```python
import torch

def _softmax(x, axis=-1):
    return torch.softmax(x, dim=axis)
def _gelu(x):
    return torch.nn.functional.gelu(x, approximate="tanh")
def _silu(x):
    return torch.nn.functional.silu(x)
def _sigmoid(x):
    return torch.sigmoid(x)
def _layernorm(x, axis=-1, eps=1e-5):
    m = x.mean(dim=axis, keepdim=True)
    v = x.var(dim=axis, keepdim=True, unbiased=False)
    return (x - m) / torch.sqrt(v + eps)
def _scatter_add(tgt, idx, src, axis=0):
    return tgt.clone().index_add_(axis, idx, src)
def _segment_sum(src, seg, n):
    out = torch.zeros((n,) + src.shape[1:], dtype=src.dtype)
    return out.index_add_(0, seg, src)
def _pad(x, pw):
    flat = tuple(v for pair in reversed(pw) for v in pair)
    return torch.nn.functional.pad(x, flat)

kernel_name = 'standalone__gqa_block_cached__near_ridge'

def setup_inputs():

    _w = (lambda a: (lambda t: t.to(torch.bfloat16) if t.is_floating_point() else t)(torch.as_tensor(a)))
    B, Sq, D = 8, 160, 448
    Hq, Hkv, Sk, Dh = 16, 8, 2048, 256
    assert Hq % Hkv == 0, (Hq, Hkv)
    return {
        "x": _w((lambda *s: torch.randn(*s, dtype=torch.bfloat16) * 0.8)(B, Sq, D)),
        "k_cache": _w((lambda *s: torch.randn(*s, dtype=torch.bfloat16) * 0.8)(B, Hkv, Sk, Dh)),
        "v_cache": _w((lambda *s: torch.randn(*s, dtype=torch.bfloat16) * 0.05)(B, Hkv, Sk, Dh)),
        "wq": _w((lambda *s: torch.randn(*s, dtype=torch.bfloat16) * 0.8)(D, Hq * Dh) * (D ** -0.5)),
        "wo": _w((lambda *s: torch.randn(*s, dtype=torch.bfloat16) * 0.05)(Hq * Dh, D) * ((Hq * Dh) ** -0.5)),
    }

def reference(x, k_cache, v_cache, wq, wo):
    B, Sq, D = x.shape
    Hq, Dh = 16, 256
    Hkv = k_cache.shape[1]
    rep = Hq // Hkv
    q = (lambda x, *d: x.permute(*d))((x @ wq).reshape(B, Sq, Hq, Dh), 0, 2, 1, 3)
    k = (lambda x, n, axis: torch.repeat_interleave(x, n, dim=axis))(k_cache, rep, axis=1)
    v = (lambda x, n, axis: torch.repeat_interleave(x, n, dim=axis))(v_cache, rep, axis=1)
    scores = torch.einsum("bhqd,bhkd->bhqk", q, k) * (Dh ** -0.5)
    p = _softmax(scores, axis=-1)
    o = torch.einsum("bhqk,bhkd->bhqd", p, v)
    return (lambda x, *d: x.permute(*d))(o, 0, 2, 1, 3).reshape(B, Sq, Hq * Dh) @ wo
```

```python
import re

TRANS = ("v_exp_f32", "v_log_f32", "v_rcp_f32", "v_rsq_f32", "v_sqrt_f32", "v_sin_f32", "v_cos_f32",
         "v_rcp_iflag_f32")


def _regs(tok):
    tok = tok.strip()
    if tok.startswith("-"):
        tok = tok[1:]
    if tok.startswith("abs(") or tok.startswith("neg("):
        tok = tok[4:-1]
    if tok.startswith("|"):
        tok = tok.strip("|")
    m = re.fullmatch(r"([vsa])(\d+)", tok)
    if m:
        return {(m.group(1), int(m.group(2)))}
    m = re.fullmatch(r"([vsa])\[(\d+):(\d+)\]", tok)
    if m:
        return {(m.group(1), i) for i in range(int(m.group(2)), int(m.group(3)) + 1)}
    if tok in ("vcc", "vcc_lo", "vcc_hi"):
        return {("vcc", 0)}
    if tok == "m0":
        return {("m0", 0)}
    if tok in ("exec", "exec_lo", "exec_hi"):
        return {("exec", 0)}
    return set()


class Ins:
    __slots__ = ("text", "nops", "op", "wr", "rd", "kind", "passes", "srcc", "srcab", "states", "wide_store",
                 "is_label", "sdata")

    def __init__(self, text):
        self.text = text
        self.nops = 0
        t = text.split(";")[0].strip()
        self.is_label = t.endswith(":") or t.startswith(".") or t == ""
        self.wr = set(); self.rd = set(); self.kind = "other"; self.passes = 0
        self.srcc = set(); self.srcab = set(); self.states = 1; self.wide_store = False; self.sdata = set()
        self.op = ""
        if self.is_label:
            self.states = 0
            return
        parts = t.split(None, 1)
        op = parts[0]; self.op = op
        ops = []
        if len(parts) > 1:
            raw = [x.strip() for x in parts[1].split(",")]
            for r in raw:
                ops.append(r.split()[0] if r else r)
            mods = parts[1]
        else:
            mods = ""
        R = [_regs(x) for x in ops]
        if op == "s_nop":
            self.states = int(ops[0], 0) + 1
            self.kind = "nop"
        elif op.startswith("v_mfma"):
            self.kind = "mfma"
            self.passes = 8 if "32x32" in op else 4
            self.wr = R[0]; self.srcab = R[1] | R[2]; self.srcc = R[3]; self.rd = self.srcab | self.srcc
        elif op.startswith("ds_read") or op.startswith("ds_bpermute") or op.startswith("ds_swizzle"):
            self.kind = "ds"; self.wr = R[0]; self.rd = set().union(*R[1:])
        elif op.startswith("ds_"):
            self.kind = "ds"; self.rd = set().union(*R)
        elif op.startswith("buffer_load") or op.startswith("global_load"):
            self.kind = "vmem"
            if re.search(r"\blds\b", mods) or "_lds_" in op:
                self.rd = set().union(*R) | {("m0", 0)}
                self.kind = "vmem_lds"
            else:
                self.wr = R[0]; self.rd = set().union(*R[1:])
        elif op.startswith("buffer_store") or op.startswith("global_store") or op.startswith("buffer_atomic") or op.startswith("global_atomic"):
            self.kind = "vmem"; self.rd = set().union(*R)
            if "x4" in op or "x3" in op:
                self.wide_store = True
                self.sdata = R[0] if op.startswith("buffer") else R[1]
        elif op.startswith("buffer_wbl2") or op.startswith("buffer_inv"):
            self.kind = "vmem"
        elif op.startswith("v_cmp"):
            self.kind = "valu"; self.wr = R[0]; self.rd = set().union(*R[1:])
        elif op.startswith("v_readfirstlane") or op.startswith("v_readlane"):
            self.kind = "valu_rl"; self.wr = R[0]; self.rd = set().union(*R[1:])
        elif op.startswith("v_permlane"):
            self.kind = "valu_perm"; self.wr = R[0] | R[1]; self.rd = R[0] | R[1]
        elif op.startswith("v_"):
            self.kind = "valu"
            self.wr = R[0]; self.rd = set().union(*R[1:]) if len(R) > 1 else set()
            if op.startswith("v_fmac") or op.startswith("v_dot2c") or op.startswith("v_mac"):
                self.rd |= R[0]
            if op.startswith("v_cndmask") and len(ops) == 3:
                self.rd |= {("vcc", 0)}
            if "_co_" in op:
                self.wr = R[0] | R[1]; self.rd = set().union(*R[2:])
            if op.split("_e")[0] in TRANS or op in TRANS:
                self.kind = "trans"
            if "dpp" in op or "row_" in mods or "quad_perm" in mods:
                self.kind = "valu_dpp"
        elif op.startswith("s_"):
            self.kind = "salu"
            if op.startswith(("s_cmp", "s_cbranch", "s_branch", "s_barrier", "s_waitcnt", "s_endpgm", "s_setprio",
                              "s_sleep", "s_bitcmp")):
                self.rd = set().union(*R) if R else set()
            else:
                self.wr = R[0] if R else set(); self.rd = set().union(*R[1:]) if len(R) > 1 else set()
                if "saveexec" in op:
                    self.wr |= {("exec", 0)}

    def is_valu(self):
        return self.kind in ("valu", "trans", "valu_rl", "valu_perm", "valu_dpp")


def need(p, c):
    n = 0
    pv = {r for r in p.wr if r[0] in "va" and r[0] != "vcc"}
    ps = {r for r in p.wr if r[0] in ("s", "vcc")}
    if p.is_valu():
        if c.kind == "mfma" and (pv & c.rd):
            n = max(n, 2)
        if c.kind == "valu_rl" and (pv & c.rd):
            n = max(n, 1)
        if c.kind in ("valu_perm", "valu_dpp") and (pv & c.rd):
            n = max(n, 2)
        if p.kind == "trans" and c.is_valu() and (pv & (c.rd | c.wr)):
            n = max(n, 1)
        if p.kind == "trans" and c.kind in ("ds", "vmem", "vmem_lds") and (pv & c.rd):
            n = max(n, 1)
        if ps:
            if c.is_valu() and (ps & c.rd):
                n = max(n, 4 if c.kind == "valu_rl" else 2)
            if c.kind in ("vmem", "vmem_lds") and (ps & c.rd):
                n = max(n, 5)
            if c.kind == "salu" and (ps & c.rd):
                n = max(n, 2)
    if p.kind == "mfma":
        big = p.passes == 8
        if c.kind == "mfma":
            if p.wr & c.srcab:
                n = max(n, 12 if big else 8)
            if p.wr & c.srcc:
                if not (p.wr == c.srcc and p.passes == c.passes):
                    n = max(n, 10 if big else 6)
            elif (p.wr & c.wr):
                n = max(n, 10 if big else 6)
        elif c.is_valu():
            if p.wr & (c.rd | c.wr):
                n = max(n, 12 if big else 8)
            if p.srcc & c.wr:
                n = max(n, 7 if big else 3)
        elif c.kind in ("ds", "vmem", "vmem_lds"):
            if p.wr & (c.rd | c.wr):
                n = max(n, 12 if big else 8)
            if p.srcc & c.wr:
                n = max(n, 7 if big else 3)
    if p.kind == "salu" and ("m0", 0) in p.wr and c.kind == "vmem_lds":
        n = max(n, 1)
    if p.wide_store and (p.sdata & c.wr):
        n = max(n, 2)
    return n


class Asm:
    def __init__(self):
        self.segs = {}
        self.order = []
        self.cur = None
        self.traces = []

    def seg(self, name):
        assert name not in self.segs, name
        self.segs[name] = []
        self.order.append(name)
        self.cur = self.segs[name]

    def __call__(self, text):
        for ln in text.split("\n"):
            if ln.strip() == "":
                continue
            self.cur.append(Ins(ln.strip()))

    def trace(self, names):
        self.traces.append(list(names))

    def fix_hazards(self):
        W = 24
        changed = True
        rounds = 0
        while changed:
            changed = False
            rounds += 1
            assert rounds < 20
            for tr in self.traces:
                hist = []
                pos = 0
                for sn in tr:
                    for ins in self.segs[sn]:
                        if ins.is_label:
                            continue
                        start = pos + ins.nops
                        req = 0
                        for (p, pend) in hist:
                            d = start - pend
                            nn = need(p, ins)
                            if nn > d:
                                req = max(req, nn - d)
                        if req:
                            ins.nops += req
                            start += req
                            changed = True
                        pos = start + ins.states
                        hist.append((ins, pos))
                        hist = [(p, e) for (p, e) in hist if pos - e < W]

    def text(self):
        out = []
        for sn in self.order:
            for ins in self.segs[sn]:
                n = ins.nops
                while n > 0:
                    k = min(n, 16)
                    out.append(f"  s_nop {k-1}")
                    n -= k
                out.append(ins.text if ins.is_label else "  " + ins.text)
        return "\n".join(out) + "\n"

    def count_nops(self):
        return {sn: sum(i.nops for i in self.segs[sn]) for sn in self.order if sum(i.nops for i in self.segs[sn])}


class VM:
    def __init__(self):
        self.q = []

    def issue(self, tag):
        self.q.append(tag)

    def wait(self, tag):
        idx = max(i for i, t in enumerate(self.q) if t == tag)
        n = len(self.q) - 1 - idx
        self.q = self.q[idx + 1:]
        assert n <= 63
        return n

    def has(self, tag):
        return tag in self.q
```

```python
import sys, struct, math
from asmlib import Asm, VM

OPT = dict(nt="", prio=1, stamps=0)
for a in sys.argv[1:]:
    k, v = a.split("=")
    OPT[k] = int(v) if v.lstrip("-").isdigit() else v
NT = (" " + OPT["nt"]) if OPT["nt"] else ""

def f32(x):
    return "0x%08x" % struct.unpack("<I", struct.pack("<f", x))[0]

P_BUF = 0
MX_OFF = 20480
VRING = 32768
KRING = 98304
STG = [0, 53248, 106496]
XOFF = 32768
WO_BUF = 98304
ST_L = 155648
LDS_BYTES = 163840
PART_BYTES = 143360
STAT_OFF = 256 * PART_BYTES
STAMP_OFF = 48 << 20

sX, sWQ, sKVr, sWO, sWS = "s[4:7]", "s[8:11]", "s[12:15]", "s[16:19]", "s[20:23]"
sW, sB, sHQ, sHALF, sHKV = "s24", "s25", "s26", "s27", "s28"
sKV, sCNT, sRETRY = "s29", "s30", "s31"
sT0, sT1, sT2, sT3 = "s32", "s33", "s34", "s35"
sW1K, sXO, sWQO, sDST, sKV0, sC, sWOO, sPART = "s36", "s37", "s38", "s39", "s40", "s41", "s42", "s43"
sQH, sKH, sDQ, sHP = "s44", "s45", "s46", "s47"
sLIM = "s48"

A = Asm()

def vr(b, n):
    return f"v[{b}:{b+n-1}]" if n > 1 else f"v{b}"

A.seg("head")
A("; @launch kernel=attn_kernel grid=(256,1,1) block=(512,1,1) lds=%d" % LDS_BYTES)
A("; @launch kernel=reduce_kernel grid=(280,1,1) block=(256,1,1) lds=0")
A('.amdgcn_target "amdgcn-amd-amdhsa--gfx950"')
A(".text")
A(".globl attn_kernel")
A(".p2align 8")
A(".type attn_kernel,@function")
A("attn_kernel:")
A.seg("entry")
A(f"""
s_cmp_ge_u32 s2, 256
s_cbranch_scc1 L_end
s_load_dwordx16 s[64:79], s[0:1], 0
""")
if OPT["stamps"]:
    A("s_memrealtime s[80:81]")
A(f"""
s_and_b32 {sHKV}, s2, 7
s_lshr_b32 {sT0}, s2, 3
s_lshr_b32 {sB}, {sT0}, 2
s_and_b32 {sT1}, {sT0}, 1
s_lshr_b32 {sHALF}, {sT0}, 1
s_and_b32 {sHALF}, {sHALF}, 1
s_lshl_b32 {sHQ}, {sHKV}, 1
s_add_u32 {sHQ}, {sHQ}, {sT1}
v_lshrrev_b32 v1, 6, v0
v_and_b32 v0, 63, v0
v_readfirstlane_b32 {sW}, v1
s_mov_b32 {sRETRY}, 0
s_mov_b32 {sC}, {f32(math.log2(math.e) / 16.0)}
s_mov_b32 {sLIM}, {f32(2.0 ** 30)}
s_mul_i32 {sXO}, {sB}, 143360
s_lshl_b32 {sWQO}, {sHQ}, 9
s_mul_i32 {sWOO}, {sHQ}, 229376
s_lshl_b32 {sT0}, {sB}, 3
s_add_u32 {sT0}, {sT0}, {sHKV}
s_lshl_b32 {sT0}, {sT0}, 1
s_add_u32 {sT0}, {sT0}, {sHALF}
s_lshl_b32 {sKV0}, {sT0}, 19
s_lshl_b32 {sT0}, {sB}, 4
s_add_u32 {sT0}, {sT0}, {sHQ}
s_lshl_b32 {sT0}, {sT0}, 1
s_add_u32 {sT0}, {sT0}, {sHALF}
s_mul_i32 {sPART}, {sT0}, {PART_BYTES}
s_lshl_b32 {sW1K}, {sW}, 10
s_and_b32 {sDQ}, {sW}, 3
s_lshr_b32 {sHP}, {sW}, 2
s_and_b32 {sQH}, {sW}, 1
s_lshr_b32 {sKH}, {sDQ}, 1
""")
A(f"""
v_and_b32 v1, 15, v0
v_lshrrev_b32 v2, 4, v0
s_and_b32 {sT0}, {sW}, 1
s_lshl_b32 {sT0}, {sT0}, 2
v_add_u32 v5, {sT0}, v2
v_and_b32 v6, 7, v0
v_xor_b32 v5, v5, v6
v_lshlrev_b32 v5, 4, v5
v_lshrrev_b32 v6, 3, v0
v_mul_u32_u24 v6, 896, v6
s_mul_i32 {sT0}, {sW}, 7168
v_add3_u32 v3, v5, v6, {sT0}
v_lshrrev_b32 v5, 5, v0
s_lshl_b32 {sT0}, {sW}, 1
v_add_u32 v5, {sT0}, v5
v_and_b32 v6, 3, v5
s_lshl_b32 {sT0}, {sHP}, 2
v_or_b32 v6, {sT0}, v6
v_bfe_u32 v7, v0, 1, 4
v_xor_b32 v6, v6, v7
v_lshlrev_b32 v6, 5, v6
v_and_b32 v7, 1, v0
v_lshlrev_b32 v7, 4, v7
v_lshlrev_b32 v5, 13, v5
v_add3_u32 v4, v5, v6, v7
s_waitcnt lgkmcnt(0)
s_mov_b32 s4, s64
s_mov_b32 s5, s65
s_mov_b32 s6, 1146880
s_mov_b32 s7, 0x20000
s_mov_b32 s8, s70
s_mov_b32 s9, s71
s_mov_b32 s10, 3670016
s_mov_b32 s11, 0x20000
s_mov_b32 s16, s72
s_mov_b32 s17, s73
s_mov_b32 s18, 3670016
s_mov_b32 s19, 0x20000
s_mov_b32 s20, s78
s_mov_b32 s21, s79
s_mov_b32 s22, 0x10000000
s_mov_b32 s23, 0x20000
s_mov_b32 s14, 0x4000000
s_mov_b32 s15, 0x20000
s_cmp_lt_u32 {sW}, 4
s_cselect_b32 s12, s66, s68
s_cselect_b32 s13, s67, s69
s_cbranch_scc0 L_PV
""")

vXD, vWD = 3, 4
vW = [5, 6, 7, 8]
vXR = [9, 10]
vQW = [12, 13, 14, 15]
vA0 = 11
QACC = 176
QA = [96, 112]
QB = [128, 148]

S_Q, S_S, S_NM, S_KF, S_L = 96, 76, 56, 24, 16
vKA = [1, 2]; vPW = 3; vKD = 4; vMX = 5
O_ACC, P_A, P_B = 96, 76, 56
VT = [40, 24]
vVB = [1, 2]; vPR = 3; vVD = [4, 5, 6, 7]
E_ACC = 116
E_A = [60, 88]
E_B = [20, 40]
vOA = [1, 2, 3, 4, 5, 6, 7]; vOB = [8, 9]; vST = 10; vEW = [12, 13, 14, 15]


def gen_role(role):
    S = role == "S"
    R = role
    vm = VM()
    tr = ["entry"]

    def seg(n):
        A.seg(f"{R}_{n}")
        tr.append(f"{R}_{n}")

    nx = 3 if S else 2
    nwo = 4 if S else 3

    def stage_dma(s):
        sb = STG[s % 3]
        for t in range(4):
            A(f"s_add_u32 m0, {sW1K}, {sb + t*8192}")
            A(f"s_add_u32 {sT0}, {sWQO}, {(s*64 + 16*t) * 8192}")
            A(f"buffer_load_dwordx4 v{vWD}, {sWQ}, {sT0} offen lds")
            vm.issue(f"st{s}")
        for t in range(nx):
            A(f"s_add_u32 m0, {sW1K}, {sb + XOFF + t*8192}")
            A(f"s_add_u32 {sT0}, {sXO}, {t*57344 + s*128}")
            A(f"buffer_load_dwordx4 v{vXD}, {sX}, {sT0} offen lds")
            vm.issue(f"st{s}")

    def k_dma(i):
        slot = i & 3
        for sg in range(4):
            A(f"s_add_u32 m0, {sDST}, {slot*16384 + sg*2048 - sg*128}")
            A(f"buffer_load_dwordx4 v{vKD_cur[0]}, {sKVr}, {sKV} offen offset:{sg*128}{NT} lds")
            vm.issue(f"K{i}")
        A(f"s_add_u32 {sKV}, {sKV}, 16384")

    def v_dma(t):
        pos = (t + 3) & 3
        for jj in range(4):
            A(f"s_add_u32 m0, {sDST}, {pos*16384 + jj*1024}")
            A(f"buffer_load_dwordx4 v{vVD_cur[jj]}, {sKVr}, {sKV} offen{NT} lds")
            vm.issue(f"V{t}")
        A(f"s_add_u32 {sKV}, {sKV}, 16384")

    vKD_cur = [16]
    vVD_cur = [16, 17, 18, 19]

    seg("pro")
    if not S:
        A("L_PV:")
    for s in range(3):
        stage_dma(s)
    A(f"""
    v_lshrrev_b32 v20, 3, v1
    v_lshlrev_b32 v20, 10, v20
    v_and_b32 v21, 7, v1
    v_lshlrev_b32 v21, 7, v21
    v_lshrrev_b32 v22, 1, v1
    v_xor_b32 v23, v2, v22
    v_lshlrev_b32 v23, 4, v23
    v_add3_u32 v{vA0}, v20, v21, v23
    s_mul_i32 {sT0}, {sHP}, 10240
    s_add_u32 {sT0}, {sT0}, {XOFF}
    v_add_u32 v{vXR[0]}, {sT0}, v{vA0}
    v_xor_b32 v{vXR[1]}, 64, v{vXR[0]}
    v_lshrrev_b32 v24, 2, v1
    v_and_b32 v25, 1, v2
    v_lshlrev_b32 v25, 2, v25
    v_or_b32 v25, v25, v24
    v_lshl_add_u32 v26, v2, 3, v24
    v_lshlrev_b32 v26, 9, v26
    v_and_b32 v27, 3, v0
    v_lshl_add_u32 v26, v27, 3, v26
    s_lshl_b32 {sT0}, {sDQ}, 2
    v_xor_b32 v25, {sT0}, v25
    """)
    for m in range(4):
        A(f"v_xor_b32 v28, {m}, v25")
        A(f"v_lshl_add_u32 v{vW[m]}, v28, 5, v26")
    A(f"""
    v_lshrrev_b32 v24, 1, v2
    v_xor_b32 v24, v24, v22
    v_and_b32 v25, 1, v2
    v_lshlrev_b32 v25, 3, v25
    v_add3_u32 v25, v20, v21, v25
    s_mul_i32 {sT0}, {sHP}, 40960
    s_lshl_b32 {sT1}, {sDQ}, 11
    s_add_u32 {sT0}, {sT0}, {sT1}
    v_add_u32 v25, {sT0}, v25
    """)
    for m in range(4):
        A(f"v_xor_b32 v28, {2*m}, v24")
        A(f"v_lshl_add_u32 v{vQW[m]}, v28, 4, v25")
    A(f"s_mov_b32 {sKV}, {sKV0}")
    if S:
        A(f"""
        s_lshl_b32 {sT0}, {sQH}, 2
        v_add_u32 v24, {sT0}, v2
        v_and_b32 v25, 7, v0
        v_xor_b32 v24, v24, v25
        v_lshlrev_b32 v24, 4, v24
        v_lshrrev_b32 v25, 3, v0
        s_lshl_b32 {sT0}, {sKH}, 4
        s_lshl_b32 {sT1}, {sQH}, 3
        s_add_u32 {sT0}, {sT0}, {sT1}
        v_add_u32 v25, {sT0}, v25
        v_lshl_add_u32 v16, v25, 9, v24
        s_lshl_b32 {sT0}, {sKH}, 13
        s_lshl_b32 {sT1}, {sQH}, 10
        s_add_u32 {sDST}, {sT0}, {sT1}
        s_add_u32 {sDST}, {sDST}, {KRING}
        """)
    else:
        A(f"""
        v_and_b32 v24, 1, v2
        v_lshlrev_b32 v24, 2, v24
        v_and_b32 v25, 7, v0
        v_xor_b32 v24, v24, v25
        v_lshlrev_b32 v24, 4, v24
        v_lshrrev_b32 v25, 3, v0
        v_lshl_add_u32 v24, v25, 9, v24
        s_lshl_b32 {sT0}, {sDQ}, 7
        v_add_u32 v16, {sT0}, v24
        v_add_u32 v17, 4096, v16
        v_add_u32 v18, 8192, v16
        v_add_u32 v19, 12288, v16
        s_lshl_b32 {sDST}, {sDQ}, 12
        s_add_u32 {sDST}, {sDST}, {VRING}
        """)

    def q_reads(s2):
        for m in range(4):
            for e in range(2):
                A(f"ds_read_b64_tr_b16 {vr(QA[s2] + m*4 + e*2, 2)}, v{vW[m]} offset:{(32*s2 + 4*e) * 512}")
        for qt in range(5):
            A(f"ds_read_b128 {vr(QB[s2] + qt*4, 4)}, v{vXR[s2]} offset:{qt*2048}")

    def q_mfma(s2, first):
        for m in range(4):
            for qt in range(5):
                acc = vr(QACC + (m*5 + qt) * 4, 4)
                A(f"v_mfma_f32_16x16x32_bf16 {acc}, {vr(QA[s2] + m*4, 4)}, {vr(QB[s2] + qt*4, 4)}, {'0' if first else acc}")

    for s in range(7):
        A(f"s_waitcnt vmcnt({vm.wait(f'st{s}')})")
        A("s_barrier")
        q_reads(0)
        if 1 <= s <= 4:
            stage_dma(s + 2)
        if s == 5 and not S:
            v_dma(0)
        if s == 6 and S:
            for i in range(3):
                k_dma(i)
        if s >= 1:
            q_mfma(1, False)
        q_reads(1)
        A("s_waitcnt lgkmcnt(13)")
        q_mfma(0, s == 0)
        if s < 6:
            d = STG[(s + 1) % 3] - STG[s % 3]
            A(f"s_mov_b32 {sT0}, {d & 0xffffffff}")
            for r in vW + vXR:
                A(f"v_add_u32 v{r}, {sT0}, v{r}")
        A("s_waitcnt lgkmcnt(0)")
    A("s_barrier")
    q_mfma(1, False)
    for m in range(4):
        for qt in range(5):
            a = QACC + (m*5 + qt) * 4
            for r in range(4):
                A(f"v_mul_f32 v{a+r}, {sC}, v{a+r}")
            A(f"v_cvt_pk_bf16_f32 v{a}, v{a}, v{a+1}")
            A(f"v_cvt_pk_bf16_f32 v{a+1}, v{a+2}, v{a+3}")
            A(f"ds_write_b64 v{vQW[m]}, {vr(a, 2)} offset:{qt*8192}")
    if S:
        A(f"""
        s_mul_i32 {sT0}, {sQH}, 40960
        v_add_u32 v6, {sT0}, v{vA0}
        v_xor_b32 v7, 64, v6
        v_lshrrev_b32 v22, 1, v2
        s_lshl_b32 {sT0}, {sKH}, 1
        v_add_u32 v22, {sT0}, v22
        v_mul_u32_u24 v22, 2560, v22
        v_and_b32 v23, 1, v2
        v_lshl_add_u32 v22, v23, 3, v22
        s_mul_i32 {sT0}, {sQH}, 80
        v_add_u32 v23, {sT0}, v1
        v_lshl_add_u32 v{vPW}, v23, 4, v22
        s_lshl_b32 {sT0}, {sKH}, 2
        v_lshlrev_b32 v23, 3, v23
        v_add_u32 v{vMX}, {sT0}, v23
        v_mov_b32 v{vKD}, v16
        s_lshl_b32 {sT0}, {sKH}, 13
        s_add_u32 {sT0}, {sT0}, {KRING}
        v_add_u32 v{vKA[0]}, {sT0}, v{vA0}
        v_xor_b32 v{vKA[1]}, 64, v{vKA[0]}
        """)
        vKD_cur[0] = vKD
        for qt in range(5):
            A(f"v_mov_b32 v{S_L+qt}, 0xff800000")
    else:
        A(f"""
        v_lshrrev_b32 v20, 2, v1
        v_lshrrev_b32 v21, 5, v0
        v_lshl_add_u32 v22, v21, 3, v20
        v_lshlrev_b32 v22, 7, v22
        v_lshrrev_b32 v23, 1, v20
        v_lshl_add_u32 v22, v23, 6, v22
        v_and_b32 v23, 1, v2
        v_lshl_add_u32 v22, v23, 5, v22
        v_and_b32 v23, 3, v0
        v_lshl_add_u32 v22, v23, 3, v22
        v_mul_u32_u24 v21, 2560, v21
        v_and_b32 v23, 31, v0
        v_lshl_add_u32 v{vPR}, v23, 4, v21
        v_add_u32 v{vVB[0]}, {sDST}, v22
        v_xor_b32 v{vVB[1]}, 64, v{vVB[0]}
        v_mov_b32 v{vVD[0]}, v16
        v_mov_b32 v{vVD[1]}, v17
        v_mov_b32 v{vVD[2]}, v18
        v_mov_b32 v{vVD[3]}, v19
        """)
        vVD_cur[:] = vVD
    A("s_waitcnt lgkmcnt(0)")
    A("s_barrier")
    if S:
        for qt in range(5):
            for s in range(8):
                A(f"ds_read_b128 {vr(S_Q + (qt*8 + s)*4, 4)}, v{6 + (s & 1)} offset:{qt*8192 + (s >> 1)*2048}")
        if OPT["prio"]:
            A(f"s_setprio {OPT['prio']}")
    vm_join = list(vm.q)
    seg("join")
    A(f"L_{R}_join:")
    if S:
        A(f"s_waitcnt vmcnt({vm.wait('K0')}) lgkmcnt(0)")
    A("s_barrier")

    def s_interval(i):
        slot = i & 3; buf = i & 1
        for s in range(8):
            A(f"ds_read_b128 {vr(S_KF + s*4, 4)}, v{vKA[s & 1]} offset:{slot*16384 + (s >> 1)*2048}")
        if i + 3 <= 31:
            k_dma(i + 3)
        for s in range(8):
            A(f"s_waitcnt lgkmcnt({7 - s})")
            for qt in range(5):
                acc = vr(S_S + qt*4, 4)
                c = acc if s else ("0" if i == 0 else vr(S_NM + qt*4, 4))
                A(f"v_mfma_f32_16x16x32_bf16 {acc}, {vr(S_KF + s*4, 4)}, {vr(S_Q + (qt*8 + s)*4, 4)}, {c}")
        if i == 0:
            for qt in range(5):
                a = S_S + qt*4; t = S_KF + qt*2
                A(f"v_max3_f32 v{t}, v{a}, v{a+1}, v{S_L+qt}")
                A(f"v_max3_f32 v{t}, v{a+2}, v{a+3}, v{t}")
                A(f"v_mov_b32 v{t+1}, v{t}")
            for qt in range(5):
                t = S_KF + qt*2
                A(f"v_permlane32_swap_b32 v{t}, v{t+1}")
            for qt in range(5):
                t = S_KF + qt*2
                A(f"v_max_f32 v{t}, v{t}, v{t+1}")
                A(f"v_mov_b32 v{t+1}, v{t}")
            for qt in range(5):
                t = S_KF + qt*2
                A(f"v_permlane16_swap_b32 v{t}, v{t+1}")
            for qt in range(5):
                t = S_KF + qt*2
                A(f"v_max_f32 v{t}, v{t}, v{t+1}")
                A(f"ds_write_b32 v{vMX}, v{t} offset:{MX_OFF + qt*128}")
            A("s_waitcnt lgkmcnt(0)")
            A("s_barrier")
            A(f"v_and_b32 v6, 0xfffffffb, v{vMX}")
            for qt in range(5):
                A(f"ds_read_b64 {vr(S_KF + qt*2, 2)}, v6 offset:{MX_OFF + qt*128}")
            for qt in range(5):
                t = S_KF + qt*2
                A(f"s_waitcnt lgkmcnt({4 - qt})")
                A(f"v_max_f32 v{t}, v{t}, v{t+1}")
                for r in range(4):
                    A(f"v_sub_f32 v{S_NM + qt*4 + r}, 0, v{t}")
                for r in range(4):
                    A(f"v_sub_f32 v{S_S + qt*4 + r}, v{S_S + qt*4 + r}, v{t}")
        for qt in range(5):
            a = S_S + qt*4
            for r in range(4):
                A(f"v_exp_f32 v{a+r}, v{a+r}")
            A(f"v_add_f32 v6, v{a}, v{a+1}")
            A(f"v_add_f32 v7, v{a+2}, v{a+3}")
            A(f"v_cvt_pk_bf16_f32 v{a}, v{a}, v{a+1}")
            A(f"v_cvt_pk_bf16_f32 v{a+1}, v{a+2}, v{a+3}")
            A(f"v_add_f32 v6, v6, v7")
            A(f"ds_write_b64 v{vPW}, {vr(a, 2)} offset:{P_BUF + buf*10240 + qt*256}")
            if i == 0:
                A(f"v_mov_b32 v{S_L+qt}, v6")
            else:
                A(f"v_add_f32 v{S_L+qt}, v{S_L+qt}, v6")
        if i + 1 <= 31:
            A(f"s_waitcnt vmcnt({vm.wait(f'K{i+1}')}) lgkmcnt(0)")
        else:
            A("s_waitcnt lgkmcnt(0)")
        A("s_barrier")

    def vt_reads(t):
        pos = (t + 3) & 3
        out = []
        for s16 in range(2):
            for tt in range(2):
                for e in range(2):
                    out.append(f"ds_read_b64_tr_b16 {vr(VT[t & 1] + (s16*2 + tt)*4 + e*2, 2)}, v{vVB[tt]} offset:{pos*16384 + (16*s16 + 4*e)*128}")
        return out

    def pv_mfma(t, s16, P, first, inter=()):
        inter = list(inter)
        for qt in range(5):
            for tt in range(2):
                acc = vr(O_ACC + (tt*5 + qt)*16, 16)
                A(f"v_mfma_f32_32x32x16_bf16 {acc}, {vr(VT[t & 1] + (s16*2 + tt)*4, 4)}, {vr(P + qt*4, 4)}, {'0' if first else acc}")
                if inter:
                    A(inter.pop(0))
        for x in inter:
            A(x)

    def wo_addr():
        for t in range(nwo):
            A(f"""
            s_lshl_b32 {sT0}, {sW}, 6
            s_add_u32 {sT0}, {sT0}, {t*512}
            v_add_u32 v21, {sT0}, v0
            v_mul_u32_u24 v22, 18725, v21
            v_lshrrev_b32 v22, 20, v22
            v_mul_u32_u24 v23, 56, v22
            v_sub_u32 v21, v21, v23
            v_bfe_u32 v23, v22, 1, 1
            v_bfe_u32 v{vEW[t]}, v22, 3, 1
            v_lshl_add_u32 v23, v{vEW[t]}, 1, v23
            v_lshlrev_b32 v23, 1, v23
            v_xor_b32 v21, v21, v23
            v_mul_u32_u24 v22, 896, v22
            v_lshl_add_u32 v{vEW[t]}, v21, 4, v22
            """)

    def wo_dma(s):
        A(f"s_add_u32 {sT0}, {sWOO}, {s*28672}")
        for t in range(nwo):
            A(f"s_add_u32 m0, {sW1K}, {WO_BUF + (s & 1)*28672 + t*8192}")
            A(f"buffer_load_dwordx4 v{vEW[t]}, {sWO}, {sT0} offen lds")
            vm.issue(f"wo{s}")

    def pv_interval(i):
        if i == 0:
            for t in (1, 2, 3):
                v_dma(t)
            A(f"s_waitcnt vmcnt({vm.wait('V0')})")
            for x in vt_reads(0):
                A(x)
            A("s_barrier")
            A("s_waitcnt lgkmcnt(0)")
            A("s_barrier")
            return
        t = i - 1; buf = t & 1
        for qt in range(5):
            A(f"ds_read_b128 {vr(P_A + qt*4, 4)}, v{vPR} offset:{P_BUF + buf*10240 + qt*512}")
        pb = [f"ds_read_b128 {vr(P_B + qt*4, 4)}, v{vPR} offset:{P_BUF + buf*10240 + 5120 + qt*512}" for qt in range(5)]
        if t >= 1:
            k = 0
            for qt in range(5):
                for tt in range(2):
                    acc = vr(O_ACC + (tt*5 + qt)*16, 16)
                    A(f"v_mfma_f32_32x32x16_bf16 {acc}, {vr(VT[(t-1) & 1] + (2 + tt)*4, 4)}, {vr(P_B + qt*4, 4)}, {acc}")
                A(pb[qt])
        else:
            for x in pb:
                A(x)
        if t + 4 <= 31:
            pass
        if t + 1 <= 31:
            A(f"s_waitcnt vmcnt({vm.wait(f'V{t+1}')}) lgkmcnt(5)")
            pv_mfma(t, 0, P_A, t == 0, vt_reads(t + 1))
        else:
            A("s_waitcnt lgkmcnt(5)")
            pv_mfma(t, 0, P_A, False)
        if t + 4 <= 31:
            v_dma(t + 4)
        if i == 32:
            wo_addr()
            wo_dma(0); wo_dma(1)
        A("s_waitcnt lgkmcnt(0)")
        A("s_barrier")

    interval = s_interval if S else pv_interval
    seg("g0")
    for i in range(4):
        interval(i)
    A(f"s_mov_b32 {sCNT}, 6")
    q_before = list(vm.q)
    seg("loop")
    A(f"L_{R}_loop:")
    for i in range(4, 8):
        interval(i)
    A(f"s_sub_u32 {sCNT}, {sCNT}, 1")
    A(f"s_cmp_lg_u32 {sCNT}, 0")
    A(f"s_cbranch_scc1 L_{R}_loop")
    sh = lambda q, d: [t[0] + str(int(t[1:]) + d) for t in q]
    assert sh(q_before, 4) == vm.q, (q_before, vm.q)
    vm.q = sh(vm.q, 20)
    tr.append(f"{R}_loop")
    seg("gl")
    for i in range(28, 32):
        interval(i)
    if S:
        if OPT["prio"]:
            A("s_setprio 0")
        for qt in range(5):
            A(f"v_mov_b32 v{S_KF + qt}, v{S_L + qt}")
        for qt in range(5):
            A(f"v_permlane32_swap_b32 v{S_KF + qt}, v{S_L + qt}")
        for qt in range(5):
            A(f"v_add_f32 v{S_L + qt}, v{S_L + qt}, v{S_KF + qt}")
            A(f"v_mov_b32 v{S_KF + qt}, v{S_L + qt}")
        for qt in range(5):
            A(f"v_permlane16_swap_b32 v{S_KF + qt}, v{S_L + qt}")
        A(f"v_add_u32 v6, {ST_L}, v{vMX}")
        for qt in range(5):
            A(f"v_add_f32 v{S_L + qt}, v{S_L + qt}, v{S_KF + qt}")
            A(f"ds_write_b32 v6, v{S_L + qt} offset:{qt*128}")
        wo_addr()
        wo_dma(0); wo_dma(1)
        A("s_waitcnt lgkmcnt(0)")
        A("s_barrier")
    else:
        pv_interval(32)

    seg("post")
    A(f"""
    v_lshlrev_b32 v16, 3, v0
    v_min_u32 v17, 31, v0
    v_lshlrev_b32 v17, 3, v17
    v_add_u32 v16, {ST_L}, v16
    v_add_u32 v17, {ST_L}, v17
    ds_read_b64 v[18:19], v16
    ds_read_b64 v[20:21], v16 offset:512
    ds_read_b64 v[22:23], v17 offset:1024
    """)
    if not S:
        for qt in range(5):
            for tt in range(2):
                acc = vr(O_ACC + (tt*5 + qt)*16, 16)
                A(f"v_mfma_f32_32x32x16_bf16 {acc}, {vr(VT[1] + (2 + tt)*4, 4)}, {vr(P_B + qt*4, 4)}, {acc}")
    A(f"""
    s_waitcnt lgkmcnt(0)
    v_add_f32 v18, v18, v19
    v_add_f32 v20, v20, v21
    v_add_f32 v22, v22, v23
    v_cmp_ge_f32 s[50:51], {sLIM}, v18
    v_cmp_ge_f32 s[52:53], {sLIM}, v20
    v_cmp_ge_f32 s[54:55], {sLIM}, v22
    s_and_b64 s[50:51], s[50:51], s[52:53]
    s_and_b64 s[50:51], s[50:51], s[54:55]
    s_cmp_eq_u64 s[50:51], -1
    s_cbranch_scc1 L_{R}_ok
    s_cmp_eq_u32 {sRETRY}, 0
    s_cbranch_scc1 L_{R}_fallback
    """)
    seg("epi")
    A(f"L_{R}_ok:")
    if S:
        A(f"v_and_b32 v6, 0xfffffffb, v{vMX}")
        A(f"v_add_u32 v7, {ST_L}, v6")
        for qt in range(5):
            A(f"ds_read_b64 {vr(S_KF + qt*2, 2)}, v7 offset:{qt*128}")
        A(f"""
        s_mul_i32 {sT0}, {sB}, 20480
        s_lshl_b32 {sT1}, {sHQ}, 3
        s_add_u32 {sT0}, {sT0}, {sT1}
        s_lshl_b32 {sT1}, {sHALF}, 2
        s_add_u32 {sT0}, {sT0}, {sT1}
        s_add_u32 {sT0}, {sT0}, {STAT_OFF}
        v_lshlrev_b32 v6, 4, v6
        """)
        for qt in range(5):
            t = S_KF + qt*2
            A(f"s_waitcnt lgkmcnt({4 - qt})")
            A(f"v_add_f32 v{t}, v{t}, v{t+1}")
            A(f"v_log_f32 v{t}, v{t}")
            A(f"v_sub_f32 v{t}, v{t}, v{S_NM + qt*4}")
            A(f"buffer_store_dword v{t}, v6, {sWS}, {sT0} offen offset:{qt*2048 if qt < 2 else 0}")
            if qt >= 1 and qt < 4:
                A(f"s_add_u32 {sT0}, {sT0}, {4096 if qt == 1 else 2048}")
            vm.issue("lse")
    else:
        A(f"""
        v_and_b32 v16, 31, v0
        v_lshlrev_b32 v16, 3, v16
        v_add_u32 v16, {ST_L}, v16
        """)
        for qt in range(5):
            A(f"ds_read_b64 {vr(24 + qt*2, 2)}, v16 offset:{qt*256}")
        A(f"""
        v_and_b32 v17, 15, v0
        v_lshrrev_b32 v18, 3, v17
        v_lshlrev_b32 v18, 10, v18
        v_and_b32 v19, 7, v17
        v_lshl_add_u32 v18, v19, 7, v18
        v_lshrrev_b32 v19, 1, v17
        v_lshl_add_u32 v18, v19, 4, v18
        v_lshrrev_b32 v19, 5, v0
        v_lshl_add_u32 v18, v19, 3, v18
        v_bfe_u32 v19, v0, 4, 1
        v_lshl_add_u32 v18, v19, 13, v18
        s_lshl_b32 {sT0}, {sDQ}, 11
        v_add_u32 v18, {sT0}, v18
        """)
        for qt in range(5):
            A(f"s_waitcnt lgkmcnt({4 - qt})")
            A(f"v_add_f32 v{24 + qt*2}, v{24 + qt*2}, v{25 + qt*2}")
            A(f"v_rcp_f32 v{24 + qt*2}, v{24 + qt*2}")
        for tt in range(2):
            for rq in range(4):
                p = 4*tt + rq
                A(f"v_xor_b32 v19, {p << 4}, v18")
                A(f"v_add_u32 v20, 0x10000, v19")
                for qt in range(5):
                    a = O_ACC + (tt*5 + qt)*16 + rq*4
                    for r in range(4):
                        A(f"v_mul_f32 v{a+r}, v{24 + qt*2}, v{a+r}")
                    A(f"v_cvt_pk_bf16_f32 v{a}, v{a}, v{a+1}")
                    A(f"v_cvt_pk_bf16_f32 v{a+1}, v{a+2}, v{a+3}")
                    if qt < 4:
                        A(f"ds_write_b64 v19, {vr(a, 2)} offset:{qt*16384}")
                    else:
                        A(f"ds_write_b64 v20, {vr(a, 2)}")
    A(f"""
    v_and_b32 v16, 15, v0
    v_lshrrev_b32 v17, 4, v0
    v_lshrrev_b32 v18, 2, v16
    v_lshl_add_u32 v19, v17, 3, v18
    v_mul_u32_u24 v19, 896, v19
    v_and_b32 v20, 3, v0
    v_lshl_add_u32 v19, v20, 3, v19
    v_add_u32 v19, {WO_BUF}, v19
    v_lshrrev_b32 v18, 1, v18
    v_and_b32 v20, 1, v17
    v_lshl_add_u32 v18, v20, 1, v18
    s_mul_i32 {sT1}, {sDQ}, 7
    """)
    for n in range(7):
        A(f"s_add_u32 {sT2}, {sT1}, {n}")
        A(f"v_xor_b32 v20, {sT2}, v18")
        A(f"v_lshl_add_u32 v{vOA[n]}, v20, 5, v19")
    A(f"""
    s_mul_i32 {sT2}, {sHP}, 40960
    v_add_u32 v{vOB[0]}, {sT2}, v{vA0}
    v_xor_b32 v{vOB[1]}, 64, v{vOB[0]}
    v_lshrrev_b32 v18, 1, v17
    v_lshlrev_b32 v18, 8, v18
    v_lshl_add_u32 v18, v16, 4, v18
    v_and_b32 v20, 1, v17
    v_lshl_add_u32 v{vST}, v20, 3, v18
    s_mul_i32 {sT1}, {sDQ}, {7*5120}
    s_mul_i32 {sT2}, {sHP}, 2560
    s_add_u32 {sPART}, {sPART}, {sT1}
    s_add_u32 {sPART}, {sPART}, {sT2}
    """)

    def e_mfma(s):
        for n in range(7):
            for qt in range(5):
                acc = vr(E_ACC + (n*5 + qt)*4, 4)
                A(f"v_mfma_f32_16x16x32_bf16 {acc}, {vr(E_A[s & 1] + n*4, 4)}, {vr(E_B[s & 1] + qt*4, 4)}, {'0' if s == 0 else acc}")

    for s in range(8):
        A(f"s_waitcnt vmcnt({vm.wait(f'wo{s}')}) lgkmcnt(0)")
        A("s_barrier")
        for qt in range(5):
            A(f"ds_read_b128 {vr(E_B[s & 1] + qt*4, 4)}, v{vOB[s & 1]} offset:{qt*8192 + (s >> 1)*2048}")
        for n in range(7):
            for e in range(2):
                A(f"ds_read_b64_tr_b16 {vr(E_A[s & 1] + n*4 + e*2, 2)}, v{vOA[n]} offset:{(s & 1)*28672 + 4*e*896}")
        if 1 <= s <= 6:
            wo_dma(s + 1)
        if s >= 1:
            e_mfma(s - 1)
    A("s_waitcnt lgkmcnt(0)")
    e_mfma(7)
    for n in range(7):
        for qt in range(5):
            a = E_ACC + (n*5 + qt)*4
            A(f"v_cvt_pk_bf16_f32 v{a}, v{a}, v{a+1}")
            A(f"v_cvt_pk_bf16_f32 v{a+1}, v{a+2}, v{a+3}")
            A(f"buffer_store_dwordx2 {vr(a, 2)}, v{vST}, {sWS}, {sPART} offen offset:{qt*512}")
        A(f"s_add_u32 {sPART}, {sPART}, 5120")
    if OPT["stamps"]:
        A(f"""
        s_waitcnt vmcnt(0)
        s_barrier
        s_memrealtime s[82:83]
        s_waitcnt lgkmcnt(0)
        v_mov_b32 v20, s80
        v_mov_b32 v21, s81
        v_mov_b32 v22, s82
        v_mov_b32 v23, s83
        s_lshl_b32 {sT0}, s2, 4
        s_add_u32 {sT0}, {sT0}, {STAMP_OFF}
        v_mov_b32 v24, 0
        buffer_store_dwordx4 v[20:23], v24, {sWS}, {sT0} offen
        """)
    A("s_endpgm")
    A.trace(tr)

    tr2 = [f"{R}_gl", f"{R}_post"]
    A.seg(f"{R}_fb"); tr2.append(f"{R}_fb")
    A(f"L_{R}_fallback:")
    A(f"""
    s_mov_b32 {sRETRY}, 1
    s_waitcnt vmcnt(0) lgkmcnt(0)
    s_barrier
    s_mov_b32 {sKV}, {sKV0}
    s_mov_b32 {sCNT}, 32
    """)
    if S:
        for qt in range(5):
            A(f"v_mov_b32 v{S_L+qt}, 0xff800000")
    A.seg(f"{R}_fbl"); tr2 += [f"{R}_fbl", f"{R}_fbl"]
    A(f"L_{R}_fbl:")
    if S:
        vm.q = []
        k_dma(0)
        A("s_waitcnt vmcnt(0)")
        A("s_barrier")
        for s in range(8):
            A(f"ds_read_b128 {vr(S_KF + s*4, 4)}, v{vKA[s & 1]} offset:{(s >> 1)*2048}")
        A("s_waitcnt lgkmcnt(0)")
        for s in range(8):
            for qt in range(5):
                acc = vr(S_S + qt*4, 4)
                A(f"v_mfma_f32_16x16x32_bf16 {acc}, {vr(S_KF + s*4, 4)}, {vr(S_Q + (qt*8 + s)*4, 4)}, {acc if s else '0'}")
        for qt in range(5):
            a = S_S + qt*4
            A(f"v_max3_f32 v{S_L+qt}, v{a}, v{a+1}, v{S_L+qt}")
            A(f"v_max3_f32 v{S_L+qt}, v{a+2}, v{a+3}, v{S_L+qt}")
        A("s_barrier")
    else:
        A("s_barrier")
        A("s_barrier")
    A(f"s_sub_u32 {sCNT}, {sCNT}, 1")
    A(f"s_cmp_lg_u32 {sCNT}, 0")
    A(f"s_cbranch_scc1 L_{R}_fbl")
    A.seg(f"{R}_fbe"); tr2 += [f"{R}_fbe", f"{R}_join", f"{R}_g0"]
    A(f"s_mov_b32 {sKV}, {sKV0}")
    vm.q = []
    if S:
        for i in range(3):
            k_dma(i)
        if OPT["prio"]:
            A(f"s_setprio {OPT['prio']}")
    else:
        v_dma(0)
    assert vm.q == vm_join[-len(vm.q):] and all(t.startswith("st") for t in vm_join[:-len(vm.q)]), (vm.q, vm_join)
    A(f"s_branch L_{R}_join")
    A.trace(tr2)


gen_role("S")
gen_role("PV")
A.seg("k1end")
A("L_end:")
A("s_endpgm")

A.seg("k2head")
A(".globl reduce_kernel")
A(".p2align 8")
A(".type reduce_kernel,@function")
A("reduce_kernel:")
A.seg("k2")
A(f"""
s_cmp_ge_u32 s2, 280
s_cbranch_scc1 L_k2end
s_load_dwordx2 s[4:5], s[0:1], 40
s_load_dwordx2 s[8:9], s[0:1], 56
s_mul_i32 s12, s2, 1873
s_lshr_b32 s12, s12, 16
s_mul_i32 s13, s12, 35
s_sub_u32 s13, s2, s13
s_lshl_b32 s13, s13, 8
v_add_u32 v1, s13, v0
v_lshlrev_b32 v2, 4, v1
v_lshrrev_b32 v3, 5, v1
v_mul_u32_u24 v4, 6554, v3
v_lshrrev_b32 v4, 16, v4
v_mul_u32_u24 v5, 10, v4
v_sub_u32 v5, v3, v5
v_and_b32 v6, 15, v1
v_lshl_add_u32 v5, v5, 4, v6
v_bfe_u32 v6, v1, 4, 1
v_lshlrev_b32 v6, 4, v6
v_lshl_add_u32 v6, v4, 5, v6
v_mul_u32_u24 v7, 896, v5
v_add_u32 v6, v6, v7
v_lshlrev_b32 v7, 7, v5
s_mul_i32 s14, s12, {32*PART_BYTES}
s_mul_i32 s15, s12, 20480
s_add_u32 s15, s15, {STAT_OFF}
s_mul_i32 s16, s12, 143360
s_waitcnt lgkmcnt(0)
s_mov_b32 s6, 1146880
s_mov_b32 s7, 0x20000
s_mov_b32 s10, 0x10000000
s_mov_b32 s11, 0x20000
""")
L0, D0, AC = 16, 48, 8
for j in range(8):
    A(f"buffer_load_dwordx4 {vr(L0 + j*4, 4)}, v7, s[8:11], s15 offen offset:{j*16}")
for p in range(32):
    A(f"buffer_load_dwordx4 {vr(D0 + p*4, 4)}, v2, s[8:11], s14 offen")
    A(f"s_add_u32 s14, s14, {PART_BYTES}")
A("s_waitcnt vmcnt(32)")
for h in range(16):
    a, b = L0 + 2*h, L0 + 2*h + 1
    A(f"v_sub_f32 v1, v{b}, v{a}")
    A(f"v_sub_f32 v3, v{a}, v{b}")
    A(f"v_exp_f32 v1, v1")
    A(f"v_exp_f32 v3, v3")
    A(f"v_add_f32 v1, 1.0, v1")
    A(f"v_add_f32 v3, 1.0, v3")
    A(f"v_rcp_f32 v{a}, v1")
    A(f"v_rcp_f32 v{b}, v3")
for p in range(32):
    A(f"s_waitcnt vmcnt({31 - p})")
    for r in range(4):
        d = D0 + p*4 + r
        A(f"v_lshlrev_b32 v1, 16, v{d}")
        A(f"v_and_b32 v3, 0xffff0000, v{d}")
        if p == 0:
            A(f"v_mul_f32 v{AC + 2*r}, v{L0 + p}, v1")
            A(f"v_mul_f32 v{AC + 2*r + 1}, v{L0 + p}, v3")
        else:
            A(f"v_fmac_f32 v{AC + 2*r}, v{L0 + p}, v1")
            A(f"v_fmac_f32 v{AC + 2*r + 1}, v{L0 + p}, v3")
for r in range(4):
    A(f"v_cvt_pk_bf16_f32 v{L0 + r}, v{AC + 2*r}, v{AC + 2*r + 1}")
A(f"buffer_store_dwordx4 {vr(L0, 4)}, v6, s[4:7], s16 offen")
A("L_k2end:")
A("s_endpgm")
A.trace(["k2"])

A.seg("desc")
A('.section .rodata,"a"')
for name, nv in (("attn_kernel", 256), ("reduce_kernel", 176)):
    A(".p2align 6")
    A(f".amdhsa_kernel {name}")
    A(f".amdhsa_next_free_vgpr {nv}")
    A(".amdhsa_next_free_sgpr 96")
    A(f".amdhsa_accum_offset {nv}")
    A(".amdhsa_group_segment_fixed_size 0")
    A(".amdhsa_kernarg_size 64")
    A(".amdhsa_user_sgpr_count 2")
    A(".amdhsa_user_sgpr_kernarg_segment_ptr 1")
    A(".amdhsa_system_sgpr_workgroup_id_x 1")
    A(".end_amdhsa_kernel")

A.fix_hazards()
sys.stderr.write("nops: %s\n" % A.count_nops())
sys.stdout.write(A.text())
```

```python
import re

TRANS = ("v_exp_f32", "v_log_f32", "v_rcp_f32", "v_rsq_f32", "v_sqrt_f32", "v_sin_f32", "v_cos_f32",
         "v_rcp_iflag_f32")


def _regs(tok):
    tok = tok.strip()
    if tok.startswith("-"):
        tok = tok[1:]
    if tok.startswith("abs(") or tok.startswith("neg("):
        tok = tok[4:-1]
    if tok.startswith("|"):
        tok = tok.strip("|")
    m = re.fullmatch(r"([vsa])(\d+)", tok)
    if m:
        return {(m.group(1), int(m.group(2)))}
    m = re.fullmatch(r"([vsa])\[(\d+):(\d+)\]", tok)
    if m:
        return {(m.group(1), i) for i in range(int(m.group(2)), int(m.group(3)) + 1)}
    if tok in ("vcc", "vcc_lo", "vcc_hi"):
        return {("vcc", 0)}
    if tok == "m0":
        return {("m0", 0)}
    if tok in ("exec", "exec_lo", "exec_hi"):
        return {("exec", 0)}
    return set()


class Ins:
    __slots__ = ("text", "nops", "op", "wr", "rd", "kind", "passes", "srcc", "srcab", "states", "wide_store",
                 "is_label", "sdata")

    def __init__(self, text):
        self.text = text
        self.nops = 0
        t = text.split(";")[0].strip()
        self.is_label = t.endswith(":") or t.startswith(".") or t == ""
        self.wr = set(); self.rd = set(); self.kind = "other"; self.passes = 0
        self.srcc = set(); self.srcab = set(); self.states = 1; self.wide_store = False; self.sdata = set()
        self.op = ""
        if self.is_label:
            self.states = 0
            return
        parts = t.split(None, 1)
        op = parts[0]; self.op = op
        ops = []
        if len(parts) > 1:
            raw = [x.strip() for x in parts[1].split(",")]
            for r in raw:
                ops.append(r.split()[0] if r else r)
            mods = parts[1]
        else:
            mods = ""
        R = [_regs(x) for x in ops]
        if op == "s_nop":
            self.states = int(ops[0], 0) + 1
            self.kind = "nop"
        elif op.startswith("v_mfma"):
            self.kind = "mfma"
            self.passes = 8 if "32x32" in op else 4
            self.wr = R[0]; self.srcab = R[1] | R[2]; self.srcc = R[3]; self.rd = self.srcab | self.srcc
        elif op.startswith("ds_read") or op.startswith("ds_bpermute") or op.startswith("ds_swizzle"):
            self.kind = "ds"; self.wr = R[0]; self.rd = set().union(*R[1:])
        elif op.startswith("ds_"):
            self.kind = "ds"; self.rd = set().union(*R)
        elif op.startswith("buffer_load") or op.startswith("global_load"):
            self.kind = "vmem"
            if re.search(r"\blds\b", mods) or "_lds_" in op:
                self.rd = set().union(*R) | {("m0", 0)}
                self.kind = "vmem_lds"
            else:
                self.wr = R[0]; self.rd = set().union(*R[1:])
        elif op.startswith("buffer_store") or op.startswith("global_store") or op.startswith("buffer_atomic") or op.startswith("global_atomic"):
            self.kind = "vmem"; self.rd = set().union(*R)
            if "x4" in op or "x3" in op:
                self.wide_store = True
                self.sdata = R[0] if op.startswith("buffer") else R[1]
        elif op.startswith("buffer_wbl2") or op.startswith("buffer_inv"):
            self.kind = "vmem"
        elif op.startswith("v_cmp"):
            self.kind = "valu"; self.wr = R[0]; self.rd = set().union(*R[1:])
        elif op.startswith("v_readfirstlane") or op.startswith("v_readlane"):
            self.kind = "valu_rl"; self.wr = R[0]; self.rd = set().union(*R[1:])
        elif op.startswith("v_permlane"):
            self.kind = "valu_perm"; self.wr = R[0] | R[1]; self.rd = R[0] | R[1]
        elif op.startswith("v_"):
            self.kind = "valu"
            self.wr = R[0]; self.rd = set().union(*R[1:]) if len(R) > 1 else set()
            if op.startswith("v_fmac") or op.startswith("v_dot2c") or op.startswith("v_mac"):
                self.rd |= R[0]
            if op.startswith("v_cndmask") and len(ops) == 3:
                self.rd |= {("vcc", 0)}
            if "_co_" in op:
                self.wr = R[0] | R[1]; self.rd = set().union(*R[2:])
            if op.split("_e")[0] in TRANS or op in TRANS:
                self.kind = "trans"
            if "dpp" in op or "row_" in mods or "quad_perm" in mods:
                self.kind = "valu_dpp"
        elif op.startswith("s_"):
            self.kind = "salu"
            if op.startswith(("s_cmp", "s_cbranch", "s_branch", "s_barrier", "s_waitcnt", "s_endpgm", "s_setprio",
                              "s_sleep", "s_bitcmp")):
                self.rd = set().union(*R) if R else set()
            else:
                self.wr = R[0] if R else set(); self.rd = set().union(*R[1:]) if len(R) > 1 else set()
                if "saveexec" in op:
                    self.wr |= {("exec", 0)}

    def is_valu(self):
        return self.kind in ("valu", "trans", "valu_rl", "valu_perm", "valu_dpp")


def need(p, c):
    n = 0
    pv = {r for r in p.wr if r[0] in "va" and r[0] != "vcc"}
    ps = {r for r in p.wr if r[0] in ("s", "vcc")}
    if p.is_valu():
        if c.kind == "mfma" and (pv & c.rd):
            n = max(n, 2)
        if c.kind == "valu_rl" and (pv & c.rd):
            n = max(n, 1)
        if c.kind in ("valu_perm", "valu_dpp") and (pv & c.rd):
            n = max(n, 2)
        if p.kind == "trans" and c.is_valu() and (pv & (c.rd | c.wr)):
            n = max(n, 1)
        if p.kind == "trans" and c.kind in ("ds", "vmem", "vmem_lds") and (pv & c.rd):
            n = max(n, 1)
        if ps:
            if c.is_valu() and (ps & c.rd):
                n = max(n, 4 if c.kind == "valu_rl" else 2)
            if c.kind in ("vmem", "vmem_lds") and (ps & c.rd):
                n = max(n, 5)
            if c.kind == "salu" and (ps & c.rd):
                n = max(n, 2)
    if p.kind == "mfma":
        big = p.passes == 8
        if c.kind == "mfma":
            if p.wr & c.srcab:
                n = max(n, 12 if big else 8)
            if p.wr & c.srcc:
                if not (p.wr == c.srcc and p.passes == c.passes):
                    n = max(n, 10 if big else 6)
            elif (p.wr & c.wr):
                n = max(n, 10 if big else 6)
        elif c.is_valu():
            if p.wr & (c.rd | c.wr):
                n = max(n, 12 if big else 8)
            if p.srcc & c.wr:
                n = max(n, 7 if big else 3)
        elif c.kind in ("ds", "vmem", "vmem_lds"):
            if p.wr & (c.rd | c.wr):
                n = max(n, 12 if big else 8)
            if p.srcc & c.wr:
                n = max(n, 7 if big else 3)
    if p.kind == "salu" and ("m0", 0) in p.wr and c.kind == "vmem_lds":
        n = max(n, 1)
    if p.wide_store and (p.sdata & c.wr):
        n = max(n, 2)
    return n


class Asm:
    def __init__(self):
        self.segs = {}
        self.order = []
        self.cur = None
        self.traces = []

    def seg(self, name):
        assert name not in self.segs, name
        self.segs[name] = []
        self.order.append(name)
        self.cur = self.segs[name]

    def __call__(self, text):
        for ln in text.split("\n"):
            if ln.strip() == "":
                continue
            self.cur.append(Ins(ln.strip()))

    def trace(self, names):
        self.traces.append(list(names))

    def fix_hazards(self):
        W = 24
        changed = True
        rounds = 0
        while changed:
            changed = False
            rounds += 1
            assert rounds < 20
            for tr in self.traces:
                hist = []
                pos = 0
                for sn in tr:
                    for ins in self.segs[sn]:
                        if ins.is_label:
                            continue
                        start = pos + ins.nops
                        req = 0
                        for (p, pend) in hist:
                            d = start - pend
                            nn = need(p, ins)
                            if nn > d:
                                req = max(req, nn - d)
                        if req:
                            ins.nops += req
                            start += req
                            changed = True
                        pos = start + ins.states
                        hist.append((ins, pos))
                        hist = [(p, e) for (p, e) in hist if pos - e < W]

    def text(self):
        out = []
        for sn in self.order:
            for ins in self.segs[sn]:
                n = ins.nops
                while n > 0:
                    k = min(n, 16)
                    out.append(f"  s_nop {k-1}")
                    n -= k
                out.append(ins.text if ins.is_label else "  " + ins.text)
        return "\n".join(out) + "\n"

    def count_nops(self):
        return {sn: sum(i.nops for i in self.segs[sn]) for sn in self.order if sum(i.nops for i in self.segs[sn])}


class VM:
    def __init__(self, cap=63):
        self.q = []
        self.cap = cap

    def issue(self, tag):
        self.q.append(tag)

    def wait(self, tag):
        idx = max(i for i, t in enumerate(self.q) if t == tag)
        n = len(self.q) - 1 - idx
        self.q = self.q[idx + 1:]
        return min(n, self.cap)

    def clear(self):
        self.q = []

    def has(self, tag):
        return tag in self.q
```

```python
import sys, struct, math
from asmlib import Asm, VM

OPT = dict(nt="", prio=1, stamps=0, fine=28, pre=24, pvlead=4)
for a in sys.argv[1:]:
    k, v = a.split("=")
    OPT[k] = int(v) if v.lstrip("-").isdigit() else v
NT = (" " + OPT["nt"]) if OPT["nt"] else ""

def f32(x):
    return "0x%08x" % struct.unpack("<I", struct.pack("<f", x))[0]

P_BUF = 0
MX_OFF = 20480
VRING = 32768
KRING = 98304
STG = [0, 53248, 106496]
XOFF = 32768
WO_BUF = 98304
ST_L = 155648
LDS_BYTES = 163840
PART_BYTES = 143360
STAT_OFF = 256 * PART_BYTES
STAMP_OFF = 48 << 20

sX, sWQ, sVr, sWO, sWS, sKr = "s[4:7]", "s[8:11]", "s[12:15]", "s[16:19]", "s[20:23]", "s[60:63]"
sW, sB, sHQ, sHALF, sHKV = "s24", "s25", "s26", "s27", "s28"
sKO, sCNT, sRETRY = "s29", "s30", "s31"
sT0, sT1, sT2, sT3 = "s32", "s33", "s34", "s35"
sW1K, sXO, sWQO, sKDST, sKV0, sC, sWOO, sPART = "s36", "s37", "s38", "s39", "s40", "s41", "s42", "s43"
sQH, sKH, sDQ, sHP = "s44", "s45", "s46", "s47"
sLIM, sVO, sVDST = "s48", "s49", "s3"

A = Asm()

def stamp(k, mode=1):
    if OPT["stamps"] == mode or (OPT["stamps"] and k in (2, 12)):
        A(f"s_memtime s[{76+2*k}:{77+2*k}]")

def vr(b, n):
    return f"v[{b}:{b+n-1}]" if n > 1 else f"v{b}"

def weave(main, fill, per=1):
    fill = list(fill)
    def put(f):
        if callable(f):
            f()
        elif isinstance(f, (list, tuple)):
            for x in f:
                A(x)
        else:
            A(f)
    for m in main:
        put(m)
        for _ in range(per):
            if fill:
                put(fill.pop(0))
    for f in fill:
        put(f)

A.seg("head")
A("; @launch kernel=attn_kernel grid=(256,1,1) block=(512,1,1) lds=%d" % LDS_BYTES)
if not OPT.get("nok2"):
    A("; @launch kernel=reduce_kernel grid=(280,1,1) block=(256,1,1) lds=0")
A('.amdgcn_target "amdgcn-amd-amdhsa--gfx950"')
A(".text")
A(".globl attn_kernel")
A(".p2align 8")
A(".type attn_kernel,@function")
A("attn_kernel:")
A.seg("entry")
A(f"""
s_cmp_ge_u32 s2, 256
s_cbranch_scc1 L_end
s_load_dwordx16 s[64:79], s[0:1], 0
""")
if OPT["stamps"]:
    A("s_memrealtime s[56:57]")
    stamp(2)
A(f"""
s_and_b32 {sHKV}, s2, 7
s_lshr_b32 {sT0}, s2, 3
s_lshr_b32 {sB}, {sT0}, 2
s_and_b32 {sT1}, {sT0}, 1
s_lshr_b32 {sHALF}, {sT0}, 1
s_and_b32 {sHALF}, {sHALF}, 1
s_lshl_b32 {sHQ}, {sHKV}, 1
s_add_u32 {sHQ}, {sHQ}, {sT1}
v_lshrrev_b32 v1, 6, v0
v_and_b32 v0, 63, v0
v_readfirstlane_b32 {sW}, v1
s_mov_b32 {sRETRY}, 0
s_mov_b32 {sC}, {f32(math.log2(math.e) / 16.0)}
s_mov_b32 {sLIM}, {f32(2.0 ** 30)}
s_mul_i32 {sXO}, {sB}, 143360
s_lshl_b32 {sWQO}, {sHQ}, 9
s_mul_i32 {sWOO}, {sHQ}, 229376
s_lshl_b32 {sT0}, {sB}, 3
s_add_u32 {sT0}, {sT0}, {sHKV}
s_lshl_b32 {sT0}, {sT0}, 1
s_add_u32 {sT0}, {sT0}, {sHALF}
s_lshl_b32 {sKV0}, {sT0}, 19
s_lshl_b32 {sT0}, {sB}, 4
s_add_u32 {sT0}, {sT0}, {sHQ}
s_lshl_b32 {sT0}, {sT0}, 1
s_add_u32 {sT0}, {sT0}, {sHALF}
s_mul_i32 {sPART}, {sT0}, {PART_BYTES}
s_lshl_b32 {sW1K}, {sW}, 10
s_and_b32 {sDQ}, {sW}, 3
s_lshr_b32 {sHP}, {sW}, 2
s_and_b32 {sQH}, {sW}, 1
s_lshr_b32 {sKH}, {sDQ}, 1
""")
A(f"""
v_and_b32 v1, 15, v0
v_lshrrev_b32 v2, 4, v0
s_and_b32 {sT0}, {sW}, 1
s_lshl_b32 {sT0}, {sT0}, 2
v_add_u32 v5, {sT0}, v2
v_and_b32 v6, 7, v0
v_xor_b32 v5, v5, v6
v_lshlrev_b32 v5, 4, v5
v_lshrrev_b32 v6, 3, v0
v_mul_u32_u24 v6, 896, v6
s_mul_i32 {sT0}, {sW}, 7168
v_add3_u32 v3, v5, v6, {sT0}
v_lshrrev_b32 v5, 5, v0
s_lshl_b32 {sT0}, {sW}, 1
v_add_u32 v5, {sT0}, v5
v_and_b32 v6, 3, v5
s_lshl_b32 {sT0}, {sHP}, 2
v_or_b32 v6, {sT0}, v6
v_bfe_u32 v7, v0, 1, 4
v_xor_b32 v6, v6, v7
v_lshlrev_b32 v6, 5, v6
v_and_b32 v7, 1, v0
v_lshlrev_b32 v7, 4, v7
v_lshlrev_b32 v5, 13, v5
v_add3_u32 v4, v5, v6, v7
s_waitcnt lgkmcnt(0)
s_mov_b32 s4, s64
s_mov_b32 s5, s65
s_mov_b32 s6, 1146880
s_mov_b32 s7, 0x20000
s_mov_b32 s8, s70
s_mov_b32 s9, s71
s_mov_b32 s10, 3670016
s_mov_b32 s11, 0x20000
s_mov_b32 s16, s72
s_mov_b32 s17, s73
s_mov_b32 s18, 3670016
s_mov_b32 s19, 0x20000
s_mov_b32 s20, s78
s_mov_b32 s21, s79
s_mov_b32 s22, 0x10000000
s_mov_b32 s23, 0x20000
s_mov_b32 s12, s68
s_mov_b32 s13, s69
s_mov_b32 s14, 0x4000000
s_mov_b32 s15, 0x20000
s_mov_b32 s60, s66
s_mov_b32 s61, s67
s_mov_b32 s62, 0x4000000
s_mov_b32 s63, 0x20000
s_cmp_lt_u32 {sW}, 4
s_cbranch_scc0 L_PV
""")

vXD, vWD = 3, 4
vW = [5, 6, 7, 8]
vXR = [9, 10]
vQW = [12, 13, 14, 15]
vA0 = 19
vKD = 16
QACC = 176
QA = [96, 112]
QB = [128, 148]

S_Q, S_NM, S_KF, S_L = 96, 36, 20, 7
S_S = [56, 76]
vKA = [1, 2]; vPW = 3; vMX = 4
S_T = [5, 6, 17, 18]
O_ACC, P_A, P_B = 96, 76, 56
VT = [40, 24]
vVB = [1, 2]; vPR = 3; vVD = [4, 5, 6, 7]
E_ACC = 116
E_A = [60, 88]
E_B = [20, 40]
vOA = [1, 2, 3, 4, 5, 6, 7]; vOB = [8, 9]; vST = 10; vEW = [12, 13, 14, 15]


def gen_role(role):
    S = role == "S"
    R = role
    vm = VM(63)
    lg = VM(15)
    tr = ["entry"]

    def seg(n):
        A.seg(f"{R}_{n}")
        tr.append(f"{R}_{n}")

    nx = 3 if S else 2
    nwo = 4 if S else 3

    def dma(lines, tag):
        def f():
            for x in lines:
                A(x)
            vm.issue(tag)
        return f

    def stage_dma(s):
        sb = STG[s % 3]
        out = []
        for t in range(4):
            out.append(dma([f"s_add_u32 m0, {sW1K}, {sb + t*8192}",
                            f"s_add_u32 {sT0}, {sWQO}, {(s*64 + 16*t) * 8192}",
                            f"buffer_load_dwordx4 v{vWD}, {sWQ}, {sT0} offen lds"], f"st{s}"))
        for t in range(nx):
            out.append(dma([f"s_add_u32 m0, {sW1K}, {sb + XOFF + t*8192}",
                            f"s_add_u32 {sT0}, {sXO}, {t*57344 + s*128}",
                            f"buffer_load_dwordx4 v{vXD}, {sX}, {sT0} offen lds"], f"st{s}"))
        return out

    def k_dma(i):
        slot = i & 3
        out = []
        for sg in range(4):
            l = [f"s_add_u32 m0, {sKDST}, {slot*16384 + sg*2048 - sg*128}",
                 f"buffer_load_dwordx4 v{vKD}, {sKr}, {sKO} offen offset:{sg*128}{NT} lds"]
            if sg == 3:
                l.append(f"s_add_u32 {sKO}, {sKO}, 16384")
            out.append(dma(l, f"K{i}"))
        return out

    vVD_cur = [20, 21, 22, 23]

    def v_dma(t):
        pos = (t + 3) & 3
        out = []
        for jj in range(4):
            l = [f"s_add_u32 m0, {sVDST}, {pos*16384 + jj*1024}",
                 f"buffer_load_dwordx4 v{vVD_cur[jj]}, {sVr}, {sVO} offen{NT} lds"]
            if jj == 3:
                l.append(f"s_add_u32 {sVO}, {sVO}, 16384")
            out.append(dma(l, f"V{t}"))
        return out

    def run(fs):
        for f in fs:
            f()

    seg("pro")
    if not S:
        A("L_PV:")
    for s in range(3):
        run(stage_dma(s))
    A(f"""
    v_lshrrev_b32 v30, 3, v1
    v_lshlrev_b32 v30, 10, v30
    v_and_b32 v31, 7, v1
    v_lshlrev_b32 v31, 7, v31
    v_lshrrev_b32 v32, 1, v1
    v_xor_b32 v33, v2, v32
    v_lshlrev_b32 v33, 4, v33
    v_add3_u32 v{vA0}, v30, v31, v33
    s_mul_i32 {sT0}, {sHP}, 10240
    s_add_u32 {sT0}, {sT0}, {XOFF}
    v_add_u32 v{vXR[0]}, {sT0}, v{vA0}
    v_xor_b32 v{vXR[1]}, 64, v{vXR[0]}
    v_lshrrev_b32 v24, 2, v1
    v_and_b32 v25, 1, v2
    v_lshlrev_b32 v25, 2, v25
    v_or_b32 v25, v25, v24
    v_lshl_add_u32 v26, v2, 3, v24
    v_lshlrev_b32 v26, 9, v26
    v_and_b32 v27, 3, v0
    v_lshl_add_u32 v26, v27, 3, v26
    s_lshl_b32 {sT0}, {sDQ}, 2
    v_xor_b32 v25, {sT0}, v25
    """)
    for m in range(4):
        A(f"v_xor_b32 v28, {m}, v25")
        A(f"v_lshl_add_u32 v{vW[m]}, v28, 5, v26")
    A(f"""
    v_lshrrev_b32 v24, 1, v2
    v_xor_b32 v24, v24, v32
    v_and_b32 v25, 1, v2
    v_lshlrev_b32 v25, 3, v25
    v_add3_u32 v25, v30, v31, v25
    s_mul_i32 {sT0}, {sHP}, 40960
    s_lshl_b32 {sT1}, {sDQ}, 11
    s_add_u32 {sT0}, {sT0}, {sT1}
    v_add_u32 v25, {sT0}, v25
    """)
    for m in range(4):
        A(f"v_xor_b32 v28, {2*m}, v24")
        A(f"v_lshl_add_u32 v{vQW[m]}, v28, 4, v25")
    A(f"""
    s_mov_b32 {sVO}, {sKV0}
    s_lshl_b32 {sT0}, {sQH}, 2
    v_add_u32 v24, {sT0}, v2
    v_and_b32 v25, 7, v0
    v_xor_b32 v24, v24, v25
    v_lshlrev_b32 v24, 4, v24
    v_lshrrev_b32 v25, 3, v0
    s_lshl_b32 {sT0}, {sKH}, 4
    s_lshl_b32 {sT1}, {sQH}, 3
    s_add_u32 {sT0}, {sT0}, {sT1}
    v_add_u32 v25, {sT0}, v25
    v_lshl_add_u32 v{vKD}, v25, 9, v24
    s_lshl_b32 {sT0}, {sKH}, 13
    s_lshl_b32 {sT1}, {sQH}, 10
    s_add_u32 {sKDST}, {sT0}, {sT1}
    s_add_u32 {sKDST}, {sKDST}, {KRING}
    """)
    if S:
        A(f"s_mov_b32 {sKO}, {sKV0}")
    else:
        A(f"""
        s_add_u32 {sKO}, {sKV0}, {3*16384}
        v_and_b32 v24, 1, v2
        v_lshlrev_b32 v24, 2, v24
        v_and_b32 v25, 7, v0
        v_xor_b32 v24, v24, v25
        v_lshlrev_b32 v24, 4, v24
        v_lshrrev_b32 v25, 3, v0
        v_lshl_add_u32 v24, v25, 9, v24
        s_lshl_b32 {sT0}, {sDQ}, 7
        v_add_u32 v20, {sT0}, v24
        v_add_u32 v21, 4096, v20
        v_add_u32 v22, 8192, v20
        v_add_u32 v23, 12288, v20
        s_lshl_b32 {sVDST}, {sDQ}, 12
        s_add_u32 {sVDST}, {sVDST}, {VRING}
        """)

    def q_reads(s2):
        out = []
        for qt in range(5):
            out.append(f"ds_read_b128 {vr(QB[s2] + qt*4, 4)}, v{vXR[s2]} offset:{qt*2048}")
        for m in range(4):
            for e in range(2):
                out.append(f"ds_read_b64_tr_b16 {vr(QA[s2] + m*4 + e*2, 2)}, v{vW[m]} offset:{(32*s2 + 4*e) * 512}")
        return out

    def q_mfma(s2, first):
        out = []
        for m in range(4):
            for qt in range(5):
                acc = vr(QACC + (m*5 + qt) * 4, 4)
                out.append(f"v_mfma_f32_16x16x32_bf16 {acc}, {vr(QA[s2] + m*4, 4)}, {vr(QB[s2] + qt*4, 4)}, {'0' if first else acc}")
        return out

    for s in range(7):
        A(f"s_waitcnt vmcnt({vm.wait(f'st{s}')})")
        A("s_barrier")
        if s == 0:
            stamp(3)
        d = []
        if 1 <= s <= 4:
            d = stage_dma(s + 2)
        if s == 5 and not S:
            d = v_dma(0)
        if s == 6 and S:
            d = k_dma(0) + k_dma(1) + k_dma(2)
        upd = []
        if s < 6:
            dl = STG[(s + 1) % 3] - STG[s % 3]
            upd = [[f"s_mov_b32 {sT1}, {dl & 0xffffffff}", f"v_add_u32 v{vW[0]}, {sT1}, v{vW[0]}"]] + \
                  [f"v_add_u32 v{r}, {sT1}, v{r}" for r in vW[1:] + vXR]
        if s >= 1:
            weave(q_mfma(1, False), q_reads(0) + d[:7])
            d = d[7:]
        else:
            weave(q_reads(0), [])
        A("s_waitcnt lgkmcnt(0)")
        weave(q_mfma(0, s == 0), q_reads(1) + d + upd)
        A("s_waitcnt lgkmcnt(0)")
    stamp(4)
    A("s_barrier")
    fin = q_mfma(1, False)
    def q_out(idx):
        m, qt = divmod(idx, 5)
        a = QACC + idx * 4
        return [f"v_mul_f32 v{a}, {sC}, v{a}", f"v_mul_f32 v{a+1}, {sC}, v{a+1}",
                f"v_mul_f32 v{a+2}, {sC}, v{a+2}", f"v_mul_f32 v{a+3}, {sC}, v{a+3}",
                f"v_cvt_pk_bf16_f32 v{a}, v{a}, v{a+1}", f"v_cvt_pk_bf16_f32 v{a+1}, v{a+2}, v{a+3}",
                f"ds_write_b64 v{vQW[m]}, {vr(a, 2)} offset:{qt*8192}"]
    for j, mf in enumerate(fin):
        A(mf)
        if j >= 3:
            for x in q_out(j - 3):
                A(x)
    if S:
        A(f"""
        s_mul_i32 {sT0}, {sQH}, 40960
        v_add_u32 v17, {sT0}, v{vA0}
        v_xor_b32 v18, 64, v17
        v_lshrrev_b32 v22, 1, v2
        s_lshl_b32 {sT0}, {sKH}, 1
        v_add_u32 v22, {sT0}, v22
        v_mul_u32_u24 v22, 2560, v22
        v_and_b32 v23, 1, v2
        v_lshl_add_u32 v22, v23, 3, v22
        s_mul_i32 {sT0}, {sQH}, 80
        v_add_u32 v23, {sT0}, v1
        v_lshl_add_u32 v{vPW}, v23, 4, v22
        s_lshl_b32 {sT0}, {sKH}, 2
        v_lshlrev_b32 v23, 3, v23
        v_add_u32 v{vMX}, {sT0}, v23
        s_lshl_b32 {sT0}, {sKH}, 13
        s_add_u32 {sT0}, {sT0}, {KRING}
        v_add_u32 v{vKA[0]}, {sT0}, v{vA0}
        v_xor_b32 v{vKA[1]}, 64, v{vKA[0]}
        """)
        for qt in range(5):
            A(f"v_mov_b32 v{S_L+qt}, 0xff800000")
    else:
        A(f"""
        v_lshrrev_b32 v30, 2, v1
        v_lshrrev_b32 v31, 5, v0
        v_lshl_add_u32 v32, v31, 3, v30
        v_lshlrev_b32 v32, 7, v32
        v_lshrrev_b32 v33, 1, v30
        v_lshl_add_u32 v32, v33, 6, v32
        v_and_b32 v33, 1, v2
        v_lshl_add_u32 v32, v33, 5, v32
        v_and_b32 v33, 3, v0
        v_lshl_add_u32 v32, v33, 3, v32
        v_mul_u32_u24 v31, 2560, v31
        v_and_b32 v33, 31, v0
        v_lshl_add_u32 v{vPR}, v33, 4, v31
        v_add_u32 v{vVB[0]}, {sVDST}, v32
        v_xor_b32 v{vVB[1]}, 64, v{vVB[0]}
        v_mov_b32 v{vVD[0]}, v20
        v_mov_b32 v{vVD[1]}, v21
        v_mov_b32 v{vVD[2]}, v22
        v_mov_b32 v{vVD[3]}, v23
        """)
        vVD_cur[:] = vVD
    for j in range(17, 20):
        for x in q_out(j):
            A(x)
    A("s_waitcnt lgkmcnt(0)")
    A("s_barrier")
    if S:
        for qt in range(5):
            for s in range(8):
                A(f"ds_read_b128 {vr(S_Q + (qt*8 + s)*4, 4)}, v{17 + (s & 1)} offset:{qt*8192 + (s >> 1)*2048}")
        if OPT["prio"]:
            A(f"s_setprio {OPT['prio']}")
    vm_join = list(vm.q)
    seg("join")
    A(f"L_{R}_join:")
    if S:
        A(f"s_waitcnt vmcnt({vm.wait('K0')}) lgkmcnt(0)")
    A("s_barrier")
    stamp(5)

    def fst(i, k):
        if i == OPT["fine"]:
            stamp(k, 2)

    def softmax_fill(j):
        SS = S_S[j & 1]; buf = j & 1
        out = []
        for qt in range(5):
            a = SS + qt*4
            t0, t1 = (S_T[0], S_T[1]) if qt % 2 == 0 else (S_T[2], S_T[3])
            ex = [(2, f"v_exp_f32 v{a+r}, v{a+r}") for r in range(4)]
            def wr(a=a, qt=qt):
                A(f"ds_write_b64 v{vPW}, {vr(a, 2)} offset:{P_BUF + buf*10240 + qt*256}")
                lg.issue("pw")
            post = [(1, f"v_add_f32 v{t0}, v{a}, v{a+1}"), (1, f"v_add_f32 v{t1}, v{a+2}, v{a+3}"),
                    (1, f"v_cvt_pk_bf16_f32 v{a}, v{a}, v{a+1}"), (1, f"v_cvt_pk_bf16_f32 v{a+1}, v{a+2}, v{a+3}"),
                    (1, f"v_add_f32 v{t0}, v{t0}, v{t1}"), (1, wr),
                    (1, f"v_mov_b32 v{S_L+qt}, v{t0}" if j == 0 else f"v_add_f32 v{S_L+qt}, v{S_L+qt}, v{t0}")]
            out.append((ex, post))
        seq = list(out[0][0])
        for qt in range(5):
            if qt + 1 < 5:
                e = out[qt + 1][0]; p = out[qt][1]
                seq += [e[0], p[0], p[1], e[1], p[2], p[3], e[2], p[4], p[5], e[3], p[6]]
            else:
                seq += out[qt][1]
        return seq

    def s_interval(i):
        slot = i & 3
        fill = softmax_fill(i - 1) if i >= 1 else []
        def put(n):
            while fill and n >= fill[0][0]:
                c, it = fill.pop(0)
                n -= c
                it() if callable(it) else A(it)
        def kread(s):
            A(f"ds_read_b128 {vr(S_KF + (s & 3)*4, 4)}, v{vKA[s & 1]} offset:{slot*16384 + (s >> 1)*2048}")
            lg.issue(f"kf{s}")
        fst(i, 3)
        if i <= 31:
            SS = S_S[i & 1]
            for s in range(4):
                kread(s)
            put(OPT["pre"])
            for s in range(8):
                A(f"s_waitcnt lgkmcnt({lg.wait(f'kf{s}')})")
                if s == 0:
                    fst(i, 4)
                for qt in range(5):
                    acc = vr(SS + qt*4, 4)
                    c = acc if s else ("0" if i == 0 else vr(S_NM + qt*4, 4))
                    A(f"v_mfma_f32_16x16x32_bf16 {acc}, {vr(S_KF + (s & 3)*4, 4)}, {vr(S_Q + (qt*8 + s)*4, 4)}, {c}")
                    if qt == 4 and s + 4 < 8:
                        kread(s + 4)
                        put(1)
                    else:
                        put(2)
            fst(i, 5)
        put(1000)
        fst(i, 6)
        if i == 0:
            SS = S_S[0]
            for qt in range(5):
                a = SS + qt*4; t = S_KF + qt*2
                A(f"v_max3_f32 v{t}, v{a}, v{a+1}, v{S_L+qt}")
                A(f"v_max3_f32 v{t}, v{a+2}, v{a+3}, v{t}")
                A(f"v_mov_b32 v{t+1}, v{t}")
            for qt in range(5):
                t = S_KF + qt*2
                A(f"v_permlane32_swap_b32 v{t}, v{t+1}")
            for qt in range(5):
                t = S_KF + qt*2
                A(f"v_max_f32 v{t}, v{t}, v{t+1}")
                A(f"v_mov_b32 v{t+1}, v{t}")
            for qt in range(5):
                t = S_KF + qt*2
                A(f"v_permlane16_swap_b32 v{t}, v{t+1}")
            for qt in range(5):
                t = S_KF + qt*2
                A(f"v_max_f32 v{t}, v{t}, v{t+1}")
                A(f"ds_write_b32 v{vMX}, v{t} offset:{MX_OFF + qt*128}")
            A("s_waitcnt lgkmcnt(0)")
            A("s_barrier")
            A(f"v_and_b32 v5, 0xfffffffb, v{vMX}")
            for qt in range(5):
                A(f"ds_read_b64 {vr(S_KF + qt*2, 2)}, v5 offset:{MX_OFF + qt*128}")
            for qt in range(5):
                t = S_KF + qt*2
                A(f"s_waitcnt lgkmcnt({4 - qt})")
                A(f"v_max_f32 v{t}, v{t}, v{t+1}")
                for r in range(4):
                    A(f"v_sub_f32 v{S_NM + qt*4 + r}, 0, v{t}")
                for r in range(4):
                    A(f"v_sub_f32 v{SS + qt*4 + r}, v{SS + qt*4 + r}, v{t}")
        if i == 32:
            wo_addr()
            run(wo_dma(0) + wo_dma(1))
        if vm.has(f"K{i+1}"):
            A(f"s_waitcnt vmcnt({vm.wait(f'K{i+1}')}) lgkmcnt(0)")
        else:
            A("s_waitcnt lgkmcnt(0)")
        lg.clear()
        fst(i, 7)
        A("s_barrier")
        fst(i, 8)

    def vt_reads(t):
        pos = (t + 3) & 3
        out = []
        for s16 in range(2):
            for tt in range(2):
                for e in range(2):
                    out.append(f"ds_read_b64_tr_b16 {vr(VT[t & 1] + (s16*2 + tt)*4 + e*2, 2)}, v{vVB[tt]} offset:{pos*16384 + (16*s16 + 4*e)*128}")
        return out

    def pv_mfma(t, s16, P, first):
        out = []
        for qt in range(5):
            for tt in range(2):
                acc = vr(O_ACC + (tt*5 + qt)*16, 16)
                out.append(f"v_mfma_f32_32x32x16_bf16 {acc}, {vr(VT[t & 1] + (s16*2 + tt)*4, 4)}, {vr(P + qt*4, 4)}, {'0' if first else acc}")
        return out

    def wo_addr():
        for t in range(nwo):
            A(f"""
            s_lshl_b32 {sT0}, {sW}, 6
            s_add_u32 {sT0}, {sT0}, {t*512}
            v_add_u32 v21, {sT0}, v0
            v_mul_u32_u24 v22, 18725, v21
            v_lshrrev_b32 v22, 20, v22
            v_mul_u32_u24 v23, 56, v22
            v_sub_u32 v21, v21, v23
            v_bfe_u32 v23, v22, 1, 1
            v_bfe_u32 v{vEW[t]}, v22, 3, 1
            v_lshl_add_u32 v23, v{vEW[t]}, 1, v23
            v_lshlrev_b32 v23, 1, v23
            v_xor_b32 v21, v21, v23
            v_mul_u32_u24 v22, 896, v22
            v_lshl_add_u32 v{vEW[t]}, v21, 4, v22
            """)

    def wo_dma(s):
        out = []
        for t in range(nwo):
            out.append(dma([f"s_add_u32 m0, {sW1K}, {WO_BUF + (s & 1)*28672 + t*8192}",
                            f"s_add_u32 {sT0}, {sWOO}, {s*28672}",
                            f"buffer_load_dwordx4 v{vEW[t]}, {sWO}, {sT0} offen lds"], f"wo{s}"))
        return out

    def pv_interval(i):
        if i == 0:
            run(v_dma(1) + k_dma(3) + v_dma(2))
            A("s_barrier")
            A("s_barrier")
            return
        if i == 1:
            run(k_dma(4) + v_dma(3))
            A(f"s_waitcnt vmcnt({vm.wait('V0')})")
            for x in vt_reads(0):
                A(x)
            A("s_waitcnt lgkmcnt(0)")
            A("s_barrier")
            return
        t = i - 2; buf = t & 1
        fst(i, 3)
        for qt in range(5):
            A(f"ds_read_b128 {vr(P_A + qt*4, 4)}, v{vPR} offset:{P_BUF + buf*10240 + qt*512}")
        pb = [f"ds_read_b128 {vr(P_B + qt*4, 4)}, v{vPR} offset:{P_BUF + buf*10240 + 5120 + qt*512}" for qt in range(5)]
        d = []
        if i + 3 <= 31:
            d += k_dma(i + 3)
        if i + 2 <= 31:
            d += v_dma(i + 2)
        if i == 32:
            d += [wo_addr] + wo_dma(0) + wo_dma(1)
        if t >= 1:
            mf = pv_mfma(t - 1, 1, P_B, False)
            for j in range(10):
                A(mf[j])
                if j & 1:
                    A(pb[j >> 1])
                if j == OPT["pvlead"] - 1:
                    fst(i, 4)
                    run(d)
                    fst(i, 5)
        else:
            for x in pb:
                A(x)
            run(d)
        fst(i, 6)
        if t + 1 <= 31:
            A(f"s_waitcnt vmcnt({vm.wait(f'V{t+1}')}) lgkmcnt(5)")
            weave(pv_mfma(t, 0, P_A, t == 0), vt_reads(t + 1))
        else:
            A("s_waitcnt lgkmcnt(5)")
            weave(pv_mfma(t, 0, P_A, False), [])
        if vm.has(f"K{i+1}"):
            A(f"s_waitcnt vmcnt({vm.wait(f'K{i+1}')}) lgkmcnt(0)")
        else:
            A("s_waitcnt lgkmcnt(0)")
        fst(i, 7)
        A("s_barrier")
        fst(i, 8)

    interval = s_interval if S else pv_interval
    seg("g0")
    for i in range(4):
        interval(i)
    stamp(6)
    A(f"s_mov_b32 {sCNT}, 6")
    q_before = list(vm.q)
    seg("loop")
    A(f"L_{R}_loop:")
    for i in range(4, 8):
        interval(i)
    A(f"s_sub_u32 {sCNT}, {sCNT}, 1")
    A(f"s_cmp_lg_u32 {sCNT}, 0")
    A(f"s_cbranch_scc1 L_{R}_loop")
    sh = lambda q, d: [t[0] + str(int(t[1:]) + d) for t in q]
    assert sh(q_before, 4) == vm.q, (q_before, vm.q)
    vm.q = sh(vm.q, 20)
    tr.append(f"{R}_loop")
    seg("gl")
    stamp(7)
    for i in range(28, 33):
        interval(i)
    if S:
        if OPT["prio"]:
            A("s_setprio 0")
        for qt in range(5):
            A(f"v_mov_b32 v{S_KF + qt}, v{S_L + qt}")
        for qt in range(5):
            A(f"v_permlane32_swap_b32 v{S_KF + qt}, v{S_L + qt}")
        for qt in range(5):
            A(f"v_add_f32 v{S_L + qt}, v{S_L + qt}, v{S_KF + qt}")
            A(f"v_mov_b32 v{S_KF + qt}, v{S_L + qt}")
        for qt in range(5):
            A(f"v_permlane16_swap_b32 v{S_KF + qt}, v{S_L + qt}")
        A(f"v_add_u32 v5, {ST_L}, v{vMX}")
        for qt in range(5):
            A(f"v_add_f32 v{S_L + qt}, v{S_L + qt}, v{S_KF + qt}")
            A(f"ds_write_b32 v5, v{S_L + qt} offset:{qt*128}")
        A("s_waitcnt lgkmcnt(0)")
        A("s_barrier")
    else:
        pv_interval(33)

    seg("post")
    stamp(8)
    A(f"""
    v_lshlrev_b32 v17, 3, v0
    v_min_u32 v18, 31, v0
    v_lshlrev_b32 v18, 3, v18
    v_add_u32 v17, {ST_L}, v17
    v_add_u32 v18, {ST_L}, v18
    ds_read_b64 v[8:9], v17
    ds_read_b64 v[20:21], v17 offset:512
    ds_read_b64 v[22:23], v18 offset:1024
    """)
    if not S:
        for x in pv_mfma(31, 1, P_B, False):
            A(x)
    A(f"""
    s_waitcnt lgkmcnt(0)
    v_add_f32 v8, v8, v9
    v_add_f32 v20, v20, v21
    v_add_f32 v22, v22, v23
    v_cmp_ge_f32 s[50:51], {sLIM}, v8
    v_cmp_ge_f32 s[52:53], {sLIM}, v20
    v_cmp_ge_f32 s[54:55], {sLIM}, v22
    s_and_b64 s[50:51], s[50:51], s[52:53]
    s_and_b64 s[50:51], s[50:51], s[54:55]
    s_cmp_eq_u64 s[50:51], -1
    s_cbranch_scc1 L_{R}_ok
    s_cmp_eq_u32 {sRETRY}, 0
    s_cbranch_scc1 L_{R}_fallback
    """)
    seg("epi")
    A(f"L_{R}_ok:")
    if S:
        A(f"v_and_b32 v5, 0xfffffffb, v{vMX}")
        A(f"v_add_u32 v6, {ST_L}, v5")
        for qt in range(5):
            A(f"ds_read_b64 {vr(S_KF + 4 + qt*2, 2)}, v6 offset:{qt*128}")
        A(f"""
        s_mul_i32 {sT0}, {sB}, 40960
        s_lshl_b32 {sT1}, {sHQ}, 4
        s_add_u32 {sT0}, {sT0}, {sT1}
        s_lshl_b32 {sT1}, {sHALF}, 3
        s_add_u32 {sT0}, {sT0}, {sT1}
        s_add_u32 {sT0}, {sT0}, {STAT_OFF}
        v_lshlrev_b32 v5, 5, v5
        """)
        for qt in range(5):
            t = S_KF + 4 + qt*2
            A(f"s_waitcnt lgkmcnt({4 - qt})")
            A(f"v_add_f32 v{t+1}, v{t}, v{t+1}")
            A(f"v_sub_f32 v{t}, 0, v{S_NM + qt*4}")
            A(f"buffer_store_dwordx2 {vr(t, 2)}, v5, {sWS}, {sT0} offen")
            A(f"s_add_u32 {sT0}, {sT0}, 4096")
            vm.issue("lse")
    else:
        A(f"""
        v_and_b32 v17, 15, v0
        v_lshrrev_b32 v18, 3, v17
        v_lshlrev_b32 v18, 10, v18
        v_and_b32 v20, 7, v17
        v_lshl_add_u32 v18, v20, 7, v18
        v_lshrrev_b32 v20, 1, v17
        v_lshl_add_u32 v18, v20, 4, v18
        v_lshrrev_b32 v20, 5, v0
        v_lshl_add_u32 v18, v20, 3, v18
        v_bfe_u32 v20, v0, 4, 1
        v_lshl_add_u32 v18, v20, 13, v18
        s_lshl_b32 {sT0}, {sDQ}, 11
        v_add_u32 v18, {sT0}, v18
        """)
        for p in range(8):
            A(f"v_xor_b32 v{40 + p}, {p << 4}, v18")
            A(f"v_add_u32 v{48 + p}, 0x10000, v{40 + p}")
        for qt in range(5):
            for tt in range(2):
                for rq in range(4):
                    p = 4*tt + rq
                    a = O_ACC + (tt*5 + qt)*16 + rq*4
                    A(f"v_cvt_pk_bf16_f32 v{a}, v{a}, v{a+1}")
                    A(f"v_cvt_pk_bf16_f32 v{a+1}, v{a+2}, v{a+3}")
                    if qt < 4:
                        A(f"ds_write_b64 v{40 + p}, {vr(a, 2)} offset:{qt*16384}")
                    else:
                        A(f"ds_write_b64 v{48 + p}, {vr(a, 2)}")
    A(f"""
    v_and_b32 v16, 15, v0
    v_lshrrev_b32 v17, 4, v0
    v_lshrrev_b32 v18, 2, v16
    v_lshl_add_u32 v11, v17, 3, v18
    v_mul_u32_u24 v11, 896, v11
    v_and_b32 v10, 3, v0
    v_lshl_add_u32 v11, v10, 3, v11
    v_add_u32 v11, {WO_BUF}, v11
    v_lshrrev_b32 v18, 1, v18
    v_and_b32 v10, 1, v17
    v_lshl_add_u32 v18, v10, 1, v18
    s_mul_i32 {sT1}, {sDQ}, 7
    """)
    for n in range(7):
        A(f"s_add_u32 {sT2}, {sT1}, {n}")
        A(f"v_xor_b32 v10, {sT2}, v18")
        A(f"v_lshl_add_u32 v{vOA[n]}, v10, 5, v11")
    A(f"""
    s_mul_i32 {sT2}, {sHP}, 40960
    v_add_u32 v{vOB[0]}, {sT2}, v{vA0}
    v_xor_b32 v{vOB[1]}, 64, v{vOB[0]}
    v_lshrrev_b32 v18, 1, v17
    v_lshlrev_b32 v18, 8, v18
    v_lshl_add_u32 v18, v16, 4, v18
    v_and_b32 v11, 1, v17
    v_lshl_add_u32 v{vST}, v11, 3, v18
    s_mul_i32 {sT1}, {sDQ}, {7*5120}
    s_mul_i32 {sT2}, {sHP}, 2560
    s_add_u32 {sPART}, {sPART}, {sT1}
    s_add_u32 {sPART}, {sPART}, {sT2}
    """)

    def e_mfma(s):
        out = []
        for n in range(7):
            for qt in range(5):
                acc = vr(E_ACC + (n*5 + qt)*4, 4)
                out.append(f"v_mfma_f32_16x16x32_bf16 {acc}, {vr(E_A[s & 1] + n*4, 4)}, {vr(E_B[s & 1] + qt*4, 4)}, {'0' if s == 0 else acc}")
        return out

    for s in range(8):
        A(f"s_waitcnt vmcnt({vm.wait(f'wo{s}')}) lgkmcnt(0)")
        A("s_barrier")
        if s == 0:
            stamp(9)
        rd = []
        for qt in range(5):
            rd.append(f"ds_read_b128 {vr(E_B[s & 1] + qt*4, 4)}, v{vOB[s & 1]} offset:{qt*8192 + (s >> 1)*2048}")
        for n in range(7):
            for e in range(2):
                rd.append(f"ds_read_b64_tr_b16 {vr(E_A[s & 1] + n*4 + e*2, 2)}, v{vOA[n]} offset:{(s & 1)*28672 + 4*e*896}")
        d = wo_dma(s + 1) if 1 <= s <= 6 else []
        if s >= 1:
            weave(e_mfma(s - 1), d + rd)
        else:
            weave(rd, [])
    A("s_waitcnt lgkmcnt(0)")
    def e_out(idx):
        n, qt = divmod(idx, 5)
        a = E_ACC + idx*4
        l = [f"v_cvt_pk_bf16_f32 v{a}, v{a}, v{a+1}", f"v_cvt_pk_bf16_f32 v{a+1}, v{a+2}, v{a+3}",
             f"buffer_store_dwordx2 {vr(a, 2)}, v{vST}, {sWS}, {sPART} offen offset:{qt*512}"]
        if qt == 4:
            l.append(f"s_add_u32 {sPART}, {sPART}, 5120")
        return l
    for j, mf in enumerate(e_mfma(7)):
        A(mf)
        if j >= 4:
            for x in e_out(j - 4):
                A(x)
    stamp(10)
    for j in range(31, 35):
        for x in e_out(j):
            A(x)
    if OPT["stamps"]:
        stamp(11)
        A("s_waitcnt vmcnt(0)")
        stamp(12)
        A("s_memrealtime s[58:59]")
        A("s_waitcnt lgkmcnt(0)")
        A("v_mov_b32 v20, s56")
        A("v_mov_b32 v21, s58")
        for k in range(2, 13):
            A(f"v_mov_b32 v{20+k}, s{76+2*k}")
        A("v_mov_b32 v33, 0")
        A("v_mov_b32 v34, 0")
        A("v_mov_b32 v35, 0")
        A(f"s_lshl_b32 {sT0}, s2, 9")
        A(f"s_lshl_b32 {sT1}, {sW}, 6")
        A(f"s_add_u32 {sT0}, {sT0}, {sT1}")
        A(f"s_add_u32 {sT0}, {sT0}, {STAMP_OFF}")
        A("v_mov_b32 v40, 0")
        for j in range(4):
            A(f"buffer_store_dwordx4 v[{20+4*j}:{23+4*j}], v40, {sWS}, {sT0} offen offset:{16*j}")
    A("s_endpgm")
    A.trace(tr)

    tr2 = [f"{R}_gl", f"{R}_post"]
    A.seg(f"{R}_fb"); tr2.append(f"{R}_fb")
    A(f"L_{R}_fallback:")
    A(f"""
    s_mov_b32 {sRETRY}, 1
    s_waitcnt vmcnt(0) lgkmcnt(0)
    s_barrier
    s_mov_b32 {sKO}, {sKV0}
    s_mov_b32 {sCNT}, 32
    """)
    if S:
        for qt in range(5):
            A(f"v_mov_b32 v{S_L+qt}, 0xff800000")
    A.seg(f"{R}_fbl"); tr2 += [f"{R}_fbl", f"{R}_fbl"]
    A(f"L_{R}_fbl:")
    if S:
        vm.clear()
        run(k_dma(0))
        A("s_waitcnt vmcnt(0)")
        A("s_barrier")
        for hh in range(2):
            for s in range(4*hh, 4*hh + 4):
                A(f"ds_read_b128 {vr(S_KF + (s & 3)*4, 4)}, v{vKA[s & 1]} offset:{(s >> 1)*2048}")
            A("s_waitcnt lgkmcnt(0)")
            for s in range(4*hh, 4*hh + 4):
                for qt in range(5):
                    acc = vr(S_S[0] + qt*4, 4)
                    A(f"v_mfma_f32_16x16x32_bf16 {acc}, {vr(S_KF + (s & 3)*4, 4)}, {vr(S_Q + (qt*8 + s)*4, 4)}, {acc if s else '0'}")
        for qt in range(5):
            a = S_S[0] + qt*4
            A(f"v_max3_f32 v{S_L+qt}, v{a}, v{a+1}, v{S_L+qt}")
            A(f"v_max3_f32 v{S_L+qt}, v{a+2}, v{a+3}, v{S_L+qt}")
        A("s_barrier")
    else:
        A("s_barrier")
        A("s_barrier")
    A(f"s_sub_u32 {sCNT}, {sCNT}, 1")
    A(f"s_cmp_lg_u32 {sCNT}, 0")
    A(f"s_cbranch_scc1 L_{R}_fbl")
    A.seg(f"{R}_fbe"); tr2 += [f"{R}_fbe", f"{R}_join", f"{R}_g0"]
    vm.clear()
    if S:
        A(f"s_mov_b32 {sKO}, {sKV0}")
        run(k_dma(0) + k_dma(1) + k_dma(2))
        if OPT["prio"]:
            A(f"s_setprio {OPT['prio']}")
    else:
        A(f"s_add_u32 {sKO}, {sKV0}, {3*16384}")
        A(f"s_mov_b32 {sVO}, {sKV0}")
        run(v_dma(0))
    assert vm.q == vm_join[-len(vm.q):] and all(t.startswith("st") for t in vm_join[:-len(vm.q)]), (vm.q, vm_join)
    A(f"s_branch L_{R}_join")
    A.trace(tr2)


gen_role("S")
gen_role("PV")
A.seg("k1end")
A("L_end:")
A("s_endpgm")

A.seg("k2head")
A(".globl reduce_kernel")
A(".p2align 8")
A(".type reduce_kernel,@function")
A("reduce_kernel:")
A.seg("k2")
A(f"""
s_cmp_ge_u32 s2, 280
s_cbranch_scc1 L_k2end
s_load_dwordx2 s[4:5], s[0:1], 40
s_load_dwordx2 s[8:9], s[0:1], 56
s_mul_i32 s12, s2, 1873
s_lshr_b32 s12, s12, 16
s_mul_i32 s13, s12, 35
s_sub_u32 s13, s2, s13
s_lshl_b32 s13, s13, 8
v_add_u32 v1, s13, v0
v_lshlrev_b32 v2, 4, v1
v_lshrrev_b32 v3, 5, v1
v_mul_u32_u24 v4, 6554, v3
v_lshrrev_b32 v4, 16, v4
v_mul_u32_u24 v5, 10, v4
v_sub_u32 v5, v3, v5
v_and_b32 v6, 15, v1
v_lshl_add_u32 v5, v5, 4, v6
v_bfe_u32 v6, v1, 4, 1
v_lshlrev_b32 v6, 4, v6
v_lshl_add_u32 v6, v4, 5, v6
v_mul_u32_u24 v7, 896, v5
v_add_u32 v6, v6, v7
v_lshlrev_b32 v7, 8, v5
s_mul_i32 s14, s12, {32*PART_BYTES}
s_mul_i32 s15, s12, 40960
s_add_u32 s15, s15, {STAT_OFF}
s_mul_i32 s16, s12, 143360
s_waitcnt lgkmcnt(0)
s_mov_b32 s6, 1146880
s_mov_b32 s7, 0x20000
s_mov_b32 s10, 0x10000000
s_mov_b32 s11, 0x20000
""")
L0, D0, AC = 16, 80, 8
for j in range(16):
    A(f"buffer_load_dwordx4 {vr(L0 + j*4, 4)}, v7, s[8:11], s15 offen offset:{j*16}")
for p in range(32):
    A(f"buffer_load_dwordx4 {vr(D0 + p*4, 4)}, v2, s[8:11], s14 offen")
    A(f"s_add_u32 s14, s14, {PART_BYTES}")
for h in range(16):
    ma, la, mb, lb = L0 + 4*h, L0 + 4*h + 1, L0 + 4*h + 2, L0 + 4*h + 3
    A(f"s_waitcnt vmcnt({32 + 15 - h})")
    A(f"v_sub_f32 v1, v{mb}, v{ma}")
    A(f"v_sub_f32 v3, v{ma}, v{mb}")
    A(f"v_exp_f32 v1, v1")
    A(f"v_exp_f32 v3, v3")
    A(f"v_fma_f32 v1, v1, v{lb}, v{la}")
    A(f"v_fma_f32 v3, v3, v{la}, v{lb}")
    A(f"v_rcp_f32 v{ma}, v1")
    A(f"v_rcp_f32 v{mb}, v3")
for p in range(32):
    A(f"s_waitcnt vmcnt({31 - p})")
    wreg = L0 + 2*p
    for r in range(4):
        d = D0 + p*4 + r
        A(f"v_lshlrev_b32 v1, 16, v{d}")
        A(f"v_and_b32 v3, 0xffff0000, v{d}")
        if p == 0:
            A(f"v_mul_f32 v{AC + 2*r}, v{wreg}, v1")
            A(f"v_mul_f32 v{AC + 2*r + 1}, v{wreg}, v3")
        else:
            A(f"v_fmac_f32 v{AC + 2*r}, v{wreg}, v1")
            A(f"v_fmac_f32 v{AC + 2*r + 1}, v{wreg}, v3")
for r in range(4):
    A(f"v_cvt_pk_bf16_f32 v{L0 + r}, v{AC + 2*r}, v{AC + 2*r + 1}")
A(f"buffer_store_dwordx4 {vr(L0, 4)}, v6, s[4:7], s16 offen")
A("L_k2end:")
A("s_endpgm")
A.trace(["k2"])

A.seg("desc")
A('.section .rodata,"a"')
for name, nv in (("attn_kernel", 256), ("reduce_kernel", 208)):
    A(".p2align 6")
    A(f".amdhsa_kernel {name}")
    A(f".amdhsa_next_free_vgpr {nv}")
    A(".amdhsa_next_free_sgpr 102")
    A(f".amdhsa_accum_offset {nv}")
    A(".amdhsa_group_segment_fixed_size 0")
    A(".amdhsa_kernarg_size 64")
    A(".amdhsa_user_sgpr_count 2")
    A(".amdhsa_user_sgpr_kernarg_segment_ptr 1")
    A(".amdhsa_system_sgpr_workgroup_id_x 1")
    A(".end_amdhsa_kernel")

A.fix_hazards()
sys.stderr.write("nops: %s\n" % A.count_nops())
sys.stdout.write(A.text())
```

```python
import sys, struct, math
from asmlib import Asm, VM

OPT = dict(nt="", prio=1, stamps=0, fine=28, pre=2, pvlead=4)
for a in sys.argv[1:]:
    k, v = a.split("=")
    OPT[k] = int(v) if v.lstrip("-").isdigit() else v
NT = (" " + OPT["nt"]) if OPT["nt"] else ""

def f32(x):
    return "0x%08x" % struct.unpack("<I", struct.pack("<f", x))[0]

P_BUF = 0
MX_OFF = 20480
VRING = 32768
KRING = 98304
STG = [0, 53248, 106496]
XOFF = 32768
WSL = [98304, 131072, 0, 32768, 65536]
ST_L = 81920
LDS_BYTES = 163840
PART_BYTES = 143360
STAT_OFF = 256 * PART_BYTES
STAMP_OFF = 48 << 20

sX, sWQ, sVr, sWO, sWS, sKr = "s[4:7]", "s[8:11]", "s[12:15]", "s[16:19]", "s[20:23]", "s[60:63]"
sW, sB, sHQ, sHALF, sHKV = "s24", "s25", "s26", "s27", "s28"
sKO, sCNT, sRETRY = "s29", "s30", "s31"
sT0, sT1, sT2, sT3 = "s32", "s33", "s34", "s35"
sW1K, sXO, sWQO, sKDST, sKV0, sC, sWOO, sPART = "s36", "s37", "s38", "s39", "s40", "s41", "s42", "s43"
sQH, sKH, sDQ, sHP = "s44", "s45", "s46", "s47"
sLIM, sVO, sVDST = "s48", "s49", "s3"

A = Asm()

def stamp(k, mode=1):
    if OPT["stamps"] == mode or (OPT["stamps"] and k in (2, 12)):
        A(f"s_memtime s[{76+2*k}:{77+2*k}]")

def vr(b, n):
    return f"v[{b}:{b+n-1}]" if n > 1 else f"v{b}"

def weave(main, fill, per=1):
    fill = list(fill)
    def put(f):
        if callable(f):
            f()
        elif isinstance(f, (list, tuple)):
            for x in f:
                A(x)
        else:
            A(f)
    for m in main:
        put(m)
        for _ in range(per):
            if fill:
                put(fill.pop(0))
    for f in fill:
        put(f)

A.seg("head")
A("; @launch kernel=attn_kernel grid=(256,1,1) block=(512,1,1) lds=%d" % LDS_BYTES)
if not OPT.get("nok2"):
    A("; @launch kernel=reduce_kernel grid=(280,1,1) block=(256,1,1) lds=0")
A('.amdgcn_target "amdgcn-amd-amdhsa--gfx950"')
A(".text")
A(".globl attn_kernel")
A(".p2align 8")
A(".type attn_kernel,@function")
A("attn_kernel:")
A.seg("entry")
A(f"""
s_cmp_ge_u32 s2, 256
s_cbranch_scc1 L_end
s_load_dwordx16 s[64:79], s[0:1], 0
""")
if OPT["stamps"]:
    A("s_memrealtime s[56:57]")
    stamp(2)
A(f"""
s_and_b32 {sHKV}, s2, 7
s_lshr_b32 {sT0}, s2, 3
s_lshr_b32 {sB}, {sT0}, 2
s_and_b32 {sT1}, {sT0}, 1
s_lshr_b32 {sHALF}, {sT0}, 1
s_and_b32 {sHALF}, {sHALF}, 1
s_lshl_b32 {sHQ}, {sHKV}, 1
s_add_u32 {sHQ}, {sHQ}, {sT1}
v_lshrrev_b32 v1, 6, v0
v_and_b32 v0, 63, v0
v_readfirstlane_b32 {sW}, v1
s_mov_b32 {sRETRY}, 0
s_mov_b32 {sC}, {f32(math.log2(math.e) / 16.0)}
s_mov_b32 {sLIM}, {f32(2.0 ** 30)}
s_mul_i32 {sXO}, {sB}, 143360
s_lshl_b32 {sWQO}, {sHQ}, 9
s_mul_i32 {sWOO}, {sHQ}, 229376
s_lshl_b32 {sT0}, {sB}, 3
s_add_u32 {sT0}, {sT0}, {sHKV}
s_lshl_b32 {sT0}, {sT0}, 1
s_add_u32 {sT0}, {sT0}, {sHALF}
s_lshl_b32 {sKV0}, {sT0}, 19
s_lshl_b32 {sT0}, {sB}, 4
s_add_u32 {sT0}, {sT0}, {sHQ}
s_lshl_b32 {sT0}, {sT0}, 1
s_add_u32 {sT0}, {sT0}, {sHALF}
s_mul_i32 {sPART}, {sT0}, {PART_BYTES}
s_lshl_b32 {sW1K}, {sW}, 10
s_and_b32 {sDQ}, {sW}, 3
s_lshr_b32 {sHP}, {sW}, 2
s_and_b32 {sQH}, {sW}, 1
s_lshr_b32 {sKH}, {sDQ}, 1
""")
A(f"""
v_and_b32 v1, 15, v0
v_lshrrev_b32 v2, 4, v0
s_and_b32 {sT0}, {sW}, 1
s_lshl_b32 {sT0}, {sT0}, 2
v_add_u32 v5, {sT0}, v2
v_and_b32 v6, 7, v0
v_xor_b32 v5, v5, v6
v_lshlrev_b32 v5, 4, v5
v_lshrrev_b32 v6, 3, v0
v_mul_u32_u24 v6, 896, v6
s_mul_i32 {sT0}, {sW}, 7168
v_add3_u32 v3, v5, v6, {sT0}
v_lshrrev_b32 v5, 5, v0
s_lshl_b32 {sT0}, {sW}, 1
v_add_u32 v5, {sT0}, v5
v_and_b32 v6, 3, v5
s_lshl_b32 {sT0}, {sHP}, 2
v_or_b32 v6, {sT0}, v6
v_bfe_u32 v7, v0, 1, 4
v_xor_b32 v6, v6, v7
v_lshlrev_b32 v6, 5, v6
v_and_b32 v7, 1, v0
v_lshlrev_b32 v7, 4, v7
v_lshlrev_b32 v5, 13, v5
v_add3_u32 v4, v5, v6, v7
s_waitcnt lgkmcnt(0)
s_mov_b32 s4, s64
s_mov_b32 s5, s65
s_mov_b32 s6, 1146880
s_mov_b32 s7, 0x20000
s_mov_b32 s8, s70
s_mov_b32 s9, s71
s_mov_b32 s10, 3670016
s_mov_b32 s11, 0x20000
s_mov_b32 s16, s72
s_mov_b32 s17, s73
s_mov_b32 s18, 3670016
s_mov_b32 s19, 0x20000
s_mov_b32 s20, s78
s_mov_b32 s21, s79
s_mov_b32 s22, 0x10000000
s_mov_b32 s23, 0x20000
s_mov_b32 s12, s68
s_mov_b32 s13, s69
s_mov_b32 s14, 0x4000000
s_mov_b32 s15, 0x20000
s_mov_b32 s60, s66
s_mov_b32 s61, s67
s_mov_b32 s62, 0x4000000
s_mov_b32 s63, 0x20000
""")
stamp(3, 3)
for t in range(4):
    A(f"s_add_u32 m0, {sW1K}, {t*8192}")
    A(f"s_add_u32 {sT0}, {sWQO}, {16*t*8192}")
    A(f"buffer_load_dwordx4 v4, {sWQ}, {sT0} offen lds")
for t in range(2):
    A(f"s_add_u32 m0, {sW1K}, {XOFF + t*8192}")
    A(f"s_add_u32 {sT0}, {sXO}, {t*57344}")
    A(f"buffer_load_dwordx4 v3, {sX}, {sT0} offen lds")
A(f"""
s_cmp_lt_u32 {sW}, 4
s_cbranch_scc0 L_PV
""")

vXD, vWD = 3, 4
vW = [5, 6, 7, 8]
vXR = [9, 10]
vQW = [12, 13, 14, 15]
vA0 = 19
vKD = 16
QACC = 176
QA = [96, 112]
QB = [128, 148]

S_Q, S_NM, S_KF, S_L = 96, 36, 20, 7
S_S = [56, 76]
vKA = [1, 2]; vPW = 3; vMX = 4
S_T = [5, 6, 17, 18]
O_ACC, P_A, P_B = 96, 76, 56
VT = [40, 24]
vVB = [1, 2]; vPR = 3; vVD = [12, 13, 14, 15]
E_O = 96
E_ACC = [56, 76]
E_A = 36
vOA = [1, 2, 3]; vOB = [5, 6]; vST = 7


def gen_role(role):
    S = role == "S"
    R = role
    vm = VM(63)
    lg = VM(15)
    tr = ["entry"]

    def seg(n):
        A.seg(f"{R}_{n}")
        tr.append(f"{R}_{n}")

    nx = 3 if S else 2
    vWOD = 35 if S else 4

    def dma(lines, tag):
        def f():
            for x in lines:
                A(x)
            vm.issue(tag)
        return f

    def stage_dma(s):
        sb = STG[s % 3]
        out = []
        for t in range(4):
            out.append(dma([f"s_add_u32 m0, {sW1K}, {sb + t*8192}",
                            f"s_add_u32 {sT0}, {sWQO}, {(s*64 + 16*t) * 8192}",
                            f"buffer_load_dwordx4 v{vWD}, {sWQ}, {sT0} offen lds"], f"st{s}"))
        for t in range(nx):
            out.append(dma([f"s_add_u32 m0, {sW1K}, {sb + XOFF + t*8192}",
                            f"s_add_u32 {sT0}, {sXO}, {t*57344 + s*128}",
                            f"buffer_load_dwordx4 v{vXD}, {sX}, {sT0} offen lds"], f"st{s}"))
        return out

    def k_dma(i):
        slot = i & 3
        out = []
        for sg in range(4):
            l = [f"s_add_u32 m0, {sKDST}, {slot*16384 + sg*2048 - sg*128}",
                 f"buffer_load_dwordx4 v{vKD}, {sKr}, {sKO} offen offset:{sg*128}{NT} lds"]
            if sg == 3:
                l.append(f"s_add_u32 {sKO}, {sKO}, 16384")
            out.append(dma(l, f"K{i}"))
        return out

    vVD_cur = [20, 21, 22, 23]

    def v_dma(t):
        pos = (t + 3) & 3
        out = []
        for jj in range(4):
            l = [f"s_add_u32 m0, {sVDST}, {pos*16384 + jj*1024}",
                 f"buffer_load_dwordx4 v{vVD_cur[jj]}, {sVr}, {sVO} offen{NT} lds"]
            if jj == 3:
                l.append(f"s_add_u32 {sVO}, {sVO}, 16384")
            out.append(dma(l, f"V{t}"))
        return out

    def run(fs):
        for f in fs:
            f()

    seg("pro")
    if not S:
        A("L_PV:")
    for _ in range(6):
        vm.issue("st0")
    if S:
        stage_dma(0)[6]()
    stamp(4, 3)
    A(f"""
    v_lshrrev_b32 v30, 3, v1
    v_lshlrev_b32 v30, 10, v30
    v_and_b32 v31, 7, v1
    v_lshlrev_b32 v31, 7, v31
    v_lshrrev_b32 v32, 1, v1
    v_xor_b32 v33, v2, v32
    v_lshlrev_b32 v33, 4, v33
    v_add3_u32 v{vA0}, v30, v31, v33
    s_mul_i32 {sT0}, {sHP}, 10240
    s_add_u32 {sT0}, {sT0}, {XOFF}
    v_add_u32 v{vXR[0]}, {sT0}, v{vA0}
    v_xor_b32 v{vXR[1]}, 64, v{vXR[0]}
    v_lshrrev_b32 v24, 2, v1
    v_and_b32 v25, 1, v2
    v_lshlrev_b32 v25, 2, v25
    v_or_b32 v25, v25, v24
    v_lshl_add_u32 v26, v2, 3, v24
    v_lshlrev_b32 v26, 9, v26
    v_and_b32 v27, 3, v0
    v_lshl_add_u32 v26, v27, 3, v26
    s_lshl_b32 {sT0}, {sDQ}, 2
    v_xor_b32 v25, {sT0}, v25
    """)
    for m in range(4):
        A(f"v_xor_b32 v28, {m}, v25")
        A(f"v_lshl_add_u32 v{vW[m]}, v28, 5, v26")
    A(f"""
    v_lshrrev_b32 v24, 1, v2
    v_xor_b32 v24, v24, v32
    v_and_b32 v25, 1, v2
    v_lshlrev_b32 v25, 3, v25
    v_add3_u32 v25, v30, v31, v25
    s_mul_i32 {sT0}, {sHP}, 40960
    s_lshl_b32 {sT1}, {sDQ}, 11
    s_add_u32 {sT0}, {sT0}, {sT1}
    v_add_u32 v25, {sT0}, v25
    """)
    for m in range(4):
        A(f"v_xor_b32 v28, {2*m}, v24")
        A(f"v_lshl_add_u32 v{vQW[m]}, v28, 4, v25")
    A(f"""
    s_mov_b32 {sVO}, {sKV0}
    s_lshl_b32 {sT0}, {sQH}, 2
    v_add_u32 v24, {sT0}, v2
    v_and_b32 v25, 7, v0
    v_xor_b32 v24, v24, v25
    v_lshlrev_b32 v24, 4, v24
    v_lshrrev_b32 v25, 3, v0
    s_lshl_b32 {sT0}, {sKH}, 4
    s_lshl_b32 {sT1}, {sQH}, 3
    s_add_u32 {sT0}, {sT0}, {sT1}
    v_add_u32 v25, {sT0}, v25
    v_lshl_add_u32 v{vKD}, v25, 9, v24
    s_lshl_b32 {sT0}, {sKH}, 13
    s_lshl_b32 {sT1}, {sQH}, 10
    s_add_u32 {sKDST}, {sT0}, {sT1}
    s_add_u32 {sKDST}, {sKDST}, {KRING}
    """)
    if True:
        A(f"""
        s_mov_b32 {sKO}, {sKV0}
        v_and_b32 v24, 1, v2
        v_lshlrev_b32 v24, 2, v24
        v_and_b32 v25, 7, v0
        v_xor_b32 v24, v24, v25
        v_lshlrev_b32 v24, 4, v24
        v_lshrrev_b32 v25, 3, v0
        v_lshl_add_u32 v24, v25, 9, v24
        s_lshl_b32 {sT0}, {sDQ}, 7
        v_add_u32 v20, {sT0}, v24
        v_add_u32 v21, 4096, v20
        v_add_u32 v22, 8192, v20
        v_add_u32 v23, 12288, v20
        s_lshl_b32 {sVDST}, {sDQ}, 12
        s_add_u32 {sVDST}, {sVDST}, {VRING}
        """)

    stamp(5, 3)
    run(stage_dma(1) + stage_dma(2))

    def q_reads(s2):
        out = []
        for qt in range(5):
            out.append(f"ds_read_b128 {vr(QB[s2] + qt*4, 4)}, v{vXR[s2]} offset:{qt*2048}")
        for m in range(4):
            for e in range(2):
                out.append(f"ds_read_b64_tr_b16 {vr(QA[s2] + m*4 + e*2, 2)}, v{vW[m]} offset:{(32*s2 + 4*e) * 512}")
        return out

    def q_mfma(s2, first):
        out = []
        for m in range(4):
            for qt in range(5):
                acc = vr(QACC + (m*5 + qt) * 4, 4)
                out.append(f"v_mfma_f32_16x16x32_bf16 {acc}, {vr(QA[s2] + m*4, 4)}, {vr(QB[s2] + qt*4, 4)}, {'0' if first else acc}")
        return out

    for s in range(7):
        if s == 0:
            stamp(6, 3)
        A(f"s_waitcnt vmcnt({vm.wait(f'st{s}')})")
        if s == 0:
            stamp(7, 3)
        A("s_barrier")
        if s <= 3:
            stamp(8 + s, 3)
        if s == 0:
            stamp(3)
        d = []
        if 1 <= s <= 4:
            d = stage_dma(s + 2)
        if s == 5 and S:
            d = v_dma(0)
        if s == 6 and S:
            d = k_dma(0) + k_dma(1) + k_dma(2)
        upd = []
        if s < 6:
            dl = STG[(s + 1) % 3] - STG[s % 3]
            upd = [[f"s_mov_b32 {sT1}, {dl & 0xffffffff}", f"v_add_u32 v{vW[0]}, {sT1}, v{vW[0]}"]] + \
                  [f"v_add_u32 v{r}, {sT1}, v{r}" for r in vW[1:] + vXR]
        if s >= 1:
            weave(q_mfma(1, False), q_reads(0) + d[:7])
            d = d[7:]
        else:
            weave(q_reads(0), [])
        A("s_waitcnt lgkmcnt(0)")
        weave(q_mfma(0, s == 0), q_reads(1) + d + upd)
        A("s_waitcnt lgkmcnt(0)")
    stamp(4)
    A("s_barrier")
    fin = q_mfma(1, False)
    def q_out(idx):
        m, qt = divmod(idx, 5)
        a = QACC + idx * 4
        return [f"v_mul_f32 v{a}, {sC}, v{a}", f"v_mul_f32 v{a+1}, {sC}, v{a+1}",
                f"v_mul_f32 v{a+2}, {sC}, v{a+2}", f"v_mul_f32 v{a+3}, {sC}, v{a+3}",
                f"v_cvt_pk_bf16_f32 v{a}, v{a}, v{a+1}", f"v_cvt_pk_bf16_f32 v{a+1}, v{a+2}, v{a+3}",
                f"ds_write_b64 v{vQW[m]}, {vr(a, 2)} offset:{qt*8192}"]
    for j, mf in enumerate(fin):
        A(mf)
        if j >= 3:
            for x in q_out(j - 3):
                A(x)
    if S:
        A(f"""
        s_mul_i32 {sT0}, {sQH}, 40960
        v_add_u32 v17, {sT0}, v{vA0}
        v_xor_b32 v18, 64, v17
        v_lshrrev_b32 v32, 1, v2
        s_lshl_b32 {sT0}, {sKH}, 1
        v_add_u32 v32, {sT0}, v32
        v_mul_u32_u24 v32, 2560, v32
        v_and_b32 v33, 1, v2
        v_lshl_add_u32 v32, v33, 3, v32
        s_mul_i32 {sT0}, {sQH}, 80
        v_add_u32 v33, {sT0}, v1
        v_lshl_add_u32 v{vPW}, v33, 4, v32
        s_lshl_b32 {sT0}, {sKH}, 2
        v_lshlrev_b32 v33, 3, v33
        v_add_u32 v{vMX}, {sT0}, v33
        s_lshl_b32 {sT0}, {sKH}, 13
        s_add_u32 {sT0}, {sT0}, {KRING}
        v_add_u32 v{vKA[0]}, {sT0}, v{vA0}
        v_xor_b32 v{vKA[1]}, 64, v{vKA[0]}
        """)
        for qt in range(5):
            A(f"v_mov_b32 v{S_L+qt}, 0xff800000")
    else:
        A(f"""
        v_lshrrev_b32 v30, 2, v1
        v_lshrrev_b32 v31, 5, v0
        v_lshl_add_u32 v32, v31, 3, v30
        v_lshlrev_b32 v32, 7, v32
        v_lshrrev_b32 v33, 1, v30
        v_lshl_add_u32 v32, v33, 6, v32
        v_and_b32 v33, 1, v2
        v_lshl_add_u32 v32, v33, 5, v32
        v_and_b32 v33, 3, v0
        v_lshl_add_u32 v32, v33, 3, v32
        v_mul_u32_u24 v31, 2560, v31
        v_and_b32 v33, 31, v0
        v_lshl_add_u32 v{vPR}, v33, 4, v31
        v_add_u32 v{vVB[0]}, {sVDST}, v32
        v_xor_b32 v{vVB[1]}, 64, v{vVB[0]}
        """)
    for j in range(17, 20):
        for x in q_out(j):
            A(x)
    if S:
        for j in range(4):
            A(f"v_mov_b32 v{vVD[j]}, v{20+j}")
        vVD_cur[:] = vVD
    A("s_waitcnt lgkmcnt(0)")
    A("s_barrier")
    if S:
        for qt in range(5):
            for s in range(8):
                A(f"ds_read_b128 {vr(S_Q + (qt*8 + s)*4, 4)}, v{17 + (s & 1)} offset:{qt*8192 + (s >> 1)*2048}")
        if OPT["prio"]:
            A(f"s_setprio {OPT['prio']}")
    vm_join = list(vm.q)
    seg("join")
    A(f"L_{R}_join:")
    if S:
        A(f"s_waitcnt vmcnt({vm.wait('K0')}) lgkmcnt(0)")
    A("s_barrier")
    stamp(5)

    def fst(i, k):
        if i == OPT["fine"]:
            stamp(k, 2)

    def softmax_fill(j):
        SS = S_S[j & 1]; buf = j & 1
        out = []
        for qt in range(5):
            a = SS + qt*4
            t0, t1 = (S_T[0], S_T[1]) if qt % 2 == 0 else (S_T[2], S_T[3])
            ex = [(2, f"v_exp_f32 v{a+r}, v{a+r}") for r in range(4)]
            def wr(a=a, qt=qt):
                A(f"ds_write_b64 v{vPW}, {vr(a, 2)} offset:{P_BUF + buf*10240 + qt*256}")
                lg.issue("pw")
            post = [(1, f"v_add_f32 v{t0}, v{a}, v{a+1}"), (1, f"v_add_f32 v{t1}, v{a+2}, v{a+3}"),
                    (1, f"v_cvt_pk_bf16_f32 v{a}, v{a}, v{a+1}"), (1, f"v_cvt_pk_bf16_f32 v{a+1}, v{a+2}, v{a+3}"),
                    (1, f"v_add_f32 v{t0}, v{t0}, v{t1}"), (1, wr),
                    (1, f"v_mov_b32 v{S_L+qt}, v{t0}" if j == 0 else f"v_add_f32 v{S_L+qt}, v{S_L+qt}, v{t0}")]
            out.append((ex, post))
        seq = list(out[0][0])
        for qt in range(5):
            if qt + 1 < 5:
                e = out[qt + 1][0]; p = out[qt][1]
                seq += [e[0], p[0], p[1], e[1], p[2], p[3], e[2], p[4], p[5], e[3], p[6]]
            else:
                seq += out[qt][1]
        return seq

    def s_interval(i):
        slot = i & 3
        fill = softmax_fill(i - 1) if i >= 1 else []
        def put(n):
            while fill and n >= fill[0][0]:
                c, it = fill.pop(0)
                n -= c
                it() if callable(it) else A(it)
        def kread(s):
            A(f"ds_read_b128 {vr(S_KF + (s & 3)*4, 4)}, v{vKA[s & 1]} offset:{slot*16384 + (s >> 1)*2048}")
            lg.issue(f"kf{s}")
        fst(i, 3)
        if i <= 31:
            SS = S_S[i & 1]
            for s in range(4):
                kread(s)
            d = []
            if i == 0:
                d += v_dma(1)
            if i + 3 <= 31:
                d += k_dma(i + 3)
            if i + 2 <= 31:
                d += v_dma(i + 2)
            for f in d:
                f()
                put(OPT["pre"])
            for s in range(8):
                A(f"s_waitcnt lgkmcnt({lg.wait(f'kf{s}')})")
                if s == 0:
                    fst(i, 4)
                for qt in range(5):
                    acc = vr(SS + qt*4, 4)
                    c = acc if s else ("0" if i == 0 else vr(S_NM + qt*4, 4))
                    A(f"v_mfma_f32_16x16x32_bf16 {acc}, {vr(S_KF + (s & 3)*4, 4)}, {vr(S_Q + (qt*8 + s)*4, 4)}, {c}")
                    if qt == 1 and 1 <= s <= 4:
                        kread(s + 3)
                        put(1)
                    elif qt == 4:
                        put(1)
                    else:
                        put(2)
            fst(i, 5)
        put(1000)
        fst(i, 6)
        if i == 0:
            SS = S_S[0]
            for qt in range(5):
                a = SS + qt*4; t = S_KF + qt*2
                A(f"v_max3_f32 v{t}, v{a}, v{a+1}, v{S_L+qt}")
                A(f"v_max3_f32 v{t}, v{a+2}, v{a+3}, v{t}")
                A(f"v_mov_b32 v{t+1}, v{t}")
            for qt in range(5):
                t = S_KF + qt*2
                A(f"v_permlane32_swap_b32 v{t}, v{t+1}")
            for qt in range(5):
                t = S_KF + qt*2
                A(f"v_max_f32 v{t}, v{t}, v{t+1}")
                A(f"v_mov_b32 v{t+1}, v{t}")
            for qt in range(5):
                t = S_KF + qt*2
                A(f"v_permlane16_swap_b32 v{t}, v{t+1}")
            for qt in range(5):
                t = S_KF + qt*2
                A(f"v_max_f32 v{t}, v{t}, v{t+1}")
                A(f"ds_write_b32 v{vMX}, v{t} offset:{MX_OFF + qt*128}")
            A("s_waitcnt lgkmcnt(0)")
            A("s_barrier")
            A(f"v_and_b32 v5, 0xfffffffb, v{vMX}")
            for qt in range(5):
                A(f"ds_read_b64 {vr(S_KF + qt*2, 2)}, v5 offset:{MX_OFF + qt*128}")
            for qt in range(5):
                t = S_KF + qt*2
                A(f"s_waitcnt lgkmcnt({4 - qt})")
                A(f"v_max_f32 v{t}, v{t}, v{t+1}")
                for r in range(4):
                    A(f"v_sub_f32 v{S_NM + qt*4 + r}, 0, v{t}")
                for r in range(4):
                    A(f"v_sub_f32 v{SS + qt*4 + r}, v{SS + qt*4 + r}, v{t}")
        if i == 32:
            wo_addr()
            run(wo_dma(0) + wo_dma(1))
        need = [t for t in (f"K{i+1}", f"V{i}") if vm.has(t)]
        if need:
            last = max(need, key=lambda t: max(k for k, x in enumerate(vm.q) if x == t))
            A(f"s_waitcnt vmcnt({vm.wait(last)}) lgkmcnt(0)")
        else:
            A("s_waitcnt lgkmcnt(0)")
        lg.clear()
        fst(i, 7)
        A("s_barrier")
        fst(i, 8)

    def vt_reads(t):
        pos = (t + 3) & 3
        out = []
        for s16 in range(2):
            for tt in range(2):
                for e in range(2):
                    out.append(f"ds_read_b64_tr_b16 {vr(VT[t & 1] + (s16*2 + tt)*4 + e*2, 2)}, v{vVB[tt]} offset:{pos*16384 + (16*s16 + 4*e)*128}")
        return out

    def pv_mfma(t, s16, P, first):
        out = []
        for qt in range(5):
            for tt in range(2):
                acc = vr(O_ACC + (tt*5 + qt)*16, 16)
                out.append(f"v_mfma_f32_32x32x16_bf16 {acc}, {vr(VT[t & 1] + (s16*2 + tt)*4, 4)}, {vr(P + qt*4, 4)}, {'0' if first else acc}")
        return out

    def wo_addr():
        A(f"""
        v_bfe_u32 v21, v0, 4, 1
        s_and_b32 {sT0}, {sW}, 1
        s_lshl_b32 {sT0}, {sT0}, 1
        v_or_b32 v21, {sT0}, v21
        v_lshlrev_b32 v21, 1, v21
        v_and_b32 v22, 7, v0
        v_xor_b32 v21, v21, v22
        v_lshrrev_b32 v22, 3, v0
        s_lshl_b32 {sT0}, {sW}, 3
        v_add_u32 v22, {sT0}, v22
        v_mul_u32_u24 v22, 896, v22
        v_lshl_add_u32 v{vWOD}, v21, 4, v22
        """)

    def wo_dma(j):
        out = []
        for t in range(4):
            out.append(dma([f"s_add_u32 m0, {sW1K}, {WSL[j % 5] + t*8192}",
                            f"s_add_u32 {sT0}, {sWOO}, {t*57344 + j*128}",
                            f"buffer_load_dwordx4 v{vWOD}, {sWO}, {sT0} offen lds"], f"wo{j}"))
        return out

    def pv_interval(i):
        if i == 0:
            A("s_barrier")
            A("s_barrier")
            return
        if i == 1:
            for x in vt_reads(0):
                A(x)
            A("s_waitcnt lgkmcnt(0)")
            A("s_barrier")
            return
        t = i - 2; buf = t & 1
        fst(i, 3)
        pa = [f"ds_read_b128 {vr(P_A + qt*4, 4)}, v{vPR} offset:{P_BUF + buf*10240 + qt*512}" for qt in range(5)]
        pb = [f"ds_read_b128 {vr(P_B + qt*4, 4)}, v{vPR} offset:{P_BUF + buf*10240 + 5120 + qt*512}" for qt in range(5)]
        if t >= 1:
            weave(pv_mfma(t - 1, 1, P_B, False), pa + pb[:3] + [[]] + [pb[3]])
        else:
            for x in pa + pb[:4]:
                A(x)
        fst(i, 4)
        A("s_waitcnt lgkmcnt(4)")
        fst(i, 5)
        d = []
        if i == 32:
            d = [wo_addr] + wo_dma(0) + wo_dma(1)
        if i == OPT.get("touch", -1):
            d = [[f"v_lshlrev_b32 v5, 7, v0", f"s_mul_i32 {sT1}, {sDQ}, 57344", f"s_add_u32 {sT1}, {sT1}, {sWOO}"]]
            for k in range(7):
                d.append(dma([f"buffer_load_dword v6, v5, {sWO}, {sT1} offen", f"s_add_u32 {sT1}, {sT1}, 8192"], "tch"))
        vt = vt_reads(t + 1) if t + 1 <= 31 else []
        weave(pv_mfma(t, 0, P_A, t == 0), [vt[:3], [pb[4]] + vt[3:5], vt[5:]] + d)
        fst(i, 6)
        A("s_waitcnt lgkmcnt(0)")
        fst(i, 7)
        A("s_barrier")
        fst(i, 8)

    interval = s_interval if S else pv_interval
    seg("g0")
    for i in range(4):
        interval(i)
    stamp(6)
    A(f"s_mov_b32 {sCNT}, 6")
    q_before = list(vm.q)
    seg("loop")
    A(f"L_{R}_loop:")
    for i in range(4, 8):
        interval(i)
    A(f"s_sub_u32 {sCNT}, {sCNT}, 1")
    A(f"s_cmp_lg_u32 {sCNT}, 0")
    A(f"s_cbranch_scc1 L_{R}_loop")
    sh = lambda q, d: [t[0] + str(int(t[1:]) + d) for t in q]
    assert sh(q_before, 4) == vm.q, (q_before, vm.q)
    vm.q = sh(vm.q, 20)
    tr.append(f"{R}_loop")
    seg("gl")
    stamp(7)
    for i in range(28, 33):
        interval(i)
    if S:
        if OPT["prio"]:
            A("s_setprio 0")
        for qt in range(5):
            A(f"v_mov_b32 v{S_KF + qt}, v{S_L + qt}")
        for qt in range(5):
            A(f"v_permlane32_swap_b32 v{S_KF + qt}, v{S_L + qt}")
        for qt in range(5):
            A(f"v_add_f32 v{S_L + qt}, v{S_L + qt}, v{S_KF + qt}")
            A(f"v_mov_b32 v{S_KF + qt}, v{S_L + qt}")
        for qt in range(5):
            A(f"v_permlane16_swap_b32 v{S_KF + qt}, v{S_L + qt}")
        A(f"v_add_u32 v5, {ST_L}, v{vMX}")
        for qt in range(5):
            A(f"v_add_f32 v{S_L + qt}, v{S_L + qt}, v{S_KF + qt}")
            A(f"ds_write_b32 v5, v{S_L + qt} offset:{qt*128}")
        A("s_waitcnt lgkmcnt(0)")
        A("s_barrier")
    else:
        pv_interval(33)

    seg("post")
    stamp(8)
    A(f"""
    v_lshlrev_b32 v17, 3, v0
    v_min_u32 v18, 31, v0
    v_lshlrev_b32 v18, 3, v18
    v_add_u32 v17, {ST_L}, v17
    v_add_u32 v18, {ST_L}, v18
    ds_read_b64 v[8:9], v17
    ds_read_b64 v[20:21], v17 offset:512
    ds_read_b64 v[22:23], v18 offset:1024
    """)
    if not S:
        for x in pv_mfma(31, 1, P_B, False):
            A(x)
    A(f"""
    s_waitcnt lgkmcnt(0)
    v_add_f32 v8, v8, v9
    v_add_f32 v20, v20, v21
    v_add_f32 v22, v22, v23
    v_cmp_ge_f32 s[50:51], {sLIM}, v8
    v_cmp_ge_f32 s[52:53], {sLIM}, v20
    v_cmp_ge_f32 s[54:55], {sLIM}, v22
    s_and_b64 s[50:51], s[50:51], s[52:53]
    s_and_b64 s[50:51], s[50:51], s[54:55]
    s_cmp_eq_u64 s[50:51], -1
    s_cbranch_scc1 L_{R}_ok
    s_cmp_eq_u32 {sRETRY}, 0
    s_cbranch_scc1 L_{R}_fallback
    """)
    seg("epi")
    A(f"L_{R}_ok:")
    if S:
        A(f"v_and_b32 v5, 0xfffffffb, v{vMX}")
        A(f"v_add_u32 v6, {ST_L}, v5")
        for qt in range(5):
            A(f"ds_read_b64 {vr(S_KF + 4 + qt*2, 2)}, v6 offset:{qt*128}")
        A(f"""
        s_mul_i32 {sT0}, {sB}, 40960
        s_lshl_b32 {sT1}, {sHQ}, 4
        s_add_u32 {sT0}, {sT0}, {sT1}
        s_lshl_b32 {sT1}, {sHALF}, 3
        s_add_u32 {sT0}, {sT0}, {sT1}
        s_add_u32 {sT0}, {sT0}, {STAT_OFF}
        v_lshlrev_b32 v5, 5, v5
        """)
        for qt in range(5):
            t = S_KF + 4 + qt*2
            A(f"s_waitcnt lgkmcnt({4 - qt})")
            A(f"v_add_f32 v{t+1}, v{t}, v{t+1}")
            A(f"v_sub_f32 v{t}, 0, v{S_NM + qt*4}")
            A(f"buffer_store_dwordx2 {vr(t, 2)}, v5, {sWS}, {sT0} offen")
            A(f"s_add_u32 {sT0}, {sT0}, 4096")
            vm.issue("lse")
    else:
        A(f"""
        v_and_b32 v17, 15, v0
        v_lshrrev_b32 v18, 3, v17
        v_lshlrev_b32 v18, 10, v18
        v_and_b32 v20, 7, v17
        v_lshl_add_u32 v18, v20, 7, v18
        v_lshrrev_b32 v20, 1, v17
        v_lshl_add_u32 v18, v20, 4, v18
        v_lshrrev_b32 v20, 5, v0
        v_lshl_add_u32 v18, v20, 3, v18
        v_bfe_u32 v20, v0, 4, 1
        v_lshl_add_u32 v18, v20, 13, v18
        s_lshl_b32 {sT0}, {sDQ}, 11
        v_add_u32 v18, {sT0}, v18
        """)
        for p in range(8):
            A(f"v_xor_b32 v{40 + p}, {p << 4}, v18")
            A(f"v_add_u32 v{48 + p}, 0x10000, v{40 + p}")
        for qt in range(5):
            for tt in range(2):
                for rq in range(4):
                    p = 4*tt + rq
                    a = O_ACC + (tt*5 + qt)*16 + rq*4
                    A(f"v_cvt_pk_bf16_f32 v{a}, v{a}, v{a+1}")
                    A(f"v_cvt_pk_bf16_f32 v{a+1}, v{a+2}, v{a+3}")
                    if qt < 4:
                        A(f"ds_write_b64 v{40 + p}, {vr(a, 2)} offset:{qt*16384}")
                    else:
                        A(f"ds_write_b64 v{48 + p}, {vr(a, 2)}")
    A(f"""
    v_and_b32 v16, 15, v0
    v_lshrrev_b32 v17, 4, v0
    v_lshrrev_b32 v18, 2, v16
    v_lshl_add_u32 v11, v17, 3, v18
    v_lshlrev_b32 v11, 7, v11
    v_and_b32 v10, 3, v0
    v_lshl_add_u32 v11, v10, 3, v11
    v_lshrrev_b32 v18, 1, v18
    v_and_b32 v10, 1, v17
    v_lshl_add_u32 v18, v10, 1, v18
    v_xor_b32 v18, {sDQ}, v18
    v_lshl_add_u32 v{vOA[0]}, v18, 5, v11
    v_add_u32 v{vOA[1]}, 0x10000, v{vOA[0]}
    v_add_u32 v{vOA[2]}, 0x20000, v{vOA[0]}
    s_mul_i32 {sT2}, {sHP}, 40960
    v_add_u32 v{vOB[0]}, {sT2}, v{vA0}
    v_xor_b32 v{vOB[1]}, 64, v{vOB[0]}
    v_lshrrev_b32 v18, 1, v17
    v_lshlrev_b32 v18, 8, v18
    v_lshl_add_u32 v18, v16, 4, v18
    v_and_b32 v11, 1, v17
    v_lshl_add_u32 v{vST}, v11, 3, v18
    s_mul_i32 {sT1}, {sDQ}, 5120
    s_mul_i32 {sT2}, {sHP}, 2560
    s_add_u32 {sPART}, {sPART}, {sT1}
    s_add_u32 {sPART}, {sPART}, {sT2}
    """)

    def lds(line, tag):
        def f():
            A(line)
            lg.issue(tag)
        return f

    def a_read(j, ks):
        sl = WSL[j % 5]
        out = []
        for e in range(2):
            off = sl + (32*ks + 4*e) * 128
            out.append(lds(f"ds_read_b64_tr_b16 {vr(E_A + (ks & 3)*4 + e*2, 2)}, v{vOA[off >> 16]} offset:{off & 0xffff}", f"a{j}_{ks}"))
        return out

    def b_read(ks):
        return [lds(f"ds_read_b128 {vr(E_O + (qt*8 + ks)*4, 4)}, v{vOB[ks & 1]} offset:{qt*8192 + (ks >> 1)*2048}", f"a0_{ks}") for qt in range(5)]

    def e_mfma(j, ks):
        out = []
        for qt in range(5):
            acc = vr(E_ACC[j & 1] + qt*4, 4)
            out.append(f"v_mfma_f32_16x16x32_bf16 {acc}, {vr(E_A + (ks & 3)*4, 4)}, {vr(E_O + (qt*8 + ks)*4, 4)}, {'0' if ks == 0 else acc}")
        return out

    def e_out(j):
        out = []
        for qt in range(5):
            a = E_ACC[j & 1] + qt*4
            out.append([f"v_cvt_pk_bf16_f32 v{a}, v{a}, v{a+1}", f"v_cvt_pk_bf16_f32 v{a+1}, v{a+2}, v{a+3}"])
            l = [f"buffer_store_dwordx2 {vr(a, 2)}, v{vST}, {sWS}, {sPART} offen offset:{qt*512}{OPT.get('stf', '').replace('+', ' ')}"]
            if OPT.get("nostore"):
                l = ["s_nop 0"]
            if qt == 4:
                l.append(f"s_add_u32 {sPART}, {sPART}, 20480")
            out.append(dma(l, "out") if not OPT.get("nostore") else l)
        return out

    def wait_a(j, ks):
        if lg.has(f"a{j}_{ks}"):
            A(f"s_waitcnt lgkmcnt({lg.wait(f'a{j}_{ks}')})")

    lg.clear()
    for j in range(7):
        A(f"s_waitcnt vmcnt({vm.wait(f'wo{j}')}) lgkmcnt(0)")
        lg.clear()
        A("s_barrier")
        if j == 0:
            stamp(9)
            run(b_read(0) + a_read(0, 0) + b_read(1) + a_read(0, 1))
            for ks in range(6):
                wait_a(0, ks)
                weave(e_mfma(0, ks), b_read(ks + 2) + a_read(0, ks + 2), per=2)
        else:
            d = []
            if j == 1:
                d = wo_dma(2) + wo_dma(3) + wo_dma(4) + wo_dma(5)
            if j == 2:
                d = wo_dma(6)
            run(a_read(j, 0) + a_read(j, 1))
            weave(e_mfma(j - 1, 6), d[:4]); d = d[4:]
            weave(e_mfma(j - 1, 7), [[], []] + a_read(j, 2))
            fill = d + e_out(j - 1)
            for ks in range(6):
                wait_a(j, ks)
                rd = a_read(j, ks + 3) if ks + 3 <= 7 else []
                k = 5 - len(rd) - 1
                weave(e_mfma(j, ks), [fill.pop(0) if fill else []] + rd + [fill.pop(0) if fill else [] for _ in range(k)])
            for f in fill:
                weave([f], [])
    A("s_waitcnt lgkmcnt(0)")
    weave(e_mfma(6, 6) + e_mfma(6, 7), [])
    stamp(10)
    weave(e_out(6), [])
    if OPT["stamps"]:
        stamp(11)
        A("s_waitcnt vmcnt(0)")
        stamp(12)
        A("s_memrealtime s[58:59]")
        A("s_waitcnt lgkmcnt(0)")
        A("v_mov_b32 v20, s56")
        A("v_mov_b32 v21, s58")
        for k in range(2, 13):
            A(f"v_mov_b32 v{20+k}, s{76+2*k}")
        A("v_mov_b32 v33, 0")
        A("v_mov_b32 v34, 0")
        A("v_mov_b32 v35, 0")
        A(f"s_lshl_b32 {sT0}, s2, 9")
        A(f"s_lshl_b32 {sT1}, {sW}, 6")
        A(f"s_add_u32 {sT0}, {sT0}, {sT1}")
        A(f"s_add_u32 {sT0}, {sT0}, {STAMP_OFF}")
        A("v_mov_b32 v40, 0")
        for j in range(4):
            A(f"buffer_store_dwordx4 v[{20+4*j}:{23+4*j}], v40, {sWS}, {sT0} offen offset:{16*j}")
        if OPT.get("dbg") is not None and S:
            A(f"s_cmp_lg_u32 s2, {OPT['dbg']}")
            A(f"s_cbranch_scc1 L_nodbg")
            A(f"s_cmp_lg_u32 {sW}, 0")
            A(f"s_cbranch_scc1 L_nodbg")
            A("s_load_dwordx2 s[64:65], s[0:1], 48")
            A("v_sub_u32 v21, v21, v20")
            for k in range(12, 2, -1):
                A(f"v_sub_u32 v{20+k}, v{20+k}, v{19+k}")
            A("s_waitcnt lgkmcnt(0)")
            A("s_mov_b32 s66, 256")
            A("s_mov_b32 s67, 0x20000")
            for j in range(4):
                A(f"buffer_store_dwordx4 v[{20+4*j}:{23+4*j}], v40, s[64:67], 0 offen offset:{16*j}")
            A("L_nodbg:")
    A("s_endpgm")
    A.trace(tr)

    tr2 = [f"{R}_gl", f"{R}_post"]
    A.seg(f"{R}_fb"); tr2.append(f"{R}_fb")
    A(f"L_{R}_fallback:")
    A(f"""
    s_mov_b32 {sRETRY}, 1
    s_waitcnt vmcnt(0) lgkmcnt(0)
    s_barrier
    s_mov_b32 {sKO}, {sKV0}
    s_mov_b32 {sCNT}, 32
    """)
    if S:
        for qt in range(5):
            A(f"v_mov_b32 v{S_L+qt}, 0xff800000")
    A.seg(f"{R}_fbl"); tr2 += [f"{R}_fbl", f"{R}_fbl"]
    A(f"L_{R}_fbl:")
    if S:
        vm.clear()
        run(k_dma(0))
        A("s_waitcnt vmcnt(0)")
        A("s_barrier")
        for hh in range(2):
            for s in range(4*hh, 4*hh + 4):
                A(f"ds_read_b128 {vr(S_KF + (s & 3)*4, 4)}, v{vKA[s & 1]} offset:{(s >> 1)*2048}")
            A("s_waitcnt lgkmcnt(0)")
            for s in range(4*hh, 4*hh + 4):
                for qt in range(5):
                    acc = vr(S_S[0] + qt*4, 4)
                    A(f"v_mfma_f32_16x16x32_bf16 {acc}, {vr(S_KF + (s & 3)*4, 4)}, {vr(S_Q + (qt*8 + s)*4, 4)}, {acc if s else '0'}")
        for qt in range(5):
            a = S_S[0] + qt*4
            A(f"v_max3_f32 v{S_L+qt}, v{a}, v{a+1}, v{S_L+qt}")
            A(f"v_max3_f32 v{S_L+qt}, v{a+2}, v{a+3}, v{S_L+qt}")
        A("s_barrier")
    else:
        A("s_barrier")
        A("s_barrier")
    A(f"s_sub_u32 {sCNT}, {sCNT}, 1")
    A(f"s_cmp_lg_u32 {sCNT}, 0")
    A(f"s_cbranch_scc1 L_{R}_fbl")
    A.seg(f"{R}_fbe"); tr2 += [f"{R}_fbe", f"{R}_join", f"{R}_g0"]
    vm.clear()
    if S:
        A(f"s_mov_b32 {sKO}, {sKV0}")
        A(f"s_mov_b32 {sVO}, {sKV0}")
        run(v_dma(0) + k_dma(0) + k_dma(1) + k_dma(2))
        if OPT["prio"]:
            A(f"s_setprio {OPT['prio']}")
    assert vm.q == [t for t in vm_join if not t.startswith("st")], (vm.q, vm_join)
    A(f"s_branch L_{R}_join")
    A.trace(tr2)


gen_role("S")
gen_role("PV")
A.seg("k1end")
A("L_end:")
A("s_endpgm")

A.seg("k2head")
A(".globl reduce_kernel")
A(".p2align 8")
A(".type reduce_kernel,@function")
A("reduce_kernel:")
A.seg("k2")
A(f"""
s_cmp_ge_u32 s2, 280
s_cbranch_scc1 L_k2end
s_load_dwordx2 s[4:5], s[0:1], 40
s_load_dwordx2 s[8:9], s[0:1], 56
s_mul_i32 s12, s2, 1873
s_lshr_b32 s12, s12, 16
s_mul_i32 s13, s12, 35
s_sub_u32 s13, s2, s13
s_lshl_b32 s13, s13, 8
v_add_u32 v1, s13, v0
v_lshlrev_b32 v2, 4, v1
v_lshrrev_b32 v3, 5, v1
v_mul_u32_u24 v4, 6554, v3
v_lshrrev_b32 v4, 16, v4
v_mul_u32_u24 v5, 10, v4
v_sub_u32 v5, v3, v5
v_and_b32 v6, 15, v1
v_lshl_add_u32 v5, v5, 4, v6
v_bfe_u32 v6, v1, 4, 1
v_lshlrev_b32 v6, 4, v6
v_lshl_add_u32 v6, v4, 5, v6
v_mul_u32_u24 v7, 896, v5
v_add_u32 v6, v6, v7
v_lshlrev_b32 v7, 8, v5
s_mul_i32 s14, s12, {32*PART_BYTES}
s_mul_i32 s15, s12, 40960
s_add_u32 s15, s15, {STAT_OFF}
s_mul_i32 s16, s12, 143360
s_waitcnt lgkmcnt(0)
s_mov_b32 s6, 1146880
s_mov_b32 s7, 0x20000
s_mov_b32 s10, 0x10000000
s_mov_b32 s11, 0x20000
""")
L0, D0, AC = 16, 80, 8
for j in range(16):
    A(f"buffer_load_dwordx4 {vr(L0 + j*4, 4)}, v7, s[8:11], s15 offen offset:{j*16}")
for p in range(32):
    A(f"buffer_load_dwordx4 {vr(D0 + p*4, 4)}, v2, s[8:11], s14 offen")
    A(f"s_add_u32 s14, s14, {PART_BYTES}")
for h in range(16):
    ma, la, mb, lb = L0 + 4*h, L0 + 4*h + 1, L0 + 4*h + 2, L0 + 4*h + 3
    A(f"s_waitcnt vmcnt({32 + 15 - h})")
    A(f"v_sub_f32 v1, v{mb}, v{ma}")
    A(f"v_sub_f32 v3, v{ma}, v{mb}")
    A(f"v_exp_f32 v1, v1")
    A(f"v_exp_f32 v3, v3")
    A(f"v_fma_f32 v1, v1, v{lb}, v{la}")
    A(f"v_fma_f32 v3, v3, v{la}, v{lb}")
    A(f"v_rcp_f32 v{ma}, v1")
    A(f"v_rcp_f32 v{mb}, v3")
for p in range(32):
    A(f"s_waitcnt vmcnt({31 - p})")
    wreg = L0 + 2*p
    for r in range(4):
        d = D0 + p*4 + r
        A(f"v_lshlrev_b32 v1, 16, v{d}")
        A(f"v_and_b32 v3, 0xffff0000, v{d}")
        if p == 0:
            A(f"v_mul_f32 v{AC + 2*r}, v{wreg}, v1")
            A(f"v_mul_f32 v{AC + 2*r + 1}, v{wreg}, v3")
        else:
            A(f"v_fmac_f32 v{AC + 2*r}, v{wreg}, v1")
            A(f"v_fmac_f32 v{AC + 2*r + 1}, v{wreg}, v3")
for r in range(4):
    A(f"v_cvt_pk_bf16_f32 v{L0 + r}, v{AC + 2*r}, v{AC + 2*r + 1}")
A(f"buffer_store_dwordx4 {vr(L0, 4)}, v6, s[4:7], s16 offen")
A("L_k2end:")
A("s_endpgm")
A.trace(["k2"])

A.seg("desc")
A('.section .rodata,"a"')
for name, nv in (("attn_kernel", 256), ("reduce_kernel", 208)):
    A(".p2align 6")
    A(f".amdhsa_kernel {name}")
    A(f".amdhsa_next_free_vgpr {nv}")
    A(".amdhsa_next_free_sgpr 102")
    A(f".amdhsa_accum_offset {nv}")
    A(".amdhsa_group_segment_fixed_size 0")
    A(".amdhsa_kernarg_size 64")
    A(".amdhsa_user_sgpr_count 2")
    A(".amdhsa_user_sgpr_kernarg_segment_ptr 1")
    A(".amdhsa_system_sgpr_workgroup_id_x 1")
    A(".end_amdhsa_kernel")

A.fix_hazards()
sys.stderr.write("nops: %s\n" % A.count_nops())
sys.stdout.write(A.text())
```

```python
import sys, struct, math
from asmlib import Asm, VM

OPT = dict(nt="", prio=1, stamps=0, fine=28, pre=2, pvlead=4)
for a in sys.argv[1:]:
    k, v = a.split("=")
    OPT[k] = int(v) if v.lstrip("-").isdigit() else v
NT = (" " + OPT["nt"]) if OPT["nt"] else ""

def f32(x):
    return "0x%08x" % struct.unpack("<I", struct.pack("<f", x))[0]

P_BUF = 0
MX_OFF = 20480
VRING = 32768
KRING = 98304
STG = [0, 53248, 106496]
XOFF = 32768
WSL = [98304, 131072, 0, 32768, 65536]
ST_L = 81920
LDS_BYTES = 163840
PART_BYTES = 143360
STAT_OFF = 256 * PART_BYTES
STAMP_OFF = 48 << 20

sX, sWQ, sVr, sWO, sWS, sKr = "s[4:7]", "s[8:11]", "s[12:15]", "s[16:19]", "s[20:23]", "s[60:63]"
sW, sB, sHQ, sHALF, sHKV = "s24", "s25", "s26", "s27", "s28"
sKO, sCNT, sRETRY = "s29", "s30", "s31"
sT0, sT1, sT2, sT3 = "s32", "s33", "s34", "s35"
sW1K, sXO, sWQO, sKDST, sKV0, sC, sWOO, sPART = "s36", "s37", "s38", "s39", "s40", "s41", "s42", "s43"
sQH, sKH, sDQ, sHP = "s44", "s45", "s46", "s47"
sLIM, sVO, sVDST = "s48", "s49", "s3"

A = Asm()

def stamp(k, mode=1):
    if OPT["stamps"] == mode or (OPT["stamps"] and k in (2, 12)):
        A(f"s_memtime s[{76+2*k}:{77+2*k}]")

def vr(b, n):
    return f"v[{b}:{b+n-1}]" if n > 1 else f"v{b}"

def weave(main, fill, per=1):
    fill = list(fill)
    def put(f):
        if callable(f):
            f()
        elif isinstance(f, (list, tuple)):
            for x in f:
                A(x)
        else:
            A(f)
    for m in main:
        put(m)
        for _ in range(per):
            if fill:
                put(fill.pop(0))
    for f in fill:
        put(f)

A.seg("head")
A("; @launch kernel=attn_kernel grid=(256,1,1) block=(512,1,1) lds=%d" % LDS_BYTES)
if not OPT.get("nok2"):
    A("; @launch kernel=reduce_kernel grid=(280,1,1) block=(256,1,1) lds=0")
A('.amdgcn_target "amdgcn-amd-amdhsa--gfx950"')
A(".text")
A(".globl attn_kernel")
A(".p2align 8")
A(".type attn_kernel,@function")
A("attn_kernel:")
A.seg("entry")
A(f"""
s_cmp_ge_u32 s2, 256
s_cbranch_scc1 L_end
s_load_dwordx16 s[64:79], s[0:1], 0
""")
if OPT["stamps"]:
    A("s_memrealtime s[56:57]")
    stamp(2)
A(f"""
s_and_b32 {sHKV}, s2, 7
s_lshr_b32 {sT0}, s2, 3
s_lshr_b32 {sB}, {sT0}, 2
s_and_b32 {sT1}, {sT0}, 1
s_lshr_b32 {sHALF}, {sT0}, 1
s_and_b32 {sHALF}, {sHALF}, 1
s_lshl_b32 {sHQ}, {sHKV}, 1
s_add_u32 {sHQ}, {sHQ}, {sT1}
v_lshrrev_b32 v1, 6, v0
v_and_b32 v0, 63, v0
v_readfirstlane_b32 {sW}, v1
s_mov_b32 {sRETRY}, 0
s_mov_b32 {sC}, {f32(math.log2(math.e) / 16.0)}
s_mov_b32 {sLIM}, {f32(2.0 ** 30)}
s_mul_i32 {sXO}, {sB}, 143360
s_lshl_b32 {sWQO}, {sHQ}, 9
s_mul_i32 {sWOO}, {sHQ}, 229376
s_lshl_b32 {sT0}, {sB}, 3
s_add_u32 {sT0}, {sT0}, {sHKV}
s_lshl_b32 {sT0}, {sT0}, 1
s_add_u32 {sT0}, {sT0}, {sHALF}
s_lshl_b32 {sKV0}, {sT0}, 19
s_lshl_b32 {sT0}, {sB}, 4
s_add_u32 {sT0}, {sT0}, {sHQ}
s_lshl_b32 {sT0}, {sT0}, 1
s_add_u32 {sT0}, {sT0}, {sHALF}
s_mul_i32 {sPART}, {sT0}, {PART_BYTES}
s_lshl_b32 {sW1K}, {sW}, 10
s_and_b32 {sDQ}, {sW}, 3
s_lshr_b32 {sHP}, {sW}, 2
s_and_b32 {sQH}, {sW}, 1
s_lshr_b32 {sKH}, {sDQ}, 1
""")
A(f"""
v_and_b32 v1, 15, v0
v_lshrrev_b32 v2, 4, v0
s_and_b32 {sT0}, {sW}, 1
s_lshl_b32 {sT0}, {sT0}, 2
v_add_u32 v5, {sT0}, v2
v_and_b32 v6, 7, v0
v_xor_b32 v5, v5, v6
v_lshlrev_b32 v5, 4, v5
v_lshrrev_b32 v6, 3, v0
v_mul_u32_u24 v6, 896, v6
s_mul_i32 {sT0}, {sW}, 7168
v_add3_u32 v3, v5, v6, {sT0}
v_lshrrev_b32 v5, 5, v0
s_lshl_b32 {sT0}, {sW}, 1
v_add_u32 v5, {sT0}, v5
v_and_b32 v6, 3, v5
s_lshl_b32 {sT0}, {sHP}, 2
v_or_b32 v6, {sT0}, v6
v_bfe_u32 v7, v0, 1, 4
v_xor_b32 v6, v6, v7
v_lshlrev_b32 v6, 5, v6
v_and_b32 v7, 1, v0
v_lshlrev_b32 v7, 4, v7
v_lshlrev_b32 v5, 13, v5
v_add3_u32 v4, v5, v6, v7
s_waitcnt lgkmcnt(0)
s_mov_b32 s4, s64
s_mov_b32 s5, s65
s_mov_b32 s6, 1146880
s_mov_b32 s7, 0x20000
s_mov_b32 s8, s70
s_mov_b32 s9, s71
s_mov_b32 s10, 3670016
s_mov_b32 s11, 0x20000
s_mov_b32 s16, s72
s_mov_b32 s17, s73
s_mov_b32 s18, 3670016
s_mov_b32 s19, 0x20000
s_mov_b32 s20, s78
s_mov_b32 s21, s79
s_mov_b32 s22, 0x10000000
s_mov_b32 s23, 0x20000
s_mov_b32 s12, s68
s_mov_b32 s13, s69
s_mov_b32 s14, 0x4000000
s_mov_b32 s15, 0x20000
s_mov_b32 s60, s66
s_mov_b32 s61, s67
s_mov_b32 s62, 0x4000000
s_mov_b32 s63, 0x20000
""")
stamp(3, 3)
for t in range(4):
    A(f"s_add_u32 m0, {sW1K}, {t*8192}")
    A(f"s_add_u32 {sT0}, {sWQO}, {16*t*8192}")
    A(f"buffer_load_dwordx4 v4, {sWQ}, {sT0} offen lds")
for t in range(2):
    A(f"s_add_u32 m0, {sW1K}, {XOFF + t*8192}")
    A(f"s_add_u32 {sT0}, {sXO}, {t*57344}")
    A(f"buffer_load_dwordx4 v3, {sX}, {sT0} offen lds")
A(f"""
s_cmp_lt_u32 {sW}, 4
s_cbranch_scc0 L_PV
""")

vXD, vWD = 3, 4
vW = [5, 6, 7, 8]
vXR = [9, 10]
vQW = [12, 13, 14, 15]
vA0 = 19
vKD = 16
QACC = 176
QA = [96, 112]
QB = [128, 148]

S_Q, S_NM, S_KF, S_L = 96, 36, 20, 7
S_S = [56, 76]
vKA = [1, 2]; vPW = 3; vMX = 4
S_T = [5, 6, 17, 18]
O_ACC, P_A, P_B = 96, 76, 56
VT = [40, 24]
vVB = [1, 2]; vPR = 3; vVD = [12, 13, 14, 15]
E_O = 96
E_ACC = [56, 76]
E_A = 36
vOA = [1, 2, 3]; vOB = [5, 6]; vST = 7


def gen_role(role):
    S = role == "S"
    R = role
    vm = VM(63)
    lg = VM(15)
    tr = ["entry"]

    def seg(n):
        A.seg(f"{R}_{n}")
        tr.append(f"{R}_{n}")

    nx = 3 if S else 2
    vWOD = 35 if S else 4

    def dma(lines, tag):
        def f():
            for x in lines:
                A(x)
            vm.issue(tag)
        return f

    def stage_dma(s):
        sb = STG[s % 3]
        out = []
        for t in range(4):
            out.append(dma([f"s_add_u32 m0, {sW1K}, {sb + t*8192}",
                            f"s_add_u32 {sT0}, {sWQO}, {(s*64 + 16*t) * 8192}",
                            f"buffer_load_dwordx4 v{vWD}, {sWQ}, {sT0} offen lds"], f"st{s}"))
        for t in range(nx):
            out.append(dma([f"s_add_u32 m0, {sW1K}, {sb + XOFF + t*8192}",
                            f"s_add_u32 {sT0}, {sXO}, {t*57344 + s*128}",
                            f"buffer_load_dwordx4 v{vXD}, {sX}, {sT0} offen lds"], f"st{s}"))
        return out

    def k_dma(i):
        slot = i & 3
        out = []
        for sg in range(4):
            l = [f"s_add_u32 m0, {sKDST}, {slot*16384 + sg*2048 - sg*128}",
                 f"buffer_load_dwordx4 v{vKD}, {sKr}, {sKO} offen offset:{sg*128}{NT} lds"]
            if sg == 3:
                l.append(f"s_add_u32 {sKO}, {sKO}, 16384")
            out.append(dma(l, f"K{i}"))
        return out

    vVD_cur = [20, 21, 22, 23]

    def v_dma(t):
        pos = (t + 3) & 3
        out = []
        for jj in range(4):
            l = [f"s_add_u32 m0, {sVDST}, {pos*16384 + jj*1024}",
                 f"buffer_load_dwordx4 v{vVD_cur[jj]}, {sVr}, {sVO} offen{NT} lds"]
            if jj == 3:
                l.append(f"s_add_u32 {sVO}, {sVO}, 16384")
            out.append(dma(l, f"V{t}"))
        return out

    def run(fs):
        for f in fs:
            f()

    seg("pro")
    if not S:
        A("L_PV:")
    for _ in range(6):
        vm.issue("st0")
    if S:
        stage_dma(0)[6]()
    stamp(4, 3)
    A(f"""
    v_lshrrev_b32 v30, 3, v1
    v_lshlrev_b32 v30, 10, v30
    v_and_b32 v31, 7, v1
    v_lshlrev_b32 v31, 7, v31
    v_lshrrev_b32 v32, 1, v1
    v_xor_b32 v33, v2, v32
    v_lshlrev_b32 v33, 4, v33
    v_add3_u32 v{vA0}, v30, v31, v33
    s_mul_i32 {sT0}, {sHP}, 10240
    s_add_u32 {sT0}, {sT0}, {XOFF}
    v_add_u32 v{vXR[0]}, {sT0}, v{vA0}
    v_xor_b32 v{vXR[1]}, 64, v{vXR[0]}
    v_lshrrev_b32 v24, 2, v1
    v_and_b32 v25, 1, v2
    v_lshlrev_b32 v25, 2, v25
    v_or_b32 v25, v25, v24
    v_lshl_add_u32 v26, v2, 3, v24
    v_lshlrev_b32 v26, 9, v26
    v_and_b32 v27, 3, v0
    v_lshl_add_u32 v26, v27, 3, v26
    s_lshl_b32 {sT0}, {sDQ}, 2
    v_xor_b32 v25, {sT0}, v25
    """)
    for m in range(4):
        A(f"v_xor_b32 v28, {m}, v25")
        A(f"v_lshl_add_u32 v{vW[m]}, v28, 5, v26")
    A(f"""
    v_lshrrev_b32 v24, 1, v2
    v_xor_b32 v24, v24, v32
    v_and_b32 v25, 1, v2
    v_lshlrev_b32 v25, 3, v25
    v_add3_u32 v25, v30, v31, v25
    s_mul_i32 {sT0}, {sHP}, 40960
    s_lshl_b32 {sT1}, {sDQ}, 11
    s_add_u32 {sT0}, {sT0}, {sT1}
    v_add_u32 v25, {sT0}, v25
    """)
    for m in range(4):
        A(f"v_xor_b32 v28, {2*m}, v24")
        A(f"v_lshl_add_u32 v{vQW[m]}, v28, 4, v25")
    A(f"""
    s_mov_b32 {sVO}, {sKV0}
    s_lshl_b32 {sT0}, {sQH}, 2
    v_add_u32 v24, {sT0}, v2
    v_and_b32 v25, 7, v0
    v_xor_b32 v24, v24, v25
    v_lshlrev_b32 v24, 4, v24
    v_lshrrev_b32 v25, 3, v0
    s_lshl_b32 {sT0}, {sKH}, 4
    s_lshl_b32 {sT1}, {sQH}, 3
    s_add_u32 {sT0}, {sT0}, {sT1}
    v_add_u32 v25, {sT0}, v25
    v_lshl_add_u32 v{vKD}, v25, 9, v24
    s_lshl_b32 {sT0}, {sKH}, 13
    s_lshl_b32 {sT1}, {sQH}, 10
    s_add_u32 {sKDST}, {sT0}, {sT1}
    s_add_u32 {sKDST}, {sKDST}, {KRING}
    """)
    if True:
        A(f"""
        s_mov_b32 {sKO}, {sKV0}
        v_and_b32 v24, 1, v2
        v_lshlrev_b32 v24, 2, v24
        v_and_b32 v25, 7, v0
        v_xor_b32 v24, v24, v25
        v_lshlrev_b32 v24, 4, v24
        v_lshrrev_b32 v25, 3, v0
        v_lshl_add_u32 v24, v25, 9, v24
        s_lshl_b32 {sT0}, {sDQ}, 7
        v_add_u32 v20, {sT0}, v24
        v_add_u32 v21, 4096, v20
        v_add_u32 v22, 8192, v20
        v_add_u32 v23, 12288, v20
        s_lshl_b32 {sVDST}, {sDQ}, 12
        s_add_u32 {sVDST}, {sVDST}, {VRING}
        """)

    stamp(5, 3)
    run(stage_dma(1) + stage_dma(2))

    def q_reads(s2):
        out = []
        for qt in range(5):
            out.append(f"ds_read_b128 {vr(QB[s2] + qt*4, 4)}, v{vXR[s2]} offset:{qt*2048}")
        for m in range(4):
            for e in range(2):
                out.append(f"ds_read_b64_tr_b16 {vr(QA[s2] + m*4 + e*2, 2)}, v{vW[m]} offset:{(32*s2 + 4*e) * 512}")
        return out

    def q_mfma(s2, first):
        out = []
        for m in range(4):
            for qt in range(5):
                acc = vr(QACC + (m*5 + qt) * 4, 4)
                out.append(f"v_mfma_f32_16x16x32_bf16 {acc}, {vr(QA[s2] + m*4, 4)}, {vr(QB[s2] + qt*4, 4)}, {'0' if first else acc}")
        return out

    for s in range(7):
        if s == 0:
            stamp(6, 3)
        A(f"s_waitcnt vmcnt({vm.wait(f'st{s}')})")
        if s == 0:
            stamp(7, 3)
        A("s_barrier")
        if s <= 3:
            stamp(8 + s, 3)
        if s == 0:
            stamp(3)
        d = []
        if 1 <= s <= 4:
            d = stage_dma(s + 2)
        if s == 5 and S:
            d = v_dma(0)
        if s == 6 and S:
            d = k_dma(0) + k_dma(1) + k_dma(2)
        upd = []
        if s < 6:
            dl = STG[(s + 1) % 3] - STG[s % 3]
            upd = [[f"s_mov_b32 {sT1}, {dl & 0xffffffff}", f"v_add_u32 v{vW[0]}, {sT1}, v{vW[0]}"]] + \
                  [f"v_add_u32 v{r}, {sT1}, v{r}" for r in vW[1:] + vXR]
        if s >= 1:
            weave(q_mfma(1, False), q_reads(0) + d[:7])
            d = d[7:]
        else:
            weave(q_reads(0), [])
        A("s_waitcnt lgkmcnt(0)")
        weave(q_mfma(0, s == 0), q_reads(1) + d + upd)
        A("s_waitcnt lgkmcnt(0)")
    stamp(4)
    A("s_barrier")
    fin = q_mfma(1, False)
    def q_out(idx):
        m, qt = divmod(idx, 5)
        a = QACC + idx * 4
        return [f"v_mul_f32 v{a}, {sC}, v{a}", f"v_mul_f32 v{a+1}, {sC}, v{a+1}",
                f"v_mul_f32 v{a+2}, {sC}, v{a+2}", f"v_mul_f32 v{a+3}, {sC}, v{a+3}",
                f"v_cvt_pk_bf16_f32 v{a}, v{a}, v{a+1}", f"v_cvt_pk_bf16_f32 v{a+1}, v{a+2}, v{a+3}",
                f"ds_write_b64 v{vQW[m]}, {vr(a, 2)} offset:{qt*8192}"]
    for j, mf in enumerate(fin):
        A(mf)
        if j >= 3:
            for x in q_out(j - 3):
                A(x)
    if S:
        A(f"""
        s_mul_i32 {sT0}, {sQH}, 40960
        v_add_u32 v17, {sT0}, v{vA0}
        v_xor_b32 v18, 64, v17
        v_lshrrev_b32 v32, 1, v2
        s_lshl_b32 {sT0}, {sKH}, 1
        v_add_u32 v32, {sT0}, v32
        v_mul_u32_u24 v32, 2560, v32
        v_and_b32 v33, 1, v2
        v_lshl_add_u32 v32, v33, 3, v32
        s_mul_i32 {sT0}, {sQH}, 80
        v_add_u32 v33, {sT0}, v1
        v_lshl_add_u32 v{vPW}, v33, 4, v32
        s_lshl_b32 {sT0}, {sKH}, 2
        v_lshlrev_b32 v33, 3, v33
        v_add_u32 v{vMX}, {sT0}, v33
        s_lshl_b32 {sT0}, {sKH}, 13
        s_add_u32 {sT0}, {sT0}, {KRING}
        v_add_u32 v{vKA[0]}, {sT0}, v{vA0}
        v_xor_b32 v{vKA[1]}, 64, v{vKA[0]}
        """)
        for qt in range(5):
            A(f"v_mov_b32 v{S_L+qt}, 0xff800000")
    else:
        A(f"""
        v_lshrrev_b32 v30, 2, v1
        v_lshrrev_b32 v31, 5, v0
        v_lshl_add_u32 v32, v31, 3, v30
        v_lshlrev_b32 v32, 7, v32
        v_lshrrev_b32 v33, 1, v30
        v_lshl_add_u32 v32, v33, 6, v32
        v_and_b32 v33, 1, v2
        v_lshl_add_u32 v32, v33, 5, v32
        v_and_b32 v33, 3, v0
        v_lshl_add_u32 v32, v33, 3, v32
        v_mul_u32_u24 v31, 2560, v31
        v_and_b32 v33, 31, v0
        v_lshl_add_u32 v{vPR}, v33, 4, v31
        v_add_u32 v{vVB[0]}, {sVDST}, v32
        v_xor_b32 v{vVB[1]}, 64, v{vVB[0]}
        """)
    for j in range(17, 20):
        for x in q_out(j):
            A(x)
    if S:
        for j in range(4):
            A(f"v_mov_b32 v{vVD[j]}, v{20+j}")
        vVD_cur[:] = vVD
    A("s_waitcnt lgkmcnt(0)")
    A("s_barrier")
    if S:
        for qt in range(5):
            for s in range(8):
                A(f"ds_read_b128 {vr(S_Q + (qt*8 + s)*4, 4)}, v{17 + (s & 1)} offset:{qt*8192 + (s >> 1)*2048}")
        if OPT["prio"]:
            A(f"s_setprio {OPT['prio']}")
    vm_join = list(vm.q)
    seg("join")
    A(f"L_{R}_join:")
    if S:
        A(f"s_waitcnt vmcnt({vm.wait('K0')}) lgkmcnt(0)")
    A("s_barrier")
    stamp(5)

    def fst(i, k):
        if i == OPT["fine"]:
            stamp(k, 2)

    def softmax_fill(j):
        SS = S_S[j & 1]; buf = j & 1
        out = []
        for qt in range(5):
            a = SS + qt*4
            t0, t1 = (S_T[0], S_T[1]) if qt % 2 == 0 else (S_T[2], S_T[3])
            ex = [(2, f"v_exp_f32 v{a+r}, v{a+r}") for r in range(4)]
            def wr(a=a, qt=qt):
                A(f"ds_write_b64 v{vPW}, {vr(a, 2)} offset:{P_BUF + buf*10240 + qt*256}")
                lg.issue("pw")
            post = [(1, f"v_add_f32 v{t0}, v{a}, v{a+1}"), (1, f"v_add_f32 v{t1}, v{a+2}, v{a+3}"),
                    (1, f"v_cvt_pk_bf16_f32 v{a}, v{a}, v{a+1}"), (1, f"v_cvt_pk_bf16_f32 v{a+1}, v{a+2}, v{a+3}"),
                    (1, f"v_add_f32 v{t0}, v{t0}, v{t1}"), (1, wr),
                    (1, f"v_mov_b32 v{S_L+qt}, v{t0}" if j == 0 else f"v_add_f32 v{S_L+qt}, v{S_L+qt}, v{t0}")]
            out.append((ex, post))
        seq = list(out[0][0])
        for qt in range(5):
            if qt + 1 < 5:
                e = out[qt + 1][0]; p = out[qt][1]
                seq += [e[0], p[0], p[1], e[1], p[2], p[3], e[2], p[4], p[5], e[3], p[6]]
            else:
                seq += out[qt][1]
        return seq

    def s_interval(i):
        slot = i & 3
        fill = softmax_fill(i - 1) if i >= 1 else []
        def put(n):
            while fill and n >= fill[0][0]:
                c, it = fill.pop(0)
                n -= c
                it() if callable(it) else A(it)
        def kread(s):
            A(f"ds_read_b128 {vr(S_KF + (s & 3)*4, 4)}, v{vKA[s & 1]} offset:{slot*16384 + (s >> 1)*2048}")
            lg.issue(f"kf{s}")
        fst(i, 3)
        if i <= 31:
            SS = S_S[i & 1]
            for s in range(4):
                kread(s)
            d = []
            if i == 0:
                d += v_dma(1)
            if i + 3 <= 31:
                d += k_dma(i + 3)
            if i + 2 <= 31:
                d += v_dma(i + 2)
            for f in d:
                f()
                put(OPT["pre"])
            for s in range(8):
                A(f"s_waitcnt lgkmcnt({lg.wait(f'kf{s}')})")
                if s == 0:
                    fst(i, 4)
                for qt in range(5):
                    acc = vr(SS + qt*4, 4)
                    c = acc if s else ("0" if i == 0 else vr(S_NM + qt*4, 4))
                    A(f"v_mfma_f32_16x16x32_bf16 {acc}, {vr(S_KF + (s & 3)*4, 4)}, {vr(S_Q + (qt*8 + s)*4, 4)}, {c}")
                    if qt == 1 and 1 <= s <= 4:
                        kread(s + 3)
                        put(1)
                    elif qt == 4:
                        put(1)
                    else:
                        put(2)
            fst(i, 5)
        put(1000)
        fst(i, 6)
        if i == 0:
            SS = S_S[0]
            for qt in range(5):
                a = SS + qt*4; t = S_KF + qt*2
                A(f"v_max3_f32 v{t}, v{a}, v{a+1}, v{S_L+qt}")
                A(f"v_max3_f32 v{t}, v{a+2}, v{a+3}, v{t}")
                A(f"v_mov_b32 v{t+1}, v{t}")
            for qt in range(5):
                t = S_KF + qt*2
                A(f"v_permlane32_swap_b32 v{t}, v{t+1}")
            for qt in range(5):
                t = S_KF + qt*2
                A(f"v_max_f32 v{t}, v{t}, v{t+1}")
                A(f"v_mov_b32 v{t+1}, v{t}")
            for qt in range(5):
                t = S_KF + qt*2
                A(f"v_permlane16_swap_b32 v{t}, v{t+1}")
            for qt in range(5):
                t = S_KF + qt*2
                A(f"v_max_f32 v{t}, v{t}, v{t+1}")
                A(f"ds_write_b32 v{vMX}, v{t} offset:{MX_OFF + qt*128}")
            A("s_waitcnt lgkmcnt(0)")
            A("s_barrier")
            A(f"v_and_b32 v5, 0xfffffffb, v{vMX}")
            for qt in range(5):
                A(f"ds_read_b64 {vr(S_KF + qt*2, 2)}, v5 offset:{MX_OFF + qt*128}")
            for qt in range(5):
                t = S_KF + qt*2
                A(f"s_waitcnt lgkmcnt({4 - qt})")
                A(f"v_max_f32 v{t}, v{t}, v{t+1}")
                for r in range(4):
                    A(f"v_sub_f32 v{S_NM + qt*4 + r}, 0, v{t}")
                for r in range(4):
                    A(f"v_sub_f32 v{SS + qt*4 + r}, v{SS + qt*4 + r}, v{t}")
        if i == 32:
            wo_addr()
            run(wo_dma(0) + wo_dma(1))
        need = [t for t in (f"K{i+1}", f"V{i}") if vm.has(t)]
        if need:
            last = max(need, key=lambda t: max(k for k, x in enumerate(vm.q) if x == t))
            A(f"s_waitcnt vmcnt({vm.wait(last)}) lgkmcnt(0)")
        else:
            A("s_waitcnt lgkmcnt(0)")
        lg.clear()
        fst(i, 7)
        A("s_barrier")
        fst(i, 8)

    def vt_reads(t):
        pos = (t + 3) & 3
        out = []
        for s16 in range(2):
            for tt in range(2):
                for e in range(2):
                    out.append(f"ds_read_b64_tr_b16 {vr(VT[t & 1] + (s16*2 + tt)*4 + e*2, 2)}, v{vVB[tt]} offset:{pos*16384 + (16*s16 + 4*e)*128}")
        return out

    def pv_mfma(t, s16, P, first):
        out = []
        for qt in range(5):
            for tt in range(2):
                acc = vr(O_ACC + (tt*5 + qt)*16, 16)
                out.append(f"v_mfma_f32_32x32x16_bf16 {acc}, {vr(VT[t & 1] + (s16*2 + tt)*4, 4)}, {vr(P + qt*4, 4)}, {'0' if first else acc}")
        return out

    def wo_addr():
        A(f"""
        v_bfe_u32 v21, v0, 4, 1
        s_and_b32 {sT0}, {sW}, 1
        s_lshl_b32 {sT0}, {sT0}, 1
        v_or_b32 v21, {sT0}, v21
        v_lshlrev_b32 v21, 1, v21
        v_and_b32 v22, 7, v0
        v_xor_b32 v21, v21, v22
        v_lshrrev_b32 v22, 3, v0
        s_lshl_b32 {sT0}, {sW}, 3
        v_add_u32 v22, {sT0}, v22
        v_mul_u32_u24 v22, 896, v22
        v_lshl_add_u32 v{vWOD}, v21, 4, v22
        """)

    def wo_dma(j):
        out = []
        for t in range(4):
            out.append(dma([f"s_add_u32 m0, {sW1K}, {WSL[j % 5] + t*8192}",
                            f"s_add_u32 {sT0}, {sWOO}, {t*57344 + j*128}",
                            f"buffer_load_dwordx4 v{vWOD}, {sWO}, {sT0} offen lds"], f"wo{j}"))
        return out

    def pv_interval(i):
        if i == 0:
            A("s_barrier")
            A("s_barrier")
            return
        if i == 1:
            for x in vt_reads(0):
                A(x)
            A("s_waitcnt lgkmcnt(0)")
            A("s_barrier")
            return
        t = i - 2; buf = t & 1
        fst(i, 3)
        pa = [f"ds_read_b128 {vr(P_A + qt*4, 4)}, v{vPR} offset:{P_BUF + buf*10240 + qt*512}" for qt in range(5)]
        pb = [f"ds_read_b128 {vr(P_B + qt*4, 4)}, v{vPR} offset:{P_BUF + buf*10240 + 5120 + qt*512}" for qt in range(5)]
        if t >= 1:
            weave(pv_mfma(t - 1, 1, P_B, False), pa + pb[:3] + [[]] + [pb[3]])
        else:
            for x in pa + pb[:4]:
                A(x)
        fst(i, 4)
        A("s_waitcnt lgkmcnt(4)")
        fst(i, 5)
        d = []
        if i == 32:
            d = [wo_addr] + wo_dma(0) + wo_dma(1)
        if i == OPT.get("touch", -1):
            d = [[f"v_lshlrev_b32 v5, 7, v0", f"s_mul_i32 {sT1}, {sDQ}, 57344", f"s_add_u32 {sT1}, {sT1}, {sWOO}"]]
            for k in range(7):
                d.append(dma([f"buffer_load_dword v6, v5, {sWO}, {sT1} offen", f"s_add_u32 {sT1}, {sT1}, 8192"], "tch"))
        vt = vt_reads(t + 1) if t + 1 <= 31 else []
        weave(pv_mfma(t, 0, P_A, t == 0), [vt[:3], [pb[4]] + vt[3:5], vt[5:]] + d)
        fst(i, 6)
        A("s_waitcnt lgkmcnt(0)")
        fst(i, 7)
        A("s_barrier")
        fst(i, 8)

    interval = s_interval if S else pv_interval
    seg("g0")
    for i in range(4):
        interval(i)
    stamp(6)
    A(f"s_mov_b32 {sCNT}, 6")
    q_before = list(vm.q)
    seg("loop")
    A(f"L_{R}_loop:")
    for i in range(4, 8):
        interval(i)
    A(f"s_sub_u32 {sCNT}, {sCNT}, 1")
    A(f"s_cmp_lg_u32 {sCNT}, 0")
    A(f"s_cbranch_scc1 L_{R}_loop")
    sh = lambda q, d: [t[0] + str(int(t[1:]) + d) for t in q]
    assert sh(q_before, 4) == vm.q, (q_before, vm.q)
    vm.q = sh(vm.q, 20)
    tr.append(f"{R}_loop")
    seg("gl")
    stamp(7)
    for i in range(28, 33):
        interval(i)
    if S:
        if OPT["prio"]:
            A("s_setprio 0")
        for qt in range(5):
            A(f"v_mov_b32 v{S_KF + qt}, v{S_L + qt}")
        for qt in range(5):
            A(f"v_permlane32_swap_b32 v{S_KF + qt}, v{S_L + qt}")
        for qt in range(5):
            A(f"v_add_f32 v{S_L + qt}, v{S_L + qt}, v{S_KF + qt}")
            A(f"v_mov_b32 v{S_KF + qt}, v{S_L + qt}")
        for qt in range(5):
            A(f"v_permlane16_swap_b32 v{S_KF + qt}, v{S_L + qt}")
        A(f"v_add_u32 v5, {ST_L}, v{vMX}")
        for qt in range(5):
            A(f"v_add_f32 v{S_L + qt}, v{S_L + qt}, v{S_KF + qt}")
            A(f"ds_write_b32 v5, v{S_L + qt} offset:{qt*128}")
        A("s_waitcnt lgkmcnt(0)")
        A("s_barrier")
    else:
        pv_interval(33)

    seg("post")
    stamp(8)
    A(f"""
    v_lshlrev_b32 v17, 3, v0
    v_min_u32 v18, 31, v0
    v_lshlrev_b32 v18, 3, v18
    v_add_u32 v17, {ST_L}, v17
    v_add_u32 v18, {ST_L}, v18
    ds_read_b64 v[8:9], v17
    ds_read_b64 v[20:21], v17 offset:512
    ds_read_b64 v[22:23], v18 offset:1024
    """)
    if not S:
        for x in pv_mfma(31, 1, P_B, False):
            A(x)
    A(f"""
    s_waitcnt lgkmcnt(0)
    v_add_f32 v8, v8, v9
    v_add_f32 v20, v20, v21
    v_add_f32 v22, v22, v23
    v_cmp_ge_f32 s[50:51], {sLIM}, v8
    v_cmp_ge_f32 s[52:53], {sLIM}, v20
    v_cmp_ge_f32 s[54:55], {sLIM}, v22
    s_and_b64 s[50:51], s[50:51], s[52:53]
    s_and_b64 s[50:51], s[50:51], s[54:55]
    s_cmp_eq_u64 s[50:51], -1
    s_cbranch_scc1 L_{R}_ok
    s_cmp_eq_u32 {sRETRY}, 0
    s_cbranch_scc1 L_{R}_fallback
    """)
    seg("epi")
    A(f"L_{R}_ok:")
    if S:
        A(f"v_and_b32 v5, 0xfffffffb, v{vMX}")
        A(f"v_add_u32 v6, {ST_L}, v5")
        for qt in range(5):
            A(f"ds_read_b64 {vr(S_KF + 4 + qt*2, 2)}, v6 offset:{qt*128}")
        A(f"""
        s_mul_i32 {sT0}, {sB}, 40960
        s_lshl_b32 {sT1}, {sHQ}, 4
        s_add_u32 {sT0}, {sT0}, {sT1}
        s_lshl_b32 {sT1}, {sHALF}, 3
        s_add_u32 {sT0}, {sT0}, {sT1}
        s_add_u32 {sT0}, {sT0}, {STAT_OFF}
        v_lshlrev_b32 v5, 5, v5
        """)
        for qt in range(5):
            t = S_KF + 4 + qt*2
            A(f"s_waitcnt lgkmcnt({4 - qt})")
            A(f"v_add_f32 v{t+1}, v{t}, v{t+1}")
            A(f"v_sub_f32 v{t}, 0, v{S_NM + qt*4}")
            A(f"buffer_store_dwordx2 {vr(t, 2)}, v5, {sWS}, {sT0} offen")
            A(f"s_add_u32 {sT0}, {sT0}, 4096")
            vm.issue("lse")
    else:
        A(f"""
        v_and_b32 v17, 15, v0
        v_lshrrev_b32 v18, 3, v17
        v_lshlrev_b32 v18, 10, v18
        v_and_b32 v20, 7, v17
        v_lshl_add_u32 v18, v20, 7, v18
        v_lshrrev_b32 v20, 1, v17
        v_lshl_add_u32 v18, v20, 4, v18
        v_lshrrev_b32 v20, 5, v0
        v_lshl_add_u32 v18, v20, 3, v18
        v_bfe_u32 v20, v0, 4, 1
        v_lshl_add_u32 v18, v20, 13, v18
        s_lshl_b32 {sT0}, {sDQ}, 11
        v_add_u32 v18, {sT0}, v18
        """)
        for p in range(8):
            A(f"v_xor_b32 v{40 + p}, {p << 4}, v18")
            A(f"v_add_u32 v{48 + p}, 0x10000, v{40 + p}")
        for qt in range(5):
            for tt in range(2):
                for rq in range(4):
                    p = 4*tt + rq
                    a = O_ACC + (tt*5 + qt)*16 + rq*4
                    A(f"v_cvt_pk_bf16_f32 v{a}, v{a}, v{a+1}")
                    A(f"v_cvt_pk_bf16_f32 v{a+1}, v{a+2}, v{a+3}")
                    if qt < 4:
                        A(f"ds_write_b64 v{40 + p}, {vr(a, 2)} offset:{qt*16384}")
                    else:
                        A(f"ds_write_b64 v{48 + p}, {vr(a, 2)}")
    A(f"""
    v_and_b32 v16, 15, v0
    v_lshrrev_b32 v17, 4, v0
    v_lshrrev_b32 v18, 2, v16
    v_lshl_add_u32 v11, v17, 3, v18
    v_lshlrev_b32 v11, 7, v11
    v_and_b32 v10, 3, v0
    v_lshl_add_u32 v11, v10, 3, v11
    v_lshrrev_b32 v18, 1, v18
    v_and_b32 v10, 1, v17
    v_lshl_add_u32 v18, v10, 1, v18
    v_xor_b32 v18, {sDQ}, v18
    v_lshl_add_u32 v{vOA[0]}, v18, 5, v11
    v_add_u32 v{vOA[1]}, 0x10000, v{vOA[0]}
    v_add_u32 v{vOA[2]}, 0x20000, v{vOA[0]}
    s_mul_i32 {sT2}, {sHP}, 40960
    v_add_u32 v{vOB[0]}, {sT2}, v{vA0}
    v_xor_b32 v{vOB[1]}, 64, v{vOB[0]}
    v_lshrrev_b32 v18, 1, v17
    v_lshlrev_b32 v18, 8, v18
    v_lshl_add_u32 v18, v16, 4, v18
    v_and_b32 v11, 1, v17
    v_lshl_add_u32 v{vST}, v11, 3, v18
    s_mul_i32 {sT1}, {sDQ}, 5120
    s_mul_i32 {sT2}, {sHP}, 2560
    s_add_u32 {sPART}, {sPART}, {sT1}
    s_add_u32 {sPART}, {sPART}, {sT2}
    """)

    def lds(line, tag):
        def f():
            A(line)
            lg.issue(tag)
        return f

    def a_read(j, ks):
        sl = WSL[j % 5]
        out = []
        for e in range(2):
            off = sl + (32*ks + 4*e) * 128
            out.append(lds(f"ds_read_b64_tr_b16 {vr(E_A + (ks & 3)*4 + e*2, 2)}, v{vOA[off >> 16]} offset:{off & 0xffff}", f"a{j}_{ks}"))
        return out

    def b_read(ks):
        return [lds(f"ds_read_b128 {vr(E_O + (qt*8 + ks)*4, 4)}, v{vOB[ks & 1]} offset:{qt*8192 + (ks >> 1)*2048}", f"a0_{ks}") for qt in range(5)]

    def e_mfma(j, ks):
        out = []
        for qt in range(5):
            acc = vr(E_ACC[j & 1] + qt*4, 4)
            out.append(f"v_mfma_f32_16x16x32_bf16 {acc}, {vr(E_A + (ks & 3)*4, 4)}, {vr(E_O + (qt*8 + ks)*4, 4)}, {'0' if ks == 0 else acc}")
        return out

    def e_out(j):
        out = []
        for qt in range(5):
            a = E_ACC[j & 1] + qt*4
            out.append([f"v_cvt_pk_bf16_f32 v{a}, v{a}, v{a+1}", f"v_cvt_pk_bf16_f32 v{a+1}, v{a+2}, v{a+3}"])
            l = [f"buffer_store_dwordx2 {vr(a, 2)}, v{vST}, {sWS}, {sPART} offen offset:{qt*512}{OPT.get('stf', '').replace('+', ' ')}"]
            if OPT.get("nostore"):
                l = ["s_nop 0"]
            if qt == 4:
                l.append(f"s_add_u32 {sPART}, {sPART}, 20480")
            out.append(dma(l, "out") if not OPT.get("nostore") else l)
        return out

    def wait_a(j, ks):
        if lg.has(f"a{j}_{ks}"):
            A(f"s_waitcnt lgkmcnt({lg.wait(f'a{j}_{ks}')})")

    lg.clear()
    for j in range(7):
        A(f"s_waitcnt vmcnt({vm.wait(f'wo{j}')}) lgkmcnt(0)")
        lg.clear()
        A("s_barrier")
        if j == 0:
            stamp(9)
            run(b_read(0) + a_read(0, 0) + b_read(1) + a_read(0, 1))
            for ks in range(6):
                wait_a(0, ks)
                weave(e_mfma(0, ks), b_read(ks + 2) + a_read(0, ks + 2), per=2)
        else:
            d = []
            if j == 1:
                d = wo_dma(2) + wo_dma(3) + wo_dma(4) + wo_dma(5)
            if j == 2:
                d = wo_dma(6)
            run(a_read(j, 0) + a_read(j, 1))
            weave(e_mfma(j - 1, 6), d[:4]); d = d[4:]
            weave(e_mfma(j - 1, 7), [[], []] + a_read(j, 2))
            fill = d + e_out(j - 1)
            for ks in range(6):
                wait_a(j, ks)
                rd = a_read(j, ks + 3) if ks + 3 <= 7 else []
                k = 5 - len(rd) - 1
                weave(e_mfma(j, ks), [fill.pop(0) if fill else []] + rd + [fill.pop(0) if fill else [] for _ in range(k)])
            for f in fill:
                weave([f], [])
    A("s_waitcnt lgkmcnt(0)")
    weave(e_mfma(6, 6) + e_mfma(6, 7), [])
    stamp(10)
    weave(e_out(6), [])
    if OPT["stamps"]:
        stamp(11)
        A("s_waitcnt vmcnt(0)")
        stamp(12)
        A("s_memrealtime s[58:59]")
        A("s_waitcnt lgkmcnt(0)")
        A("v_mov_b32 v20, s56")
        A("v_mov_b32 v21, s58")
        for k in range(2, 13):
            A(f"v_mov_b32 v{20+k}, s{76+2*k}")
        A("v_mov_b32 v33, 0")
        A("v_mov_b32 v34, 0")
        A("v_mov_b32 v35, 0")
        A(f"s_lshl_b32 {sT0}, s2, 9")
        A(f"s_lshl_b32 {sT1}, {sW}, 6")
        A(f"s_add_u32 {sT0}, {sT0}, {sT1}")
        A(f"s_add_u32 {sT0}, {sT0}, {STAMP_OFF}")
        A("v_mov_b32 v40, 0")
        for j in range(4):
            A(f"buffer_store_dwordx4 v[{20+4*j}:{23+4*j}], v40, {sWS}, {sT0} offen offset:{16*j}")
        if OPT.get("dbgk1") is not None and S:
            A(f"s_cmp_lg_u32 s2, {OPT['dbg']}")
            A(f"s_cbranch_scc1 L_nodbg")
            A(f"s_cmp_lg_u32 {sW}, 0")
            A(f"s_cbranch_scc1 L_nodbg")
            A("s_load_dwordx2 s[64:65], s[0:1], 48")
            A("v_sub_u32 v21, v21, v20")
            for k in range(12, 2, -1):
                A(f"v_sub_u32 v{20+k}, v{20+k}, v{19+k}")
            A("s_waitcnt lgkmcnt(0)")
            A("s_mov_b32 s66, 256")
            A("s_mov_b32 s67, 0x20000")
            for j in range(4):
                A(f"buffer_store_dwordx4 v[{20+4*j}:{23+4*j}], v40, s[64:67], 0 offen offset:{16*j}")
            A("L_nodbg:")
    A("s_endpgm")
    A.trace(tr)

    tr2 = [f"{R}_gl", f"{R}_post"]
    A.seg(f"{R}_fb"); tr2.append(f"{R}_fb")
    A(f"L_{R}_fallback:")
    A(f"""
    s_mov_b32 {sRETRY}, 1
    s_waitcnt vmcnt(0) lgkmcnt(0)
    s_barrier
    s_mov_b32 {sKO}, {sKV0}
    s_mov_b32 {sCNT}, 32
    """)
    if S:
        for qt in range(5):
            A(f"v_mov_b32 v{S_L+qt}, 0xff800000")
    A.seg(f"{R}_fbl"); tr2 += [f"{R}_fbl", f"{R}_fbl"]
    A(f"L_{R}_fbl:")
    if S:
        vm.clear()
        run(k_dma(0))
        A("s_waitcnt vmcnt(0)")
        A("s_barrier")
        for hh in range(2):
            for s in range(4*hh, 4*hh + 4):
                A(f"ds_read_b128 {vr(S_KF + (s & 3)*4, 4)}, v{vKA[s & 1]} offset:{(s >> 1)*2048}")
            A("s_waitcnt lgkmcnt(0)")
            for s in range(4*hh, 4*hh + 4):
                for qt in range(5):
                    acc = vr(S_S[0] + qt*4, 4)
                    A(f"v_mfma_f32_16x16x32_bf16 {acc}, {vr(S_KF + (s & 3)*4, 4)}, {vr(S_Q + (qt*8 + s)*4, 4)}, {acc if s else '0'}")
        for qt in range(5):
            a = S_S[0] + qt*4
            A(f"v_max3_f32 v{S_L+qt}, v{a}, v{a+1}, v{S_L+qt}")
            A(f"v_max3_f32 v{S_L+qt}, v{a+2}, v{a+3}, v{S_L+qt}")
        A("s_barrier")
    else:
        A("s_barrier")
        A("s_barrier")
    A(f"s_sub_u32 {sCNT}, {sCNT}, 1")
    A(f"s_cmp_lg_u32 {sCNT}, 0")
    A(f"s_cbranch_scc1 L_{R}_fbl")
    A.seg(f"{R}_fbe"); tr2 += [f"{R}_fbe", f"{R}_join", f"{R}_g0"]
    vm.clear()
    if S:
        A(f"s_mov_b32 {sKO}, {sKV0}")
        A(f"s_mov_b32 {sVO}, {sKV0}")
        run(v_dma(0) + k_dma(0) + k_dma(1) + k_dma(2))
        if OPT["prio"]:
            A(f"s_setprio {OPT['prio']}")
    assert vm.q == [t for t in vm_join if not t.startswith("st")], (vm.q, vm_join)
    A(f"s_branch L_{R}_join")
    A.trace(tr2)


gen_role("S")
gen_role("PV")
A.seg("k1end")
A("L_end:")
A("s_endpgm")

A.seg("k2head")
A(".globl reduce_kernel")
A(".p2align 8")
A(".type reduce_kernel,@function")
A("reduce_kernel:")
A.seg("k2")
A(f"""
s_cmp_ge_u32 s2, 280
s_cbranch_scc1 L_k2end
s_load_dwordx2 s[4:5], s[0:1], 40
s_load_dwordx2 s[8:9], s[0:1], 56
s_memrealtime s[20:21]
s_mul_i32 s12, s2, 1873
s_lshr_b32 s12, s12, 16
s_mul_i32 s13, s12, 35
s_sub_u32 s13, s2, s13
s_lshl_b32 s13, s13, 8
v_add_u32 v1, s13, v0
v_lshlrev_b32 v2, 4, v1
v_lshrrev_b32 v3, 5, v1
v_mul_u32_u24 v4, 6554, v3
v_lshrrev_b32 v4, 16, v4
v_mul_u32_u24 v5, 10, v4
v_sub_u32 v5, v3, v5
v_and_b32 v6, 15, v1
v_lshl_add_u32 v5, v5, 4, v6
v_bfe_u32 v6, v1, 4, 1
v_lshlrev_b32 v6, 4, v6
v_lshl_add_u32 v6, v4, 5, v6
v_mul_u32_u24 v7, 896, v5
v_add_u32 v6, v6, v7
v_lshlrev_b32 v7, 8, v5
s_mul_i32 s14, s12, {32*PART_BYTES}
s_mul_i32 s15, s12, 40960
s_add_u32 s15, s15, {STAT_OFF}
s_mul_i32 s16, s12, 143360
s_waitcnt lgkmcnt(0)
s_mov_b32 s6, 1146880
s_mov_b32 s7, 0x20000
s_mov_b32 s10, 0x10000000
s_mov_b32 s11, 0x20000
""")
L0, D0, AC = 16, 80, 8
for j in range(16):
    A(f"buffer_load_dwordx4 {vr(L0 + j*4, 4)}, v7, s[8:11], s15 offen offset:{j*16}")
for p in range(32):
    A(f"buffer_load_dwordx4 {vr(D0 + p*4, 4)}, v2, s[8:11], s14 offen")
    A(f"s_add_u32 s14, s14, {PART_BYTES}")
for h in range(16):
    ma, la, mb, lb = L0 + 4*h, L0 + 4*h + 1, L0 + 4*h + 2, L0 + 4*h + 3
    A(f"s_waitcnt vmcnt({32 + 15 - h})")
    A(f"v_sub_f32 v1, v{mb}, v{ma}")
    A(f"v_sub_f32 v3, v{ma}, v{mb}")
    A(f"v_exp_f32 v1, v1")
    A(f"v_exp_f32 v3, v3")
    A(f"v_fma_f32 v1, v1, v{lb}, v{la}")
    A(f"v_fma_f32 v3, v3, v{la}, v{lb}")
    A(f"v_rcp_f32 v{ma}, v1")
    A(f"v_rcp_f32 v{mb}, v3")
for p in range(32):
    A(f"s_waitcnt vmcnt({31 - p})")
    wreg = L0 + 2*p
    for r in range(4):
        d = D0 + p*4 + r
        A(f"v_lshlrev_b32 v1, 16, v{d}")
        A(f"v_and_b32 v3, 0xffff0000, v{d}")
        if p == 0:
            A(f"v_mul_f32 v{AC + 2*r}, v{wreg}, v1")
            A(f"v_mul_f32 v{AC + 2*r + 1}, v{wreg}, v3")
        else:
            A(f"v_fmac_f32 v{AC + 2*r}, v{wreg}, v1")
            A(f"v_fmac_f32 v{AC + 2*r + 1}, v{wreg}, v3")
for r in range(4):
    A(f"v_cvt_pk_bf16_f32 v{L0 + r}, v{AC + 2*r}, v{AC + 2*r + 1}")
A(f"buffer_store_dwordx4 {vr(L0, 4)}, v6, s[4:7], s16 offen")
if OPT.get("dbg") is not None:
    A(f"""
    s_cmp_lg_u32 s2, 0
    s_cbranch_scc1 L_k2end
    s_waitcnt vmcnt(0)
    s_memrealtime s[22:23]
    s_load_dwordx2 s[24:25], s[0:1], 48
    v_lshlrev_b32 v1, 2, v0
    s_mov_b32 s17, {STAMP_OFF + OPT['dbg']*512}
    buffer_load_dword v2, v1, s[8:11], s17 offen
    s_waitcnt vmcnt(0) lgkmcnt(0)
    s_mov_b32 s26, 64
    s_mov_b32 s27, 0x20000
    v_mov_b32 v3, s20
    v_mov_b32 v4, s22
    v_cmp_eq_u32 vcc, 13, v0
    v_cndmask_b32 v2, v2, v3, vcc
    v_cmp_eq_u32 vcc, 14, v0
    v_cndmask_b32 v2, v2, v4, vcc
    buffer_store_dword v2, v1, s[24:27], 0 offen
    """)
A("L_k2end:")
A("s_endpgm")
A.trace(["k2"])

A.seg("desc")
A('.section .rodata,"a"')
for name, nv in (("attn_kernel", 256), ("reduce_kernel", 208)):
    A(".p2align 6")
    A(f".amdhsa_kernel {name}")
    A(f".amdhsa_next_free_vgpr {nv}")
    A(".amdhsa_next_free_sgpr 102")
    A(f".amdhsa_accum_offset {nv}")
    A(".amdhsa_group_segment_fixed_size 0")
    A(".amdhsa_kernarg_size 64")
    A(".amdhsa_user_sgpr_count 2")
    A(".amdhsa_user_sgpr_kernarg_segment_ptr 1")
    A(".amdhsa_system_sgpr_workgroup_id_x 1")
    A(".end_amdhsa_kernel")

A.fix_hazards()
sys.stderr.write("nops: %s\n" % A.count_nops())
sys.stdout.write(A.text())
```

```python
import re

TRANS = ("v_exp_f32", "v_log_f32", "v_rcp_f32", "v_rsq_f32", "v_sqrt_f32", "v_sin_f32", "v_cos_f32",
         "v_rcp_iflag_f32")


def _regs(tok):
    tok = tok.strip()
    if tok.startswith("-"):
        tok = tok[1:]
    if tok.startswith("abs(") or tok.startswith("neg("):
        tok = tok[4:-1]
    if tok.startswith("|"):
        tok = tok.strip("|")
    m = re.fullmatch(r"([vsa])(\d+)", tok)
    if m:
        return {(m.group(1), int(m.group(2)))}
    m = re.fullmatch(r"([vsa])\[(\d+):(\d+)\]", tok)
    if m:
        return {(m.group(1), i) for i in range(int(m.group(2)), int(m.group(3)) + 1)}
    if tok in ("vcc", "vcc_lo", "vcc_hi"):
        return {("vcc", 0)}
    if tok == "m0":
        return {("m0", 0)}
    if tok in ("exec", "exec_lo", "exec_hi"):
        return {("exec", 0)}
    return set()


class Ins:
    __slots__ = ("text", "nops", "op", "wr", "rd", "kind", "passes", "srcc", "srcab", "states", "wide_store",
                 "is_label", "sdata", "cond")

    def __init__(self, text):
        self.text = text
        self.nops = 0
        t = text.split(";")[0].strip()
        self.is_label = t.endswith(":") or t.startswith(".") or t == ""
        self.wr = set(); self.rd = set(); self.kind = "other"; self.passes = 0
        self.srcc = set(); self.srcab = set(); self.states = 1; self.wide_store = False; self.sdata = set()
        self.op = ""
        self.cond = False
        if self.is_label:
            self.states = 0
            return
        cond = "; cond" in text
        parts = t.split(None, 1)
        op = parts[0]; self.op = op
        ops = []
        if len(parts) > 1:
            raw = [x.strip() for x in parts[1].split(",")]
            for r in raw:
                ops.append(r.split()[0] if r else r)
            mods = parts[1]
        else:
            mods = ""
        R = [_regs(x) for x in ops]
        if op == "s_nop":
            self.states = int(ops[0], 0) + 1
            self.kind = "nop"
        elif op.startswith("v_mfma"):
            self.kind = "mfma"
            self.passes = 8 if "32x32" in op else 4
            self.wr = R[0]; self.srcab = R[1] | R[2]; self.srcc = R[3]; self.rd = self.srcab | self.srcc
        elif op.startswith("ds_read") or op.startswith("ds_bpermute") or op.startswith("ds_swizzle"):
            self.kind = "ds"; self.wr = R[0]; self.rd = set().union(*R[1:])
        elif op.startswith("ds_"):
            self.kind = "ds"; self.rd = set().union(*R)
        elif op.startswith("buffer_load") or op.startswith("global_load"):
            self.kind = "vmem"
            if re.search(r"\blds\b", mods) or "_lds_" in op:
                self.rd = set().union(*R) | {("m0", 0)}
                self.kind = "vmem_lds"
            else:
                self.wr = R[0]; self.rd = set().union(*R[1:])
        elif op.startswith("buffer_store") or op.startswith("global_store") or op.startswith("buffer_atomic") or op.startswith("global_atomic"):
            self.kind = "vmem"; self.rd = set().union(*R)
            if "x4" in op or "x3" in op:
                self.wide_store = True
                self.sdata = R[0] if op.startswith("buffer") else R[1]
        elif op.startswith("buffer_wbl2") or op.startswith("buffer_inv"):
            self.kind = "vmem"
        elif op.startswith("v_cmp"):
            self.kind = "valu"; self.wr = R[0]; self.rd = set().union(*R[1:])
        elif op.startswith("v_readfirstlane") or op.startswith("v_readlane"):
            self.kind = "valu_rl"; self.wr = R[0]; self.rd = set().union(*R[1:])
        elif op.startswith("v_permlane"):
            self.kind = "valu_perm"; self.wr = R[0] | R[1]; self.rd = R[0] | R[1]
        elif op.startswith("v_"):
            self.kind = "valu"
            self.wr = R[0]; self.rd = set().union(*R[1:]) if len(R) > 1 else set()
            if op.startswith("v_fmac") or op.startswith("v_dot2c") or op.startswith("v_mac"):
                self.rd |= R[0]
            if op.startswith("v_cndmask") and len(ops) == 3:
                self.rd |= {("vcc", 0)}
            if "_co_" in op:
                self.wr = R[0] | R[1]; self.rd = set().union(*R[2:])
            if op.split("_e")[0] in TRANS or op in TRANS:
                self.kind = "trans"
            if "dpp" in op or "row_" in mods or "quad_perm" in mods:
                self.kind = "valu_dpp"
        elif op.startswith("s_"):
            self.kind = "salu"
            if op.startswith(("s_cmp", "s_cbranch", "s_branch", "s_barrier", "s_waitcnt", "s_endpgm", "s_setprio",
                              "s_sleep", "s_bitcmp")):
                self.rd = set().union(*R) if R else set()
            else:
                self.wr = R[0] if R else set(); self.rd = set().union(*R[1:]) if len(R) > 1 else set()
                if "saveexec" in op:
                    self.wr |= {("exec", 0)}

        if cond:
            self.states = 0
            self.cond = True

    def is_valu(self):
        return self.kind in ("valu", "trans", "valu_rl", "valu_perm", "valu_dpp")


def need(p, c):
    n = 0
    pv = {r for r in p.wr if r[0] in "va" and r[0] != "vcc"}
    ps = {r for r in p.wr if r[0] in ("s", "vcc")}
    if p.is_valu():
        if c.kind == "mfma" and (pv & c.rd):
            n = max(n, 2)
        if c.kind == "valu_rl" and (pv & c.rd):
            n = max(n, 1)
        if c.kind in ("valu_perm", "valu_dpp") and (pv & c.rd):
            n = max(n, 2)
        if p.kind == "trans" and c.is_valu() and (pv & (c.rd | c.wr)):
            n = max(n, 1)
        if p.kind == "trans" and c.kind in ("ds", "vmem", "vmem_lds") and (pv & c.rd):
            n = max(n, 1)
        if ps:
            if c.is_valu() and (ps & c.rd):
                n = max(n, 4 if c.kind == "valu_rl" else 2)
            if c.kind in ("vmem", "vmem_lds") and (ps & c.rd):
                n = max(n, 5)
            if c.kind == "salu" and (ps & c.rd):
                n = max(n, 2)
    if p.kind == "mfma":
        big = p.passes == 8
        if c.kind == "mfma":
            if p.wr & c.srcab:
                n = max(n, 12 if big else 8)
            if p.wr & c.srcc:
                if not (p.wr == c.srcc and p.passes == c.passes):
                    n = max(n, 10 if big else 6)
            elif (p.wr & c.wr):
                n = max(n, 10 if big else 6)
        elif c.is_valu():
            if p.wr & (c.rd | c.wr):
                n = max(n, 12 if big else 8)
            if p.srcc & c.wr:
                n = max(n, 7 if big else 3)
        elif c.kind in ("ds", "vmem", "vmem_lds"):
            if p.wr & (c.rd | c.wr):
                n = max(n, 12 if big else 8)
            if p.srcc & c.wr:
                n = max(n, 7 if big else 3)
    if p.kind == "salu" and ("m0", 0) in p.wr and c.kind == "vmem_lds":
        n = max(n, 1)
    if p.wide_store and (p.sdata & c.wr):
        n = max(n, 2)
    return n


class Asm:
    def __init__(self):
        self.segs = {}
        self.order = []
        self.cur = None
        self.traces = []

    def seg(self, name):
        assert name not in self.segs, name
        self.segs[name] = []
        self.order.append(name)
        self.cur = self.segs[name]

    def __call__(self, text):
        for ln in text.split("\n"):
            if ln.strip() == "":
                continue
            self.cur.append(Ins(ln.strip()))

    def trace(self, names):
        self.traces.append(list(names))

    def fix_hazards(self):
        W = 24
        changed = True
        rounds = 0
        while changed:
            changed = False
            rounds += 1
            assert rounds < 20
            for tr in self.traces:
                hist = []
                pos = 0
                for sn in tr:
                    for ins in self.segs[sn]:
                        if ins.is_label:
                            continue
                        start = pos + ins.nops
                        req = 0
                        for (p, pend) in hist:
                            if p.cond and ins.cond:
                                continue
                            d = start - pend
                            nn = need(p, ins)
                            if nn > d:
                                req = max(req, nn - d)
                        if req:
                            ins.nops += req
                            start += req
                            changed = True
                        pos = pos if ins.cond else start + ins.states
                        hist.append((ins, pos))
                        hist = [(p, e) for (p, e) in hist if pos - e < W]

    def text(self):
        out = []
        for sn in self.order:
            for ins in self.segs[sn]:
                n = ins.nops
                while n > 0:
                    k = min(n, 16)
                    out.append(f"  s_nop {k-1}")
                    n -= k
                out.append(ins.text if ins.is_label else "  " + ins.text)
        return "\n".join(out) + "\n"

    def count_nops(self):
        return {sn: sum(i.nops for i in self.segs[sn]) for sn in self.order if sum(i.nops for i in self.segs[sn])}


class VM:
    def __init__(self, cap=63):
        self.q = []
        self.cap = cap

    def issue(self, tag):
        self.q.append(tag)

    def wait(self, tag):
        idx = max(i for i, t in enumerate(self.q) if t == tag)
        n = len(self.q) - 1 - idx
        self.q = self.q[idx + 1:]
        return min(n, self.cap)

    def clear(self):
        self.q = []

    def has(self, tag):
        return tag in self.q
```

```python
import sys, struct, math
from asmlib import Asm, VM

OPT = dict(nt="nt", prio=1, stamps=0, fine=28, pre=4, touch=29, xtouch=1, wwarm=2, xt0=29, vpv=1, mapb=1, slp=4)
for a in sys.argv[1:]:
    k, v = a.split("=")
    OPT[k] = int(v) if v.lstrip("-").isdigit() else v
NT = (" " + OPT["nt"]) if OPT["nt"] not in ("", "none") else ""
KNAME = "standalone__gqa_block_cached__near_ridge_kernel"

def f32(x):
    return "0x%08x" % struct.unpack("<I", struct.pack("<f", x))[0]

P_BUF = 0
VRING = 32768
KRING = 98304
MX_OFF = KRING + 3 * 16384
STG = [0, 53248, 106496]
XOFF = 32768
WSL = [98304, 131072, 65536, 32768, 98304, 131072, 65536]
ST_L = 28672
ST_M = ST_L + 1280
LDS_BYTES = 163840
PART_BYTES = 71680
XCH_BYTES = 71680 + 1024
XST = 71680
SCR = 20480
XCH_OFF = 256 * PART_BYTES
FLAG_OFF = XCH_OFF + 256 * XCH_BYTES
STAMP_OFF = 48 << 20

sX, sWQ, sVr, sWO, sWS, sKr = "s[4:7]", "s[8:11]", "s[12:15]", "s[16:19]", "s[20:23]", "s[60:63]"
sW, sB, sHQ, sHALF, sHKV = "s24", "s25", "s26", "s27", "s28"
sKO, sCNT, sRETRY = "s29", "s30", "s31"
sT0, sT1, sT2, sT3 = "s32", "s33", "s34", "s35"
sW1K, sXO, sWQO, sKDST, sKV0, sC, sWOO, sPART = "s36", "s37", "s38", "s39", "s40", "s41", "s42", "s43"
sQH, sKH, sDQ, sHP = "s44", "s45", "s46", "s47"
sLIM, sVO, sVDST = "s48", "s49", "s3"
sXS, sXR = "s64", "s65"
sFLG, sLOC = "s66", "s67"
sXT = ["s50", "s51", "s52"]
sPA, sPB, sPC = "s50", "s51", "s52"
WOF = " " + OPT.get("wof", "none").replace("+", " ").replace("none", "")
sXTC = "s53"
XTF = " " + OPT.get("xtf", "sc1").replace("+", " ").replace("none", "")
sDBG = "s[68:71]"
sOUT = "s[72:75]"

A = Asm()
_lab = [0]

def stamp(k, mode=1):
    if OPT["stamps"] == mode or (OPT["stamps"] and k in (2, 12)):
        A(f"s_memtime s[{76+2*k}:{77+2*k}]")

def vr(b, n):
    return f"v[{b}:{b+n-1}]" if n > 1 else f"v{b}"

def put(f):
    if callable(f):
        f()
    elif isinstance(f, (list, tuple)):
        for x in f:
            put(x)
    else:
        A(f)

def weave(main, fill, per=1):
    fill = list(fill)
    for m in main:
        put(m)
        for _ in range(per):
            if fill:
                put(fill.pop(0))
    for f in fill:
        put(f)

def run(fs):
    for f in fs:
        put(f)

def only_S(lines):
    def f():
        _lab[0] += 1
        A(f"s_cmp_ge_u32 {sW}, 4")
        A(f"s_cbranch_scc1 L_sk{_lab[0]}")
        for x in lines:
            A(x + " ; cond")
        A(f"L_sk{_lab[0]}:")
    return f

vI, vG = 40, 41
vXD, vWD = 42, 43
vW = [44, 45, 46, 47]
vXR = [48, 49]
vQW = [50, 51, 52, 53]
vQL = [54, 55]
vPVa = [56, 57, 58]
vA0 = 19
vKD = 16
vVD = [12, 13, 14, 15]
QACC = 176
QA = [96, 112]
QB = [128, 148]
S_Q, S_NM, S_KF, S_L = 96, 36, 20, 7
S_S = [56, 76]
vKA = [1, 2]; vPW = 3; vMX = 4
S_T = [5, 6, 17, 18]
O_ACC, P_A, P_B = 96, 76, 56
VT = [40, 24]
vVB = [1, 2]; vPR = 3
vWOD = 12
E_O = 96
E_ACC = [56, 76]
E_A = 36
vOA = [1, 2, 3]; vOB = [5, 6]; vST4 = 7; vST2 = 8; vSTAT = 10

A.seg("head")
A("; @launch grid=(256,1,1) block=(512,1,1) lds=%d" % LDS_BYTES)
A('.amdgcn_target "amdgcn-amd-amdhsa--gfx950"')
A(".text")
A(f".globl {KNAME}")
A(".p2align 8")
A(f".type {KNAME},@function")
A(f"{KNAME}:")
A.seg("entry")
A(f"""
s_cmp_ge_u32 s2, 256
s_cbranch_scc1 L_end
s_load_dwordx16 s[64:79], s[0:1], 0
""")
if OPT["stamps"]:
    A("s_memrealtime s[56:57]")
    stamp(2)
A(f"""
s_and_b32 {sB if OPT.get("mapb") else sHKV}, s2, 7
s_lshr_b32 {sT0}, s2, 3
s_lshr_b32 {sHKV if OPT.get("mapb") else sB}, {sT0}, 2
s_and_b32 {sT1}, {sT0}, 1
s_lshr_b32 {sHALF}, {sT0}, 1
s_and_b32 {sHALF}, {sHALF}, 1
s_lshl_b32 {sHQ}, {sHKV}, 1
s_add_u32 {sHQ}, {sHQ}, {sT1}
v_lshrrev_b32 v1, 6, v0
v_and_b32 v0, 63, v0
v_readfirstlane_b32 {sW}, v1
s_mul_i32 {sXO}, {sB}, 143360
s_lshl_b32 {sWQO}, {sHQ}, 9
v_and_b32 v{vI}, 15, v0
v_lshrrev_b32 v{vG}, 4, v0
s_lshl_b32 {sW1K}, {sW}, 10
s_lshr_b32 {sHP}, {sW}, 2
s_and_b32 {sQH}, {sW}, 1
s_lshl_b32 {sT0}, {sQH}, 2
v_add_u32 v5, {sT0}, v{vG}
v_and_b32 v6, 7, v0
v_xor_b32 v5, v5, v6
v_lshlrev_b32 v5, 4, v5
v_lshrrev_b32 v6, 3, v0
v_mul_u32_u24 v6, 896, v6
v_add_u32 v{vXD}, v5, v6
s_mul_i32 {sT0}, {sHALF}, 10
s_add_u32 {sT0}, {sT0}, {sW}
s_sub_u32 {sT1}, {sT0}, 20
s_cmp_ge_u32 {sT0}, 20
s_cselect_b32 {sT1}, {sT1}, {sT0}
s_mul_i32 {sT1}, {sT1}, 7168
s_add_u32 {sXT[0]}, {sT1}, {sXO}
s_add_u32 {sT0}, {sT0}, 8
s_sub_u32 {sT1}, {sT0}, 20
s_cmp_ge_u32 {sT0}, 20
s_cselect_b32 {sT1}, {sT1}, {sT0}
s_mul_i32 {sT1}, {sT1}, 7168
s_add_u32 {sXT[1]}, {sT1}, {sXO}
s_add_u32 {sT0}, {sT0}, 8
s_sub_u32 {sT1}, {sT0}, 20
s_cmp_ge_u32 {sT0}, 20
s_cselect_b32 {sT1}, {sT1}, {sT0}
s_mul_i32 {sT1}, {sT1}, 7168
s_add_u32 {sXT[2]}, {sT1}, {sXO}
v_lshrrev_b32 v5, 5, v0
s_lshl_b32 {sT0}, {sW}, 1
v_add_u32 v5, {sT0}, v5
v_and_b32 v6, 3, v5
s_lshl_b32 {sT0}, {sHP}, 2
v_or_b32 v6, {sT0}, v6
v_bfe_u32 v7, v0, 1, 4
v_xor_b32 v6, v6, v7
v_lshlrev_b32 v6, 5, v6
v_and_b32 v7, 1, v0
v_lshlrev_b32 v7, 4, v7
v_lshlrev_b32 v5, 13, v5
v_add3_u32 v{vWD}, v5, v6, v7
s_mov_b32 s6, 1146880
s_mov_b32 s7, 0x20000
s_mov_b32 s10, 3670016
s_mov_b32 s11, 0x20000
s_waitcnt lgkmcnt(0)
s_mov_b32 s4, s64
s_mov_b32 s5, s65
s_mov_b32 s8, s70
s_mov_b32 s9, s71
""")
stamp(3, 3)

vm = VM(63)

def dma(lines, tag, v=None):
    def f():
        for x in lines:
            A(x)
        (v or vm).issue(tag)
    return f

def stage_dma(s):
    sb = STG[s % 3]
    out = []
    for t in range(4):
        out.append(dma([f"s_add_u32 m0, {sW1K}, {sb + t*8192}",
                        f"s_add_u32 {sT0}, {sWQO}, {(s*64 + 16*t) * 8192}",
                        f"buffer_load_dwordx4 v{vWD}, {sWQ}, {sT0} offen lds"], f"st{s}"))
    for t in range(3):
        l = [f"s_add_u32 m0, {sW1K}, {sb + XOFF + t*8192}",
             f"s_add_u32 {sT0}, {sXT[t]}, {s*128}",
             f"buffer_load_dwordx4 v{vXD}, {sX}, {sT0} offen lds"]
        out.append(dma(l, f"st{s}") if t < 2 else only_S(l))
    return [out[6]] + out[:6]

def k_lines(i):
    slot = i & 3
    out = []
    for sg in range(4):
        l = [f"s_add_u32 m0, {sKDST}, {slot*16384 + sg*2048 - sg*128}", "s_nop 0",
             f"buffer_load_dwordx4 v{vKD}, {sKr}, {sKO} offen offset:{sg*128}{NT} lds"]
        if sg == 3:
            l.append(f"s_add_u32 {sKO}, {sKO}, 16384")
        out.append(l)
    return out

def v_lines(t):
    pos = (t + 3) & 3
    out = []
    for jj in range(4):
        l = [f"s_add_u32 m0, {sVDST}, {pos*16384 + jj*1024}", "s_nop 0",
             f"buffer_load_dwordx4 v{vVD[jj]}, {sVr}, {sVO} offen{NT} lds"]
        if jj == 3:
            l.append(f"s_add_u32 {sVO}, {sVO}, 16384")
        out.append(l)
    return out

run(stage_dma(0))
stamp(4, 3)
A.seg("pro")
A(f"""
s_mov_b32 s16, s72
s_mov_b32 s17, s73
s_mov_b32 s18, 3670016
s_mov_b32 s19, 0x20000
s_mov_b32 s20, s78
s_mov_b32 s21, s79
s_mov_b32 s22, 0x10000000
s_mov_b32 s23, 0x20000
s_mov_b32 s12, s68
s_mov_b32 s13, s69
s_mov_b32 s14, 0x4000000
s_mov_b32 s15, 0x20000
s_mov_b32 s60, s66
s_mov_b32 s61, s67
s_mov_b32 s62, 0x4000000
s_mov_b32 s63, 0x20000
s_mov_b32 {sRETRY}, 0
s_mov_b32 {sC}, {f32(math.log2(math.e) / 16.0)}
s_mov_b32 {sLIM}, {f32(2.0 ** 30)}
s_mul_i32 {sWOO}, {sHQ}, 229376
s_lshl_b32 {sT0}, {sB}, 3
s_add_u32 {sT0}, {sT0}, {sHKV}
s_lshl_b32 {sT0}, {sT0}, 1
s_add_u32 {sT0}, {sT0}, {sHALF}
s_lshl_b32 {sKV0}, {sT0}, 19
s_mov_b32 s68, s76
s_mov_b32 s69, s77
s_mov_b32 s70, 256
s_mov_b32 s71, 0x20000
s_mov_b32 s72, s74
s_mov_b32 s73, s75
s_mov_b32 s74, 1146880
s_mov_b32 s75, 0x20000
s_lshl_b32 {sT0}, {sB}, 1
s_add_u32 {sT0}, {sT0}, {sHALF}
s_lshl_b32 {sFLG}, {sT0}, 7
s_add_u32 {sFLG}, {sFLG}, {FLAG_OFF}
s_lshl_b32 {sT0}, {sT0}, 4
s_add_u32 {sT0}, {sT0}, {sHQ}
s_mul_i32 {sPART}, {sT0}, {PART_BYTES}
s_mul_i32 {sXS}, {sT0}, {XCH_BYTES}
s_add_u32 {sXS}, {sXS}, {XCH_OFF}
s_xor_b32 {sT0}, {sT0}, 16
s_mul_i32 {sXR}, {sT0}, {XCH_BYTES}
s_add_u32 {sXR}, {sXR}, {XCH_OFF}
s_and_b32 {sDQ}, {sW}, 3
s_lshr_b32 {sKH}, {sDQ}, 1
v_lshrrev_b32 v30, 3, v{vI}
v_lshlrev_b32 v30, 10, v30
v_and_b32 v31, 7, v{vI}
v_lshlrev_b32 v31, 7, v31
v_lshrrev_b32 v32, 1, v{vI}
v_xor_b32 v33, v{vG}, v32
v_lshlrev_b32 v33, 4, v33
v_add3_u32 v{vA0}, v30, v31, v33
s_mul_i32 {sT0}, {sHP}, 10240
s_add_u32 {sT0}, {sT0}, {XOFF}
v_add_u32 v{vXR[0]}, {sT0}, v{vA0}
v_xor_b32 v{vXR[1]}, 64, v{vXR[0]}
v_lshrrev_b32 v24, 2, v{vI}
v_and_b32 v25, 1, v{vG}
v_lshlrev_b32 v25, 2, v25
v_or_b32 v25, v25, v24
v_lshl_add_u32 v26, v{vG}, 3, v24
v_lshlrev_b32 v26, 9, v26
v_and_b32 v27, 3, v0
v_lshl_add_u32 v26, v27, 3, v26
s_lshl_b32 {sT0}, {sDQ}, 2
v_xor_b32 v25, {sT0}, v25
""")
for m in range(4):
    A(f"v_xor_b32 v28, {m}, v25")
    A(f"v_lshl_add_u32 v{vW[m]}, v28, 5, v26")
stamp(5, 3)
A("s_barrier")
run(stage_dma(1))
stamp(6, 3)
A(f"""
v_lshrrev_b32 v24, 1, v{vG}
v_xor_b32 v24, v24, v32
v_and_b32 v25, 1, v{vG}
v_lshlrev_b32 v25, 3, v25
v_add3_u32 v25, v30, v31, v25
s_mul_i32 {sT0}, {sHP}, 40960
s_lshl_b32 {sT1}, {sDQ}, 11
s_add_u32 {sT0}, {sT0}, {sT1}
v_add_u32 v25, {sT0}, v25
""")
for m in range(4):
    A(f"v_xor_b32 v28, {2*m}, v24")
    A(f"v_lshl_add_u32 v{vQW[m]}, v28, 4, v25")
A(f"""
s_mov_b32 {sVO}, {sKV0}
s_mov_b32 {sKO}, {sKV0}
s_lshl_b32 {sT0}, {sQH}, 2
v_add_u32 v24, {sT0}, v{vG}
v_and_b32 v25, 7, v0
v_xor_b32 v24, v24, v25
v_lshlrev_b32 v24, 4, v24
v_lshrrev_b32 v25, 3, v0
s_lshl_b32 {sT0}, {sKH}, 4
s_lshl_b32 {sT1}, {sQH}, 3
s_add_u32 {sT0}, {sT0}, {sT1}
v_add_u32 v25, {sT0}, v25
v_lshl_add_u32 v{vKD}, v25, 9, v24
s_lshl_b32 {sT0}, {sKH}, 13
s_lshl_b32 {sT1}, {sQH}, 10
s_add_u32 {sKDST}, {sT0}, {sT1}
s_add_u32 {sKDST}, {sKDST}, {KRING}
""")
def v_addr():
    A(f"""
    v_bfe_u32 v24, v0, 4, 1
    v_lshlrev_b32 v24, 2, v24
    v_and_b32 v25, 7, v0
    v_xor_b32 v24, v24, v25
    v_lshlrev_b32 v24, 4, v24
    v_lshrrev_b32 v25, 3, v0
    v_lshl_add_u32 v24, v25, 9, v24
    s_lshl_b32 {sT0}, {sDQ}, 7
    v_add_u32 v{vVD[0]}, {sT0}, v24
    v_add_u32 v{vVD[1]}, 4096, v{vVD[0]}
    v_add_u32 v{vVD[2]}, 8192, v{vVD[0]}
    v_add_u32 v{vVD[3]}, 12288, v{vVD[0]}
    """)
v_addr()
A(f"""
s_cmp_lg_u32 {sW}, 4
s_cbranch_scc1 L_noclr
v_and_b32 v24, 1, v0 ; cond
v_lshlrev_b32 v24, 6, v24 ; cond
s_lshl_b32 {sT1}, {sHQ}, 2 ; cond
v_add_u32 v24, {sT1}, v24 ; cond
v_mov_b32 v25, 0 ; cond
buffer_store_dword v25, v24, {sWS}, {sFLG} offen sc1 ; cond
L_noclr:
s_lshl_b32 {sVDST}, {sDQ}, 12
s_add_u32 {sVDST}, {sVDST}, {VRING}
s_mul_i32 {sT0}, {sQH}, 40960
v_add_u32 v{vQL[0]}, {sT0}, v{vA0}
v_xor_b32 v{vQL[1]}, 64, v{vQL[0]}
v_lshrrev_b32 v24, 1, v{vG}
s_lshl_b32 {sT0}, {sKH}, 1
v_add_u32 v24, {sT0}, v24
v_mul_u32_u24 v24, 2560, v24
v_and_b32 v25, 1, v{vG}
v_lshl_add_u32 v24, v25, 3, v24
s_mul_i32 {sT0}, {sQH}, 80
v_add_u32 v25, {sT0}, v{vI}
v_lshl_add_u32 v{vPW}, v25, 4, v24
s_lshl_b32 {sT0}, {sKH}, 2
s_add_u32 {sT0}, {sT0}, {MX_OFF}
v_lshlrev_b32 v25, 3, v25
v_add_u32 v{vMX}, {sT0}, v25
s_lshl_b32 {sT0}, {sKH}, 13
s_add_u32 {sT0}, {sT0}, {KRING}
v_add_u32 v{vKA[0]}, {sT0}, v{vA0}
v_xor_b32 v{vKA[1]}, 64, v{vKA[0]}
v_lshrrev_b32 v30, 2, v{vI}
v_lshrrev_b32 v31, 5, v0
v_lshl_add_u32 v32, v31, 3, v30
v_lshlrev_b32 v32, 7, v32
v_lshrrev_b32 v33, 1, v30
v_lshl_add_u32 v32, v33, 6, v32
v_and_b32 v33, 1, v{vG}
v_lshl_add_u32 v32, v33, 5, v32
v_and_b32 v33, 3, v0
v_lshl_add_u32 v32, v33, 3, v32
v_mul_u32_u24 v31, 2560, v31
v_and_b32 v33, 31, v0
v_lshl_add_u32 v{vPVa[2]}, v33, 4, v31
v_add_u32 v{vPVa[0]}, {sVDST}, v32
v_xor_b32 v{vPVa[1]}, 64, v{vPVa[0]}
""")
for qt in range(5):
    A(f"v_mov_b32 v{S_L+qt}, 0xff800000")

def q_reads(s2):
    out = []
    for qt in range(5):
        out.append(f"ds_read_b128 {vr(QB[s2] + qt*4, 4)}, v{vXR[s2]} offset:{qt*2048}")
    for m in range(4):
        for e in range(2):
            out.append(f"ds_read_b64_tr_b16 {vr(QA[s2] + m*4 + e*2, 2)}, v{vW[m]} offset:{(32*s2 + 4*e) * 512}")
    return out

def q_mfma(s2, first):
    out = []
    for m in range(4):
        for qt in range(5):
            acc = vr(QACC + (m*5 + qt) * 4, 4)
            out.append(f"v_mfma_f32_16x16x32_bf16 {acc}, {vr(QA[s2] + m*4, 4)}, {vr(QB[s2] + qt*4, 4)}, {'0' if first else acc}")
    return out

for s in range(7):
    A(f"s_waitcnt vmcnt({vm.wait(f'st{s}')})")
    if s == 0:
        stamp(7, 3)
    A("s_barrier")
    if s <= 3:
        stamp(8 + s, 3)
    if s == 0:
        stamp(3)
    d = []
    if 0 <= s <= 4:
        d = stage_dma(s + 2)
    if s == 6:
        kl = k_lines(0) + k_lines(1) + v_lines(0) + k_lines(2)
        d = [only_S(kl[2*j] + kl[2*j + 1]) for j in range(8)]
    upd = []
    if s < 6:
        dl = STG[(s + 1) % 3] - STG[s % 3]
        upd = [[f"s_mov_b32 {sT1}, {dl & 0xffffffff}", f"v_add_u32 v{vW[0]}, {sT1}, v{vW[0]}"]] + \
              [f"v_add_u32 v{r}, {sT1}, v{r}" for r in vW[1:] + vXR]
    if s >= 1:
        if s == 6:
            weave(q_mfma(1, False), d[:4] + q_reads(0) + d[4:7])
        else:
            weave(q_mfma(1, False), q_reads(0) + d[:7])
        d = d[7:]
    else:
        weave(q_reads(0), [])
    A("s_waitcnt lgkmcnt(0)")
    if s == 0:
        weave(q_mfma(0, True), q_reads(1) + d + upd)
    else:
        weave(q_mfma(0, False), [[], []] + q_reads(1) + d + upd)
    A("s_waitcnt lgkmcnt(0)")
stamp(4)
A("s_barrier")

def q_out(idx):
    m, qt = divmod(idx, 5)
    a = QACC + idx * 4
    return [f"v_mul_f32 v{a}, {sC}, v{a}", f"v_mul_f32 v{a+1}, {sC}, v{a+1}",
            f"v_mul_f32 v{a+2}, {sC}, v{a+2}", f"v_mul_f32 v{a+3}, {sC}, v{a+3}",
            f"v_cvt_pk_bf16_f32 v{a}, v{a}, v{a+1}", f"v_cvt_pk_bf16_f32 v{a+1}, v{a+2}, v{a+3}",
            f"ds_write_b64 v{vQW[m]}, {vr(a, 2)} offset:{qt*8192}"]
for j, mf in enumerate(q_mfma(1, False)):
    A(mf)
    if j >= 3:
        run(q_out(j - 3))
for j in range(17, 20):
    run(q_out(j))
A(f"s_cmp_ge_u32 {sW}, 4")
A("s_cbranch_scc1 L_PV")


def wo_addr():
    A(f"""
    v_bfe_u32 v13, v0, 4, 1
    s_lshl_b32 {sT0}, {sQH}, 1
    v_or_b32 v13, {sT0}, v13
    v_lshlrev_b32 v13, 1, v13
    v_and_b32 v14, 7, v0
    v_xor_b32 v13, v13, v14
    v_lshrrev_b32 v14, 3, v0
    s_lshl_b32 {sT0}, {sW}, 3
    v_add_u32 v14, {sT0}, v14
    v_mul_u32_u24 v14, 896, v14
    v_lshl_add_u32 v{vWOD}, v13, 4, v14
    """)

def wo_dma(j, v):
    out = []
    for t in range(8):
        out.append(dma([f"s_add_u32 m0, {sW1K}, {WSL[j] + t*4096}",
                        f"s_add_u32 {sT0}, {sWOO}, {t*28672 + j*128}",
                        f"buffer_load_dwordx4 v{vWOD}, {sWO}, {sT0} offen{WOF} lds"], f"wo{j}", v))
    return out


def gen_role(role):
    S = role == "S"
    R = role
    vm = VM(63)
    lg = VM(15)
    tr = ["entry", "pro"]

    def seg(n):
        A.seg(f"{R}_{n}")
        tr.append(f"{R}_{n}")

    def k_dma(i):
        return [dma(l, f"K{i}", vm) for l in k_lines(i)]

    def v_dma(t):
        return [dma(l, f"V{t}", vm) for l in v_lines(t)]

    def lds(line, tag):
        def f():
            A(line)
            lg.issue(tag)
        return f

    def fst(i, k):
        if i == OPT["fine"]:
            stamp(k, 2)

    def kread(i, s):
        return lds(f"ds_read_b128 {vr(S_KF + (s & 3)*4, 4)}, v{vKA[s & 1]} offset:{(i & 3)*16384 + (s >> 1)*2048}", f"kf{s}")

    def s_mfma(i, s, qt):
        acc = vr(S_S[i & 1] + qt*4, 4)
        c = acc if s else ("0" if i == 0 else vr(S_NM + qt*4, 4))
        return f"v_mfma_f32_16x16x32_bf16 {acc}, {vr(S_KF + (s & 3)*4, 4)}, {vr(S_Q + (qt*8 + s)*4, 4)}, {c}"

    def end_wait(i):
        need = [t for t in (f"K{i+1}", f"V{i}") if vm.has(t)]
        if need:
            last = max(need, key=lambda t: max(k for k, x in enumerate(vm.q) if x == t))
            A(f"s_waitcnt vmcnt({vm.wait(last)}) lgkmcnt(0)")
        else:
            A("s_waitcnt lgkmcnt(0)")
        lg.clear()

    seg("i0")
    if S:
        for t in ["K0"]*4 + ["K1"]*4 + ["V0"]*4 + ["K2"]*4:
            vm.issue(t)
        if OPT["prio"]:
            A(f"s_setprio {OPT['prio']}")
        A(f"s_waitcnt vmcnt({vm.wait('K0')}) lgkmcnt(0)")
        A("s_barrier")
        stamp(5)
        def grp(s):
            return [kread(0, s)] + [lds(f"ds_read_b128 {vr(S_Q + (qt*8 + s)*4, 4)}, v{vQL[s & 1]} offset:{qt*8192 + (s >> 1)*2048}", f"kf{s}")
                                    for qt in range(5)]
        run(grp(0) + grp(1))
        for s in range(8):
            A(f"s_waitcnt lgkmcnt({lg.wait(f'kf{s}')})")
            weave([s_mfma(0, s, qt) for qt in range(5)], grp(s + 2) if s + 2 < 8 else [], per=2)
    else:
        A("L_PV:")
        for j in range(3):
            A(f"v_mov_b32 v{1+j}, v{vPVa[j]}")
        A("s_waitcnt lgkmcnt(0)")
        A("s_barrier")
        stamp(5)
        A(f"""
        s_cmp_lg_u32 {sW}, 4
        s_cbranch_scc1 L_noreg
        s_getreg_b32 {sT0}, hwreg(HW_REG_XCC_ID)
        s_and_b32 {sT0}, {sT0}, 15
        s_mul_i32 {sT1}, {sT0}, {sT0}
        s_lshl_b32 {sT1}, {sT1}, 18
        s_lshl_b32 {sT0}, {sT0}, 8
        s_add_u32 {sT0}, {sT0}, {sT1}
        s_add_u32 {sT0}, {sT0}, 1
        v_mov_b32 v21, 0
        v_mov_b32 v22, {sT0}
        s_lshl_b32 {sT1}, {sB}, 5
        s_mov_b64 exec, 1
        buffer_atomic_add v22, v21, {sDBG}, {sT1} offen
        s_mov_b64 exec, -1
        L_noreg:
        """)
    vm_join = list(vm.q)
    seg("join")
    A(f"L_{R}_join:")
    if S:
        SS = S_S[0]
        for qt in range(5):
            a = SS + qt*4; t = S_KF + qt*2
            A(f"v_max3_f32 v{t}, v{a}, v{a+1}, v{S_L+qt}")
            A(f"v_max3_f32 v{t}, v{a+2}, v{a+3}, v{t}")
            A(f"v_mov_b32 v{t+1}, v{t}")
        for qt in range(5):
            t = S_KF + qt*2
            A(f"v_permlane32_swap_b32 v{t}, v{t+1}")
        for qt in range(5):
            t = S_KF + qt*2
            A(f"v_max_f32 v{t}, v{t}, v{t+1}")
            A(f"v_mov_b32 v{t+1}, v{t}")
        for qt in range(5):
            t = S_KF + qt*2
            A(f"v_permlane16_swap_b32 v{t}, v{t+1}")
        for qt in range(5):
            t = S_KF + qt*2
            A(f"v_max_f32 v{t}, v{t}, v{t+1}")
            A(f"ds_write_b32 v{vMX}, v{t} offset:{qt*128}")
        A("s_waitcnt lgkmcnt(0)")
        A("s_barrier")
        A(f"v_and_b32 v5, 0xfffffffb, v{vMX}")
        for qt in range(5):
            A(f"ds_read_b64 {vr(S_KF + qt*2, 2)}, v5 offset:{qt*128}")
        run(v_dma(1) + v_dma(2))
        for qt in range(5):
            t = S_KF + qt*2
            A(f"s_waitcnt lgkmcnt({4 - qt})")
            A(f"v_max_f32 v{t}, v{t}, v{t+1}")
            for r in range(4):
                A(f"v_sub_f32 v{S_NM + qt*4 + r}, 0, v{t}")
            for r in range(4):
                A(f"v_sub_f32 v{SS + qt*4 + r}, v{SS + qt*4 + r}, v{t}")
        end_wait(0)
        A("s_barrier")
    else:
        A("s_barrier")
        A("s_barrier")

    def softmax_fill(j):
        SS = S_S[j & 1]; buf = j & 1
        out = []
        for qt in range(5):
            a = SS + qt*4
            t0, t1 = (S_T[0], S_T[1]) if qt % 2 == 0 else (S_T[2], S_T[3])
            ex = [(2, f"v_exp_f32 v{a+r}, v{a+r}") for r in range(4)]
            wr = lds(f"ds_write_b64 v{vPW}, {vr(a, 2)} offset:{P_BUF + buf*10240 + qt*256}", "pw")
            post = [(1, f"v_add_f32 v{t0}, v{a}, v{a+1}"), (1, f"v_add_f32 v{t1}, v{a+2}, v{a+3}"),
                    (1, f"v_cvt_pk_bf16_f32 v{a}, v{a}, v{a+1}"), (1, f"v_cvt_pk_bf16_f32 v{a+1}, v{a+2}, v{a+3}"),
                    (1, f"v_add_f32 v{t0}, v{t0}, v{t1}"), (1, wr),
                    (1, f"v_mov_b32 v{S_L+qt}, v{t0}" if j == 0 else f"v_add_f32 v{S_L+qt}, v{S_L+qt}, v{t0}")]
            out.append((ex, post))
        seq = list(out[0][0])
        for qt in range(5):
            if qt + 1 < 5:
                e = out[qt + 1][0]; p = out[qt][1]
                seq += [e[0], p[0], p[1], e[1], p[2], p[3], e[2], p[4], p[5], e[3], p[6]]
            else:
                seq += out[qt][1]
        return seq

    def s_interval(i):
        fill = softmax_fill(i - 1)
        def fput(n):
            while fill and n >= fill[0][0]:
                c, it = fill.pop(0)
                n -= c
                put(it)
        fst(i, 3)
        if i <= 31:
            for s in range(4):
                put(kread(i, s))
            d = []
            if i == 1:
                d += k_dma(3)
            if i + 3 <= 31:
                d += k_dma(i + 3)
            if i == 29:
                d += [wo_addr]
            if i == 30:
                d += wo_dma(0, vm)[:4]
            if i == 31:
                d += wo_dma(0, vm)[4:]
            for f in d:
                f()
                fput(OPT["pre"])
            for s in range(8):
                A(f"s_waitcnt lgkmcnt({lg.wait(f'kf{s}')})")
                if s == 0:
                    fst(i, 4)
                for qt in range(5):
                    A(s_mfma(i, s, qt))
                    if qt == 1 and 1 <= s <= 4:
                        put(kread(i, s + 3))
                        fput(1)
                    elif qt == 4:
                        fput(1)
                    else:
                        fput(2)
            fst(i, 5)
        fput(1000)
        fst(i, 6)
        if i == 32:
            run(wo_dma(1, vm))
        end_wait(i)
        fst(i, 7)
        A("s_barrier")
        fst(i, 8)

    def vt_reads(t):
        pos = (t + 3) & 3
        out = []
        for s16 in range(2):
            for tt in range(2):
                for e in range(2):
                    out.append(f"ds_read_b64_tr_b16 {vr(VT[t & 1] + (s16*2 + tt)*4 + e*2, 2)}, v{vVB[tt]} offset:{pos*16384 + (16*s16 + 4*e)*128}")
        return out

    def pv_mfma(t, s16, P, first):
        out = []
        for qt in range(5):
            for tt in range(2):
                acc = vr(O_ACC + (tt*5 + qt)*16, 16)
                out.append(f"v_mfma_f32_32x32x16_bf16 {acc}, {vr(VT[t & 1] + (s16*2 + tt)*4, 4)}, {vr(P + qt*4, 4)}, {'0' if first else acc}")
        return out

    def o_addr():
        A(f"""
        v_and_b32 v17, 15, v0
        v_lshrrev_b32 v18, 3, v17
        v_lshlrev_b32 v18, 10, v18
        v_and_b32 v20, 7, v17
        v_lshl_add_u32 v18, v20, 7, v18
        v_lshrrev_b32 v20, 1, v17
        v_lshl_add_u32 v18, v20, 4, v18
        v_lshrrev_b32 v20, 5, v0
        v_lshl_add_u32 v18, v20, 3, v18
        v_bfe_u32 v20, v0, 4, 1
        v_lshl_add_u32 v18, v20, 13, v18
        s_lshl_b32 {sT0}, {sDQ}, 11
        v_add_u32 v18, {sT0}, v18
        """)
        for p in range(8):
            A(f"v_xor_b32 v{4 + p}, {p << 4}, v18")

    def pv_interval(i):
        if i == 1:
            run(vt_reads(0))
            o_addr()
            A(f"v_lshlrev_b32 v17, 4, v0")
            A(f"s_lshl_b32 {sXTC}, {sDQ}, 10")
            A(f"s_add_u32 {sXTC}, {sXTC}, {sXS}")
            if OPT["vpv"]:
                A(f"s_add_u32 {sVO}, {sKV0}, {3*16384}")
                run(v_dma(3))
            A("s_waitcnt lgkmcnt(0)")
            A("s_barrier")
            return
        t = i - 2; buf = t & 1
        fst(i, 3)
        pa = [f"ds_read_b128 {vr(P_A + qt*4, 4)}, v{vPR} offset:{P_BUF + buf*10240 + qt*512}" for qt in range(5)]
        pb = [f"ds_read_b128 {vr(P_B + qt*4, 4)}, v{vPR} offset:{P_BUF + buf*10240 + 5120 + qt*512}" for qt in range(5)]
        if t >= 1:
            weave(pv_mfma(t - 1, 1, P_B, False), pa + pb[:3] + [[]] + [pb[3]])
        else:
            run(pa + pb[:4])
        fst(i, 4)
        if OPT["vpv"]:
            if i + 2 <= 31:
                run(v_dma(i + 2))
            if vm.has(f"V{t+1}"):
                A(f"s_waitcnt vmcnt({vm.wait(f'V{t+1}')})")
            nx = {OPT["xt0"]: 3, OPT["xt0"] + 1: 4, OPT["xt0"] + 2: 4}.get(i, 0) if OPT["xtouch"] else 0
            if nx:
                A(f"s_add_u32 m0, {sW1K}, {SCR}")
            for k in range(nx):
                if i == OPT["xt0"] + 2 and k == 3:
                    A(f"s_add_u32 {sXTC}, {sXS}, {XST}")
                else:
                    A("s_nop 0")
                put(dma([f"buffer_load_dwordx4 v17, {sWS}, {sXTC} offen{XTF} lds", f"s_add_u32 {sXTC}, {sXTC}, 4096"], "tch", vm))
        A("s_waitcnt lgkmcnt(4)")
        fst(i, 5)
        d = []
        if i == OPT["wwarm"]:
            d = [[f"s_mul_i32 {sT1}, s2, 14336", f"s_lshl_b32 {sT2}, {sDQ}, 10", f"s_add_u32 {sT1}, {sT1}, {sT2}",
                  f"s_add_u32 m0, {sW1K}, {SCR}"]]
            for k in range(4):
                d.append(dma([f"buffer_load_dwordx4 v17, {sWO}, {sT1} offen lds", f"s_add_u32 {sT1}, {sT1}, 4096"], f"X{i}", vm))
        if i == OPT["touch"]:
            d = [[f"v_lshrrev_b32 v16, 2, v0", f"v_mul_u32_u24 v16, 896, v16", f"v_and_b32 v18, 3, v0",
                  f"v_lshl_add_u32 v16, v18, 7, v16",
                  f"s_lshl_b32 {sT1}, {sHALF}, 2", f"s_add_u32 {sT1}, {sT1}, {sDQ}", f"s_mul_i32 {sT1}, {sT1}, {32*896}",
                  f"s_add_u32 {sT1}, {sT1}, {sWOO}", f"s_add_u32 {sT2}, {sT1}, {16*896}"],
                 dma([f"s_add_u32 m0, {sW1K}, {SCR - 384}", "s_nop 0", f"buffer_load_dword v16, {sWO}, {sT1} offen offset:384 lds"], "tch", vm),
                 dma([f"buffer_load_dword v16, {sWO}, {sT2} offen offset:384 lds"], "tch", vm)]
        vt = vt_reads(t + 1) if t + 1 <= 31 else []
        weave(pv_mfma(t, 0, P_A, t == 0), [vt[:3], [pb[4]] + vt[3:5], vt[5:]] + d)
        fst(i, 6)
        A("s_waitcnt lgkmcnt(0)")
        fst(i, 7)
        A("s_barrier")
        fst(i, 8)

    interval = s_interval if S else pv_interval
    seg("g0")
    for i in range(1, 4):
        interval(i)
    stamp(6)
    A(f"s_mov_b32 {sCNT}, 6")
    vm.q = [t for t in vm.q if t[0] != "X"]
    q_before = list(vm.q)
    seg("loop")
    A(f"L_{R}_loop:")
    for i in range(4, 8):
        interval(i)
    A(f"s_sub_u32 {sCNT}, {sCNT}, 1")
    A(f"s_cmp_lg_u32 {sCNT}, 0")
    A(f"s_cbranch_scc1 L_{R}_loop")
    sh = lambda q, d: [t[0] + str(int(t[1:]) + d) for t in q]
    while vm.q and vm.q[0][0] == 'X':
        vm.q.pop(0)
    assert sh(q_before, 4) == vm.q, (q_before, vm.q)
    vm.q = sh(vm.q, 20)
    tr.append(f"{R}_loop")
    seg("gl")
    stamp(7)
    for i in range(28, 33):
        interval(i)
    if S:
        if OPT["prio"]:
            A("s_setprio 0")
        T = S_KF + 4
        for qt in range(5):
            A(f"v_mov_b32 v{T + qt}, v{S_L + qt}")
        for qt in range(5):
            A(f"v_permlane32_swap_b32 v{T + qt}, v{S_L + qt}")
        for qt in range(5):
            A(f"v_add_f32 v{S_L + qt}, v{S_L + qt}, v{T + qt}")
            A(f"v_mov_b32 v{T + qt}, v{S_L + qt}")
        for qt in range(5):
            A(f"v_permlane16_swap_b32 v{T + qt}, v{S_L + qt}")
        A(f"v_add_u32 v5, {(ST_L - MX_OFF) & 0xffffffff}, v{vMX}")
        A(f"v_subrev_u32 v6, {MX_OFF}, v{vMX}")
        A(f"v_lshrrev_b32 v6, 3, v6")
        A(f"v_lshlrev_b32 v6, 2, v6")
        A(f"v_add_u32 v6, {ST_M}, v6")
        for qt in range(5):
            A(f"v_add_f32 v{S_L + qt}, v{S_L + qt}, v{T + qt}")
            A(f"ds_write_b32 v5, v{S_L + qt} offset:{qt*128}")
            A(f"ds_write_b32 v6, v{S_NM + qt*4} offset:{qt*64}")
        A(f"""
        s_cmp_lg_u32 {sW}, 0
        s_cbranch_scc1 L_regdone
        s_getreg_b32 {sT2}, hwreg(HW_REG_XCC_ID)
        s_and_b32 {sT2}, {sT2}, 15
        s_mul_i32 {sT1}, {sT2}, {sT2}
        s_lshl_b32 {sT1}, {sT1}, 23
        s_lshl_b32 {sT2}, {sT2}, 13
        s_add_u32 {sT2}, {sT2}, {sT1}
        s_add_u32 {sT2}, {sT2}, 32
        s_lshl_b32 {sT1}, {sB}, 5
        v_mov_b32 v29, 0
        s_mov_b32 {sCNT}, 0x40000
        L_regpoll:
        buffer_load_dword v30, v29, {sDBG}, {sT1} offen sc1
        s_waitcnt vmcnt(0)
        v_readfirstlane_b32 {sT0}, v30
        s_sub_u32 {sCNT}, {sCNT}, 1
        s_cmp_eq_u32 {sCNT}, 0
        s_cbranch_scc1 L_regok
        s_and_b32 {sT3}, {sT0}, 0xff
        s_cmp_ge_u32 {sT3}, 32
        s_cbranch_scc1 L_regok
        s_sleep 8
        s_branch L_regpoll
        L_regok:
        s_cmp_eq_u32 {sT0}, {sT2}
        s_cselect_b32 {sLOC}, {0 if OPT.get("noloc") else 1}, 0
        v_mov_b32 v29, {ST_M + 1024}
        v_mov_b32 v30, {sLOC}
        ds_write_b32 v29, v30
        L_regdone:
        """)
        run(wo_dma(2, vm) + wo_dma(3, vm))
        A(f"s_waitcnt vmcnt({vm.wait('wo1')}) lgkmcnt(0)")
        A("s_barrier")
    else:
        pv_interval(33)

    seg("post")
    stamp(8)
    A(f"""
    v_lshlrev_b32 v17, 3, v0
    v_min_u32 v18, 31, v0
    v_lshlrev_b32 v18, 3, v18
    v_add_u32 v17, {ST_L}, v17
    v_add_u32 v18, {ST_L}, v18
    ds_read_b64 v[76:77], v17
    ds_read_b64 v[20:21], v17 offset:512
    ds_read_b64 v[78:79], v18 offset:1024
    v_mov_b32 v17, {ST_M + 1024}
    ds_read_b32 v80, v17
    """)
    chk = f"""
    s_waitcnt lgkmcnt(0)
    v_readfirstlane_b32 {sLOC}, v80
    v_add_f32 v76, v76, v77
    v_add_f32 v20, v20, v21
    v_add_f32 v78, v78, v79
    v_cmp_ge_f32 s[50:51], {sLIM}, v76
    v_cmp_ge_f32 s[52:53], {sLIM}, v20
    v_cmp_ge_f32 s[54:55], {sLIM}, v78
    s_and_b64 s[50:51], s[50:51], s[52:53]
    s_and_b64 s[50:51], s[50:51], s[54:55]
    s_cmp_eq_u64 s[50:51], -1
    s_cbranch_scc1 L_{R}_ok
    s_cmp_eq_u32 {sRETRY}, 0
    s_cbranch_scc1 L_{R}_fallback
    """
    if not S:
        mfa = pv_mfma(31, 1, P_B, False)
        mf = mfa[4:] + mfa[:4]
        run(mf[:4])
    A(chk)
    seg("ok")
    A(f"L_{R}_ok:")

    def signal_wait(flag_word, poll_addr_code, nlanes, lab, agent=0):
        A(f"""
        s_cmp_lg_u32 {sW}, {agent}
        s_cbranch_scc1 L_{lab}_done
        v_mov_b32 v28, 1
        s_lshl_b32 {sT1}, {sHQ}, 2
        s_add_u32 {sT1}, {sT1}, {flag_word}
        v_mov_b32 v27, {sT1}
        {poll_addr_code}
        s_mov_b32 {sCNT}, 0x40000
        s_mov_b64 exec, 1
        s_cmp_eq_u32 {sLOC}, 1
        s_cbranch_scc1 L_{lab}_loc
        buffer_wbl2 sc1
        s_waitcnt vmcnt(0)
        buffer_store_dword v28, v27, {sWS}, {sFLG} offen sc1
        s_branch L_{lab}_sent
        L_{lab}_loc:
        buffer_store_dword v28, v27, {sWS}, {sFLG} offen
        L_{lab}_sent:
        s_mov_b64 exec, {hex((1 << nlanes) - 1)}
        L_{lab}_poll:
        buffer_load_dword v30, v29, {sWS}, {sT2} offen sc1
        s_waitcnt vmcnt(0)
        v_cmp_ne_u32 vcc, 1, v30
        s_sub_u32 {sCNT}, {sCNT}, 1
        s_cmp_eq_u32 {sCNT}, 0
        s_cbranch_scc1 L_{lab}_got
        s_cmp_eq_u64 vcc, 0
        s_cbranch_scc1 L_{lab}_got
        s_sleep {OPT["slp"]}
        s_branch L_{lab}_poll
        L_{lab}_got:
        s_mov_b64 exec, -1
        s_cmp_eq_u32 {sLOC}, 1
        s_cbranch_scc1 L_{lab}_done
        buffer_inv sc1
        s_waitcnt vmcnt(0)
        L_{lab}_done:
        """)

    def oa_addr():
        A(f"""
        v_and_b32 v16, 15, v0
        v_lshrrev_b32 v17, 4, v0
        v_lshrrev_b32 v18, 2, v16
        v_lshl_add_u32 v20, v17, 3, v18
        v_lshlrev_b32 v20, 7, v20
        v_and_b32 v21, 3, v0
        v_lshl_add_u32 v20, v21, 3, v20
        v_lshrrev_b32 v18, 1, v18
        v_and_b32 v21, 1, v17
        v_lshl_add_u32 v18, v21, 1, v18
        v_xor_b32 v18, {sDQ}, v18
        v_lshl_add_u32 v{vOA[0]}, v18, 5, v20
        v_add_u32 v{vOA[1]}, 0x10000, v{vOA[0]}
        v_add_u32 v{vOA[2]}, 0x20000, v{vOA[0]}
        s_lshl_b32 {sT1}, {sDQ}, 9
        s_cmp_eq_u32 {sLOC}, 1
        s_cselect_b32 {sPA}, {sXR}, {sPART}
        s_add_u32 {sPA}, {sPA}, {sT1}
        v_lshrrev_b32 v18, 1, v17
        v_lshlrev_b32 v18, 8, v18
        v_lshl_add_u32 v18, v16, 4, v18
        v_mul_u32_u24 v22, 14336, v21
        v_xor_b32 v13, 64, v{vA0}
        v_add_u32 v14, v22, v18
        v_lshl_add_u32 v15, v21, 3, v18
        """)
    vOBx = [vA0, 13]; vS4, vS2 = 14, 15
    SA = 128
    def sa_reads(j):
        out = []
        for ks in range(8):
            for e in range(2):
                off = WSL[j] + (32*ks + 4*e) * 128
                out.append(f"ds_read_b64_tr_b16 {vr(SA + j*32 + ks*4 + e*2, 2)}, v{vOA[off >> 16]} offset:{off & 0xffff}")
        return out

    if S:
        A(f"""
        s_lshl_b32 {sT0}, {sW}, 6
        v_add_u32 v23, {sT0}, v0
        v_min_u32 v5, 79, v23
        v_lshlrev_b32 v6, 3, v5
        v_lshlrev_b32 v5, 2, v5
        v_add_u32 v7, {ST_L + 640}, v6
        v_add_u32 v5, {ST_M + 320}, v5
        ds_read_b64 v[24:25], v7
        ds_read_b32 v26, v5
        s_add_u32 {sT2}, {sXS}, {XST}
        """)
        oa_addr()
        A(f"""
        s_waitcnt lgkmcnt(0)
        v_add_f32 v27, v24, v25
        buffer_store_dwordx2 v[26:27], v6, {sWS}, {sT2} offen
        """)
        run(sa_reads(0) + sa_reads(1))
        A("s_waitcnt lgkmcnt(0)")
    else:
        A(f"""
        v_and_b32 v17, 31, v0
        v_lshrrev_b32 v18, 5, v0
        v_mul_u32_u24 v18, 1280, v18
        v_lshl_add_u32 v14, v17, 4, v18
        v_mov_b32 v18, 0x7fffff00
        v_cmp_le_u32 vcc, 16, v17
        v_subrev_u32 v15, 256, v14
        v_add_u32 v16, 1024, v14
        v_cndmask_b32 v15, v18, v15, vcc
        v_cndmask_b32 v16, v16, v18, vcc
        s_mul_i32 {sT3}, {sDQ}, 10240
        s_add_u32 {sT2}, {sXS}, {sT3}
        """)
        def send(j):
            qt, tt = 2 + j // 2, j % 2
            out = []
            for rp in range(2):
                a = O_ACC + (tt*5 + qt)*16 + rp*8
                dd = a if qt > 2 else 40 + tt*8 + rp*4
                for k in range(4):
                    out.append(f"v_cvt_pk_bf16_f32 v{dd+k}, v{a+2*k}, v{a+2*k+1}")
                out.append(f"s_add_u32 {sT0}, {sT2}, {(tt*2 + rp)*2560}")
                if qt == 2:
                    out.append(f"buffer_store_dwordx4 {vr(dd, 4)}, v15, {sWS}, {sT0} offen")
                else:
                    out.append(f"buffer_store_dwordx4 {vr(dd, 4)}, v14, {sWS}, {sT0} offen offset:{256 if qt == 3 else 768}")
            return out
        for j in range(4, 10):
            A(mf[j])
            run(send(j - 4))
        A(f"""
        v_lshlrev_b32 v18, 3, v17
        v_lshlrev_b32 v17, 2, v17
        v_add_u32 v18, {ST_L}, v18
        v_add_u32 v17, {ST_M}, v17
        """)
        for qt in range(3):
            A(f"ds_read_b64 {vr(56 + qt*4, 2)}, v18 offset:{qt*256}")
            A(f"ds_read_b32 v{58 + qt*4}, v17 offset:{qt*128}")
    stamp(3, 4)
    A("s_waitcnt vmcnt(0)")
    vm.clear()
    A("s_barrier")
    stamp(4, 4)
    if S:
        run(sa_reads(2) + sa_reads(3))
        A("s_waitcnt lgkmcnt(0)")
    else:
        signal_wait(64, f"v_mov_b32 v29, v27\n s_xor_b32 {sT2}, {sFLG}, 128", 1, "px", agent=4)
    A("s_barrier")
    stamp(5, 4); stamp(3, 5)
    if not S:
        RB = lambda tt, qt: O_ACC + (tt*5 + 3)*16 + qt*8
        A(f"""
        v_and_b32 v17, 31, v0
        v_lshlrev_b32 v17, 3, v17
        s_add_u32 {sT0}, {sXR}, {XST}
        s_add_u32 {sT2}, {sXR}, {sT3}
        """)
        for qt in range(3):
            A(f"buffer_load_dwordx2 {vr(70 + qt*2, 2)}, v17, {sWS}, {sT0} offen offset:{qt*256} sc1")
            vm.issue("ps")
        for qt in range(3):
            for tt in range(2):
                for rp in range(2):
                    A(f"s_add_u32 {sT0}, {sT2}, {(tt*2 + rp)*2560}")
                    if qt == 2:
                        A(f"buffer_load_dwordx4 {vr(RB(tt, qt) + rp*4, 4)}, v16, {sWS}, {sT0} offen sc1")
                    else:
                        A(f"buffer_load_dwordx4 {vr(RB(tt, qt) + rp*4, 4)}, v14, {sWS}, {sT0} offen offset:{qt*512} sc1")
                    vm.issue(f"x{qt}{tt}{rp}")
        A("s_barrier")
        stamp(4, 5)
        A(f"s_waitcnt vmcnt({vm.wait('ps')}) lgkmcnt(0)")
        stamp(5, 5)
        if OPT["stamps"] == 5:
            A("s_waitcnt vmcnt(0)")
            stamp(6, 5)
        for qt in range(3):
            l0, l1, nm = 56 + qt*4, 57 + qt*4, 58 + qt*4
            pn, pl = 70 + qt*2, 71 + qt*2
            A(f"""
            v_add_f32 v{l0}, v{l0}, v{l1}
            v_sub_f32 v{l1}, v{nm}, v{pn}
            v_sub_f32 v{nm}, v{pn}, v{nm}
            v_exp_f32 v{l1}, v{l1}
            v_exp_f32 v{nm}, v{nm}
            v_fma_f32 v{l1}, v{l1}, v{pl}, v{l0}
            v_fma_f32 v{nm}, v{nm}, v{l0}, v{pl}
            v_rcp_f32 v{l1}, v{l1}
            v_rcp_f32 v{nm}, v{nm}
            """)
        for qt in range(3):
            w1, w2 = 57 + qt*4, 58 + qt*4
            for tt in range(2):
                for rq in range(4):
                    a = O_ACC + (tt*5 + qt)*16 + rq*4; r = RB(tt, qt) + rq*2
                    for k in range(4):
                        A(f"v_mul_f32 v{a+k}, v{w1}, v{a+k}")
                    if rq % 2 == 0:
                        A(f"s_waitcnt vmcnt({vm.wait(f'x{qt}{tt}{rq//2}')})")
                    A(f"v_lshlrev_b32 v24, 16, v{r}")
                    A(f"v_and_b32 v25, 0xffff0000, v{r}")
                    A(f"v_lshlrev_b32 v26, 16, v{r+1}")
                    A(f"v_and_b32 v27, 0xffff0000, v{r+1}")
                    for k in range(4):
                        A(f"v_fmac_f32 v{a+k}, v{w2}, v{24+k}")
                    A(f"v_cvt_pk_bf16_f32 v{a}, v{a}, v{a+1}")
                    A(f"v_cvt_pk_bf16_f32 v{a+1}, v{a+2}, v{a+3}")
                    A(f"ds_write_b64 v{4 + 4*tt + rq}, {vr(a, 2)} offset:{qt*16384}")
    else:
        A("s_barrier")
        run(wo_dma(4, vm) + wo_dma(5, vm) + wo_dma(6, vm))
    if S and OPT["xtouch"]:
        A(f"v_lshlrev_b32 v17, 4, v0")
        A(f"s_add_u32 {sT0}, {sXR}, {sW1K}")
        for k in range(8):
            A(f"s_add_u32 {sT1}, {sT0}, {40960 + k*4096}")
            put(dma([f"buffer_load_dwordx4 v[8:11], v17, {sWS}, {sT1} offen{XTF}"], "tch", vm))
    stamp(7, 5)
    def y_out(acc, slot):
        out = []
        co = slot * 2048
        for pr in range(2):
            a = acc + pr*8; b = a + 4
            out.append([f"v_cvt_pk_bf16_f32 v{a}, v{a}, v{a+1}", f"v_cvt_pk_bf16_f32 v{a+1}, v{a+2}, v{a+3}"])
            out.append([f"v_cvt_pk_bf16_f32 v{a+2}, v{b}, v{b+1}", f"v_cvt_pk_bf16_f32 v{a+3}, v{b+2}, v{b+3}"])
            out.append(f"s_add_u32 {sT1}, {sPA}, {co + pr*2*14336}")
            out.append([f"v_permlane16_swap_b32 v{a}, v{a+2}", f"v_permlane16_swap_b32 v{a+1}, v{a+3}"])
            out.append(f"buffer_store_dwordx4 {vr(a, 4)}, v{vS4}, {sWS}, {sT1} offen")
        a = acc + 16
        out.append([f"v_cvt_pk_bf16_f32 v{a}, v{a}, v{a+1}", f"v_cvt_pk_bf16_f32 v{a+1}, v{a+2}, v{a+3}"])
        out.append([f"s_add_u32 {sT1}, {sPA}, {co + 4*14336}", f"buffer_store_dwordx2 {vr(a, 2)}, v{vS2}, {sWS}, {sT1} offen"])
        return out

    lg.clear()
    if S:
        A(f"s_waitcnt vmcnt({vm.wait('wo6')})")
        stamp(8, 5)
        A("s_barrier")
        stamp(9); stamp(6, 4); stamp(9, 5)
        SB, NB, SACC = 24, 6, 48
        seq = [(ps, ks, qt) for ps in range(2) for ks in range(8) for qt in range(5)]
        def bread(n):
            ps, ks, qt = seq[n]
            return lds(f"ds_read_b128 {vr(SB + (n % NB)*4, 4)}, v{vOBx[ks & 1]} offset:{qt*8192 + (ks >> 1)*2048}", f"b{n}")
        for n in range(NB - 1):
            put(bread(n))
        fill = []
        for n, (ps, ks, qt) in enumerate(seq):
            if n == 42:
                fill = y_out(SACC, 0) + y_out(SACC + 20, 1)
            A(f"s_waitcnt lgkmcnt({lg.wait(f'b{n}')})")
            for tl in range(2):
                j = ps*2 + tl
                acc = vr(SACC + j*20 + qt*4, 4)
                A(f"v_mfma_f32_16x16x32_bf16 {acc}, {vr(SA + j*32 + ks*4, 4)}, {vr(SB + (n % NB)*4, 4)}, {'0' if ks == 0 else acc}")
                if tl == 0 and n + NB - 1 < len(seq):
                    put(bread(n + NB - 1))
                elif fill:
                    put(fill.pop(0))
        run(fill)
        run(y_out(SACC + 40, 2) + y_out(SACC + 60, 3))
        A(f"v_mov_b32 v12, v23")
    else:
        oa_addr()
        A(f"s_lshl_b32 {sT0}, {sW}, 6")
        A(f"v_add_u32 v12, {sT0}, v0")
        A("s_waitcnt lgkmcnt(0)")
        stamp(8, 5)
        A("s_barrier")
        stamp(9); stamp(6, 4); stamp(9, 5)
        steps = [(r, ks) for r in range(3) for ks in range(8)]
        def a_read(n):
            r, ks = steps[n]
            out = []
            if r == 0:
                out += [lds(f"ds_read_b128 {vr(E_O + (qt*8 + ks)*4, 4)}, v{vOBx[ks & 1]} offset:{qt*8192 + (ks >> 1)*2048}", f"a{n}") for qt in range(5)]
            for e in range(2):
                off = WSL[4 + r] + (32*ks + 4*e) * 128
                out.append(lds(f"ds_read_b64_tr_b16 {vr(E_A + (n & 3)*4 + e*2, 2)}, v{vOA[off >> 16]} offset:{off & 0xffff}", f"a{n}"))
            return out
        run(a_read(0) + a_read(1))
        fill = []
        for n, (r, ks) in enumerate(steps):
            if ks == 1 and r >= 1:
                fill = y_out(E_ACC[(r - 1) & 1], 4 + r - 1)
            A(f"s_waitcnt lgkmcnt({lg.wait(f'a{n}')})")
            mfs = []
            for qt in range(5):
                acc = vr(E_ACC[r & 1] + qt*4, 4)
                mfs.append(f"v_mfma_f32_16x16x32_bf16 {acc}, {vr(E_A + (n & 3)*4, 4)}, {vr(E_O + (qt*8 + ks)*4, 4)}, {'0' if ks == 0 else acc}")
            rd = a_read(n + 2) if n + 2 < len(steps) else []
            if len(rd) > 2:
                weave(mfs, rd, per=2)
            else:
                weave(mfs, rd + [fill.pop(0) if fill else [] for _ in range(3)])
        run(fill)
        run(y_out(E_ACC[0], 6))
    stamp(10); stamp(7, 4); stamp(11, 5)
    A(f"""
    s_mul_i32 {sT0}, {sHQ}, 280
    v_add_u32 v1, {sT0}, v12
    v_lshrrev_b32 v2, 5, v1
    v_mul_u32_u24 v3, 2341, v2
    v_lshrrev_b32 v3, 16, v3
    v_mul_u32_u24 v4, 28, v3
    v_sub_u32 v4, v2, v4
    v_and_b32 v5, 15, v1
    v_lshl_add_u32 v5, v3, 4, v5
    v_bfe_u32 v6, v1, 4, 1
    v_lshlrev_b32 v6, 4, v6
    v_lshl_add_u32 v6, v4, 5, v6
    v_mul_u32_u24 v7, 896, v5
    v_add_u32 v6, v6, v7
    v_lshlrev_b32 v1, 4, v1
    v_mov_b32 v13, 0x7fffff00
    v_cmp_gt_u32 vcc, 280, v12
    v_cndmask_b32 v1, v13, v1, vcc
    v_cndmask_b32 v6, v13, v6, vcc
    s_waitcnt vmcnt(0)
    s_barrier
    """)
    stamp(8, 4)
    if S:
        signal_wait(0, f"v_lshlrev_b32 v29, 2, v0\n s_mov_b32 {sT2}, {sFLG}", 16, "fx")
        A("s_branch L_red")
    tr.append("red")
    A.trace(tr)
    return vm, vm_join


def gen_fallback(role, vm_join):
    S = role == "S"; R = role
    vm = VM(63)
    tr2 = [f"{R}_gl", f"{R}_post"]
    A.seg(f"{R}_fb"); tr2.append(f"{R}_fb")
    A(f"L_{R}_fallback:")
    A(f"""
    s_mov_b32 {sRETRY}, 1
    s_waitcnt vmcnt(0) lgkmcnt(0)
    s_barrier
    s_mov_b32 {sKO}, {sKV0}
    s_mov_b32 {sCNT}, 32
    """)
    if S:
        for qt in range(5):
            A(f"v_mov_b32 v{S_L+qt}, 0xff800000")
        v_addr()
    def s_tile():
        for hh in range(2):
            for s in range(4*hh, 4*hh + 4):
                A(f"ds_read_b128 {vr(S_KF + (s & 3)*4, 4)}, v{vKA[s & 1]} offset:{(s >> 1)*2048}")
            A("s_waitcnt lgkmcnt(0)")
            for s in range(4*hh, 4*hh + 4):
                for qt in range(5):
                    acc = vr(S_S[0] + qt*4, 4)
                    A(f"v_mfma_f32_16x16x32_bf16 {acc}, {vr(S_KF + (s & 3)*4, 4)}, {vr(S_Q + (qt*8 + s)*4, 4)}, {acc if s else '0'}")
    A.seg(f"{R}_fbl"); tr2 += [f"{R}_fbl", f"{R}_fbl"]
    A(f"L_{R}_fbl:")
    if S:
        run(k_lines(0))
        A("s_waitcnt vmcnt(0)")
        A("s_barrier")
        s_tile()
        for qt in range(5):
            a = S_S[0] + qt*4
            A(f"v_max3_f32 v{S_L+qt}, v{a}, v{a+1}, v{S_L+qt}")
            A(f"v_max3_f32 v{S_L+qt}, v{a+2}, v{a+3}, v{S_L+qt}")
        A("s_barrier")
    else:
        A("s_barrier")
        A("s_barrier")
    A(f"s_sub_u32 {sCNT}, {sCNT}, 1")
    A(f"s_cmp_lg_u32 {sCNT}, 0")
    A(f"s_cbranch_scc1 L_{R}_fbl")
    A.seg(f"{R}_fbe"); tr2 += [f"{R}_fbe", f"{R}_join", f"{R}_g0"]
    if S:
        A(f"s_mov_b32 {sKO}, {sKV0}")
        A(f"s_mov_b32 {sVO}, {sKV0}")
        run(k_lines(0) + k_lines(1) + v_lines(0) + k_lines(2))
        assert vm_join == ["K1"]*4 + ["V0"]*4 + ["K2"]*4, vm_join
        if OPT["prio"]:
            A(f"s_setprio {OPT['prio']}")
        A("s_waitcnt vmcnt(12)")
        A("s_barrier")
        s_tile()
    else:
        A("s_barrier")
    A(f"s_branch L_{R}_join")
    A.trace(tr2)


vmS, joinS = gen_role("S")
gen_fallback("S", joinS)
gen_fallback("PV", None) if False else None
vmP, joinP = gen_role("PV")

D0, AC = 96, 40
A.seg("red")
A("L_red:")
A("s_barrier")
stamp(11); stamp(9, 4)
A(f"""
s_cmp_ge_u32 {sW}, 5
s_cbranch_scc1 L_fin
s_lshl_b32 {sT2}, {sB}, 1
s_add_u32 {sT2}, {sT2}, {sHALF}
s_xor_b32 {sT3}, {sT2}, 1
s_mul_i32 {sT2}, {sT2}, {16*PART_BYTES}
s_mul_i32 {sT3}, {sT3}, {16*XCH_BYTES}
s_add_u32 {sT3}, {sT3}, {XCH_OFF}
s_mov_b32 {sT0}, {PART_BYTES}
s_cmp_eq_u32 {sLOC}, 1
s_cselect_b32 {sT2}, {sT3}, {sT2}
s_cselect_b32 {sT0}, {XCH_BYTES}, {sT0}
s_mul_i32 {sT1}, {sHALF}, {80*896}
s_add_u32 {sT1}, {sT1}, {sXO}
""")
for p in range(16):
    A(f"buffer_load_dwordx4 {vr(D0 + p*4, 4)}, v1, {sWS}, {sT2} offen sc1")
    A(f"s_add_u32 {sT2}, {sT2}, {sT0}")
for p in range(16):
    A(f"s_waitcnt vmcnt({15 - p})")
    if p in (0, 15):
        stamp({0: 10, 15: 11}[p], 4)
    for r in range(4):
        d = D0 + p*4 + r
        if p == 0:
            A(f"v_lshlrev_b32 v{AC + 2*r}, 16, v{d}")
            A(f"v_and_b32 v{AC + 2*r + 1}, 0xffff0000, v{d}")
        else:
            A(f"v_lshlrev_b32 v{24 + 2*r}, 16, v{d}")
            A(f"v_and_b32 v{25 + 2*r}, 0xffff0000, v{d}")
    if p:
        for r in range(8):
            A(f"v_add_f32 v{AC + r}, v{AC + r}, v{24 + r}")
for r in range(4):
    A(f"v_cvt_pk_bf16_f32 v{20 + r}, v{AC + 2*r}, v{AC + 2*r + 1}")
A(f"buffer_store_dwordx4 v[20:23], v6, {sOUT}, {sT1} offen")
A("L_fin:")
if OPT["stamps"]:
    A("s_waitcnt vmcnt(0)")
    stamp(12)
    A("s_memrealtime s[58:59]")
    A("s_waitcnt lgkmcnt(0)")
    A("v_mov_b32 v20, s56")
    A("v_mov_b32 v21, s58")
    for k in range(2, 13):
        A(f"v_mov_b32 v{20+k}, s{76+2*k}")
    A("v_mov_b32 v33, 0")
    A("v_mov_b32 v34, 0")
    A("v_mov_b32 v35, 0")
    A(f"s_lshl_b32 {sT0}, s2, 9")
    A(f"s_lshl_b32 {sT1}, {sW}, 6")
    A(f"s_add_u32 {sT0}, {sT0}, {sT1}")
    A(f"s_add_u32 {sT0}, {sT0}, {STAMP_OFF}")
    A("v_mov_b32 v40, 0")
    for j in range(4):
        A(f"buffer_store_dwordx4 v[{20+4*j}:{23+4*j}], v40, {sWS}, {sT0} offen offset:{16*j}")
A("L_end:")
A("s_endpgm")
gen_fallback("PV", joinP)

A.seg("desc")
A('.section .rodata,"a"')
A(".p2align 6")
A(f".amdhsa_kernel {KNAME}")
A(".amdhsa_next_free_vgpr 256")
A(".amdhsa_next_free_sgpr 102")
A(".amdhsa_accum_offset 256")
A(".amdhsa_group_segment_fixed_size 0")
A(".amdhsa_kernarg_size 64")
A(".amdhsa_user_sgpr_count 2")
A(".amdhsa_user_sgpr_kernarg_segment_ptr 1")
A(".amdhsa_system_sgpr_workgroup_id_x 1")
A(".end_amdhsa_kernel")

A.fix_hazards()
sys.stderr.write("nops: %s\n" % A.count_nops())
sys.stdout.write(A.text())
```

```python
import sys, struct, math
from asmlib import Asm, VM

OPT = dict(nt="nt", prio=1, stamps=0, fine=28, pre=4, touch=29, xtouch=1, wwarm=2, xt0=29, vpv=1, mapb=1, slp=4)
for a in sys.argv[1:]:
    k, v = a.split("=")
    OPT[k] = int(v) if v.lstrip("-").isdigit() else v
NT = (" " + OPT["nt"]) if OPT["nt"] not in ("", "none") else ""
NTV = NT if "ntv" not in OPT else ((" " + OPT["ntv"]) if OPT["ntv"] != "none" else "")
KNAME = "standalone__gqa_block_cached__near_ridge_kernel"

def f32(x):
    return "0x%08x" % struct.unpack("<I", struct.pack("<f", x))[0]

P_BUF = 0
VRING = 32768
KRING = 98304
MX_OFF = KRING + 3 * 16384
STG = [0, 53248, 106496]
XOFF = 32768
WSL = [98304, 131072, 65536, 32768, 98304, 131072, 65536]
ST_L = 28672
ST_M = ST_L + 1280
LDS_BYTES = 163840
PART_BYTES = 71680
XCH_BYTES = 71680 + 1024
XST = 71680
SCR = 20480
XCH_OFF = 256 * PART_BYTES
FLAG_OFF = XCH_OFF + 256 * XCH_BYTES
STAMP_OFF = 48 << 20

sX, sWQ, sVr, sWO, sWS, sKr = "s[4:7]", "s[8:11]", "s[12:15]", "s[16:19]", "s[20:23]", "s[60:63]"
sW, sB, sHQ, sHALF, sHKV = "s24", "s25", "s26", "s27", "s28"
sKO, sCNT, sRETRY = "s29", "s30", "s31"
sT0, sT1, sT2, sT3 = "s32", "s33", "s34", "s35"
sW1K, sXO, sWQO, sKDST, sKV0, sC, sWOO, sPART = "s36", "s37", "s38", "s39", "s40", "s41", "s42", "s43"
sQH, sKH, sDQ, sHP = "s44", "s45", "s46", "s47"
sLIM, sVO, sVDST = "s48", "s49", "s3"
sXS, sXR = "s64", "s65"
sFLG, sLOC = "s66", "s67"
sXT = ["s50", "s51", "s52"]
sPA, sPB, sPC = "s50", "s51", "s52"
WOF = " " + OPT.get("wof", "none").replace("+", " ").replace("none", "")
sXTC = "s53"
XTF = " " + OPT.get("xtf", "sc1").replace("+", " ").replace("none", "")
sDBG = "s[68:71]"
sOUT = "s[72:75]"

A = Asm()
_lab = [0]

def stamp(k, mode=1):
    if OPT["stamps"] == mode or (OPT["stamps"] and k in (2, 12)):
        A(f"s_memtime s[{76+2*k}:{77+2*k}]")

def vr(b, n):
    return f"v[{b}:{b+n-1}]" if n > 1 else f"v{b}"

def put(f):
    if callable(f):
        f()
    elif isinstance(f, (list, tuple)):
        for x in f:
            put(x)
    else:
        A(f)

def weave(main, fill, per=1):
    fill = list(fill)
    for m in main:
        put(m)
        for _ in range(per):
            if fill:
                put(fill.pop(0))
    for f in fill:
        put(f)

def run(fs):
    for f in fs:
        put(f)

def only_S(lines):
    def f():
        _lab[0] += 1
        A(f"s_cmp_ge_u32 {sW}, 4")
        A(f"s_cbranch_scc1 L_sk{_lab[0]}")
        for x in lines:
            A(x + " ; cond")
        A(f"L_sk{_lab[0]}:")
    return f

vI, vG = 40, 41
vXD, vWD = 42, 43
vW = [44, 45, 46, 47]
vXR = [48, 49]
vQW = [50, 51, 52, 53]
vQL = [54, 55]
vPVa = [56, 57, 58]
vA0 = 19
vKD = 16
vVD = [12, 13, 14, 15]
QACC = 176
QA = [96, 112]
QB = [128, 148]
S_Q, S_NM, S_KF, S_L = 96, 36, 20, 7
S_S = [56, 76]
vKA = [1, 2]; vPW = 3; vMX = 4
S_T = [5, 6, 17, 18]
O_ACC, P_A, P_B = 96, 76, 56
VT = [40, 24]
vVB = [1, 2]; vPR = 3
vWOD = 12
E_O = 96
E_ACC = [56, 76]
E_A = 36
vOA = [1, 2, 3]; vOB = [5, 6]; vST4 = 7; vST2 = 8; vSTAT = 10

A.seg("head")
A("; @launch grid=(256,1,1) block=(512,1,1) lds=%d" % LDS_BYTES)
A('.amdgcn_target "amdgcn-amd-amdhsa--gfx950"')
A(".text")
A(f".globl {KNAME}")
A(".p2align 8")
A(f".type {KNAME},@function")
A(f"{KNAME}:")
A.seg("entry")
A(f"""
s_cmp_ge_u32 s2, 256
s_cbranch_scc1 L_end
s_load_dwordx16 s[64:79], s[0:1], 0
""")
if OPT["stamps"]:
    A("s_memrealtime s[56:57]")
    stamp(2)
A(f"""
s_and_b32 {sB if OPT.get("mapb") else sHKV}, s2, 7
s_lshr_b32 {sT0}, s2, 3
s_lshr_b32 {sHKV if OPT.get("mapb") else sB}, {sT0}, 2
s_and_b32 {sT1}, {sT0}, 1
s_lshr_b32 {sHALF}, {sT0}, 1
s_and_b32 {sHALF}, {sHALF}, 1
s_lshl_b32 {sHQ}, {sHKV}, 1
s_add_u32 {sHQ}, {sHQ}, {sT1}
v_lshrrev_b32 v1, 6, v0
v_and_b32 v0, 63, v0
v_readfirstlane_b32 {sW}, v1
s_mul_i32 {sXO}, {sB}, 143360
s_lshl_b32 {sWQO}, {sHQ}, 9
v_and_b32 v{vI}, 15, v0
v_lshrrev_b32 v{vG}, 4, v0
s_lshl_b32 {sW1K}, {sW}, 10
s_lshr_b32 {sHP}, {sW}, 2
s_and_b32 {sQH}, {sW}, 1
s_lshl_b32 {sT0}, {sQH}, 2
v_add_u32 v5, {sT0}, v{vG}
v_and_b32 v6, 7, v0
v_xor_b32 v5, v5, v6
v_lshlrev_b32 v5, 4, v5
v_lshrrev_b32 v6, 3, v0
v_mul_u32_u24 v6, 896, v6
v_add_u32 v{vXD}, v5, v6
s_mul_i32 {sT0}, {sHALF}, 10
s_add_u32 {sT0}, {sT0}, {sW}
s_sub_u32 {sT1}, {sT0}, 20
s_cmp_ge_u32 {sT0}, 20
s_cselect_b32 {sT1}, {sT1}, {sT0}
s_mul_i32 {sT1}, {sT1}, 7168
s_add_u32 {sXT[0]}, {sT1}, {sXO}
s_add_u32 {sT0}, {sT0}, 8
s_sub_u32 {sT1}, {sT0}, 20
s_cmp_ge_u32 {sT0}, 20
s_cselect_b32 {sT1}, {sT1}, {sT0}
s_mul_i32 {sT1}, {sT1}, 7168
s_add_u32 {sXT[1]}, {sT1}, {sXO}
s_add_u32 {sT0}, {sT0}, 8
s_sub_u32 {sT1}, {sT0}, 20
s_cmp_ge_u32 {sT0}, 20
s_cselect_b32 {sT1}, {sT1}, {sT0}
s_mul_i32 {sT1}, {sT1}, 7168
s_add_u32 {sXT[2]}, {sT1}, {sXO}
v_lshrrev_b32 v5, 5, v0
s_lshl_b32 {sT0}, {sW}, 1
v_add_u32 v5, {sT0}, v5
v_and_b32 v6, 3, v5
s_lshl_b32 {sT0}, {sHP}, 2
v_or_b32 v6, {sT0}, v6
v_bfe_u32 v7, v0, 1, 4
v_xor_b32 v6, v6, v7
v_lshlrev_b32 v6, 5, v6
v_and_b32 v7, 1, v0
v_lshlrev_b32 v7, 4, v7
v_lshlrev_b32 v5, 13, v5
v_add3_u32 v{vWD}, v5, v6, v7
s_mov_b32 s6, 1146880
s_mov_b32 s7, 0x20000
s_mov_b32 s10, 3670016
s_mov_b32 s11, 0x20000
s_waitcnt lgkmcnt(0)
s_mov_b32 s4, s64
s_mov_b32 s5, s65
s_mov_b32 s8, s70
s_mov_b32 s9, s71
""")
stamp(3, 3)

vm = VM(63)

def dma(lines, tag, v=None):
    def f():
        for x in lines:
            A(x)
        (v or vm).issue(tag)
    return f

def stage_dma(s):
    sb = STG[s % 3]
    out = []
    for t in range(4):
        out.append(dma([f"s_add_u32 m0, {sW1K}, {sb + t*8192}",
                        f"s_add_u32 {sT0}, {sWQO}, {(s*64 + 16*t) * 8192}",
                        f"buffer_load_dwordx4 v{vWD}, {sWQ}, {sT0} offen lds"], f"st{s}"))
    for t in range(3):
        l = [f"s_add_u32 m0, {sW1K}, {sb + XOFF + t*8192}",
             f"s_add_u32 {sT0}, {sXT[t]}, {s*128}",
             f"buffer_load_dwordx4 v{vXD}, {sX}, {sT0} offen lds"]
        out.append(dma(l, f"st{s}") if t < 2 else only_S(l))
    return [out[6]] + out[:6]

def k_lines(i):
    slot = i & 3
    out = []
    for sg in range(4):
        l = [f"s_add_u32 m0, {sKDST}, {slot*16384 + sg*2048 - sg*128}", "s_nop 0",
             f"buffer_load_dwordx4 v{vKD}, {sKr}, {sKO} offen offset:{sg*128}{NT} lds"]
        if sg == 3:
            l.append(f"s_add_u32 {sKO}, {sKO}, 16384")
        out.append(l)
    return out

def v_lines(t):
    pos = (t + 3) & 3
    out = []
    for jj in range(4):
        l = [f"s_add_u32 m0, {sVDST}, {pos*16384 + jj*1024}", "s_nop 0",
             f"buffer_load_dwordx4 v{vVD[jj]}, {sVr}, {sVO} offen{NTV} lds"]
        if jj == 3:
            l.append(f"s_add_u32 {sVO}, {sVO}, 16384")
        out.append(l)
    return out

run(stage_dma(0))
stamp(4, 3)
A.seg("pro")
A(f"""
s_mov_b32 s16, s72
s_mov_b32 s17, s73
s_mov_b32 s18, 3670016
s_mov_b32 s19, 0x20000
s_mov_b32 s20, s78
s_mov_b32 s21, s79
s_mov_b32 s22, 0x10000000
s_mov_b32 s23, 0x20000
s_mov_b32 s12, s68
s_mov_b32 s13, s69
s_mov_b32 s14, 0x4000000
s_mov_b32 s15, 0x20000
s_mov_b32 s60, s66
s_mov_b32 s61, s67
s_mov_b32 s62, 0x4000000
s_mov_b32 s63, 0x20000
s_mov_b32 {sRETRY}, 0
s_mov_b32 {sC}, {f32(math.log2(math.e) / 16.0)}
s_mov_b32 {sLIM}, {f32(2.0 ** 30)}
s_mul_i32 {sWOO}, {sHQ}, 229376
s_lshl_b32 {sT0}, {sB}, 3
s_add_u32 {sT0}, {sT0}, {sHKV}
s_lshl_b32 {sT0}, {sT0}, 1
s_add_u32 {sT0}, {sT0}, {sHALF}
s_lshl_b32 {sKV0}, {sT0}, 19
s_mov_b32 s68, s76
s_mov_b32 s69, s77
s_mov_b32 s70, 256
s_mov_b32 s71, 0x20000
s_mov_b32 s72, s74
s_mov_b32 s73, s75
s_mov_b32 s74, 1146880
s_mov_b32 s75, 0x20000
s_lshl_b32 {sT0}, {sB}, 1
s_add_u32 {sT0}, {sT0}, {sHALF}
s_lshl_b32 {sFLG}, {sT0}, 7
s_add_u32 {sFLG}, {sFLG}, {FLAG_OFF}
s_lshl_b32 {sT0}, {sT0}, 4
s_add_u32 {sT0}, {sT0}, {sHQ}
s_mul_i32 {sPART}, {sT0}, {PART_BYTES}
s_mul_i32 {sXS}, {sT0}, {XCH_BYTES}
s_add_u32 {sXS}, {sXS}, {XCH_OFF}
s_xor_b32 {sT0}, {sT0}, 16
s_mul_i32 {sXR}, {sT0}, {XCH_BYTES}
s_add_u32 {sXR}, {sXR}, {XCH_OFF}
s_and_b32 {sDQ}, {sW}, 3
s_lshr_b32 {sKH}, {sDQ}, 1
v_lshrrev_b32 v30, 3, v{vI}
v_lshlrev_b32 v30, 10, v30
v_and_b32 v31, 7, v{vI}
v_lshlrev_b32 v31, 7, v31
v_lshrrev_b32 v32, 1, v{vI}
v_xor_b32 v33, v{vG}, v32
v_lshlrev_b32 v33, 4, v33
v_add3_u32 v{vA0}, v30, v31, v33
s_mul_i32 {sT0}, {sHP}, 10240
s_add_u32 {sT0}, {sT0}, {XOFF}
v_add_u32 v{vXR[0]}, {sT0}, v{vA0}
v_xor_b32 v{vXR[1]}, 64, v{vXR[0]}
v_lshrrev_b32 v24, 2, v{vI}
v_and_b32 v25, 1, v{vG}
v_lshlrev_b32 v25, 2, v25
v_or_b32 v25, v25, v24
v_lshl_add_u32 v26, v{vG}, 3, v24
v_lshlrev_b32 v26, 9, v26
v_and_b32 v27, 3, v0
v_lshl_add_u32 v26, v27, 3, v26
s_lshl_b32 {sT0}, {sDQ}, 2
v_xor_b32 v25, {sT0}, v25
""")
for m in range(4):
    A(f"v_xor_b32 v28, {m}, v25")
    A(f"v_lshl_add_u32 v{vW[m]}, v28, 5, v26")
stamp(5, 3)
A("s_barrier")
run(stage_dma(1))
stamp(6, 3)
A(f"""
v_lshrrev_b32 v24, 1, v{vG}
v_xor_b32 v24, v24, v32
v_and_b32 v25, 1, v{vG}
v_lshlrev_b32 v25, 3, v25
v_add3_u32 v25, v30, v31, v25
s_mul_i32 {sT0}, {sHP}, 40960
s_lshl_b32 {sT1}, {sDQ}, 11
s_add_u32 {sT0}, {sT0}, {sT1}
v_add_u32 v25, {sT0}, v25
""")
for m in range(4):
    A(f"v_xor_b32 v28, {2*m}, v24")
    A(f"v_lshl_add_u32 v{vQW[m]}, v28, 4, v25")
A(f"""
s_mov_b32 {sVO}, {sKV0}
s_mov_b32 {sKO}, {sKV0}
s_lshl_b32 {sT0}, {sQH}, 2
v_add_u32 v24, {sT0}, v{vG}
v_and_b32 v25, 7, v0
v_xor_b32 v24, v24, v25
v_lshlrev_b32 v24, 4, v24
v_lshrrev_b32 v25, 3, v0
s_lshl_b32 {sT0}, {sKH}, 4
s_lshl_b32 {sT1}, {sQH}, 3
s_add_u32 {sT0}, {sT0}, {sT1}
v_add_u32 v25, {sT0}, v25
v_lshl_add_u32 v{vKD}, v25, 9, v24
s_lshl_b32 {sT0}, {sKH}, 13
s_lshl_b32 {sT1}, {sQH}, 10
s_add_u32 {sKDST}, {sT0}, {sT1}
s_add_u32 {sKDST}, {sKDST}, {KRING}
""")
def v_addr():
    A(f"""
    v_bfe_u32 v24, v0, 4, 1
    v_lshlrev_b32 v24, 2, v24
    v_and_b32 v25, 7, v0
    v_xor_b32 v24, v24, v25
    v_lshlrev_b32 v24, 4, v24
    v_lshrrev_b32 v25, 3, v0
    v_lshl_add_u32 v24, v25, 9, v24
    s_lshl_b32 {sT0}, {sDQ}, 7
    v_add_u32 v{vVD[0]}, {sT0}, v24
    v_add_u32 v{vVD[1]}, 4096, v{vVD[0]}
    v_add_u32 v{vVD[2]}, 8192, v{vVD[0]}
    v_add_u32 v{vVD[3]}, 12288, v{vVD[0]}
    """)
v_addr()
A(f"""
s_cmp_lg_u32 {sW}, 4
s_cbranch_scc1 L_noclr
v_and_b32 v24, 1, v0 ; cond
v_lshlrev_b32 v24, 6, v24 ; cond
s_lshl_b32 {sT1}, {sHQ}, 2 ; cond
v_add_u32 v24, {sT1}, v24 ; cond
v_mov_b32 v25, 0 ; cond
buffer_store_dword v25, v24, {sWS}, {sFLG} offen sc1 ; cond
L_noclr:
s_lshl_b32 {sVDST}, {sDQ}, 12
s_add_u32 {sVDST}, {sVDST}, {VRING}
s_mul_i32 {sT0}, {sQH}, 40960
v_add_u32 v{vQL[0]}, {sT0}, v{vA0}
v_xor_b32 v{vQL[1]}, 64, v{vQL[0]}
v_lshrrev_b32 v24, 1, v{vG}
s_lshl_b32 {sT0}, {sKH}, 1
v_add_u32 v24, {sT0}, v24
v_mul_u32_u24 v24, 2560, v24
v_and_b32 v25, 1, v{vG}
v_lshl_add_u32 v24, v25, 3, v24
s_mul_i32 {sT0}, {sQH}, 80
v_add_u32 v25, {sT0}, v{vI}
v_lshl_add_u32 v{vPW}, v25, 4, v24
s_lshl_b32 {sT0}, {sKH}, 2
s_add_u32 {sT0}, {sT0}, {MX_OFF}
v_lshlrev_b32 v25, 3, v25
v_add_u32 v{vMX}, {sT0}, v25
s_lshl_b32 {sT0}, {sKH}, 13
s_add_u32 {sT0}, {sT0}, {KRING}
v_add_u32 v{vKA[0]}, {sT0}, v{vA0}
v_xor_b32 v{vKA[1]}, 64, v{vKA[0]}
v_lshrrev_b32 v30, 2, v{vI}
v_lshrrev_b32 v31, 5, v0
v_lshl_add_u32 v32, v31, 3, v30
v_lshlrev_b32 v32, 7, v32
v_lshrrev_b32 v33, 1, v30
v_lshl_add_u32 v32, v33, 6, v32
v_and_b32 v33, 1, v{vG}
v_lshl_add_u32 v32, v33, 5, v32
v_and_b32 v33, 3, v0
v_lshl_add_u32 v32, v33, 3, v32
v_mul_u32_u24 v31, 2560, v31
v_and_b32 v33, 31, v0
v_lshl_add_u32 v{vPVa[2]}, v33, 4, v31
v_add_u32 v{vPVa[0]}, {sVDST}, v32
v_xor_b32 v{vPVa[1]}, 64, v{vPVa[0]}
""")
for qt in range(5):
    A(f"v_mov_b32 v{S_L+qt}, 0xff800000")

def q_reads(s2):
    out = []
    for qt in range(5):
        out.append(f"ds_read_b128 {vr(QB[s2] + qt*4, 4)}, v{vXR[s2]} offset:{qt*2048}")
    for m in range(4):
        for e in range(2):
            out.append(f"ds_read_b64_tr_b16 {vr(QA[s2] + m*4 + e*2, 2)}, v{vW[m]} offset:{(32*s2 + 4*e) * 512}")
    return out

def q_mfma(s2, first):
    out = []
    for m in range(4):
        for qt in range(5):
            acc = vr(QACC + (m*5 + qt) * 4, 4)
            out.append(f"v_mfma_f32_16x16x32_bf16 {acc}, {vr(QA[s2] + m*4, 4)}, {vr(QB[s2] + qt*4, 4)}, {'0' if first else acc}")
    return out

for s in range(7):
    A(f"s_waitcnt vmcnt({vm.wait(f'st{s}')})")
    if s == 0:
        stamp(7, 3)
    A("s_barrier")
    if s <= 3:
        stamp(8 + s, 3)
    if s == 0:
        stamp(3)
    d = []
    if 0 <= s <= 4:
        d = stage_dma(s + 2)
    if s == 6:
        kl = k_lines(0) + k_lines(1) + v_lines(0) + k_lines(2)
        d = [only_S(kl[2*j] + kl[2*j + 1]) for j in range(8)]
    upd = []
    if s < 6:
        dl = STG[(s + 1) % 3] - STG[s % 3]
        upd = [[f"s_mov_b32 {sT1}, {dl & 0xffffffff}", f"v_add_u32 v{vW[0]}, {sT1}, v{vW[0]}"]] + \
              [f"v_add_u32 v{r}, {sT1}, v{r}" for r in vW[1:] + vXR]
    if s >= 1:
        if s == 6:
            weave(q_mfma(1, False), d[:4] + q_reads(0) + d[4:7])
        else:
            weave(q_mfma(1, False), q_reads(0) + d[:7])
        d = d[7:]
    else:
        weave(q_reads(0), [])
    A("s_waitcnt lgkmcnt(0)")
    if s == 0:
        weave(q_mfma(0, True), q_reads(1) + d + upd)
    else:
        weave(q_mfma(0, False), [[], []] + q_reads(1) + d + upd)
    A("s_waitcnt lgkmcnt(0)")
stamp(4)
A("s_barrier")

def q_out(idx):
    m, qt = divmod(idx, 5)
    a = QACC + idx * 4
    return [f"v_mul_f32 v{a}, {sC}, v{a}", f"v_mul_f32 v{a+1}, {sC}, v{a+1}",
            f"v_mul_f32 v{a+2}, {sC}, v{a+2}", f"v_mul_f32 v{a+3}, {sC}, v{a+3}",
            f"v_cvt_pk_bf16_f32 v{a}, v{a}, v{a+1}", f"v_cvt_pk_bf16_f32 v{a+1}, v{a+2}, v{a+3}",
            f"ds_write_b64 v{vQW[m]}, {vr(a, 2)} offset:{qt*8192}"]
for j, mf in enumerate(q_mfma(1, False)):
    A(mf)
    if j >= 3:
        run(q_out(j - 3))
for j in range(17, 20):
    run(q_out(j))
A(f"s_cmp_ge_u32 {sW}, 4")
A("s_cbranch_scc1 L_PV")


def wo_addr():
    A(f"""
    v_bfe_u32 v13, v0, 4, 1
    s_lshl_b32 {sT0}, {sQH}, 1
    v_or_b32 v13, {sT0}, v13
    v_lshlrev_b32 v13, 1, v13
    v_and_b32 v14, 7, v0
    v_xor_b32 v13, v13, v14
    v_lshrrev_b32 v14, 3, v0
    s_lshl_b32 {sT0}, {sW}, 3
    v_add_u32 v14, {sT0}, v14
    v_mul_u32_u24 v14, 896, v14
    v_lshl_add_u32 v{vWOD}, v13, 4, v14
    """)

def wo_dma(j, v):
    out = []
    for t in range(8):
        out.append(dma([f"s_add_u32 m0, {sW1K}, {WSL[j] + t*4096}",
                        f"s_add_u32 {sT0}, {sWOO}, {t*28672 + j*128}",
                        f"buffer_load_dwordx4 v{vWOD}, {sWO}, {sT0} offen{WOF} lds"], f"wo{j}", v))
    return out


def gen_role(role):
    S = role == "S"
    R = role
    vm = VM(63)
    lg = VM(15)
    tr = ["entry", "pro"]

    def seg(n):
        A.seg(f"{R}_{n}")
        tr.append(f"{R}_{n}")

    def k_dma(i):
        return [dma(l, f"K{i}", vm) for l in k_lines(i)]

    def v_dma(t):
        return [dma(l, f"V{t}", vm) for l in v_lines(t)]

    def lds(line, tag):
        def f():
            A(line)
            lg.issue(tag)
        return f

    def fst(i, k):
        if i == OPT["fine"]:
            stamp(k, 2)

    def kread(i, s):
        return lds(f"ds_read_b128 {vr(S_KF + (s & 3)*4, 4)}, v{vKA[s & 1]} offset:{(i & 3)*16384 + (s >> 1)*2048}", f"kf{s}")

    def s_mfma(i, s, qt):
        acc = vr(S_S[i & 1] + qt*4, 4)
        c = acc if s else ("0" if i == 0 else vr(S_NM + qt*4, 4))
        return f"v_mfma_f32_16x16x32_bf16 {acc}, {vr(S_KF + (s & 3)*4, 4)}, {vr(S_Q + (qt*8 + s)*4, 4)}, {c}"

    def end_wait(i):
        need = [t for t in (f"K{i+1}", f"V{i}") if vm.has(t)]
        if need:
            last = max(need, key=lambda t: max(k for k, x in enumerate(vm.q) if x == t))
            A(f"s_waitcnt vmcnt({vm.wait(last)}) lgkmcnt(0)")
        else:
            A("s_waitcnt lgkmcnt(0)")
        lg.clear()

    seg("i0")
    if S:
        for t in ["K0"]*4 + ["K1"]*4 + ["V0"]*4 + ["K2"]*4:
            vm.issue(t)
        if OPT["prio"]:
            A(f"s_setprio {OPT['prio']}")
        A(f"s_waitcnt vmcnt({vm.wait('K0')}) lgkmcnt(0)")
        A("s_barrier")
        stamp(5)
        def grp(s):
            return [kread(0, s)] + [lds(f"ds_read_b128 {vr(S_Q + (qt*8 + s)*4, 4)}, v{vQL[s & 1]} offset:{qt*8192 + (s >> 1)*2048}", f"kf{s}")
                                    for qt in range(5)]
        run(grp(0) + grp(1))
        for s in range(8):
            A(f"s_waitcnt lgkmcnt({lg.wait(f'kf{s}')})")
            weave([s_mfma(0, s, qt) for qt in range(5)], grp(s + 2) if s + 2 < 8 else [], per=2)
    else:
        A("L_PV:")
        for j in range(3):
            A(f"v_mov_b32 v{1+j}, v{vPVa[j]}")
        A("s_waitcnt lgkmcnt(0)")
        A("s_barrier")
        stamp(5)
        A(f"""
        s_cmp_lg_u32 {sW}, 4
        s_cbranch_scc1 L_noreg
        s_getreg_b32 {sT0}, hwreg(HW_REG_XCC_ID)
        s_and_b32 {sT0}, {sT0}, 15
        s_mul_i32 {sT1}, {sT0}, {sT0}
        s_lshl_b32 {sT1}, {sT1}, 18
        s_lshl_b32 {sT0}, {sT0}, 8
        s_add_u32 {sT0}, {sT0}, {sT1}
        s_add_u32 {sT0}, {sT0}, 1
        v_mov_b32 v21, 0
        v_mov_b32 v22, {sT0}
        s_lshl_b32 {sT1}, {sB}, 5
        s_mov_b64 exec, 1
        buffer_atomic_add v22, v21, {sDBG}, {sT1} offen
        s_mov_b64 exec, -1
        L_noreg:
        """)
    vm_join = list(vm.q)
    seg("join")
    A(f"L_{R}_join:")
    if S:
        SS = S_S[0]
        for qt in range(5):
            a = SS + qt*4; t = S_KF + qt*2
            A(f"v_max3_f32 v{t}, v{a}, v{a+1}, v{S_L+qt}")
            A(f"v_max3_f32 v{t}, v{a+2}, v{a+3}, v{t}")
            A(f"v_mov_b32 v{t+1}, v{t}")
        for qt in range(5):
            t = S_KF + qt*2
            A(f"v_permlane32_swap_b32 v{t}, v{t+1}")
        for qt in range(5):
            t = S_KF + qt*2
            A(f"v_max_f32 v{t}, v{t}, v{t+1}")
            A(f"v_mov_b32 v{t+1}, v{t}")
        for qt in range(5):
            t = S_KF + qt*2
            A(f"v_permlane16_swap_b32 v{t}, v{t+1}")
        for qt in range(5):
            t = S_KF + qt*2
            A(f"v_max_f32 v{t}, v{t}, v{t+1}")
            A(f"ds_write_b32 v{vMX}, v{t} offset:{qt*128}")
        A("s_waitcnt lgkmcnt(0)")
        A("s_barrier")
        A(f"v_and_b32 v5, 0xfffffffb, v{vMX}")
        for qt in range(5):
            A(f"ds_read_b64 {vr(S_KF + qt*2, 2)}, v5 offset:{qt*128}")
        run(v_dma(1) + v_dma(2))
        for qt in range(5):
            t = S_KF + qt*2
            A(f"s_waitcnt lgkmcnt({4 - qt})")
            A(f"v_max_f32 v{t}, v{t}, v{t+1}")
            for r in range(4):
                A(f"v_sub_f32 v{S_NM + qt*4 + r}, 0, v{t}")
            for r in range(4):
                A(f"v_sub_f32 v{SS + qt*4 + r}, v{SS + qt*4 + r}, v{t}")
        end_wait(0)
        A("s_barrier")
    else:
        A("s_barrier")
        A("s_barrier")

    def softmax_fill(j):
        SS = S_S[j & 1]; buf = j & 1
        out = []
        for qt in range(5):
            a = SS + qt*4
            t0, t1 = (S_T[0], S_T[1]) if qt % 2 == 0 else (S_T[2], S_T[3])
            ex = [(2, f"v_exp_f32 v{a+r}, v{a+r}") for r in range(4)]
            wr = lds(f"ds_write_b64 v{vPW}, {vr(a, 2)} offset:{P_BUF + buf*10240 + qt*256}", "pw")
            post = [(1, f"v_add_f32 v{t0}, v{a}, v{a+1}"), (1, f"v_add_f32 v{t1}, v{a+2}, v{a+3}"),
                    (1, f"v_cvt_pk_bf16_f32 v{a}, v{a}, v{a+1}"), (1, f"v_cvt_pk_bf16_f32 v{a+1}, v{a+2}, v{a+3}"),
                    (1, f"v_add_f32 v{t0}, v{t0}, v{t1}"), (1, wr),
                    (1, f"v_mov_b32 v{S_L+qt}, v{t0}" if j == 0 else f"v_add_f32 v{S_L+qt}, v{S_L+qt}, v{t0}")]
            out.append((ex, post))
        seq = list(out[0][0])
        for qt in range(5):
            if qt + 1 < 5:
                e = out[qt + 1][0]; p = out[qt][1]
                seq += [e[0], p[0], p[1], e[1], p[2], p[3], e[2], p[4], p[5], e[3], p[6]]
            else:
                seq += out[qt][1]
        return seq

    def s_interval(i):
        fill = softmax_fill(i - 1)
        def fput(n):
            while fill and n >= fill[0][0]:
                c, it = fill.pop(0)
                n -= c
                put(it)
        fst(i, 3)
        if i <= 31:
            for s in range(4):
                put(kread(i, s))
            d = []
            if i == 1:
                d += k_dma(3)
            if i + 3 <= 31:
                d += k_dma(i + 3)
            if i == 29:
                d += [wo_addr]
            if i == 30:
                d += wo_dma(0, vm)[:4]
            if i == 31:
                d += wo_dma(0, vm)[4:]
            for f in d:
                f()
                fput(OPT["pre"])
            for s in range(8):
                A(f"s_waitcnt lgkmcnt({lg.wait(f'kf{s}')})")
                if s == 0:
                    fst(i, 4)
                for qt in range(5):
                    A(s_mfma(i, s, qt))
                    if qt == 1 and 1 <= s <= 4:
                        put(kread(i, s + 3))
                        fput(1)
                    elif qt == 4:
                        fput(1)
                    else:
                        fput(2)
            fst(i, 5)
        fput(1000)
        fst(i, 6)
        if i == 32:
            run(wo_dma(1, vm))
        end_wait(i)
        fst(i, 7)
        A("s_barrier")
        fst(i, 8)

    def vt_reads(t):
        pos = (t + 3) & 3
        out = []
        for s16 in range(2):
            for tt in range(2):
                for e in range(2):
                    out.append(f"ds_read_b64_tr_b16 {vr(VT[t & 1] + (s16*2 + tt)*4 + e*2, 2)}, v{vVB[tt]} offset:{pos*16384 + (16*s16 + 4*e)*128}")
        return out

    def pv_mfma(t, s16, P, first):
        out = []
        for qt in range(5):
            for tt in range(2):
                acc = vr(O_ACC + (tt*5 + qt)*16, 16)
                out.append(f"v_mfma_f32_32x32x16_bf16 {acc}, {vr(VT[t & 1] + (s16*2 + tt)*4, 4)}, {vr(P + qt*4, 4)}, {'0' if first else acc}")
        return out

    def o_addr():
        A(f"""
        v_and_b32 v17, 15, v0
        v_lshrrev_b32 v18, 3, v17
        v_lshlrev_b32 v18, 10, v18
        v_and_b32 v20, 7, v17
        v_lshl_add_u32 v18, v20, 7, v18
        v_lshrrev_b32 v20, 1, v17
        v_lshl_add_u32 v18, v20, 4, v18
        v_lshrrev_b32 v20, 5, v0
        v_lshl_add_u32 v18, v20, 3, v18
        v_bfe_u32 v20, v0, 4, 1
        v_lshl_add_u32 v18, v20, 13, v18
        s_lshl_b32 {sT0}, {sDQ}, 11
        v_add_u32 v18, {sT0}, v18
        """)
        for p in range(8):
            A(f"v_xor_b32 v{4 + p}, {p << 4}, v18")

    def pv_interval(i):
        if i == 1:
            run(vt_reads(0))
            o_addr()
            A(f"v_lshlrev_b32 v17, 4, v0")
            A(f"s_lshl_b32 {sXTC}, {sDQ}, 10")
            A(f"s_add_u32 {sXTC}, {sXTC}, {sXS}")
            if OPT["vpv"]:
                A(f"s_add_u32 {sVO}, {sKV0}, {3*16384}")
                run(v_dma(3))
            A("s_waitcnt lgkmcnt(0)")
            A("s_barrier")
            return
        t = i - 2; buf = t & 1
        fst(i, 3)
        pa = [f"ds_read_b128 {vr(P_A + qt*4, 4)}, v{vPR} offset:{P_BUF + buf*10240 + qt*512}" for qt in range(5)]
        pb = [f"ds_read_b128 {vr(P_B + qt*4, 4)}, v{vPR} offset:{P_BUF + buf*10240 + 5120 + qt*512}" for qt in range(5)]
        if t >= 1:
            weave(pv_mfma(t - 1, 1, P_B, False), pa + pb[:3] + [[]] + [pb[3]])
        else:
            run(pa + pb[:4])
        fst(i, 4)
        if OPT["vpv"]:
            if i + 2 <= 31:
                run(v_dma(i + 2))
            if vm.has(f"V{t+1}"):
                A(f"s_waitcnt vmcnt({vm.wait(f'V{t+1}')})")
            nx = {OPT["xt0"]: 3, OPT["xt0"] + 1: 4, OPT["xt0"] + 2: 4}.get(i, 0) if OPT["xtouch"] else 0
            if nx:
                A(f"s_add_u32 m0, {sW1K}, {SCR}")
            for k in range(nx):
                if i == OPT["xt0"] + 2 and k == 3:
                    A(f"s_add_u32 {sXTC}, {sXS}, {XST}")
                else:
                    A("s_nop 0")
                put(dma([f"buffer_load_dwordx4 v17, {sWS}, {sXTC} offen{XTF} lds", f"s_add_u32 {sXTC}, {sXTC}, 4096"], "tch", vm))
        A("s_waitcnt lgkmcnt(4)")
        fst(i, 5)
        d = []
        if i == OPT["wwarm"]:
            d = [[f"s_mul_i32 {sT1}, s2, 14336", f"s_lshl_b32 {sT2}, {sDQ}, 10", f"s_add_u32 {sT1}, {sT1}, {sT2}",
                  f"s_add_u32 m0, {sW1K}, {SCR}"]]
            for k in range(4):
                d.append(dma([f"buffer_load_dwordx4 v17, {sWO}, {sT1} offen lds", f"s_add_u32 {sT1}, {sT1}, 4096"], f"X{i}", vm))
        if i == OPT["touch"]:
            d = [[f"v_lshrrev_b32 v16, 2, v0", f"v_mul_u32_u24 v16, 896, v16", f"v_and_b32 v18, 3, v0",
                  f"v_lshl_add_u32 v16, v18, 7, v16",
                  f"s_lshl_b32 {sT1}, {sHALF}, 2", f"s_add_u32 {sT1}, {sT1}, {sDQ}", f"s_mul_i32 {sT1}, {sT1}, {32*896}",
                  f"s_add_u32 {sT1}, {sT1}, {sWOO}", f"s_add_u32 {sT2}, {sT1}, {16*896}"],
                 dma([f"s_add_u32 m0, {sW1K}, {SCR - 384}", "s_nop 0", f"buffer_load_dword v16, {sWO}, {sT1} offen offset:384 lds"], "tch", vm),
                 dma([f"buffer_load_dword v16, {sWO}, {sT2} offen offset:384 lds"], "tch", vm)]
        vt = vt_reads(t + 1) if t + 1 <= 31 else []
        weave(pv_mfma(t, 0, P_A, t == 0), [vt[:3], [pb[4]] + vt[3:5], vt[5:]] + d)
        fst(i, 6)
        A("s_waitcnt lgkmcnt(0)")
        fst(i, 7)
        A("s_barrier")
        fst(i, 8)

    interval = s_interval if S else pv_interval
    seg("g0")
    for i in range(1, 4):
        interval(i)
    stamp(6)
    A(f"s_mov_b32 {sCNT}, 6")
    vm.q = [t for t in vm.q if t[0] != "X"]
    q_before = list(vm.q)
    seg("loop")
    A(f"L_{R}_loop:")
    for i in range(4, 8):
        interval(i)
    A(f"s_sub_u32 {sCNT}, {sCNT}, 1")
    A(f"s_cmp_lg_u32 {sCNT}, 0")
    A(f"s_cbranch_scc1 L_{R}_loop")
    sh = lambda q, d: [t[0] + str(int(t[1:]) + d) for t in q]
    while vm.q and vm.q[0][0] == 'X':
        vm.q.pop(0)
    assert sh(q_before, 4) == vm.q, (q_before, vm.q)
    vm.q = sh(vm.q, 20)
    tr.append(f"{R}_loop")
    seg("gl")
    stamp(7)
    for i in range(28, 33):
        interval(i)
    if S:
        if OPT["prio"]:
            A("s_setprio 0")
        T = S_KF + 4
        for qt in range(5):
            A(f"v_mov_b32 v{T + qt}, v{S_L + qt}")
        for qt in range(5):
            A(f"v_permlane32_swap_b32 v{T + qt}, v{S_L + qt}")
        for qt in range(5):
            A(f"v_add_f32 v{S_L + qt}, v{S_L + qt}, v{T + qt}")
            A(f"v_mov_b32 v{T + qt}, v{S_L + qt}")
        for qt in range(5):
            A(f"v_permlane16_swap_b32 v{T + qt}, v{S_L + qt}")
        A(f"v_add_u32 v5, {(ST_L - MX_OFF) & 0xffffffff}, v{vMX}")
        A(f"v_subrev_u32 v6, {MX_OFF}, v{vMX}")
        A(f"v_lshrrev_b32 v6, 3, v6")
        A(f"v_lshlrev_b32 v6, 2, v6")
        A(f"v_add_u32 v6, {ST_M}, v6")
        for qt in range(5):
            A(f"v_add_f32 v{S_L + qt}, v{S_L + qt}, v{T + qt}")
            A(f"ds_write_b32 v5, v{S_L + qt} offset:{qt*128}")
            A(f"ds_write_b32 v6, v{S_NM + qt*4} offset:{qt*64}")
        A(f"""
        s_cmp_lg_u32 {sW}, 0
        s_cbranch_scc1 L_regdone
        s_getreg_b32 {sT2}, hwreg(HW_REG_XCC_ID)
        s_and_b32 {sT2}, {sT2}, 15
        s_mul_i32 {sT1}, {sT2}, {sT2}
        s_lshl_b32 {sT1}, {sT1}, 23
        s_lshl_b32 {sT2}, {sT2}, 13
        s_add_u32 {sT2}, {sT2}, {sT1}
        s_add_u32 {sT2}, {sT2}, 32
        s_lshl_b32 {sT1}, {sB}, 5
        v_mov_b32 v29, 0
        s_mov_b32 {sCNT}, 0x40000
        L_regpoll:
        buffer_load_dword v30, v29, {sDBG}, {sT1} offen sc1
        s_waitcnt vmcnt(0)
        v_readfirstlane_b32 {sT0}, v30
        s_sub_u32 {sCNT}, {sCNT}, 1
        s_cmp_eq_u32 {sCNT}, 0
        s_cbranch_scc1 L_regok
        s_and_b32 {sT3}, {sT0}, 0xff
        s_cmp_ge_u32 {sT3}, 32
        s_cbranch_scc1 L_regok
        s_sleep 8
        s_branch L_regpoll
        L_regok:
        s_cmp_eq_u32 {sT0}, {sT2}
        s_cselect_b32 {sLOC}, {0 if OPT.get("noloc") else 1}, 0
        v_mov_b32 v29, {ST_M + 1024}
        v_mov_b32 v30, {sLOC}
        ds_write_b32 v29, v30
        L_regdone:
        """)
        run(wo_dma(2, vm) + wo_dma(3, vm))
        A(f"s_waitcnt vmcnt({vm.wait('wo1')}) lgkmcnt(0)")
        A("s_barrier")
    else:
        pv_interval(33)

    seg("post")
    stamp(8)
    A(f"""
    v_lshlrev_b32 v17, 3, v0
    v_min_u32 v18, 31, v0
    v_lshlrev_b32 v18, 3, v18
    v_add_u32 v17, {ST_L}, v17
    v_add_u32 v18, {ST_L}, v18
    ds_read_b64 v[76:77], v17
    ds_read_b64 v[20:21], v17 offset:512
    ds_read_b64 v[78:79], v18 offset:1024
    v_mov_b32 v17, {ST_M + 1024}
    ds_read_b32 v80, v17
    """)
    chk = f"""
    s_waitcnt lgkmcnt(0)
    v_readfirstlane_b32 {sLOC}, v80
    v_add_f32 v76, v76, v77
    v_add_f32 v20, v20, v21
    v_add_f32 v78, v78, v79
    v_cmp_ge_f32 s[50:51], {sLIM}, v76
    v_cmp_ge_f32 s[52:53], {sLIM}, v20
    v_cmp_ge_f32 s[54:55], {sLIM}, v78
    s_and_b64 s[50:51], s[50:51], s[52:53]
    s_and_b64 s[50:51], s[50:51], s[54:55]
    s_cmp_eq_u64 s[50:51], -1
    s_cbranch_scc1 L_{R}_ok
    s_cmp_eq_u32 {sRETRY}, 0
    s_cbranch_scc1 L_{R}_fallback
    """
    if not S:
        mfa = pv_mfma(31, 1, P_B, False)
        mf = mfa[4:] + mfa[:4]
        run(mf[:4])
    A(chk)
    seg("ok")
    A(f"L_{R}_ok:")

    def signal_wait(flag_word, poll_addr_code, nlanes, lab, agent=0):
        A(f"""
        s_cmp_lg_u32 {sW}, {agent}
        s_cbranch_scc1 L_{lab}_done
        v_mov_b32 v28, 1
        s_lshl_b32 {sT1}, {sHQ}, 2
        s_add_u32 {sT1}, {sT1}, {flag_word}
        v_mov_b32 v27, {sT1}
        {poll_addr_code}
        s_mov_b32 {sCNT}, 0x40000
        s_mov_b64 exec, 1
        s_cmp_eq_u32 {sLOC}, 1
        s_cbranch_scc1 L_{lab}_loc
        buffer_wbl2 sc1
        s_waitcnt vmcnt(0)
        buffer_store_dword v28, v27, {sWS}, {sFLG} offen sc1
        s_branch L_{lab}_sent
        L_{lab}_loc:
        buffer_store_dword v28, v27, {sWS}, {sFLG} offen
        L_{lab}_sent:
        s_mov_b64 exec, {hex((1 << nlanes) - 1)}
        L_{lab}_poll:
        buffer_load_dword v30, v29, {sWS}, {sT2} offen sc1
        s_waitcnt vmcnt(0)
        v_cmp_ne_u32 vcc, 1, v30
        s_sub_u32 {sCNT}, {sCNT}, 1
        s_cmp_eq_u32 {sCNT}, 0
        s_cbranch_scc1 L_{lab}_got
        s_cmp_eq_u64 vcc, 0
        s_cbranch_scc1 L_{lab}_got
        s_sleep {OPT["slp"]}
        s_branch L_{lab}_poll
        L_{lab}_got:
        s_mov_b64 exec, -1
        s_cmp_eq_u32 {sLOC}, 1
        s_cbranch_scc1 L_{lab}_done
        buffer_inv sc1
        s_waitcnt vmcnt(0)
        L_{lab}_done:
        """)

    def oa_addr():
        A(f"""
        v_and_b32 v16, 15, v0
        v_lshrrev_b32 v17, 4, v0
        v_lshrrev_b32 v18, 2, v16
        v_lshl_add_u32 v20, v17, 3, v18
        v_lshlrev_b32 v20, 7, v20
        v_and_b32 v21, 3, v0
        v_lshl_add_u32 v20, v21, 3, v20
        v_lshrrev_b32 v18, 1, v18
        v_and_b32 v21, 1, v17
        v_lshl_add_u32 v18, v21, 1, v18
        v_xor_b32 v18, {sDQ}, v18
        v_lshl_add_u32 v{vOA[0]}, v18, 5, v20
        v_add_u32 v{vOA[1]}, 0x10000, v{vOA[0]}
        v_add_u32 v{vOA[2]}, 0x20000, v{vOA[0]}
        s_lshl_b32 {sT1}, {sDQ}, 9
        s_cmp_eq_u32 {sLOC}, 1
        s_cselect_b32 {sPA}, {sXR}, {sPART}
        s_add_u32 {sPA}, {sPA}, {sT1}
        v_lshrrev_b32 v18, 1, v17
        v_lshlrev_b32 v18, 8, v18
        v_lshl_add_u32 v18, v16, 4, v18
        v_mul_u32_u24 v22, 14336, v21
        v_xor_b32 v13, 64, v{vA0}
        v_add_u32 v14, v22, v18
        v_lshl_add_u32 v15, v21, 3, v18
        """)
    vOBx = [vA0, 13]; vS4, vS2 = 14, 15
    SA = 128
    def sa_reads(j):
        out = []
        for ks in range(8):
            for e in range(2):
                off = WSL[j] + (32*ks + 4*e) * 128
                out.append(f"ds_read_b64_tr_b16 {vr(SA + j*32 + ks*4 + e*2, 2)}, v{vOA[off >> 16]} offset:{off & 0xffff}")
        return out

    if S:
        A(f"""
        s_lshl_b32 {sT0}, {sW}, 6
        v_add_u32 v23, {sT0}, v0
        v_min_u32 v5, 79, v23
        v_lshlrev_b32 v6, 3, v5
        v_lshlrev_b32 v5, 2, v5
        v_add_u32 v7, {ST_L + 640}, v6
        v_add_u32 v5, {ST_M + 320}, v5
        ds_read_b64 v[24:25], v7
        ds_read_b32 v26, v5
        s_add_u32 {sT2}, {sXS}, {XST}
        """)
        oa_addr()
        A(f"""
        s_waitcnt lgkmcnt(0)
        v_add_f32 v27, v24, v25
        buffer_store_dwordx2 v[26:27], v6, {sWS}, {sT2} offen
        """)
        run(sa_reads(0) + sa_reads(1))
        A("s_waitcnt lgkmcnt(0)")
    else:
        A(f"""
        v_and_b32 v17, 31, v0
        v_lshrrev_b32 v18, 5, v0
        v_mul_u32_u24 v18, 1280, v18
        v_lshl_add_u32 v14, v17, 4, v18
        v_mov_b32 v18, 0x7fffff00
        v_cmp_le_u32 vcc, 16, v17
        v_subrev_u32 v15, 256, v14
        v_add_u32 v16, 1024, v14
        v_cndmask_b32 v15, v18, v15, vcc
        v_cndmask_b32 v16, v16, v18, vcc
        s_mul_i32 {sT3}, {sDQ}, 10240
        s_add_u32 {sT2}, {sXS}, {sT3}
        """)
        def send(j):
            qt, tt = 2 + j // 2, j % 2
            out = []
            for rp in range(2):
                a = O_ACC + (tt*5 + qt)*16 + rp*8
                dd = a if qt > 2 else 40 + tt*8 + rp*4
                for k in range(4):
                    out.append(f"v_cvt_pk_bf16_f32 v{dd+k}, v{a+2*k}, v{a+2*k+1}")
                out.append(f"s_add_u32 {sT0}, {sT2}, {(tt*2 + rp)*2560}")
                if qt == 2:
                    out.append(f"buffer_store_dwordx4 {vr(dd, 4)}, v15, {sWS}, {sT0} offen")
                else:
                    out.append(f"buffer_store_dwordx4 {vr(dd, 4)}, v14, {sWS}, {sT0} offen offset:{256 if qt == 3 else 768}")
            return out
        for j in range(4, 10):
            A(mf[j])
            run(send(j - 4))
        A(f"""
        v_lshlrev_b32 v18, 3, v17
        v_lshlrev_b32 v17, 2, v17
        v_add_u32 v18, {ST_L}, v18
        v_add_u32 v17, {ST_M}, v17
        """)
        for qt in range(3):
            A(f"ds_read_b64 {vr(56 + qt*4, 2)}, v18 offset:{qt*256}")
            A(f"ds_read_b32 v{58 + qt*4}, v17 offset:{qt*128}")
    stamp(3, 4)
    A("s_waitcnt vmcnt(0)")
    vm.clear()
    A("s_barrier")
    stamp(4, 4)
    if S:
        run(sa_reads(2) + sa_reads(3))
        A("s_waitcnt lgkmcnt(0)")
    else:
        signal_wait(64, f"v_mov_b32 v29, v27\n s_xor_b32 {sT2}, {sFLG}, 128", 1, "px", agent=4)
    A("s_barrier")
    stamp(5, 4); stamp(3, 5)
    if not S:
        RB = lambda tt, qt: O_ACC + (tt*5 + 3)*16 + qt*8
        A(f"""
        v_and_b32 v17, 31, v0
        v_lshlrev_b32 v17, 3, v17
        s_add_u32 {sT0}, {sXR}, {XST}
        s_add_u32 {sT2}, {sXR}, {sT3}
        """)
        for qt in range(3):
            A(f"buffer_load_dwordx2 {vr(70 + qt*2, 2)}, v17, {sWS}, {sT0} offen offset:{qt*256} sc1")
            vm.issue("ps")
        for qt in range(3):
            for tt in range(2):
                for rp in range(2):
                    A(f"s_add_u32 {sT0}, {sT2}, {(tt*2 + rp)*2560}")
                    if qt == 2:
                        A(f"buffer_load_dwordx4 {vr(RB(tt, qt) + rp*4, 4)}, v16, {sWS}, {sT0} offen sc1")
                    else:
                        A(f"buffer_load_dwordx4 {vr(RB(tt, qt) + rp*4, 4)}, v14, {sWS}, {sT0} offen offset:{qt*512} sc1")
                    vm.issue(f"x{qt}{tt}{rp}")
        A("s_barrier")
        stamp(4, 5)
        A(f"s_waitcnt vmcnt({vm.wait('ps')}) lgkmcnt(0)")
        stamp(5, 5)
        if OPT["stamps"] == 5:
            A("s_waitcnt vmcnt(0)")
            stamp(6, 5)
        for qt in range(3):
            l0, l1, nm = 56 + qt*4, 57 + qt*4, 58 + qt*4
            pn, pl = 70 + qt*2, 71 + qt*2
            A(f"""
            v_add_f32 v{l0}, v{l0}, v{l1}
            v_sub_f32 v{l1}, v{nm}, v{pn}
            v_sub_f32 v{nm}, v{pn}, v{nm}
            v_exp_f32 v{l1}, v{l1}
            v_exp_f32 v{nm}, v{nm}
            v_fma_f32 v{l1}, v{l1}, v{pl}, v{l0}
            v_fma_f32 v{nm}, v{nm}, v{l0}, v{pl}
            v_rcp_f32 v{l1}, v{l1}
            v_rcp_f32 v{nm}, v{nm}
            """)
        for qt in range(3):
            w1, w2 = 57 + qt*4, 58 + qt*4
            for tt in range(2):
                for rq in range(4):
                    a = O_ACC + (tt*5 + qt)*16 + rq*4; r = RB(tt, qt) + rq*2
                    for k in range(4):
                        A(f"v_mul_f32 v{a+k}, v{w1}, v{a+k}")
                    if rq % 2 == 0:
                        A(f"s_waitcnt vmcnt({vm.wait(f'x{qt}{tt}{rq//2}')})")
                    A(f"v_lshlrev_b32 v24, 16, v{r}")
                    A(f"v_and_b32 v25, 0xffff0000, v{r}")
                    A(f"v_lshlrev_b32 v26, 16, v{r+1}")
                    A(f"v_and_b32 v27, 0xffff0000, v{r+1}")
                    for k in range(4):
                        A(f"v_fmac_f32 v{a+k}, v{w2}, v{24+k}")
                    A(f"v_cvt_pk_bf16_f32 v{a}, v{a}, v{a+1}")
                    A(f"v_cvt_pk_bf16_f32 v{a+1}, v{a+2}, v{a+3}")
                    A(f"ds_write_b64 v{4 + 4*tt + rq}, {vr(a, 2)} offset:{qt*16384}")
    else:
        A("s_barrier")
        run(wo_dma(4, vm) + wo_dma(5, vm) + wo_dma(6, vm))
    if S and OPT["xtouch"]:
        A(f"v_lshlrev_b32 v17, 4, v0")
        A(f"s_add_u32 {sT0}, {sXR}, {sW1K}")
        for k in range(8):
            A(f"s_add_u32 {sT1}, {sT0}, {40960 + k*4096}")
            put(dma([f"buffer_load_dwordx4 v[8:11], v17, {sWS}, {sT1} offen{XTF}"], "tch", vm))
    stamp(7, 5)
    def y_out(acc, slot):
        out = []
        co = slot * 2048
        for pr in range(2):
            a = acc + pr*8; b = a + 4
            out.append([f"v_cvt_pk_bf16_f32 v{a}, v{a}, v{a+1}", f"v_cvt_pk_bf16_f32 v{a+1}, v{a+2}, v{a+3}"])
            out.append([f"v_cvt_pk_bf16_f32 v{a+2}, v{b}, v{b+1}", f"v_cvt_pk_bf16_f32 v{a+3}, v{b+2}, v{b+3}"])
            out.append(f"s_add_u32 {sT1}, {sPA}, {co + pr*2*14336}")
            out.append([f"v_permlane16_swap_b32 v{a}, v{a+2}", f"v_permlane16_swap_b32 v{a+1}, v{a+3}"])
            out.append(f"buffer_store_dwordx4 {vr(a, 4)}, v{vS4}, {sWS}, {sT1} offen")
        a = acc + 16
        out.append([f"v_cvt_pk_bf16_f32 v{a}, v{a}, v{a+1}", f"v_cvt_pk_bf16_f32 v{a+1}, v{a+2}, v{a+3}"])
        out.append([f"s_add_u32 {sT1}, {sPA}, {co + 4*14336}", f"buffer_store_dwordx2 {vr(a, 2)}, v{vS2}, {sWS}, {sT1} offen"])
        return out

    lg.clear()
    if S:
        A(f"s_waitcnt vmcnt({vm.wait('wo6')})")
        stamp(8, 5)
        A("s_barrier")
        stamp(9); stamp(6, 4); stamp(9, 5)
        SB, NB, SACC = 24, 6, 48
        seq = [(ps, ks, qt) for ps in range(2) for ks in range(8) for qt in range(5)]
        def bread(n):
            ps, ks, qt = seq[n]
            return lds(f"ds_read_b128 {vr(SB + (n % NB)*4, 4)}, v{vOBx[ks & 1]} offset:{qt*8192 + (ks >> 1)*2048}", f"b{n}")
        for n in range(NB - 1):
            put(bread(n))
        fill = []
        for n, (ps, ks, qt) in enumerate(seq):
            if n == 42:
                fill = y_out(SACC, 0) + y_out(SACC + 20, 1)
            A(f"s_waitcnt lgkmcnt({lg.wait(f'b{n}')})")
            for tl in range(2):
                j = ps*2 + tl
                acc = vr(SACC + j*20 + qt*4, 4)
                A(f"v_mfma_f32_16x16x32_bf16 {acc}, {vr(SA + j*32 + ks*4, 4)}, {vr(SB + (n % NB)*4, 4)}, {'0' if ks == 0 else acc}")
                if tl == 0 and n + NB - 1 < len(seq):
                    put(bread(n + NB - 1))
                elif fill:
                    put(fill.pop(0))
        run(fill)
        run(y_out(SACC + 40, 2) + y_out(SACC + 60, 3))
        A(f"v_mov_b32 v12, v23")
    else:
        oa_addr()
        A(f"s_lshl_b32 {sT0}, {sW}, 6")
        A(f"v_add_u32 v12, {sT0}, v0")
        A("s_waitcnt lgkmcnt(0)")
        stamp(8, 5)
        A("s_barrier")
        stamp(9); stamp(6, 4); stamp(9, 5)
        steps = [(r, ks) for r in range(3) for ks in range(8)]
        def a_read(n):
            r, ks = steps[n]
            out = []
            if r == 0:
                out += [lds(f"ds_read_b128 {vr(E_O + (qt*8 + ks)*4, 4)}, v{vOBx[ks & 1]} offset:{qt*8192 + (ks >> 1)*2048}", f"a{n}") for qt in range(5)]
            for e in range(2):
                off = WSL[4 + r] + (32*ks + 4*e) * 128
                out.append(lds(f"ds_read_b64_tr_b16 {vr(E_A + (n & 3)*4 + e*2, 2)}, v{vOA[off >> 16]} offset:{off & 0xffff}", f"a{n}"))
            return out
        run(a_read(0) + a_read(1))
        fill = []
        for n, (r, ks) in enumerate(steps):
            if ks == 1 and r >= 1:
                fill = y_out(E_ACC[(r - 1) & 1], 4 + r - 1)
            A(f"s_waitcnt lgkmcnt({lg.wait(f'a{n}')})")
            mfs = []
            for qt in range(5):
                acc = vr(E_ACC[r & 1] + qt*4, 4)
                mfs.append(f"v_mfma_f32_16x16x32_bf16 {acc}, {vr(E_A + (n & 3)*4, 4)}, {vr(E_O + (qt*8 + ks)*4, 4)}, {'0' if ks == 0 else acc}")
            rd = a_read(n + 2) if n + 2 < len(steps) else []
            if len(rd) > 2:
                weave(mfs, rd, per=2)
            else:
                weave(mfs, rd + [fill.pop(0) if fill else [] for _ in range(3)])
        run(fill)
        run(y_out(E_ACC[0], 6))
    stamp(10); stamp(7, 4); stamp(11, 5)
    A(f"""
    s_mul_i32 {sT0}, {sHQ}, 280
    v_add_u32 v1, {sT0}, v12
    v_lshrrev_b32 v2, 5, v1
    v_mul_u32_u24 v3, 2341, v2
    v_lshrrev_b32 v3, 16, v3
    v_mul_u32_u24 v4, 28, v3
    v_sub_u32 v4, v2, v4
    v_and_b32 v5, 15, v1
    v_lshl_add_u32 v5, v3, 4, v5
    v_bfe_u32 v6, v1, 4, 1
    v_lshlrev_b32 v6, 4, v6
    v_lshl_add_u32 v6, v4, 5, v6
    v_mul_u32_u24 v7, 896, v5
    v_add_u32 v6, v6, v7
    v_lshlrev_b32 v1, 4, v1
    v_mov_b32 v13, 0x7fffff00
    v_cmp_gt_u32 vcc, 280, v12
    v_cndmask_b32 v1, v13, v1, vcc
    v_cndmask_b32 v6, v13, v6, vcc
    s_waitcnt vmcnt(0)
    s_barrier
    """)
    stamp(8, 4)
    if S:
        signal_wait(0, f"v_lshlrev_b32 v29, 2, v0\n s_mov_b32 {sT2}, {sFLG}", 16, "fx")
        A("s_branch L_red")
    tr.append("red")
    A.trace(tr)
    return vm, vm_join


def gen_fallback(role, vm_join):
    S = role == "S"; R = role
    vm = VM(63)
    tr2 = [f"{R}_gl", f"{R}_post"]
    A.seg(f"{R}_fb"); tr2.append(f"{R}_fb")
    A(f"L_{R}_fallback:")
    A(f"""
    s_mov_b32 {sRETRY}, 1
    s_waitcnt vmcnt(0) lgkmcnt(0)
    s_barrier
    s_mov_b32 {sKO}, {sKV0}
    s_mov_b32 {sCNT}, 32
    """)
    if S:
        for qt in range(5):
            A(f"v_mov_b32 v{S_L+qt}, 0xff800000")
        v_addr()
    def s_tile():
        for hh in range(2):
            for s in range(4*hh, 4*hh + 4):
                A(f"ds_read_b128 {vr(S_KF + (s & 3)*4, 4)}, v{vKA[s & 1]} offset:{(s >> 1)*2048}")
            A("s_waitcnt lgkmcnt(0)")
            for s in range(4*hh, 4*hh + 4):
                for qt in range(5):
                    acc = vr(S_S[0] + qt*4, 4)
                    A(f"v_mfma_f32_16x16x32_bf16 {acc}, {vr(S_KF + (s & 3)*4, 4)}, {vr(S_Q + (qt*8 + s)*4, 4)}, {acc if s else '0'}")
    A.seg(f"{R}_fbl"); tr2 += [f"{R}_fbl", f"{R}_fbl"]
    A(f"L_{R}_fbl:")
    if S:
        run(k_lines(0))
        A("s_waitcnt vmcnt(0)")
        A("s_barrier")
        s_tile()
        for qt in range(5):
            a = S_S[0] + qt*4
            A(f"v_max3_f32 v{S_L+qt}, v{a}, v{a+1}, v{S_L+qt}")
            A(f"v_max3_f32 v{S_L+qt}, v{a+2}, v{a+3}, v{S_L+qt}")
        A("s_barrier")
    else:
        A("s_barrier")
        A("s_barrier")
    A(f"s_sub_u32 {sCNT}, {sCNT}, 1")
    A(f"s_cmp_lg_u32 {sCNT}, 0")
    A(f"s_cbranch_scc1 L_{R}_fbl")
    A.seg(f"{R}_fbe"); tr2 += [f"{R}_fbe", f"{R}_join", f"{R}_g0"]
    if S:
        A(f"s_mov_b32 {sKO}, {sKV0}")
        A(f"s_mov_b32 {sVO}, {sKV0}")
        run(k_lines(0) + k_lines(1) + v_lines(0) + k_lines(2))
        assert vm_join == ["K1"]*4 + ["V0"]*4 + ["K2"]*4, vm_join
        if OPT["prio"]:
            A(f"s_setprio {OPT['prio']}")
        A("s_waitcnt vmcnt(12)")
        A("s_barrier")
        s_tile()
    else:
        A("s_barrier")
    A(f"s_branch L_{R}_join")
    A.trace(tr2)


vmS, joinS = gen_role("S")
gen_fallback("S", joinS)
gen_fallback("PV", None) if False else None
vmP, joinP = gen_role("PV")

D0, AC = 96, 40
A.seg("red")
A("L_red:")
A("s_barrier")
stamp(11); stamp(9, 4)
A(f"""
s_cmp_ge_u32 {sW}, 5
s_cbranch_scc1 L_fin
s_lshl_b32 {sT2}, {sB}, 1
s_add_u32 {sT2}, {sT2}, {sHALF}
s_xor_b32 {sT3}, {sT2}, 1
s_mul_i32 {sT2}, {sT2}, {16*PART_BYTES}
s_mul_i32 {sT3}, {sT3}, {16*XCH_BYTES}
s_add_u32 {sT3}, {sT3}, {XCH_OFF}
s_mov_b32 {sT0}, {PART_BYTES}
s_cmp_eq_u32 {sLOC}, 1
s_cselect_b32 {sT2}, {sT3}, {sT2}
s_cselect_b32 {sT0}, {XCH_BYTES}, {sT0}
s_mul_i32 {sT1}, {sHALF}, {80*896}
s_add_u32 {sT1}, {sT1}, {sXO}
""")
for p in range(16):
    A(f"buffer_load_dwordx4 {vr(D0 + p*4, 4)}, v1, {sWS}, {sT2} offen sc1")
    A(f"s_add_u32 {sT2}, {sT2}, {sT0}")
for p in range(16):
    A(f"s_waitcnt vmcnt({15 - p})")
    if p in (0, 15):
        stamp({0: 10, 15: 11}[p], 4)
    for r in range(4):
        d = D0 + p*4 + r
        if p == 0:
            A(f"v_lshlrev_b32 v{AC + 2*r}, 16, v{d}")
            A(f"v_and_b32 v{AC + 2*r + 1}, 0xffff0000, v{d}")
        else:
            A(f"v_lshlrev_b32 v{24 + 2*r}, 16, v{d}")
            A(f"v_and_b32 v{25 + 2*r}, 0xffff0000, v{d}")
    if p:
        for r in range(8):
            A(f"v_add_f32 v{AC + r}, v{AC + r}, v{24 + r}")
for r in range(4):
    A(f"v_cvt_pk_bf16_f32 v{20 + r}, v{AC + 2*r}, v{AC + 2*r + 1}")
A(f"buffer_store_dwordx4 v[20:23], v6, {sOUT}, {sT1} offen")
A("L_fin:")
if OPT["stamps"]:
    A("s_waitcnt vmcnt(0)")
    stamp(12)
    A("s_memrealtime s[58:59]")
    A("s_waitcnt lgkmcnt(0)")
    A("v_mov_b32 v20, s56")
    A("v_mov_b32 v21, s58")
    for k in range(2, 13):
        A(f"v_mov_b32 v{20+k}, s{76+2*k}")
    A("v_mov_b32 v33, 0")
    A("v_mov_b32 v34, 0")
    A("v_mov_b32 v35, 0")
    A(f"s_lshl_b32 {sT0}, s2, 9")
    A(f"s_lshl_b32 {sT1}, {sW}, 6")
    A(f"s_add_u32 {sT0}, {sT0}, {sT1}")
    A(f"s_add_u32 {sT0}, {sT0}, {STAMP_OFF}")
    A("v_mov_b32 v40, 0")
    for j in range(4):
        A(f"buffer_store_dwordx4 v[{20+4*j}:{23+4*j}], v40, {sWS}, {sT0} offen offset:{16*j}")
if OPT["stamps"] and OPT.get("dbg") is not None:
    A(f"s_cmp_lg_u32 s2, {OPT['dbg']}")
    A("s_cbranch_scc1 L_end")
    A(f"s_cmp_lg_u32 {sW}, 0")
    A("s_cbranch_scc1 L_end")
    A("v_sub_u32 v21, v21, v20")
    for k in range(12, 2, -1):
        A(f"v_sub_u32 v{20+k}, v{20+k}, v{19+k}")
    for j, r in enumerate([21] + list(range(23, 33))):
        w = j + 1 if j < 7 else j + 2
        A(f"buffer_store_dword v{r}, v40, {sDBG}, 0 offen offset:{4*w}")
A("L_end:")
A("s_endpgm")
gen_fallback("PV", joinP)

A.seg("desc")
A('.section .rodata,"a"')
A(".p2align 6")
A(f".amdhsa_kernel {KNAME}")
A(".amdhsa_next_free_vgpr 256")
A(".amdhsa_next_free_sgpr 102")
A(".amdhsa_accum_offset 256")
A(".amdhsa_group_segment_fixed_size 0")
A(".amdhsa_kernarg_size 64")
A(".amdhsa_user_sgpr_count 2")
A(".amdhsa_user_sgpr_kernarg_segment_ptr 1")
A(".amdhsa_system_sgpr_workgroup_id_x 1")
A(".end_amdhsa_kernel")

A.fix_hazards()
sys.stderr.write("nops: %s\n" % A.count_nops())
sys.stdout.write(A.text())
```

```python
import sys, struct, math
from asmlib import Asm, VM

OPT = dict(nt="nt", prio=1, stamps=0, fine=28, pre=4, touch=-1, xtouch=1, ts=0, z4=30, wwarm=2, xt0=29, vpv=1, mapb=1, slp=4)
for a in sys.argv[1:]:
    k, v = a.split("=")
    OPT[k] = int(v) if v.lstrip("-").isdigit() else v
NT = (" " + OPT["nt"]) if OPT["nt"] not in ("", "none") else ""
NTV = NT if "ntv" not in OPT else ((" " + OPT["ntv"]) if OPT["ntv"] != "none" else "")
KNAME = "standalone__gqa_block_cached__near_ridge_kernel"

def f32(x):
    return "0x%08x" % struct.unpack("<I", struct.pack("<f", x))[0]

P_BUF = 0
VRING = 32768
KRING = 98304
MX_OFF = KRING + 3 * 16384
STG = [0, 53248, 106496]
XOFF = 32768
WSL = [98304, 131072, 65536, 32768, 98304, 131072, 65536]
ST_L = 28672
ST_M = ST_L + 1280
LDS_BYTES = 163840
PART_BYTES = 71680
XCH_BYTES = 71680 + 2048
XST = 71680
SCR = 20480
XCH_OFF = 256 * PART_BYTES
FLAG_OFF = XCH_OFF + 256 * XCH_BYTES
STAMP_OFF = 48 << 20

sX, sWQ, sVr, sWO, sWS, sKr = "s[4:7]", "s[8:11]", "s[12:15]", "s[16:19]", "s[20:23]", "s[60:63]"
sW, sB, sHQ, sHALF, sHKV = "s24", "s25", "s26", "s27", "s28"
sKO, sCNT, sRETRY = "s29", "s30", "s31"
sT0, sT1, sT2, sT3 = "s32", "s33", "s34", "s35"
sW1K, sXO, sWQO, sKDST, sKV0, sC, sWOO, sPART = "s36", "s37", "s38", "s39", "s40", "s41", "s42", "s43"
sQH, sKH, sDQ, sHP = "s44", "s45", "s46", "s47"
sLIM, sVO, sVDST = "s48", "s49", "s3"
sXS, sXR = "s64", "s65"
sFLG, sLOC = "s66", "s67"
sXT = ["s50", "s51", "s52"]
sPA, sPB, sPC = "s50", "s51", "s52"
WOF = " " + OPT.get("wof", "none").replace("+", " ").replace("none", "")
YF = " sc1" if OPT.get("gsc1") else ""
sXTC = "s53"
XTF = " " + OPT.get("xtf", "sc1").replace("+", " ").replace("none", "")
sDBG = "s[68:71]"
sOUT = "s[72:75]"

A = Asm()
_lab = [0]

def stamp(k, mode=1):
    if OPT["stamps"] == mode or (OPT["stamps"] and k in (2, 12)):
        A(f"s_memtime s[{76+2*k}:{77+2*k}]")
    if OPT["stamps"] == 6 and mode == 1 and k in (5, 7, 8, 10):
        j = {5: 3, 7: 5, 8: 7, 10: 9}[k]
        A(f"s_memtime s[{76+2*j}:{77+2*j}]")
        A(f"s_memrealtime s[{78+2*j}:{79+2*j}]")

def vr(b, n):
    return f"v[{b}:{b+n-1}]" if n > 1 else f"v{b}"

def put(f):
    if callable(f):
        f()
    elif isinstance(f, (list, tuple)):
        for x in f:
            put(x)
    else:
        A(f)

def weave(main, fill, per=1):
    fill = list(fill)
    for m in main:
        put(m)
        for _ in range(per):
            if fill:
                put(fill.pop(0))
    for f in fill:
        put(f)

def run(fs):
    for f in fs:
        put(f)

def only_S(lines):
    def f():
        _lab[0] += 1
        A(f"s_cmp_ge_u32 {sW}, 4")
        A(f"s_cbranch_scc1 L_sk{_lab[0]}")
        for x in lines:
            A(x + " ; cond")
        A(f"L_sk{_lab[0]}:")
    return f

vI, vG = 40, 41
vXD, vWD = 42, 43
vW = [44, 45, 46, 47]
vXR = [48, 49]
vQW = [50, 51, 52, 53]
vQL = [54, 55]
vPVa = [56, 57, 58, 59, 60]
vA0 = 19
vKD = 16
vVD = [12, 13, 14, 15]
QACC = 176
QA = [96, 112]
QB = [128, 148]
S_Q, S_NM, S_KF, S_L = 96, 36, 20, 7
S_S = [56, 76]
vKA = [1, 2]; vPW = 3; vMX = 4
S_T = [5, 6, 17, 18]
O_ACC, P_A, P_B = 96, 76, 56
VT = [40, 24]
vVB = [1, 2, 20, 21]; vPR = 3; vOW = [4, 5, 6, 7]
vWOD = 12
E_O = 96
E_ACC = [56, 76]
E_A = 36
vOA = [1, 2, 3]; vOB = [5, 6]; vST4 = 7; vST2 = 8; vSTAT = 10

A.seg("head")
A("; @launch grid=(256,1,1) block=(512,1,1) lds=%d" % LDS_BYTES)
A('.amdgcn_target "amdgcn-amd-amdhsa--gfx950"')
A(".text")
A(f".globl {KNAME}")
A(".p2align 8")
A(f".type {KNAME},@function")
A(f"{KNAME}:")
A.seg("entry")
A(f"""
s_cmp_ge_u32 s2, 256
s_cbranch_scc1 L_end
s_load_dwordx16 s[64:79], s[0:1], 0
""")
if OPT["stamps"]:
    A("s_memrealtime s[56:57]")
    stamp(2)
A(f"""
s_and_b32 {sB if OPT.get("mapb") else sHKV}, s2, 7
s_lshr_b32 {sT0}, s2, 3
s_lshr_b32 {sHKV if OPT.get("mapb") else sB}, {sT0}, 2
s_and_b32 {sT1}, {sT0}, 1
s_lshr_b32 {sHALF}, {sT0}, 1
s_and_b32 {sHALF}, {sHALF}, 1
s_lshl_b32 {sHQ}, {sHKV}, 1
s_add_u32 {sHQ}, {sHQ}, {sT1}
v_lshrrev_b32 v1, 6, v0
v_and_b32 v0, 63, v0
v_readfirstlane_b32 {sW}, v1
s_mul_i32 {sXO}, {sB}, 143360
s_lshl_b32 {sWQO}, {sHQ}, 9
v_and_b32 v{vI}, 15, v0
v_lshrrev_b32 v{vG}, 4, v0
s_lshl_b32 {sW1K}, {sW}, 10
s_lshr_b32 {sHP}, {sW}, 2
s_and_b32 {sQH}, {sW}, 1
s_lshl_b32 {sT0}, {sQH}, 2
v_add_u32 v5, {sT0}, v{vG}
v_and_b32 v6, 7, v0
v_xor_b32 v5, v5, v6
v_lshlrev_b32 v5, 4, v5
v_lshrrev_b32 v6, 3, v0
v_mul_u32_u24 v6, 896, v6
v_add_u32 v{vXD}, v5, v6
s_mul_i32 {sT0}, {sHALF}, 10
s_add_u32 {sT0}, {sT0}, {sW}
s_sub_u32 {sT1}, {sT0}, 20
s_cmp_ge_u32 {sT0}, 20
s_cselect_b32 {sT1}, {sT1}, {sT0}
s_mul_i32 {sT1}, {sT1}, 7168
s_add_u32 {sXT[0]}, {sT1}, {sXO}
s_add_u32 {sT0}, {sT0}, 8
s_sub_u32 {sT1}, {sT0}, 20
s_cmp_ge_u32 {sT0}, 20
s_cselect_b32 {sT1}, {sT1}, {sT0}
s_mul_i32 {sT1}, {sT1}, 7168
s_add_u32 {sXT[1]}, {sT1}, {sXO}
s_add_u32 {sT0}, {sT0}, 8
s_sub_u32 {sT1}, {sT0}, 20
s_cmp_ge_u32 {sT0}, 20
s_cselect_b32 {sT1}, {sT1}, {sT0}
s_mul_i32 {sT1}, {sT1}, 7168
s_add_u32 {sXT[2]}, {sT1}, {sXO}
v_lshrrev_b32 v5, 5, v0
s_lshl_b32 {sT0}, {sW}, 1
v_add_u32 v5, {sT0}, v5
v_and_b32 v6, 3, v5
s_lshl_b32 {sT0}, {sHP}, 2
v_or_b32 v6, {sT0}, v6
v_bfe_u32 v7, v0, 1, 4
v_xor_b32 v6, v6, v7
v_lshlrev_b32 v6, 5, v6
v_and_b32 v7, 1, v0
v_lshlrev_b32 v7, 4, v7
v_lshlrev_b32 v5, 13, v5
v_add3_u32 v{vWD}, v5, v6, v7
s_mov_b32 s6, 1146880
s_mov_b32 s7, 0x20000
s_mov_b32 s10, 3670016
s_mov_b32 s11, 0x20000
s_waitcnt lgkmcnt(0)
s_mov_b32 s4, s64
s_mov_b32 s5, s65
s_mov_b32 s8, s70
s_mov_b32 s9, s71
""")
stamp(3, 3)

vm = VM(63)

def dma(lines, tag, v=None):
    def f():
        for x in lines:
            A(x)
        (v or vm).issue(tag)
    return f

def stage_dma(s):
    sb = STG[s % 3]
    out = []
    for t in range(4):
        out.append(dma([f"s_add_u32 m0, {sW1K}, {sb + t*8192}",
                        f"s_add_u32 {sT0}, {sWQO}, {(s*64 + 16*t) * 8192}",
                        f"buffer_load_dwordx4 v{vWD}, {sWQ}, {sT0} offen lds"], f"st{s}"))
    for t in range(3):
        l = [f"s_add_u32 m0, {sW1K}, {sb + XOFF + t*8192}",
             f"s_add_u32 {sT0}, {sXT[t]}, {s*128}",
             f"buffer_load_dwordx4 v{vXD}, {sX}, {sT0} offen lds"]
        out.append(dma(l, f"st{s}") if t < 2 else only_S(l))
    return [out[6]] + out[:6]

def k_lines(i):
    slot = i & 3
    out = []
    for sg in range(4):
        l = [f"s_add_u32 m0, {sKDST}, {slot*16384 + sg*2048 - sg*128}", "s_nop 0",
             f"buffer_load_dwordx4 v{vKD}, {sKr}, {sKO} offen offset:{sg*128}{NT} lds"]
        if sg == 3:
            l.append(f"s_add_u32 {sKO}, {sKO}, {0 if OPT.get('samekv') else 16384}")
        out.append(l)
    return out

def v_lines(t):
    pos = (t + 3) & 3
    out = []
    for jj in range(4):
        l = [f"s_add_u32 m0, {sVDST}, {pos*16384 + jj*1024}", "s_nop 0",
             f"buffer_load_dwordx4 v{vVD[jj]}, {sVr}, {sVO} offen{NTV} lds"]
        if jj == 3:
            l.append(f"s_add_u32 {sVO}, {sVO}, {0 if OPT.get('samekv') else 16384}")
        out.append(l)
    return out

run(stage_dma(0))
stamp(4, 3)
A.seg("pro")
A(f"""
s_mov_b32 s16, s72
s_mov_b32 s17, s73
s_mov_b32 s18, 3670016
s_mov_b32 s19, 0x20000
s_mov_b32 s20, s78
s_mov_b32 s21, s79
s_mov_b32 s22, 0x10000000
s_mov_b32 s23, 0x20000
s_mov_b32 s12, s68
s_mov_b32 s13, s69
s_mov_b32 s14, 0x4000000
s_mov_b32 s15, 0x20000
s_mov_b32 s60, s66
s_mov_b32 s61, s67
s_mov_b32 s62, 0x4000000
s_mov_b32 s63, 0x20000
s_mov_b32 {sRETRY}, 0
s_mov_b32 {sC}, {f32(math.log2(math.e) / 16.0)}
s_mov_b32 {sLIM}, {f32(2.0 ** 30)}
s_mul_i32 {sWOO}, {sHQ}, 229376
s_lshl_b32 {sT0}, {sB}, 3
s_add_u32 {sT0}, {sT0}, {sHKV}
s_lshl_b32 {sT0}, {sT0}, 1
s_add_u32 {sT0}, {sT0}, {sHALF}
s_lshl_b32 {sKV0}, {sT0}, 19
s_mov_b32 s68, s76
s_mov_b32 s69, s77
s_mov_b32 s70, 256
s_mov_b32 s71, 0x20000
s_mov_b32 s72, s74
s_mov_b32 s73, s75
s_mov_b32 s74, 1146880
s_mov_b32 s75, 0x20000
s_lshl_b32 {sT0}, {sB}, 1
s_add_u32 {sT0}, {sT0}, {sHALF}
s_lshl_b32 {sFLG}, {sT0}, 7
s_add_u32 {sFLG}, {sFLG}, {FLAG_OFF}
s_lshl_b32 {sT0}, {sT0}, 4
s_add_u32 {sT0}, {sT0}, {sHQ}
s_mul_i32 {sPART}, {sT0}, {PART_BYTES}
s_mul_i32 {sXS}, {sT0}, {XCH_BYTES}
s_add_u32 {sXS}, {sXS}, {XCH_OFF}
s_xor_b32 {sT0}, {sT0}, 16
s_mul_i32 {sXR}, {sT0}, {XCH_BYTES}
s_add_u32 {sXR}, {sXR}, {XCH_OFF}
s_and_b32 {sDQ}, {sW}, 3
s_lshr_b32 {sKH}, {sDQ}, 1
v_lshrrev_b32 v30, 3, v{vI}
v_lshlrev_b32 v30, 10, v30
v_and_b32 v31, 7, v{vI}
v_lshlrev_b32 v31, 7, v31
v_lshrrev_b32 v32, 1, v{vI}
v_xor_b32 v33, v{vG}, v32
v_lshlrev_b32 v33, 4, v33
v_add3_u32 v{vA0}, v30, v31, v33
s_mul_i32 {sT0}, {sHP}, 10240
s_add_u32 {sT0}, {sT0}, {XOFF}
v_add_u32 v{vXR[0]}, {sT0}, v{vA0}
v_xor_b32 v{vXR[1]}, 64, v{vXR[0]}
v_lshrrev_b32 v24, 2, v{vI}
v_and_b32 v25, 1, v{vG}
v_lshlrev_b32 v25, 2, v25
v_or_b32 v25, v25, v24
v_lshl_add_u32 v26, v{vG}, 3, v24
v_lshlrev_b32 v26, 9, v26
v_and_b32 v27, 3, v0
v_lshl_add_u32 v26, v27, 3, v26
s_lshl_b32 {sT0}, {sDQ}, 2
v_xor_b32 v25, {sT0}, v25
""")
for m in range(4):
    A(f"v_xor_b32 v28, {m}, v25")
    A(f"v_lshl_add_u32 v{vW[m]}, v28, 5, v26")
stamp(5, 3)
A("s_barrier")
run(stage_dma(1))
stamp(6, 3)
A(f"""
v_lshrrev_b32 v24, 1, v{vG}
v_xor_b32 v24, v24, v32
v_and_b32 v25, 1, v{vG}
v_lshlrev_b32 v25, 3, v25
v_add3_u32 v25, v30, v31, v25
s_mul_i32 {sT0}, {sHP}, 40960
s_lshl_b32 {sT1}, {sDQ}, 11
s_add_u32 {sT0}, {sT0}, {sT1}
v_add_u32 v25, {sT0}, v25
""")
for m in range(4):
    A(f"v_xor_b32 v28, {2*m}, v24")
    A(f"v_lshl_add_u32 v{vQW[m]}, v28, 4, v25")
A(f"""
s_mov_b32 {sVO}, {sKV0}
s_mov_b32 {sKO}, {sKV0}
s_lshl_b32 {sT0}, {sQH}, 2
v_add_u32 v24, {sT0}, v{vG}
v_and_b32 v25, 7, v0
v_xor_b32 v24, v24, v25
v_lshlrev_b32 v24, 4, v24
v_lshrrev_b32 v25, 3, v0
s_lshl_b32 {sT0}, {sKH}, 4
s_lshl_b32 {sT1}, {sQH}, 3
s_add_u32 {sT0}, {sT0}, {sT1}
v_add_u32 v25, {sT0}, v25
v_lshl_add_u32 v{vKD}, v25, 9, v24
s_lshl_b32 {sT0}, {sKH}, 13
s_lshl_b32 {sT1}, {sQH}, 10
s_add_u32 {sKDST}, {sT0}, {sT1}
s_add_u32 {sKDST}, {sKDST}, {KRING}
""")
def v_addr():
    A(f"""
    v_bfe_u32 v24, v0, 4, 1
    v_lshlrev_b32 v24, 1, v24
    v_and_b32 v25, 7, v0
    v_xor_b32 v24, v24, v25
    v_lshlrev_b32 v24, 4, v24
    v_lshrrev_b32 v25, 3, v0
    v_lshl_add_u32 v24, v25, 9, v24
    s_lshl_b32 {sT0}, {sDQ}, 7
    v_add_u32 v{vVD[0]}, {sT0}, v24
    v_xor_b32 v24, 64, v{vVD[0]}
    v_add_u32 v{vVD[1]}, 4096, v24
    v_add_u32 v{vVD[2]}, 8192, v{vVD[0]}
    v_add_u32 v{vVD[3]}, 12288, v24
    """)
v_addr()
A(f"""
s_cmp_lg_u32 {sW}, 4
s_cbranch_scc1 L_noclr
v_and_b32 v24, 1, v0 ; cond
v_lshlrev_b32 v24, 6, v24 ; cond
s_lshl_b32 {sT1}, {sHQ}, 2 ; cond
v_add_u32 v24, {sT1}, v24 ; cond
v_mov_b32 v25, 0 ; cond
buffer_store_dword v25, v24, {sWS}, {sFLG} offen sc1 ; cond
L_noclr:
s_lshl_b32 {sVDST}, {sDQ}, 12
s_add_u32 {sVDST}, {sVDST}, {VRING}
s_mul_i32 {sT0}, {sQH}, 40960
v_add_u32 v{vQL[0]}, {sT0}, v{vA0}
v_xor_b32 v{vQL[1]}, 64, v{vQL[0]}
v_lshrrev_b32 v24, 1, v{vG}
s_lshl_b32 {sT0}, {sKH}, 1
v_add_u32 v24, {sT0}, v24
v_mul_u32_u24 v24, 2560, v24
v_and_b32 v25, 1, v{vG}
v_lshl_add_u32 v24, v25, 3, v24
s_mul_i32 {sT0}, {sQH}, 80
v_add_u32 v25, {sT0}, v{vI}
v_lshl_add_u32 v{vPW}, v25, 4, v24
s_lshl_b32 {sT0}, {sKH}, 2
s_add_u32 {sT0}, {sT0}, {MX_OFF}
v_lshlrev_b32 v25, 3, v25
v_add_u32 v{vMX}, {sT0}, v25
s_lshl_b32 {sT0}, {sKH}, 13
s_add_u32 {sT0}, {sT0}, {KRING}
v_add_u32 v{vKA[0]}, {sT0}, v{vA0}
v_xor_b32 v{vKA[1]}, 64, v{vKA[0]}
v_lshrrev_b32 v30, 2, v{vI}
v_lshl_add_u32 v32, v{vG}, 3, v30
v_lshlrev_b32 v32, 7, v32
v_and_b32 v33, 3, v0
v_lshl_add_u32 v32, v33, 3, v32
v_add_u32 v32, {sVDST}, v32
v_lshrrev_b32 v30, 1, v30
v_and_b32 v33, 1, v{vG}
v_lshl_add_u32 v30, v33, 1, v30
v_lshl_add_u32 v{vPVa[0]}, v30, 5, v32
v_xor_b32 v{vPVa[1]}, 32, v{vPVa[0]}
v_xor_b32 v{vPVa[2]}, 64, v{vPVa[0]}
v_xor_b32 v{vPVa[3]}, 96, v{vPVa[0]}
v_mul_u32_u24 v31, 2560, v{vG}
v_lshl_add_u32 v{vPVa[4]}, v{vI}, 4, v31
""")
for qt in range(5):
    A(f"v_mov_b32 v{S_L+qt}, 0xff800000")

def q_reads(s2):
    out = []
    for qt in range(5):
        out.append(f"ds_read_b128 {vr(QB[s2] + qt*4, 4)}, v{vXR[s2]} offset:{qt*2048}")
    for m in range(4):
        for e in range(2):
            out.append(f"ds_read_b64_tr_b16 {vr(QA[s2] + m*4 + e*2, 2)}, v{vW[m]} offset:{(32*s2 + 4*e) * 512}")
    return out

def q_mfma(s2, first):
    out = []
    for m in range(4):
        for qt in range(5):
            acc = vr(QACC + (m*5 + qt) * 4, 4)
            out.append(f"v_mfma_f32_16x16x32_bf16 {acc}, {vr(QA[s2] + m*4, 4)}, {vr(QB[s2] + qt*4, 4)}, {'0' if first else acc}")
    return out

for s in range(7):
    A(f"s_waitcnt vmcnt({vm.wait(f'st{s}')})")
    if s == 0:
        stamp(7, 3)
    A("s_barrier")
    if s <= 3:
        stamp(8 + s, 3)
    if s == 0:
        stamp(3)
    d = []
    if 0 <= s <= 4:
        d = stage_dma(s + 2)
    if s == 6:
        kl = k_lines(0) + k_lines(1) + v_lines(0) + k_lines(2)
        d = [only_S(kl[2*j] + kl[2*j + 1]) for j in range(8)]
    upd = []
    if s < 6:
        dl = STG[(s + 1) % 3] - STG[s % 3]
        upd = [[f"s_mov_b32 {sT1}, {dl & 0xffffffff}", f"v_add_u32 v{vW[0]}, {sT1}, v{vW[0]}"]] + \
              [f"v_add_u32 v{r}, {sT1}, v{r}" for r in vW[1:] + vXR]
    if s >= 1:
        if s == 6:
            weave(q_mfma(1, False), d[:4] + q_reads(0) + d[4:7])
        else:
            weave(q_mfma(1, False), q_reads(0) + d[:7])
        d = d[7:]
    else:
        weave(q_reads(0), [])
    A("s_waitcnt lgkmcnt(0)")
    if s == 0:
        weave(q_mfma(0, True), q_reads(1) + d + upd)
    else:
        weave(q_mfma(0, False), [[], []] + q_reads(1) + d + upd)
    A("s_waitcnt lgkmcnt(0)")
stamp(4)
A("s_barrier")

def q_out(idx):
    m, qt = divmod(idx, 5)
    a = QACC + idx * 4
    return [f"v_mul_f32 v{a}, {sC}, v{a}", f"v_mul_f32 v{a+1}, {sC}, v{a+1}",
            f"v_mul_f32 v{a+2}, {sC}, v{a+2}", f"v_mul_f32 v{a+3}, {sC}, v{a+3}",
            f"v_cvt_pk_bf16_f32 v{a}, v{a}, v{a+1}", f"v_cvt_pk_bf16_f32 v{a+1}, v{a+2}, v{a+3}",
            f"ds_write_b64 v{vQW[m]}, {vr(a, 2)} offset:{qt*8192}"]
for j, mf in enumerate(q_mfma(1, False)):
    A(mf)
    if j >= 3:
        run(q_out(j - 3))
for j in range(17, 20):
    run(q_out(j))
A(f"s_cmp_ge_u32 {sW}, 4")
A("s_cbranch_scc1 L_PV")


def wo_addr():
    A(f"""
    v_bfe_u32 v13, v0, 4, 1
    s_lshl_b32 {sT0}, {sQH}, 1
    v_or_b32 v13, {sT0}, v13
    v_lshlrev_b32 v13, 1, v13
    v_and_b32 v14, 7, v0
    v_xor_b32 v13, v13, v14
    v_lshrrev_b32 v14, 3, v0
    s_lshl_b32 {sT0}, {sW}, 3
    v_add_u32 v14, {sT0}, v14
    v_mul_u32_u24 v14, 896, v14
    v_lshl_add_u32 v{vWOD}, v13, 4, v14
    """)

def wo_dma(j, v):
    out = []
    for t in range(8):
        out.append(dma([f"s_add_u32 m0, {sW1K}, {WSL[j] + t*4096}",
                        f"s_add_u32 {sT0}, {sWOO}, {t*28672 + j*128}",
                        f"buffer_load_dwordx4 v{vWOD}, {sWO}, {sT0} offen{WOF} lds"], f"wo{j}", v))
    return out


def gen_role(role):
    S = role == "S"
    R = role
    vm = VM(63)
    lg = VM(15)
    tr = ["entry", "pro"]

    def seg(n):
        A.seg(f"{R}_{n}")
        tr.append(f"{R}_{n}")

    def k_dma(i):
        return [dma(l, f"K{i}", vm) for l in k_lines(i)]

    def v_dma(t):
        return [dma(l, f"V{t}", vm) for l in v_lines(t)]

    def lds(line, tag):
        def f():
            A(line)
            lg.issue(tag)
        return f

    def fst(i, k):
        if i == OPT["fine"]:
            stamp(k, 2)

    def kread(i, s):
        return lds(f"ds_read_b128 {vr(S_KF + (s & 3)*4, 4)}, v{vKA[s & 1]} offset:{(i & 3)*16384 + (s >> 1)*2048}", f"kf{s}")

    def s_mfma(i, s, qt):
        acc = vr(S_S[i & 1] + qt*4, 4)
        c = acc if s else ("0" if i == 0 else vr(S_NM + qt*4, 4))
        return f"v_mfma_f32_16x16x32_bf16 {acc}, {vr(S_KF + (s & 3)*4, 4)}, {vr(S_Q + (qt*8 + s)*4, 4)}, {c}"

    def end_wait(i):
        need = [t for t in (f"K{i+1}", f"V{i}") if vm.has(t)]
        if need:
            last = max(need, key=lambda t: max(k for k, x in enumerate(vm.q) if x == t))
            A(f"s_waitcnt vmcnt({vm.wait(last)}) lgkmcnt(0)")
        else:
            A("s_waitcnt lgkmcnt(0)")
        lg.clear()

    seg("i0")
    if S:
        for t in ["K0"]*4 + ["K1"]*4 + ["V0"]*4 + ["K2"]*4:
            vm.issue(t)
        if OPT["prio"]:
            A(f"s_setprio {OPT['prio']}")
        A(f"s_waitcnt vmcnt({vm.wait('K0')}) lgkmcnt(0)")
        A("s_barrier")
        stamp(5)
        def grp(s):
            return [kread(0, s)] + [lds(f"ds_read_b128 {vr(S_Q + (qt*8 + s)*4, 4)}, v{vQL[s & 1]} offset:{qt*8192 + (s >> 1)*2048}", f"kf{s}")
                                    for qt in range(5)]
        run(grp(0) + grp(1))
        for s in range(8):
            A(f"s_waitcnt lgkmcnt({lg.wait(f'kf{s}')})")
            weave([s_mfma(0, s, qt) for qt in range(5)], grp(s + 2) if s + 2 < 8 else [], per=2)
    else:
        A("L_PV:")
        for j in range(4):
            A(f"v_mov_b32 v{vVB[j]}, v{vPVa[j]}")
            A(f"v_subrev_u32 v{vOW[j]}, 40960, v{vQW[j]}")
        A(f"v_mov_b32 v{vPR}, v{vPVa[4]}")
        A("s_waitcnt lgkmcnt(0)")
        A("s_barrier")
        stamp(5)
        A(f"""
        s_cmp_lg_u32 {sW}, 4
        s_cbranch_scc1 L_noreg
        s_getreg_b32 {sT0}, hwreg(HW_REG_XCC_ID)
        s_and_b32 {sT0}, {sT0}, 15
        s_mul_i32 {sT1}, {sT0}, {sT0}
        s_lshl_b32 {sT1}, {sT1}, 18
        s_lshl_b32 {sT0}, {sT0}, 8
        s_add_u32 {sT0}, {sT0}, {sT1}
        s_add_u32 {sT0}, {sT0}, 1
        v_mov_b32 v23, 0
        v_mov_b32 v22, {sT0}
        s_lshl_b32 {sT1}, {sB}, 5
        s_mov_b64 exec, 1
        buffer_atomic_add v22, v23, {sDBG}, {sT1} offen
        s_mov_b64 exec, -1
        L_noreg:
        """)
    vm_join = list(vm.q)
    seg("join")
    A(f"L_{R}_join:")
    if S:
        SS = S_S[0]
        for qt in range(5):
            a = SS + qt*4; t = S_KF + qt*2
            A(f"v_max3_f32 v{t}, v{a}, v{a+1}, v{S_L+qt}")
            A(f"v_max3_f32 v{t}, v{a+2}, v{a+3}, v{t}")
            A(f"v_mov_b32 v{t+1}, v{t}")
        for qt in range(5):
            t = S_KF + qt*2
            A(f"v_permlane32_swap_b32 v{t}, v{t+1}")
        for qt in range(5):
            t = S_KF + qt*2
            A(f"v_max_f32 v{t}, v{t}, v{t+1}")
            A(f"v_mov_b32 v{t+1}, v{t}")
        for qt in range(5):
            t = S_KF + qt*2
            A(f"v_permlane16_swap_b32 v{t}, v{t+1}")
        for qt in range(5):
            t = S_KF + qt*2
            A(f"v_max_f32 v{t}, v{t}, v{t+1}")
            A(f"ds_write_b32 v{vMX}, v{t} offset:{qt*128}")
        A("s_waitcnt lgkmcnt(0)")
        A("s_barrier")
        A(f"v_and_b32 v5, 0xfffffffb, v{vMX}")
        for qt in range(5):
            A(f"ds_read_b64 {vr(S_KF + qt*2, 2)}, v5 offset:{qt*128}")
        run(v_dma(1) + v_dma(2))
        for qt in range(5):
            t = S_KF + qt*2
            A(f"s_waitcnt lgkmcnt({4 - qt})")
            A(f"v_max_f32 v{t}, v{t}, v{t+1}")
            for r in range(4):
                A(f"v_sub_f32 v{S_NM + qt*4 + r}, 0, v{t}")
            for r in range(4):
                A(f"v_sub_f32 v{SS + qt*4 + r}, v{SS + qt*4 + r}, v{t}")
        end_wait(0)
        A("s_barrier")
    else:
        A("s_barrier")
        A("s_barrier")

    def softmax_fill(j):
        SS = S_S[j & 1]; buf = j & 1
        out = []
        for qt in range(5):
            a = SS + qt*4
            t0, t1 = (S_T[0], S_T[1]) if qt % 2 == 0 else (S_T[2], S_T[3])
            ex = [(2, f"v_exp_f32 v{a+r}, v{a+r}") for r in range(4)]
            wr = lds(f"ds_write_b64 v{vPW}, {vr(a, 2)} offset:{P_BUF + buf*10240 + qt*256}", "pw")
            post = [(1, f"v_add_f32 v{t0}, v{a}, v{a+1}"), (1, f"v_add_f32 v{t1}, v{a+2}, v{a+3}"),
                    (1, f"v_cvt_pk_bf16_f32 v{a}, v{a}, v{a+1}"), (1, f"v_cvt_pk_bf16_f32 v{a+1}, v{a+2}, v{a+3}"),
                    (1, f"v_add_f32 v{t0}, v{t0}, v{t1}"), (1, wr),
                    (1, f"v_mov_b32 v{S_L+qt}, v{t0}" if j == 0 else f"v_add_f32 v{S_L+qt}, v{S_L+qt}, v{t0}")]
            out.append((ex, post))
        seq = list(out[0][0])
        for qt in range(5):
            if qt + 1 < 5:
                e = out[qt + 1][0]; p = out[qt][1]
                seq += [e[0], p[0], p[1], e[1], p[2], p[3], e[2], p[4], p[5], e[3], p[6]]
            else:
                seq += out[qt][1]
        return seq

    def s_interval(i):
        fill = softmax_fill(i - 1)
        def fput(n):
            while fill and n >= fill[0][0]:
                c, it = fill.pop(0)
                n -= c
                put(it)
        fst(i, 3)
        if i <= 31:
            for s in range(4):
                put(kread(i, s))
            d = []
            if i == 1:
                d += k_dma(3)
            if i + 3 <= 31:
                d += k_dma(i + 3)
            if i == 29:
                d += [wo_addr] + wo_dma(0, vm)[:4]
            if i == 30:
                d += wo_dma(0, vm)[4:] + wo_dma(2, vm)[4:]
            if i == 31:
                d += wo_dma(1, vm)[:4] + wo_dma(3, vm)[:4]
            for f in d:
                f()
                fput(OPT["pre"])
            for s in range(8):
                A(f"s_waitcnt lgkmcnt({lg.wait(f'kf{s}')})")
                if s == 0:
                    fst(i, 4)
                    if OPT.get("dprio"):
                        A("s_setprio 2")
                for qt in range(5):
                    A(s_mfma(i, s, qt))
                    if qt == 1 and 1 <= s <= 4:
                        put(kread(i, s + 3))
                        fput(1)
                    elif qt == 4:
                        fput(1)
                    else:
                        fput(2)
            if OPT.get("dprio"):
                A("s_setprio 0")
            fst(i, 5)
        fput(1000)
        fst(i, 6)
        if i == 32:
            run(wo_dma(1, vm)[4:] + wo_dma(3, vm)[4:])
        end_wait(i)
        fst(i, 7)
        A("s_barrier")
        fst(i, 8)

    def vt_reads(t):
        pos = (t + 3) & 3
        out = []
        for dt in range(4):
            for e in range(2):
                out.append(f"ds_read_b64_tr_b16 {vr(VT[t & 1] + dt*4 + e*2, 2)}, v{vVB[dt]} offset:{pos*16384 + 4*e*128}")
        return out

    def oacc(qt, dt):
        return O_ACC + (qt*4 + dt)*4

    def pv_mfma(t, own, P, first):
        out = []
        for j in range(5):
            qt = j if own else 5 + j
            for dt in range(4):
                acc = vr(oacc(qt, dt), 4)
                out.append(f"v_mfma_f32_16x16x32_bf16 {acc}, {vr(VT[t & 1] + dt*4, 4)}, {vr(P + j*4, 4)}, {'0' if first else acc}")
        return out

    def send(j):
        out = []
        for dp in range(2):
            a = oacc(5 + j, dp*2)
            out.append([f"v_cvt_pk_bf16_f32 v{a+k}, v{a+2*k}, v{a+2*k+1}" for k in range(4)])
            out.append(dma([f"s_add_u32 {sT0}, {sT2}, {(j*2 + dp)*1024}",
                            f"buffer_store_dwordx4 {vr(a, 4)}, v17, {sWS}, {sT0} offen"], "snd", vm))
        return out

    def pv_interval(i):
        if i == 1:
            run(vt_reads(0))
            if OPT.get("dprio"):
                A("s_setprio 1")
            A(f"v_lshlrev_b32 v17, 4, v0")
            A(f"s_lshl_b32 {sXTC}, {sDQ}, 10")
            A(f"s_add_u32 {sXTC}, {sXTC}, {sXS}")
            if OPT["vpv"]:
                A(f"s_add_u32 {sVO}, {sKV0}, {3*16384}")
                run(v_dma(3))
            A("s_waitcnt lgkmcnt(0)")
            A("s_barrier")
            return
        t = i - 2; buf = t & 1
        fst(i, 3)
        pa = [f"ds_read_b128 {vr(P_A + j*4, 4)}, v{vPR} offset:{P_BUF + buf*10240 + (5 + j)*256}" for j in range(5)]
        pb = [f"ds_read_b128 {vr(P_B + j*4, 4)}, v{vPR} offset:{P_BUF + buf*10240 + j*256}" for j in range(5)]
        if t >= 1:
            e = []
            fl = [pa[0], e, pa[1], e, pa[2], e, pa[3], e, pa[4], e, pb[0], e, pb[1], e, pb[2], e, e, e, e, pb[3]]
            weave(pv_mfma(t - 1, 1, P_B, t == 1), fl)
        else:
            run(pa + pb[:4])
        fst(i, 4)
        if OPT["vpv"]:
            if i + 2 <= 31:
                run(v_dma(i + 2))
            if vm.has(f"V{t+1}"):
                A(f"s_waitcnt vmcnt({vm.wait(f'V{t+1}')})")
            if i == 28:
                A(f"""
                s_cmp_lg_u32 {sW}, 4
                s_cbranch_scc1 L_rg1
                v_mov_b32 v23, 0 ; cond
                s_lshl_b32 {sT1}, {sB}, 5 ; cond
                buffer_load_dword v22, v23, {sDBG}, {sT1} offen sc1 ; cond
                L_rg1:
                """)
            if i == 32:
                A(f"""
                s_cmp_lg_u32 {sW}, 4
                s_cbranch_scc1 L_regdone
                s_getreg_b32 {sT2}, hwreg(HW_REG_XCC_ID)
                s_and_b32 {sT2}, {sT2}, 15
                s_mul_i32 {sT1}, {sT2}, {sT2}
                s_lshl_b32 {sT1}, {sT1}, 23
                s_lshl_b32 {sT2}, {sT2}, 13
                s_add_u32 {sT2}, {sT2}, {sT1}
                s_add_u32 {sT2}, {sT2}, 32
                s_lshl_b32 {sT1}, {sB}, 5
                s_mov_b32 {sCNT}, 0x40000
                v_mov_b32 v23, 0
                L_regpoll:
                v_readfirstlane_b32 {sT0}, v22
                s_sub_u32 {sCNT}, {sCNT}, 1
                s_cmp_eq_u32 {sCNT}, 0
                s_cbranch_scc1 L_regok
                s_and_b32 {sT3}, {sT0}, 0xff
                s_cmp_ge_u32 {sT3}, 32
                s_cbranch_scc1 L_regok
                s_sleep 8
                buffer_load_dword v22, v23, {sDBG}, {sT1} offen sc1
                s_waitcnt vmcnt(0)
                s_branch L_regpoll
                L_regok:
                s_cmp_eq_u32 {sT0}, {sT2}
                s_cselect_b32 {sLOC}, {0 if OPT.get("noloc") else 1}, 0
                v_mov_b32 v23, {ST_M + 1024}
                v_mov_b32 v22, {sLOC}
                s_waitcnt lgkmcnt(0)
                ds_write_b32 v23, v22
                s_waitcnt lgkmcnt(0)
                L_regdone:
                """)
            TS = OPT["ts"]
            if OPT["xtouch"] and TS and i == OPT["xt0"]:
                per = 64 * TS
                tot = XCH_BYTES if OPT.get("tall") else 40960
                n = -(-tot // (4 * per))
                A(f"v_mul_u32_u24 v16, {TS}, v0")
                A(f"s_add_u32 m0, {sW1K}, {SCR}")
                A(f"s_mul_i32 {sXTC}, {sDQ}, {per}")
                A(f"s_add_u32 {sXTC}, {sXTC}, {sXS}")
                for k in range(n):
                    put(dma([f"buffer_load_dword v16, {sWS}, {sXTC} offen{XTF} lds", f"s_add_u32 {sXTC}, {sXTC}, {4*per}"], "tch", vm))
                A(f"s_add_u32 {sXTC}, {sXS}, {XST}")
                put(dma([f"buffer_load_dword v16, {sWS}, {sXTC} offen{XTF} lds"], "tch", vm))
            nx = {OPT["xt0"]: 3, OPT["xt0"] + 1: 4, OPT["xt0"] + 2: 4}.get(i, 0) if (OPT["xtouch"] and not TS) else 0
            if nx:
                A(f"s_add_u32 m0, {sW1K}, {SCR}")
            for k in range(nx):
                if i == OPT["xt0"] + 2 and k == 3:
                    A(f"s_and_b32 {sXTC}, {sW1K}, 1024")
                    A(f"s_add_u32 {sXTC}, {sXTC}, {sXS}")
                    A(f"s_add_u32 {sXTC}, {sXTC}, {XST}")
                else:
                    A("s_nop 0")
                put(dma([f"buffer_load_dwordx4 v17, {sWS}, {sXTC} offen{XTF} lds", f"s_add_u32 {sXTC}, {sXTC}, 4096"], "tch", vm))
        A("s_waitcnt lgkmcnt(4)")
        fst(i, 5)
        d = []
        if i == OPT["wwarm"]:
            d = [[f"s_mul_i32 {sT1}, s2, 14336", f"s_lshl_b32 {sT2}, {sDQ}, 10", f"s_add_u32 {sT1}, {sT1}, {sT2}",
                  f"s_add_u32 m0, {sW1K}, {SCR}"]]
            for k in range(4):
                d.append(dma([f"buffer_load_dwordx4 v17, {sWO}, {sT1} offen lds", f"s_add_u32 {sT1}, {sT1}, 4096"], f"X{i}", vm))
        if i == OPT["touch"]:
            d = [[f"v_lshrrev_b32 v16, 2, v0", f"v_mul_u32_u24 v16, 896, v16", f"v_and_b32 v18, 3, v0",
                  f"v_lshl_add_u32 v16, v18, 7, v16",
                  f"s_lshl_b32 {sT1}, {sHALF}, 2", f"s_add_u32 {sT1}, {sT1}, {sDQ}", f"s_mul_i32 {sT1}, {sT1}, {32*896}",
                  f"s_add_u32 {sT1}, {sT1}, {sWOO}", f"s_add_u32 {sT2}, {sT1}, {16*896}"],
                 dma([f"s_add_u32 m0, {sW1K}, {SCR - 384}", "s_nop 0", f"buffer_load_dword v16, {sWO}, {sT1} offen offset:384 lds"], "tch", vm),
                 dma([f"buffer_load_dword v16, {sWO}, {sT2} offen offset:384 lds"], "tch", vm)]
        vt = vt_reads(t + 1) if t + 1 <= 31 else []
        if i == 33:
            d = [[f"s_mul_i32 {sT3}, {sDQ}, 10240", f"s_add_u32 {sT2}, {sXS}, {sT3}"], [], [], []]
            for j in range(5):
                d += send(j)
        weave(pv_mfma(t, 0, P_A, t == 0), [[], []] + vt[:2] + [pb[4]] + vt[2:] + d)
        fst(i, 6)
        A("s_waitcnt lgkmcnt(0)")
        fst(i, 7)
        A("s_barrier")
        fst(i, 8)

    interval = s_interval if S else pv_interval
    seg("g0")
    for i in range(1, 4):
        interval(i)
    stamp(6)
    A(f"s_mov_b32 {sCNT}, 6")
    vm.q = [t for t in vm.q if t[0] != "X"]
    q_before = list(vm.q)
    seg("loop")
    A(f"L_{R}_loop:")
    for i in range(4, 8):
        interval(i)
    A(f"s_sub_u32 {sCNT}, {sCNT}, 1")
    A(f"s_cmp_lg_u32 {sCNT}, 0")
    A(f"s_cbranch_scc1 L_{R}_loop")
    sh = lambda q, d: [t[0] + str(int(t[1:]) + d) for t in q]
    while vm.q and vm.q[0][0] == 'X':
        vm.q.pop(0)
    assert sh(q_before, 4) == vm.q, (q_before, vm.q)
    vm.q = sh(vm.q, 20)
    tr.append(f"{R}_loop")
    seg("gl")
    stamp(7)
    for i in range(28, 33):
        interval(i)
    if S:
        if OPT["prio"]:
            A("s_setprio 0")
        run(wo_dma(2, vm)[:4])
        T = S_KF + 4
        for qt in range(5):
            A(f"v_mov_b32 v{T + qt}, v{S_L + qt}")
        for qt in range(5):
            A(f"v_permlane32_swap_b32 v{T + qt}, v{S_L + qt}")
        for qt in range(5):
            A(f"v_add_f32 v{S_L + qt}, v{S_L + qt}, v{T + qt}")
            A(f"v_mov_b32 v{T + qt}, v{S_L + qt}")
        for qt in range(5):
            A(f"v_permlane16_swap_b32 v{T + qt}, v{S_L + qt}")
        A(f"v_add_u32 v5, {(ST_L - MX_OFF) & 0xffffffff}, v{vMX}")
        A(f"v_subrev_u32 v6, {MX_OFF}, v{vMX}")
        A(f"v_lshrrev_b32 v6, 3, v6")
        A(f"v_lshlrev_b32 v6, 2, v6")
        A(f"v_add_u32 v6, {ST_M}, v6")
        for qt in range(5):
            A(f"v_add_f32 v{S_L + qt}, v{S_L + qt}, v{T + qt}")
            A(f"ds_write_b32 v5, v{S_L + qt} offset:{qt*128}")
            A(f"ds_write_b32 v6, v{S_NM + qt*4} offset:{qt*64}")
        A(f"""
        v_and_b32 v17, 15, v0
        v_lshlrev_b32 v17, 4, v17
        s_add_u32 {sT2}, {sXS}, {XST}
        s_cmp_eq_u32 {sQH}, 1
        s_cselect_b32 {sT1}, 0, 0x7fff0000
        v_add_u32 v17, {sT1}, v17
        s_lshl_b32 {sT1}, {sKH}, 2
        s_add_u32 {sT1}, {sT1}, {sT2}
        """)
        for qt in range(5):
            put(dma([f"buffer_store_dword v{S_L + qt}, v17, {sWS}, {sT1} offen offset:{qt*256 + 4}"], "sst", vm))
            put(dma([f"buffer_store_dword v{S_NM + qt*4}, v17, {sWS}, {sT2} offen offset:{qt*256}"], "sst", vm))
        A("s_waitcnt lgkmcnt(0)")
        A("s_barrier")
    else:
        pv_interval(33)

    seg("post")
    stamp(8)
    A(f"""
    v_lshlrev_b32 v17, 3, v0
    v_min_u32 v18, 31, v0
    v_lshlrev_b32 v18, 3, v18
    v_add_u32 v17, {ST_L}, v17
    v_add_u32 v18, {ST_L}, v18
    ds_read_b64 v[76:77], v17
    ds_read_b64 v[82:83], v17 offset:512
    ds_read_b64 v[78:79], v18 offset:1024
    v_mov_b32 v17, {ST_M + 1024}
    ds_read_b32 v80, v17
    """)
    chk = f"""
    s_waitcnt lgkmcnt(0)
    v_readfirstlane_b32 {sLOC}, v80
    v_add_f32 v76, v76, v77
    v_add_f32 v82, v82, v83
    v_add_f32 v78, v78, v79
    v_cmp_ge_f32 s[50:51], {sLIM}, v76
    v_cmp_ge_f32 s[52:53], {sLIM}, v82
    v_cmp_ge_f32 s[54:55], {sLIM}, v78
    s_and_b64 s[50:51], s[50:51], s[52:53]
    s_and_b64 s[50:51], s[50:51], s[54:55]
    s_cmp_eq_u64 s[50:51], -1
    s_cbranch_scc1 L_{R}_ok
    s_cmp_eq_u32 {sRETRY}, 0
    s_cbranch_scc1 L_{R}_fallback
    """
    if not S:
        mf = pv_mfma(31, 1, P_B, False)
        run(mf[:6])
    A(chk)
    seg("ok")
    A(f"L_{R}_ok:")

    def signal_wait(flag_word, poll_addr_code, nlanes, lab, agent=0):
        A(f"""
        s_cmp_lg_u32 {sW}, {agent}
        s_cbranch_scc1 L_{lab}_done
        v_mov_b32 v28, 1
        s_lshl_b32 {sT1}, {sHQ}, 2
        s_add_u32 {sT1}, {sT1}, {flag_word}
        v_mov_b32 v27, {sT1}
        {poll_addr_code}
        s_mov_b32 {sCNT}, 0x40000
        s_mov_b64 exec, 1
        s_cmp_eq_u32 {sLOC}, 1
        s_cbranch_scc1 L_{lab}_loc
        buffer_wbl2 sc1
        s_waitcnt vmcnt(0)
        buffer_store_dword v28, v27, {sWS}, {sFLG} offen sc1
        s_branch L_{lab}_sent
        L_{lab}_loc:
        buffer_store_dword v28, v27, {sWS}, {sFLG} offen{YF if lab == "fx" else ""}
        L_{lab}_sent:
        s_mov_b64 exec, {hex((1 << nlanes) - 1)}
        L_{lab}_poll:
        buffer_load_dword v30, v29, {sWS}, {sT2} offen sc1
        s_waitcnt vmcnt(0)
        v_cmp_ne_u32 vcc, 1, v30
        s_sub_u32 {sCNT}, {sCNT}, 1
        s_cmp_eq_u32 {sCNT}, 0
        s_cbranch_scc1 L_{lab}_got
        s_cmp_eq_u64 vcc, 0
        s_cbranch_scc1 L_{lab}_got
        s_sleep {OPT["slp"]}
        s_branch L_{lab}_poll
        L_{lab}_got:
        s_mov_b64 exec, -1
        s_cmp_eq_u32 {sLOC}, 1
        s_cbranch_scc1 L_{lab}_done
        buffer_inv sc1
        s_waitcnt vmcnt(0)
        L_{lab}_done:
        """)

    def oa_addr():
        A(f"""
        v_and_b32 v16, 15, v0
        v_lshrrev_b32 v17, 4, v0
        v_lshrrev_b32 v18, 2, v16
        v_lshl_add_u32 v20, v17, 3, v18
        v_lshlrev_b32 v20, 7, v20
        v_and_b32 v21, 3, v0
        v_lshl_add_u32 v20, v21, 3, v20
        v_lshrrev_b32 v18, 1, v18
        v_and_b32 v21, 1, v17
        v_lshl_add_u32 v18, v21, 1, v18
        v_xor_b32 v18, {sDQ}, v18
        v_lshl_add_u32 v{vOA[0]}, v18, 5, v20
        v_add_u32 v{vOA[1]}, 0x10000, v{vOA[0]}
        v_add_u32 v{vOA[2]}, 0x20000, v{vOA[0]}
        s_lshl_b32 {sT1}, {sDQ}, 9
        s_cmp_eq_u32 {sLOC}, 1
        s_cselect_b32 {sPA}, {sPART if OPT.get("gsc1") else sXR}, {sPART}
        s_add_u32 {sPA}, {sPA}, {sT1}
        v_lshrrev_b32 v18, 1, v17
        v_lshlrev_b32 v18, 8, v18
        v_lshl_add_u32 v18, v16, 4, v18
        v_mul_u32_u24 v22, 14336, v21
        v_xor_b32 v13, 64, v{vA0}
        v_add_u32 v14, v22, v18
        v_lshl_add_u32 v15, v21, 3, v18
        """)
    vOBx = [vA0, 13]; vS4, vS2 = 14, 15
    SA = 128
    def sa_reads(j):
        out = []
        for ks in range(8):
            for e in range(2):
                off = WSL[j] + (32*ks + 4*e) * 128
                out.append(f"ds_read_b64_tr_b16 {vr(SA + j*32 + ks*4 + e*2, 2)}, v{vOA[off >> 16]} offset:{off & 0xffff}")
        return out

    if S:
        A(f"s_lshl_b32 {sT0}, {sW}, 6")
        A(f"v_add_u32 v23, {sT0}, v0")
        oa_addr()
    else:
        A(f"""
        v_lshlrev_b32 v17, 4, v0
        v_and_b32 v16, 15, v0
        v_lshlrev_b32 v14, 4, v16
        v_lshlrev_b32 v18, 3, v16
        v_lshlrev_b32 v16, 2, v16
        v_add_u32 v15, {ST_L}, v18
        v_add_u32 v16, {ST_M}, v16
        """)
        run(mf[6:])
        for qt in range(5):
            A(f"ds_read_b64 {vr(76 + qt*4, 2)}, v15 offset:{qt*128}")
            A(f"ds_read_b32 v{78 + qt*4}, v16 offset:{qt*64}")
    stamp(3, 4)
    A("s_waitcnt vmcnt(0)")
    vm.clear()
    A("s_barrier")
    stamp(4, 4)
    if S:
        run(sa_reads(0) + sa_reads(1) + sa_reads(3))
        A("s_waitcnt lgkmcnt(0)")
    else:
        signal_wait(64, f"v_mov_b32 v29, v27\n s_xor_b32 {sT2}, {sFLG}, 128", 1, "px", agent=4)
    A("s_barrier")
    stamp(5, 4); stamp(3, 5)
    if not S:
        RB = oacc(5, 0)
        A(f"""
        s_add_u32 {sT0}, {sXR}, {XST}
        s_add_u32 {sT2}, {sXR}, {sT3}
        """)
        for qt in range(5):
            A(f"buffer_load_dwordx3 {vr(56 + qt*4, 3)}, v14, {sWS}, {sT0} offen offset:{qt*256} sc1")
            vm.issue("ps")
        for n in range(10):
            A(f"s_add_u32 {sT0}, {sT2}, {n*1024}")
            A(f"buffer_load_dwordx4 {vr(RB + n*4, 4)}, v17, {sWS}, {sT0} offen sc1")
            vm.issue(f"x{n}")
        A("s_barrier")
        stamp(4, 5)
        A(f"s_waitcnt vmcnt({vm.wait('ps')}) lgkmcnt(0)")
        stamp(5, 5)
        if OPT["stamps"] == 5:
            A("s_waitcnt vmcnt(0)")
            stamp(6, 5)
        for qt in range(5):
            l0, l1, nm = 76 + qt*4, 77 + qt*4, 78 + qt*4
            pn, pl = 56 + qt*4, 57 + qt*4
            A(f"""
            v_add_f32 v{pl}, v{pl}, v{pl+1}
            v_add_f32 v{l0}, v{l0}, v{l1}
            v_sub_f32 v{l1}, v{nm}, v{pn}
            v_sub_f32 v{nm}, v{pn}, v{nm}
            v_exp_f32 v{l1}, v{l1}
            v_exp_f32 v{nm}, v{nm}
            v_fma_f32 v{l1}, v{l1}, v{pl}, v{l0}
            v_fma_f32 v{nm}, v{nm}, v{l0}, v{pl}
            v_rcp_f32 v{l1}, v{l1}
            v_rcp_f32 v{nm}, v{nm}
            """)
        for qt in range(5):
            w1, w2 = 77 + qt*4, 78 + qt*4
            for dt in range(4):
                a = oacc(qt, dt); r = RB + (qt*2 + dt//2)*4 + (dt & 1)*2
                for k in range(4):
                    A(f"v_mul_f32 v{a+k}, v{w1}, v{a+k}")
                if dt % 2 == 0:
                    A(f"s_waitcnt vmcnt({vm.wait(f'x{qt*2 + dt//2}')})")
                A(f"v_lshlrev_b32 v24, 16, v{r}")
                A(f"v_and_b32 v25, 0xffff0000, v{r}")
                A(f"v_lshlrev_b32 v26, 16, v{r+1}")
                A(f"v_and_b32 v27, 0xffff0000, v{r+1}")
                for k in range(4):
                    A(f"v_fmac_f32 v{a+k}, v{w2}, v{24+k}")
                A(f"v_cvt_pk_bf16_f32 v{a}, v{a}, v{a+1}")
                A(f"v_cvt_pk_bf16_f32 v{a+1}, v{a+2}, v{a+3}")
                A(f"ds_write_b64 v{vOW[dt]}, {vr(a, 2)} offset:{qt*8192}")
    else:
        run(sa_reads(2))
        A("s_waitcnt lgkmcnt(0)")
        A("s_barrier")
        run(wo_dma(4, vm) + wo_dma(5, vm) + wo_dma(6, vm))
    if S and OPT["xtouch"] and not OPT.get("gsc1") and not OPT.get("tall"):
        A(f"v_lshlrev_b32 v17, 4, v0")
        A(f"s_add_u32 {sT0}, {sXR}, {sW1K}")
        for k in range(8):
            A(f"s_add_u32 {sT1}, {sT0}, {40960 + k*4096}")
            put(dma([f"buffer_load_dwordx4 v[8:11], v17, {sWS}, {sT1} offen{XTF}"], "tch", vm))
    stamp(7, 5)
    def y_out(acc, slot):
        out = []
        co = slot * 2048
        for pr in range(2):
            a = acc + pr*8; b = a + 4
            out.append([f"v_cvt_pk_bf16_f32 v{a}, v{a}, v{a+1}", f"v_cvt_pk_bf16_f32 v{a+1}, v{a+2}, v{a+3}"])
            out.append([f"v_cvt_pk_bf16_f32 v{a+2}, v{b}, v{b+1}", f"v_cvt_pk_bf16_f32 v{a+3}, v{b+2}, v{b+3}"])
            out.append(f"s_add_u32 {sT1}, {sPA}, {co + pr*2*14336}")
            out.append([f"v_permlane16_swap_b32 v{a}, v{a+2}", f"v_permlane16_swap_b32 v{a+1}, v{a+3}"])
            out.append(f"buffer_store_dwordx4 {vr(a, 4)}, v{vS4}, {sWS}, {sT1} offen{YF}")
        a = acc + 16
        out.append([f"v_cvt_pk_bf16_f32 v{a}, v{a}, v{a+1}", f"v_cvt_pk_bf16_f32 v{a+1}, v{a+2}, v{a+3}"])
        out.append([f"s_add_u32 {sT1}, {sPA}, {co + 4*14336}", f"buffer_store_dwordx2 {vr(a, 2)}, v{vS2}, {sWS}, {sT1} offen{YF}"])
        return out

    lg.clear()
    if S:
        stamp(8, 5)
        A("s_barrier")
        stamp(9); stamp(6, 4); stamp(9, 5)
        SB, NB, SACC = 24, 6, 48
        seq = [(ps, ks, qt) for ps in range(2) for ks in range(8) for qt in range(5)]
        def bread(n):
            ps, ks, qt = seq[n]
            return lds(f"ds_read_b128 {vr(SB + (n % NB)*4, 4)}, v{vOBx[ks & 1]} offset:{qt*8192 + (ks >> 1)*2048}", f"b{n}")
        for n in range(NB - 1):
            put(bread(n))
        fill = []
        for n, (ps, ks, qt) in enumerate(seq):
            if n == 42:
                fill = y_out(SACC, 0) + y_out(SACC + 20, 1)
            if n == OPT["z4"]:
                A(f"s_waitcnt vmcnt({vm.wait('wo6')})")
                A("s_barrier")
            A(f"s_waitcnt lgkmcnt({lg.wait(f'b{n}')})")
            for tl in range(2):
                j = ps*2 + tl
                acc = vr(SACC + j*20 + qt*4, 4)
                A(f"v_mfma_f32_16x16x32_bf16 {acc}, {vr(SA + j*32 + ks*4, 4)}, {vr(SB + (n % NB)*4, 4)}, {'0' if ks == 0 else acc}")
                if tl == 0 and n + NB - 1 < len(seq):
                    put(bread(n + NB - 1))
                elif fill:
                    put(fill.pop(0))
        run(fill)
        run(y_out(SACC + 40, 2) + y_out(SACC + 60, 3))
        A(f"v_mov_b32 v12, v23")
    else:
        oa_addr()
        A(f"s_lshl_b32 {sT0}, {sW}, 6")
        A(f"v_add_u32 v12, {sT0}, v0")
        A("s_waitcnt lgkmcnt(0)")
        stamp(8, 5)
        A("s_barrier")
        stamp(9); stamp(6, 4); stamp(9, 5)
        steps = [(r, ks) for r in range(3) for ks in range(8)]
        def a_read(n):
            r, ks = steps[n]
            out = []
            for e in range(2):
                off = WSL[4 + r] + (32*ks + 4*e) * 128
                out.append(lds(f"ds_read_b64_tr_b16 {vr(E_A + (n & 3)*4 + e*2, 2)}, v{vOA[off >> 16]} offset:{off & 0xffff}", f"a{n}"))
            return out
        for ks in range(8):
            for qt in range(5):
                A(f"ds_read_b128 {vr(E_O + (qt*8 + ks)*4, 4)}, v{vOBx[ks & 1]} offset:{qt*8192 + (ks >> 1)*2048}")
        A("s_barrier")
        stamp(10, 5)
        run(a_read(0) + a_read(1))
        fill = []
        for n, (r, ks) in enumerate(steps):
            if ks == 1 and r >= 1:
                fill = y_out(E_ACC[(r - 1) & 1], 4 + r - 1)
            A(f"s_waitcnt lgkmcnt({lg.wait(f'a{n}')})")
            mfs = []
            for qt in range(5):
                acc = vr(E_ACC[r & 1] + qt*4, 4)
                mfs.append(f"v_mfma_f32_16x16x32_bf16 {acc}, {vr(E_A + (n & 3)*4, 4)}, {vr(E_O + (qt*8 + ks)*4, 4)}, {'0' if ks == 0 else acc}")
            rd = a_read(n + 2) if n + 2 < len(steps) else []
            if len(rd) > 2:
                weave(mfs, rd, per=2)
            else:
                weave(mfs, rd + [fill.pop(0) if fill else [] for _ in range(3)])
        run(fill)
        run(y_out(E_ACC[0], 6))
    stamp(10); stamp(7, 4); stamp(11, 5)
    A(f"""
    s_mul_i32 {sT0}, {sHQ}, 280
    v_add_u32 v1, {sT0}, v12
    v_lshrrev_b32 v2, 5, v1
    v_mul_u32_u24 v3, 2341, v2
    v_lshrrev_b32 v3, 16, v3
    v_mul_u32_u24 v4, 28, v3
    v_sub_u32 v4, v2, v4
    v_and_b32 v5, 15, v1
    v_lshl_add_u32 v5, v3, 4, v5
    v_bfe_u32 v6, v1, 4, 1
    v_lshlrev_b32 v6, 4, v6
    v_lshl_add_u32 v6, v4, 5, v6
    v_mul_u32_u24 v7, 896, v5
    v_add_u32 v6, v6, v7
    v_lshlrev_b32 v1, 4, v1
    v_mov_b32 v13, 0x7fffff00
    v_cmp_gt_u32 vcc, 280, v12
    v_cndmask_b32 v1, v13, v1, vcc
    v_cndmask_b32 v6, v13, v6, vcc
    s_waitcnt vmcnt(0)
    s_barrier
    """)
    stamp(8, 4)
    if S:
        signal_wait(0, f"v_lshlrev_b32 v29, 2, v0\n s_mov_b32 {sT2}, {sFLG}", 16, "fx")
        A("s_branch L_red")
    tr.append("red")
    A.trace(tr)
    return vm, vm_join


def gen_fallback(role, vm_join):
    S = role == "S"; R = role
    vm = VM(63)
    tr2 = [f"{R}_gl", f"{R}_post"]
    A.seg(f"{R}_fb"); tr2.append(f"{R}_fb")
    A(f"L_{R}_fallback:")
    A(f"""
    s_mov_b32 {sRETRY}, 1
    s_waitcnt vmcnt(0) lgkmcnt(0)
    s_barrier
    s_mov_b32 {sKO}, {sKV0}
    s_mov_b32 {sCNT}, 32
    """)
    if S:
        for qt in range(5):
            A(f"v_mov_b32 v{S_L+qt}, 0xff800000")
        v_addr()
    def s_tile():
        for hh in range(2):
            for s in range(4*hh, 4*hh + 4):
                A(f"ds_read_b128 {vr(S_KF + (s & 3)*4, 4)}, v{vKA[s & 1]} offset:{(s >> 1)*2048}")
            A("s_waitcnt lgkmcnt(0)")
            for s in range(4*hh, 4*hh + 4):
                for qt in range(5):
                    acc = vr(S_S[0] + qt*4, 4)
                    A(f"v_mfma_f32_16x16x32_bf16 {acc}, {vr(S_KF + (s & 3)*4, 4)}, {vr(S_Q + (qt*8 + s)*4, 4)}, {acc if s else '0'}")
    A.seg(f"{R}_fbl"); tr2 += [f"{R}_fbl", f"{R}_fbl"]
    A(f"L_{R}_fbl:")
    if S:
        run(k_lines(0))
        A("s_waitcnt vmcnt(0)")
        A("s_barrier")
        s_tile()
        for qt in range(5):
            a = S_S[0] + qt*4
            A(f"v_max3_f32 v{S_L+qt}, v{a}, v{a+1}, v{S_L+qt}")
            A(f"v_max3_f32 v{S_L+qt}, v{a+2}, v{a+3}, v{S_L+qt}")
        A("s_barrier")
    else:
        A("s_barrier")
        A("s_barrier")
    A(f"s_sub_u32 {sCNT}, {sCNT}, 1")
    A(f"s_cmp_lg_u32 {sCNT}, 0")
    A(f"s_cbranch_scc1 L_{R}_fbl")
    A.seg(f"{R}_fbe"); tr2 += [f"{R}_fbe", f"{R}_join", f"{R}_g0"]
    if S:
        A(f"s_mov_b32 {sKO}, {sKV0}")
        A(f"s_mov_b32 {sVO}, {sKV0}")
        run(k_lines(0) + k_lines(1) + v_lines(0) + k_lines(2))
        assert vm_join == ["K1"]*4 + ["V0"]*4 + ["K2"]*4, vm_join
        if OPT["prio"]:
            A(f"s_setprio {OPT['prio']}")
        A("s_waitcnt vmcnt(12)")
        A("s_barrier")
        s_tile()
    else:
        A("s_barrier")
    A(f"s_branch L_{R}_join")
    A.trace(tr2)


vmS, joinS = gen_role("S")
gen_fallback("S", joinS)
gen_fallback("PV", None) if False else None
vmP, joinP = gen_role("PV")

D0, AC = 96, 40
A.seg("red")
A("L_red:")
A("s_barrier")
stamp(11); stamp(9, 4)
A(f"""
s_cmp_ge_u32 {sW}, 5
s_cbranch_scc1 L_fin
s_lshl_b32 {sT2}, {sB}, 1
s_add_u32 {sT2}, {sT2}, {sHALF}
s_xor_b32 {sT3}, {sT2}, 1
s_mul_i32 {sT2}, {sT2}, {16*PART_BYTES}
s_mul_i32 {sT3}, {sT3}, {16*XCH_BYTES}
s_add_u32 {sT3}, {sT3}, {XCH_OFF}
s_mov_b32 {sT0}, {PART_BYTES}
s_cmp_eq_u32 {sLOC}, {2 if OPT.get("gsc1") else 1}
s_cselect_b32 {sT2}, {sT3}, {sT2}
s_cselect_b32 {sT0}, {XCH_BYTES}, {sT0}
s_mul_i32 {sT1}, {sHALF}, {80*896}
s_add_u32 {sT1}, {sT1}, {sXO}
""")
for p in range(16):
    A(f"buffer_load_dwordx4 {vr(D0 + p*4, 4)}, v1, {sWS}, {sT2} offen sc1")
    A(f"s_add_u32 {sT2}, {sT2}, {sT0}")
for p in range(16):
    A(f"s_waitcnt vmcnt({15 - p})")
    if p in (0, 15):
        stamp({0: 10, 15: 11}[p], 4)
    for r in range(4):
        d = D0 + p*4 + r
        if p == 0:
            A(f"v_lshlrev_b32 v{AC + 2*r}, 16, v{d}")
            A(f"v_and_b32 v{AC + 2*r + 1}, 0xffff0000, v{d}")
        else:
            A(f"v_lshlrev_b32 v{24 + 2*r}, 16, v{d}")
            A(f"v_and_b32 v{25 + 2*r}, 0xffff0000, v{d}")
    if p:
        for r in range(8):
            A(f"v_add_f32 v{AC + r}, v{AC + r}, v{24 + r}")
for r in range(4):
    A(f"v_cvt_pk_bf16_f32 v{20 + r}, v{AC + 2*r}, v{AC + 2*r + 1}")
A(f"buffer_store_dwordx4 v[20:23], v6, {sOUT}, {sT1} offen")
A("L_fin:")
if OPT["stamps"]:
    A("s_waitcnt vmcnt(0)")
    stamp(12)
    A("s_memrealtime s[58:59]")
    A("s_waitcnt lgkmcnt(0)")
    A("v_mov_b32 v20, s56")
    A("v_mov_b32 v21, s58")
    for k in range(2, 13):
        A(f"v_mov_b32 v{20+k}, s{76+2*k}")
    A("v_mov_b32 v33, 0")
    A("v_mov_b32 v34, 0")
    A("v_mov_b32 v35, 0")
    A(f"s_lshl_b32 {sT0}, s2, 9")
    A(f"s_lshl_b32 {sT1}, {sW}, 6")
    A(f"s_add_u32 {sT0}, {sT0}, {sT1}")
    A(f"s_add_u32 {sT0}, {sT0}, {STAMP_OFF}")
    A("v_mov_b32 v40, 0")
    for j in range(4):
        A(f"buffer_store_dwordx4 v[{20+4*j}:{23+4*j}], v40, {sWS}, {sT0} offen offset:{16*j}")
if OPT["stamps"] and OPT.get("dbg") is not None:
    A(f"s_cmp_lg_u32 s2, {OPT['dbg']}")
    A("s_cbranch_scc1 L_end")
    A(f"s_cmp_lg_u32 {sW}, 0")
    A("s_cbranch_scc1 L_end")
    A("v_sub_u32 v21, v21, v20")
    for k in range(12, 2, -1):
        A(f"v_sub_u32 v{20+k}, v{20+k}, v{19+k}")
    for j, r in enumerate([21] + list(range(23, 33))):
        w = j + 1 if j < 7 else j + 2
        A(f"buffer_store_dword v{r}, v40, {sDBG}, 0 offen offset:{4*w}")
A("L_end:")
A("s_endpgm")
gen_fallback("PV", joinP)

A.seg("desc")
A('.section .rodata,"a"')
A(".p2align 6")
A(f".amdhsa_kernel {KNAME}")
A(".amdhsa_next_free_vgpr 256")
A(".amdhsa_next_free_sgpr 102")
A(".amdhsa_accum_offset 256")
A(".amdhsa_group_segment_fixed_size 0")
A(".amdhsa_kernarg_size 64")
A(".amdhsa_user_sgpr_count 2")
A(".amdhsa_user_sgpr_kernarg_segment_ptr 1")
A(".amdhsa_system_sgpr_workgroup_id_x 1")
A(".end_amdhsa_kernel")

A.fix_hazards()
sys.stderr.write("nops: %s\n" % A.count_nops())
sys.stdout.write(A.text())
```

```python
import sys, struct, math
from asmlib import Asm, VM

OPT = dict(nt="nt", prio=1, stamps=0, fine=28, pre=4, touch=-1, xtouch=1, cw=2, ts=0, z4=30, wwarm=2, xt0=29, vpv=1, mapb=1, slp=4)
for a in sys.argv[1:]:
    k, v = a.split("=")
    OPT[k] = int(v) if v.lstrip("-").isdigit() else v
NT = (" " + OPT["nt"]) if OPT["nt"] not in ("", "none") else ""
NTV = NT if "ntv" not in OPT else ((" " + OPT["ntv"]) if OPT["ntv"] != "none" else "")
KNAME = "standalone__gqa_block_cached__near_ridge_kernel"

def f32(x):
    return "0x%08x" % struct.unpack("<I", struct.pack("<f", x))[0]

P_BUF = 0
VRING = 32768
KRING = 98304
MX_OFF = KRING + 3 * 16384
STG = [0, 53248, 106496]
XOFF = 32768
WSL = [98304, 131072, 65536, 32768, 98304, 131072, 65536]
ST_L = 28672
ST_M = ST_L + 1280
LDS_BYTES = 163840
PART_BYTES = 71680
XCH_BYTES = 71680 + 2048
XST = 71680
SCR = 20480
XCH_OFF = 256 * PART_BYTES
FLAG_OFF = XCH_OFF + 256 * XCH_BYTES
STAMP_OFF = 48 << 20

sX, sWQ, sVr, sWO, sWS, sKr = "s[4:7]", "s[8:11]", "s[12:15]", "s[16:19]", "s[20:23]", "s[60:63]"
sW, sB, sHQ, sHALF, sHKV = "s24", "s25", "s26", "s27", "s28"
sKO, sCNT, sRETRY = "s29", "s30", "s31"
sT0, sT1, sT2, sT3 = "s32", "s33", "s34", "s35"
sW1K, sXO, sWQO, sKDST, sKV0, sC, sWOO, sPART = "s36", "s37", "s38", "s39", "s40", "s41", "s42", "s43"
sQH, sKH, sDQ, sHP = "s44", "s45", "s46", "s47"
sLIM, sVO, sVDST = "s48", "s49", "s3"
sXS, sXR = "s64", "s65"
sFLG, sLOC = "s66", "s67"
sXT = ["s50", "s51", "s52"]
sPA, sPB, sPC = "s50", "s51", "s52"
WOF = " " + OPT.get("wof", "none").replace("+", " ").replace("none", "")
YF = " sc1" if OPT.get("gsc1") else ""
sXTC = "s53"
XTF = " " + OPT.get("xtf", "sc1").replace("+", " ").replace("none", "")
sDBG = "s[68:71]"
sOUT = "s[72:75]"

A = Asm()
_lab = [0]

def stamp(k, mode=1):
    if OPT["stamps"] == mode or (OPT["stamps"] and k in (2, 12)):
        A(f"s_memtime s[{76+2*k}:{77+2*k}]")
    if OPT["stamps"] == 6 and mode == 1 and k in (5, 7, 8, 10):
        j = {5: 3, 7: 5, 8: 7, 10: 9}[k]
        A(f"s_memtime s[{76+2*j}:{77+2*j}]")
        A(f"s_memrealtime s[{78+2*j}:{79+2*j}]")

def vr(b, n):
    return f"v[{b}:{b+n-1}]" if n > 1 else f"v{b}"

def put(f):
    if callable(f):
        f()
    elif isinstance(f, (list, tuple)):
        for x in f:
            put(x)
    else:
        A(f)

def weave(main, fill, per=1):
    fill = list(fill)
    for m in main:
        put(m)
        for _ in range(per):
            if fill:
                put(fill.pop(0))
    for f in fill:
        put(f)

def run(fs):
    for f in fs:
        put(f)

def only_S(lines):
    def f():
        _lab[0] += 1
        A(f"s_cmp_ge_u32 {sW}, 4")
        A(f"s_cbranch_scc1 L_sk{_lab[0]}")
        for x in lines:
            A(x + " ; cond")
        A(f"L_sk{_lab[0]}:")
    return f

vI, vG = 40, 41
vXD, vWD = 42, 43
vW = [44, 45, 46, 47]
vXR = [48, 49]
vQW = [50, 51, 52, 53]
vQL = [54, 55]
vPVa = [56, 57, 58, 59, 60]
vA0 = 19
vKD = 16
vVD = [12, 13, 14, 15]
QACC = 176
QA = [96, 112]
QB = [128, 148]
S_Q, S_NM, S_KF, S_L = 96, 36, 20, 7
S_S = [56, 76]
vKA = [1, 2]; vPW = 3; vMX = 4
S_T = [5, 6, 17, 18]
O_ACC, P_A, P_B = 96, 76, 56
VT = [40, 24]
vVB = [1, 2, 20, 21]; vPR = 3; vOW = [4, 5, 6, 7]
vWOD = 12
E_O = 96
E_ACC = [56, 76]
E_A = 36
vOA = [1, 2, 3]; vOB = [5, 6]; vST4 = 7; vST2 = 8; vSTAT = 10

A.seg("head")
A("; @launch grid=(256,1,1) block=(512,1,1) lds=%d" % LDS_BYTES)
A('.amdgcn_target "amdgcn-amd-amdhsa--gfx950"')
A(".text")
A(f".globl {KNAME}")
A(".p2align 8")
A(f".type {KNAME},@function")
A(f"{KNAME}:")
A.seg("entry")
A(f"""
s_cmp_ge_u32 s2, 256
s_cbranch_scc1 L_end
s_load_dwordx16 s[64:79], s[0:1], 0
""")
if OPT["stamps"]:
    A("s_memrealtime s[56:57]")
    stamp(2)
A(f"""
s_and_b32 {sB if OPT.get("mapb") else sHKV}, s2, 7
s_lshr_b32 {sT0}, s2, 3
s_lshr_b32 {sHKV if OPT.get("mapb") else sB}, {sT0}, 2
s_and_b32 {sT1}, {sT0}, 1
s_lshr_b32 {sHALF}, {sT0}, 1
s_and_b32 {sHALF}, {sHALF}, 1
s_lshl_b32 {sHQ}, {sHKV}, 1
s_add_u32 {sHQ}, {sHQ}, {sT1}
v_lshrrev_b32 v1, 6, v0
v_and_b32 v0, 63, v0
v_readfirstlane_b32 {sW}, v1
s_mul_i32 {sXO}, {sB}, 143360
s_lshl_b32 {sWQO}, {sHQ}, 9
v_and_b32 v{vI}, 15, v0
v_lshrrev_b32 v{vG}, 4, v0
s_lshl_b32 {sW1K}, {sW}, 10
s_lshr_b32 {sHP}, {sW}, 2
s_and_b32 {sQH}, {sW}, 1
s_lshl_b32 {sT0}, {sQH}, 2
v_add_u32 v5, {sT0}, v{vG}
v_and_b32 v6, 7, v0
v_xor_b32 v5, v5, v6
v_lshlrev_b32 v5, 4, v5
v_lshrrev_b32 v6, 3, v0
v_mul_u32_u24 v6, 896, v6
v_add_u32 v{vXD}, v5, v6
s_mul_i32 {sT0}, {sHALF}, 10
s_add_u32 {sT0}, {sT0}, {sW}
s_sub_u32 {sT1}, {sT0}, 20
s_cmp_ge_u32 {sT0}, 20
s_cselect_b32 {sT1}, {sT1}, {sT0}
s_mul_i32 {sT1}, {sT1}, 7168
s_add_u32 {sXT[0]}, {sT1}, {sXO}
s_add_u32 {sT0}, {sT0}, 8
s_sub_u32 {sT1}, {sT0}, 20
s_cmp_ge_u32 {sT0}, 20
s_cselect_b32 {sT1}, {sT1}, {sT0}
s_mul_i32 {sT1}, {sT1}, 7168
s_add_u32 {sXT[1]}, {sT1}, {sXO}
s_add_u32 {sT0}, {sT0}, 8
s_sub_u32 {sT1}, {sT0}, 20
s_cmp_ge_u32 {sT0}, 20
s_cselect_b32 {sT1}, {sT1}, {sT0}
s_mul_i32 {sT1}, {sT1}, 7168
s_add_u32 {sXT[2]}, {sT1}, {sXO}
v_lshrrev_b32 v5, 5, v0
s_lshl_b32 {sT0}, {sW}, 1
v_add_u32 v5, {sT0}, v5
v_and_b32 v6, 3, v5
s_lshl_b32 {sT0}, {sHP}, 2
v_or_b32 v6, {sT0}, v6
v_bfe_u32 v7, v0, 1, 4
v_xor_b32 v6, v6, v7
v_lshlrev_b32 v6, 5, v6
v_and_b32 v7, 1, v0
v_lshlrev_b32 v7, 4, v7
v_lshlrev_b32 v5, 13, v5
v_add3_u32 v{vWD}, v5, v6, v7
s_mov_b32 s6, 1146880
s_mov_b32 s7, 0x20000
s_mov_b32 s10, 3670016
s_mov_b32 s11, 0x20000
s_waitcnt lgkmcnt(0)
s_mov_b32 s4, s64
s_mov_b32 s5, s65
s_mov_b32 s8, s70
s_mov_b32 s9, s71
""")
stamp(3, 3)

vm = VM(63)

def dma(lines, tag, v=None):
    def f():
        for x in lines:
            A(x)
        (v or vm).issue(tag)
    return f

def stage_dma(s):
    sb = STG[s % 3]
    out = []
    for t in range(4):
        out.append(dma([f"s_add_u32 m0, {sW1K}, {sb + t*8192}",
                        f"s_add_u32 {sT0}, {sWQO}, {(s*64 + 16*t) * 8192}",
                        f"buffer_load_dwordx4 v{vWD}, {sWQ}, {sT0} offen lds"], f"st{s}"))
    for t in range(3):
        l = [f"s_add_u32 m0, {sW1K}, {sb + XOFF + t*8192}",
             f"s_add_u32 {sT0}, {sXT[t]}, {s*128}",
             f"buffer_load_dwordx4 v{vXD}, {sX}, {sT0} offen lds"]
        out.append(dma(l, f"st{s}") if t < 2 else only_S(l))
    return [out[6]] + out[:6]

def k_lines(i):
    slot = i & 3
    out = []
    for sg in range(4):
        l = [f"s_add_u32 m0, {sKDST}, {slot*16384 + sg*2048 - sg*128}", "s_nop 0",
             f"buffer_load_dwordx4 v{vKD}, {sKr}, {sKO} offen offset:{sg*128}{NT} lds"]
        if sg == 3:
            l.append(f"s_add_u32 {sKO}, {sKO}, {0 if OPT.get('samekv') else 16384}")
        out.append(l)
    return out

def v_lines(t):
    pos = (t + 3) & 3
    out = []
    for jj in range(4):
        l = [f"s_add_u32 m0, {sVDST}, {pos*16384 + jj*1024}", "s_nop 0",
             f"buffer_load_dwordx4 v{vVD[jj]}, {sVr}, {sVO} offen{NTV} lds"]
        if jj == 3:
            l.append(f"s_add_u32 {sVO}, {sVO}, {0 if OPT.get('samekv') else 16384}")
        out.append(l)
    return out

run(stage_dma(0))
def code_warm(lab, wave, lds_dst, va):
    A(f"""
    s_cmp_lg_u32 {sW}, {wave}
    s_cbranch_scc1 L_cw{lab}
    s_getpc_b64 s[54:55] ; cond
    L_pc{lab}:
    s_lshr_b32 {sT0}, s2, 3 ; cond
    s_mul_i32 {sT0}, {sT0}, 1280 ; cond
    s_min_u32 {sT0}, {sT0}, L_codeend - {KNAME} - 2048 ; cond
    s_sub_u32 {sT0}, {sT0}, L_pc{lab} - {KNAME} ; cond
    s_ashr_i32 {sT1}, {sT0}, 31 ; cond
    s_add_u32 s54, s54, {sT0} ; cond
    s_addc_u32 s55, s55, {sT1} ; cond
    v_lshlrev_b32 v{va}, 4, v0 ; cond
    s_mov_b32 m0, {lds_dst} ; cond
    s_nop 0 ; cond
    global_load_lds_dwordx4 v{va}, s[54:55] ; cond
    global_load_lds_dwordx4 v{va}, s[54:55] offset:1024 ; cond
    L_cw{lab}:
    """)
if OPT["cw"]:
    code_warm("a", 5, 159744, 8)
stamp(4, 3)
A.seg("pro")
A(f"""
s_mov_b32 s16, s72
s_mov_b32 s17, s73
s_mov_b32 s18, 3670016
s_mov_b32 s19, 0x20000
s_mov_b32 s20, s78
s_mov_b32 s21, s79
s_mov_b32 s22, 0x10000000
s_mov_b32 s23, 0x20000
s_mov_b32 s12, s68
s_mov_b32 s13, s69
s_mov_b32 s14, 0x4000000
s_mov_b32 s15, 0x20000
s_mov_b32 s60, s66
s_mov_b32 s61, s67
s_mov_b32 s62, 0x4000000
s_mov_b32 s63, 0x20000
s_mov_b32 {sRETRY}, 0
s_mov_b32 {sC}, {f32(math.log2(math.e) / 16.0)}
s_mov_b32 {sLIM}, {f32(2.0 ** 30)}
s_mul_i32 {sWOO}, {sHQ}, 229376
s_lshl_b32 {sT0}, {sB}, 3
s_add_u32 {sT0}, {sT0}, {sHKV}
s_lshl_b32 {sT0}, {sT0}, 1
s_add_u32 {sT0}, {sT0}, {sHALF}
s_lshl_b32 {sKV0}, {sT0}, 19
s_mov_b32 s68, s76
s_mov_b32 s69, s77
s_mov_b32 s70, 256
s_mov_b32 s71, 0x20000
s_mov_b32 s72, s74
s_mov_b32 s73, s75
s_mov_b32 s74, 1146880
s_mov_b32 s75, 0x20000
s_lshl_b32 {sT0}, {sB}, 1
s_add_u32 {sT0}, {sT0}, {sHALF}
s_lshl_b32 {sFLG}, {sT0}, 7
s_add_u32 {sFLG}, {sFLG}, {FLAG_OFF}
s_lshl_b32 {sT0}, {sT0}, 4
s_add_u32 {sT0}, {sT0}, {sHQ}
s_mul_i32 {sPART}, {sT0}, {PART_BYTES}
s_mul_i32 {sXS}, {sT0}, {XCH_BYTES}
s_add_u32 {sXS}, {sXS}, {XCH_OFF}
s_xor_b32 {sT0}, {sT0}, 16
s_mul_i32 {sXR}, {sT0}, {XCH_BYTES}
s_add_u32 {sXR}, {sXR}, {XCH_OFF}
s_and_b32 {sDQ}, {sW}, 3
s_lshr_b32 {sKH}, {sDQ}, 1
v_lshrrev_b32 v30, 3, v{vI}
v_lshlrev_b32 v30, 10, v30
v_and_b32 v31, 7, v{vI}
v_lshlrev_b32 v31, 7, v31
v_lshrrev_b32 v32, 1, v{vI}
v_xor_b32 v33, v{vG}, v32
v_lshlrev_b32 v33, 4, v33
v_add3_u32 v{vA0}, v30, v31, v33
s_mul_i32 {sT0}, {sHP}, 10240
s_add_u32 {sT0}, {sT0}, {XOFF}
v_add_u32 v{vXR[0]}, {sT0}, v{vA0}
v_xor_b32 v{vXR[1]}, 64, v{vXR[0]}
v_lshrrev_b32 v24, 2, v{vI}
v_and_b32 v25, 1, v{vG}
v_lshlrev_b32 v25, 2, v25
v_or_b32 v25, v25, v24
v_lshl_add_u32 v26, v{vG}, 3, v24
v_lshlrev_b32 v26, 9, v26
v_and_b32 v27, 3, v0
v_lshl_add_u32 v26, v27, 3, v26
s_lshl_b32 {sT0}, {sDQ}, 2
v_xor_b32 v25, {sT0}, v25
""")
for m in range(4):
    A(f"v_xor_b32 v28, {m}, v25")
    A(f"v_lshl_add_u32 v{vW[m]}, v28, 5, v26")
stamp(5, 3)
A("s_barrier")
run(stage_dma(1))
stamp(6, 3)
A(f"""
v_lshrrev_b32 v24, 1, v{vG}
v_xor_b32 v24, v24, v32
v_and_b32 v25, 1, v{vG}
v_lshlrev_b32 v25, 3, v25
v_add3_u32 v25, v30, v31, v25
s_mul_i32 {sT0}, {sHP}, 40960
s_lshl_b32 {sT1}, {sDQ}, 11
s_add_u32 {sT0}, {sT0}, {sT1}
v_add_u32 v25, {sT0}, v25
""")
for m in range(4):
    A(f"v_xor_b32 v28, {2*m}, v24")
    A(f"v_lshl_add_u32 v{vQW[m]}, v28, 4, v25")
A(f"""
s_mov_b32 {sVO}, {sKV0}
s_mov_b32 {sKO}, {sKV0}
s_lshl_b32 {sT0}, {sQH}, 2
v_add_u32 v24, {sT0}, v{vG}
v_and_b32 v25, 7, v0
v_xor_b32 v24, v24, v25
v_lshlrev_b32 v24, 4, v24
v_lshrrev_b32 v25, 3, v0
s_lshl_b32 {sT0}, {sKH}, 4
s_lshl_b32 {sT1}, {sQH}, 3
s_add_u32 {sT0}, {sT0}, {sT1}
v_add_u32 v25, {sT0}, v25
v_lshl_add_u32 v{vKD}, v25, 9, v24
s_lshl_b32 {sT0}, {sKH}, 13
s_lshl_b32 {sT1}, {sQH}, 10
s_add_u32 {sKDST}, {sT0}, {sT1}
s_add_u32 {sKDST}, {sKDST}, {KRING}
""")
def v_addr():
    A(f"""
    v_bfe_u32 v24, v0, 4, 1
    v_lshlrev_b32 v24, 1, v24
    v_and_b32 v25, 7, v0
    v_xor_b32 v24, v24, v25
    v_lshlrev_b32 v24, 4, v24
    v_lshrrev_b32 v25, 3, v0
    v_lshl_add_u32 v24, v25, 9, v24
    s_lshl_b32 {sT0}, {sDQ}, 7
    v_add_u32 v{vVD[0]}, {sT0}, v24
    v_xor_b32 v24, 64, v{vVD[0]}
    v_add_u32 v{vVD[1]}, 4096, v24
    v_add_u32 v{vVD[2]}, 8192, v{vVD[0]}
    v_add_u32 v{vVD[3]}, 12288, v24
    """)
v_addr()
A(f"""
s_cmp_lg_u32 {sW}, 4
s_cbranch_scc1 L_noclr
v_and_b32 v24, 1, v0 ; cond
v_lshlrev_b32 v24, 6, v24 ; cond
s_lshl_b32 {sT1}, {sHQ}, 2 ; cond
v_add_u32 v24, {sT1}, v24 ; cond
v_mov_b32 v25, 0 ; cond
buffer_store_dword v25, v24, {sWS}, {sFLG} offen sc1 ; cond
L_noclr:
s_lshl_b32 {sVDST}, {sDQ}, 12
s_add_u32 {sVDST}, {sVDST}, {VRING}
s_mul_i32 {sT0}, {sQH}, 40960
v_add_u32 v{vQL[0]}, {sT0}, v{vA0}
v_xor_b32 v{vQL[1]}, 64, v{vQL[0]}
v_lshrrev_b32 v24, 1, v{vG}
s_lshl_b32 {sT0}, {sKH}, 1
v_add_u32 v24, {sT0}, v24
v_mul_u32_u24 v24, 2560, v24
v_and_b32 v25, 1, v{vG}
v_lshl_add_u32 v24, v25, 3, v24
s_mul_i32 {sT0}, {sQH}, 80
v_add_u32 v25, {sT0}, v{vI}
v_lshl_add_u32 v{vPW}, v25, 4, v24
s_lshl_b32 {sT0}, {sKH}, 2
s_add_u32 {sT0}, {sT0}, {MX_OFF}
v_lshlrev_b32 v25, 3, v25
v_add_u32 v{vMX}, {sT0}, v25
s_lshl_b32 {sT0}, {sKH}, 13
s_add_u32 {sT0}, {sT0}, {KRING}
v_add_u32 v{vKA[0]}, {sT0}, v{vA0}
v_xor_b32 v{vKA[1]}, 64, v{vKA[0]}
v_lshrrev_b32 v30, 2, v{vI}
v_lshl_add_u32 v32, v{vG}, 3, v30
v_lshlrev_b32 v32, 7, v32
v_and_b32 v33, 3, v0
v_lshl_add_u32 v32, v33, 3, v32
v_add_u32 v32, {sVDST}, v32
v_lshrrev_b32 v30, 1, v30
v_and_b32 v33, 1, v{vG}
v_lshl_add_u32 v30, v33, 1, v30
v_lshl_add_u32 v{vPVa[0]}, v30, 5, v32
v_xor_b32 v{vPVa[1]}, 32, v{vPVa[0]}
v_xor_b32 v{vPVa[2]}, 64, v{vPVa[0]}
v_xor_b32 v{vPVa[3]}, 96, v{vPVa[0]}
v_mul_u32_u24 v31, 2560, v{vG}
v_lshl_add_u32 v{vPVa[4]}, v{vI}, 4, v31
""")
for qt in range(5):
    A(f"v_mov_b32 v{S_L+qt}, 0xff800000")

def q_reads(s2):
    out = []
    for qt in range(5):
        out.append(f"ds_read_b128 {vr(QB[s2] + qt*4, 4)}, v{vXR[s2]} offset:{qt*2048}")
    for m in range(4):
        for e in range(2):
            out.append(f"ds_read_b64_tr_b16 {vr(QA[s2] + m*4 + e*2, 2)}, v{vW[m]} offset:{(32*s2 + 4*e) * 512}")
    return out

def q_mfma(s2, first):
    out = []
    for m in range(4):
        for qt in range(5):
            acc = vr(QACC + (m*5 + qt) * 4, 4)
            out.append(f"v_mfma_f32_16x16x32_bf16 {acc}, {vr(QA[s2] + m*4, 4)}, {vr(QB[s2] + qt*4, 4)}, {'0' if first else acc}")
    return out

for s in range(7):
    A(f"s_waitcnt vmcnt({vm.wait(f'st{s}')})")
    if s == 0:
        stamp(7, 3)
    A("s_barrier")
    if s <= 3:
        stamp(8 + s, 3)
    if s == 0:
        stamp(3)
    d = []
    if 0 <= s <= 4:
        d = stage_dma(s + 2)
    if s == 6:
        kl = k_lines(0) + k_lines(1) + v_lines(0) + k_lines(2)
        d = [only_S(kl[2*j] + kl[2*j + 1]) for j in range(8)]
    upd = []
    if s < 6:
        dl = STG[(s + 1) % 3] - STG[s % 3]
        upd = [[f"s_mov_b32 {sT1}, {dl & 0xffffffff}", f"v_add_u32 v{vW[0]}, {sT1}, v{vW[0]}"]] + \
              [f"v_add_u32 v{r}, {sT1}, v{r}" for r in vW[1:] + vXR]
    if s >= 1:
        if s == 6:
            weave(q_mfma(1, False), d[:4] + q_reads(0) + d[4:7])
        else:
            weave(q_mfma(1, False), q_reads(0) + d[:7])
        d = d[7:]
    else:
        weave(q_reads(0), [])
    A("s_waitcnt lgkmcnt(0)")
    if s == 0:
        weave(q_mfma(0, True), q_reads(1) + d + upd)
    else:
        weave(q_mfma(0, False), [[], []] + q_reads(1) + d + upd)
    A("s_waitcnt lgkmcnt(0)")
stamp(4)
A("s_barrier")

def q_out(idx):
    m, qt = divmod(idx, 5)
    a = QACC + idx * 4
    return [f"v_mul_f32 v{a}, {sC}, v{a}", f"v_mul_f32 v{a+1}, {sC}, v{a+1}",
            f"v_mul_f32 v{a+2}, {sC}, v{a+2}", f"v_mul_f32 v{a+3}, {sC}, v{a+3}",
            f"v_cvt_pk_bf16_f32 v{a}, v{a}, v{a+1}", f"v_cvt_pk_bf16_f32 v{a+1}, v{a+2}, v{a+3}",
            f"ds_write_b64 v{vQW[m]}, {vr(a, 2)} offset:{qt*8192}"]
for j, mf in enumerate(q_mfma(1, False)):
    A(mf)
    if j >= 3:
        run(q_out(j - 3))
for j in range(17, 20):
    run(q_out(j))
A(f"s_cmp_ge_u32 {sW}, 4")
A("s_cbranch_scc1 L_PV")


def wo_addr():
    A(f"""
    v_bfe_u32 v13, v0, 4, 1
    s_lshl_b32 {sT0}, {sQH}, 1
    v_or_b32 v13, {sT0}, v13
    v_lshlrev_b32 v13, 1, v13
    v_and_b32 v14, 7, v0
    v_xor_b32 v13, v13, v14
    v_lshrrev_b32 v14, 3, v0
    s_lshl_b32 {sT0}, {sW}, 3
    v_add_u32 v14, {sT0}, v14
    v_mul_u32_u24 v14, 896, v14
    v_lshl_add_u32 v{vWOD}, v13, 4, v14
    """)

def wo_dma(j, v):
    out = []
    for t in range(8):
        out.append(dma([f"s_add_u32 m0, {sW1K}, {WSL[j] + t*4096}",
                        f"s_add_u32 {sT0}, {sWOO}, {t*28672 + j*128}",
                        f"buffer_load_dwordx4 v{vWOD}, {sWO}, {sT0} offen{WOF} lds"], f"wo{j}", v))
    return out


def gen_role(role):
    S = role == "S"
    R = role
    vm = VM(63)
    lg = VM(15)
    tr = ["entry", "pro"]

    def seg(n):
        A.seg(f"{R}_{n}")
        tr.append(f"{R}_{n}")

    def k_dma(i):
        return [dma(l, f"K{i}", vm) for l in k_lines(i)]

    def v_dma(t):
        return [dma(l, f"V{t}", vm) for l in v_lines(t)]

    def lds(line, tag):
        def f():
            A(line)
            lg.issue(tag)
        return f

    def fst(i, k):
        if i == OPT["fine"]:
            stamp(k, 2)

    def kread(i, s):
        return lds(f"ds_read_b128 {vr(S_KF + (s & 3)*4, 4)}, v{vKA[s & 1]} offset:{(i & 3)*16384 + (s >> 1)*2048}", f"kf{s}")

    def s_mfma(i, s, qt):
        acc = vr(S_S[i & 1] + qt*4, 4)
        c = acc if s else ("0" if i == 0 else vr(S_NM + qt*4, 4))
        return f"v_mfma_f32_16x16x32_bf16 {acc}, {vr(S_KF + (s & 3)*4, 4)}, {vr(S_Q + (qt*8 + s)*4, 4)}, {c}"

    def end_wait(i):
        need = [t for t in (f"K{i+1}", f"V{i}") if vm.has(t)]
        if need:
            last = max(need, key=lambda t: max(k for k, x in enumerate(vm.q) if x == t))
            A(f"s_waitcnt vmcnt({vm.wait(last)}) lgkmcnt(0)")
        else:
            A("s_waitcnt lgkmcnt(0)")
        lg.clear()

    seg("i0")
    if S:
        for t in ["K0"]*4 + ["K1"]*4 + ["V0"]*4 + ["K2"]*4:
            vm.issue(t)
        if OPT["prio"]:
            A(f"s_setprio {OPT['prio']}")
        A(f"s_waitcnt vmcnt({vm.wait('K0')}) lgkmcnt(0)")
        A("s_barrier")
        stamp(5)
        def grp(s):
            return [kread(0, s)] + [lds(f"ds_read_b128 {vr(S_Q + (qt*8 + s)*4, 4)}, v{vQL[s & 1]} offset:{qt*8192 + (s >> 1)*2048}", f"kf{s}")
                                    for qt in range(5)]
        run(grp(0) + grp(1))
        for s in range(8):
            A(f"s_waitcnt lgkmcnt({lg.wait(f'kf{s}')})")
            weave([s_mfma(0, s, qt) for qt in range(5)], grp(s + 2) if s + 2 < 8 else [], per=2)
    else:
        A("L_PV:")
        for j in range(4):
            A(f"v_mov_b32 v{vVB[j]}, v{vPVa[j]}")
            A(f"v_subrev_u32 v{vOW[j]}, 40960, v{vQW[j]}")
        A(f"v_mov_b32 v{vPR}, v{vPVa[4]}")
        A("s_waitcnt lgkmcnt(0)")
        A("s_barrier")
        stamp(5)
        A(f"""
        s_cmp_lg_u32 {sW}, 4
        s_cbranch_scc1 L_noreg
        s_getreg_b32 {sT0}, hwreg(HW_REG_XCC_ID)
        s_and_b32 {sT0}, {sT0}, 15
        s_mul_i32 {sT1}, {sT0}, {sT0}
        s_lshl_b32 {sT1}, {sT1}, 18
        s_lshl_b32 {sT0}, {sT0}, 8
        s_add_u32 {sT0}, {sT0}, {sT1}
        s_add_u32 {sT0}, {sT0}, 1
        v_mov_b32 v23, 0
        v_mov_b32 v22, {sT0}
        s_lshl_b32 {sT1}, {sB}, 5
        s_mov_b64 exec, 1
        buffer_atomic_add v22, v23, {sDBG}, {sT1} offen
        s_mov_b64 exec, -1
        L_noreg:
        """)
    vm_join = list(vm.q)
    seg("join")
    A(f"L_{R}_join:")
    if S:
        SS = S_S[0]
        for qt in range(5):
            a = SS + qt*4; t = S_KF + qt*2
            A(f"v_max3_f32 v{t}, v{a}, v{a+1}, v{S_L+qt}")
            A(f"v_max3_f32 v{t}, v{a+2}, v{a+3}, v{t}")
            A(f"v_mov_b32 v{t+1}, v{t}")
        for qt in range(5):
            t = S_KF + qt*2
            A(f"v_permlane32_swap_b32 v{t}, v{t+1}")
        for qt in range(5):
            t = S_KF + qt*2
            A(f"v_max_f32 v{t}, v{t}, v{t+1}")
            A(f"v_mov_b32 v{t+1}, v{t}")
        for qt in range(5):
            t = S_KF + qt*2
            A(f"v_permlane16_swap_b32 v{t}, v{t+1}")
        for qt in range(5):
            t = S_KF + qt*2
            A(f"v_max_f32 v{t}, v{t}, v{t+1}")
            A(f"ds_write_b32 v{vMX}, v{t} offset:{qt*128}")
        A("s_waitcnt lgkmcnt(0)")
        A("s_barrier")
        A(f"v_and_b32 v5, 0xfffffffb, v{vMX}")
        for qt in range(5):
            A(f"ds_read_b64 {vr(S_KF + qt*2, 2)}, v5 offset:{qt*128}")
        run(v_dma(1) + v_dma(2))
        for qt in range(5):
            t = S_KF + qt*2
            A(f"s_waitcnt lgkmcnt({4 - qt})")
            A(f"v_max_f32 v{t}, v{t}, v{t+1}")
            for r in range(4):
                A(f"v_sub_f32 v{S_NM + qt*4 + r}, 0, v{t}")
            for r in range(4):
                A(f"v_sub_f32 v{SS + qt*4 + r}, v{SS + qt*4 + r}, v{t}")
        end_wait(0)
        A("s_barrier")
    else:
        A("s_barrier")
        A("s_barrier")

    def softmax_fill(j):
        SS = S_S[j & 1]; buf = j & 1
        out = []
        for qt in range(5):
            a = SS + qt*4
            t0, t1 = (S_T[0], S_T[1]) if qt % 2 == 0 else (S_T[2], S_T[3])
            ex = [(2, f"v_exp_f32 v{a+r}, v{a+r}") for r in range(4)]
            wr = lds(f"ds_write_b64 v{vPW}, {vr(a, 2)} offset:{P_BUF + buf*10240 + qt*256}", "pw")
            post = [(1, f"v_add_f32 v{t0}, v{a}, v{a+1}"), (1, f"v_add_f32 v{t1}, v{a+2}, v{a+3}"),
                    (1, f"v_cvt_pk_bf16_f32 v{a}, v{a}, v{a+1}"), (1, f"v_cvt_pk_bf16_f32 v{a+1}, v{a+2}, v{a+3}"),
                    (1, f"v_add_f32 v{t0}, v{t0}, v{t1}"), (1, wr),
                    (1, f"v_mov_b32 v{S_L+qt}, v{t0}" if j == 0 else f"v_add_f32 v{S_L+qt}, v{S_L+qt}, v{t0}")]
            out.append((ex, post))
        seq = list(out[0][0])
        for qt in range(5):
            if qt + 1 < 5:
                e = out[qt + 1][0]; p = out[qt][1]
                seq += [e[0], p[0], p[1], e[1], p[2], p[3], e[2], p[4], p[5], e[3], p[6]]
            else:
                seq += out[qt][1]
        return seq

    def s_interval(i):
        fill = softmax_fill(i - 1)
        def fput(n):
            while fill and n >= fill[0][0]:
                c, it = fill.pop(0)
                n -= c
                put(it)
        fst(i, 3)
        if i <= 31:
            for s in range(4):
                put(kread(i, s))
            d = []
            if i == 1:
                d += k_dma(3)
            if i + 3 <= 31:
                d += k_dma(i + 3)
            if i == 29:
                d += [wo_addr] + wo_dma(0, vm)[:4]
            if i == 30:
                d += wo_dma(0, vm)[4:] + wo_dma(2, vm)[4:]
            if i == 31:
                d += wo_dma(1, vm)[:4] + wo_dma(3, vm)[:4]
            for f in d:
                f()
                fput(OPT["pre"])
            for s in range(8):
                A(f"s_waitcnt lgkmcnt({lg.wait(f'kf{s}')})")
                if s == 0:
                    fst(i, 4)
                    if OPT.get("dprio"):
                        A("s_setprio 2")
                for qt in range(5):
                    A(s_mfma(i, s, qt))
                    if qt == 1 and 1 <= s <= 4:
                        put(kread(i, s + 3))
                        fput(1)
                    elif qt == 4:
                        fput(1)
                    else:
                        fput(2)
            if OPT.get("dprio"):
                A("s_setprio 0")
            fst(i, 5)
        fput(1000)
        fst(i, 6)
        if i == 32:
            run(wo_dma(1, vm)[4:] + wo_dma(3, vm)[4:])
        end_wait(i)
        fst(i, 7)
        A("s_barrier")
        fst(i, 8)

    def vt_reads(t):
        pos = (t + 3) & 3
        out = []
        for dt in range(4):
            for e in range(2):
                out.append(f"ds_read_b64_tr_b16 {vr(VT[t & 1] + dt*4 + e*2, 2)}, v{vVB[dt]} offset:{pos*16384 + 4*e*128}")
        return out

    def oacc(qt, dt):
        return O_ACC + (qt*4 + dt)*4

    def pv_mfma(t, own, P, first):
        out = []
        for j in range(5):
            qt = j if own else 5 + j
            for dt in range(4):
                acc = vr(oacc(qt, dt), 4)
                out.append(f"v_mfma_f32_16x16x32_bf16 {acc}, {vr(VT[t & 1] + dt*4, 4)}, {vr(P + j*4, 4)}, {'0' if first else acc}")
        return out

    def send(j):
        out = []
        for dp in range(2):
            a = oacc(5 + j, dp*2)
            out.append([f"v_cvt_pk_bf16_f32 v{a+k}, v{a+2*k}, v{a+2*k+1}" for k in range(4)])
            out.append(dma([f"s_add_u32 {sT0}, {sT2}, {(j*2 + dp)*1024}",
                            f"buffer_store_dwordx4 {vr(a, 4)}, v17, {sWS}, {sT0} offen"], "snd", vm))
        return out

    def pv_interval(i):
        if i == 1:
            run(vt_reads(0))
            if OPT.get("dprio"):
                A("s_setprio 1")
            A(f"v_lshlrev_b32 v17, 4, v0")
            A(f"s_lshl_b32 {sXTC}, {sDQ}, 10")
            A(f"s_add_u32 {sXTC}, {sXTC}, {sXS}")
            if OPT["vpv"]:
                A(f"s_add_u32 {sVO}, {sKV0}, {3*16384}")
                run(v_dma(3))
            A("s_waitcnt lgkmcnt(0)")
            A("s_barrier")
            return
        t = i - 2; buf = t & 1
        fst(i, 3)
        pa = [f"ds_read_b128 {vr(P_A + j*4, 4)}, v{vPR} offset:{P_BUF + buf*10240 + (5 + j)*256}" for j in range(5)]
        pb = [f"ds_read_b128 {vr(P_B + j*4, 4)}, v{vPR} offset:{P_BUF + buf*10240 + j*256}" for j in range(5)]
        if t >= 1:
            e = []
            fl = [pa[0], e, pa[1], e, pa[2], e, pa[3], e, pa[4], e, pb[0], e, pb[1], e, pb[2], e, e, e, e, pb[3]]
            weave(pv_mfma(t - 1, 1, P_B, t == 1), fl)
        else:
            run(pa + pb[:4])
        fst(i, 4)
        if OPT["vpv"]:
            if i + 2 <= 31:
                run(v_dma(i + 2))
            if vm.has(f"V{t+1}"):
                A(f"s_waitcnt vmcnt({vm.wait(f'V{t+1}')})")
            if i == 28 and OPT["cw"] >= 2:
                code_warm("b", 5, SCR, 16)
            if i == 28:
                A(f"""
                s_cmp_lg_u32 {sW}, 4
                s_cbranch_scc1 L_rg1
                v_mov_b32 v23, 0 ; cond
                s_lshl_b32 {sT1}, {sB}, 5 ; cond
                buffer_load_dword v22, v23, {sDBG}, {sT1} offen sc1 ; cond
                L_rg1:
                """)
            if i == 32:
                A(f"""
                s_cmp_lg_u32 {sW}, 4
                s_cbranch_scc1 L_regdone
                s_getreg_b32 {sT2}, hwreg(HW_REG_XCC_ID)
                s_and_b32 {sT2}, {sT2}, 15
                s_mul_i32 {sT1}, {sT2}, {sT2}
                s_lshl_b32 {sT1}, {sT1}, 23
                s_lshl_b32 {sT2}, {sT2}, 13
                s_add_u32 {sT2}, {sT2}, {sT1}
                s_add_u32 {sT2}, {sT2}, 32
                s_lshl_b32 {sT1}, {sB}, 5
                s_mov_b32 {sCNT}, 0x40000
                v_mov_b32 v23, 0
                L_regpoll:
                v_readfirstlane_b32 {sT0}, v22
                s_sub_u32 {sCNT}, {sCNT}, 1
                s_cmp_eq_u32 {sCNT}, 0
                s_cbranch_scc1 L_regok
                s_and_b32 {sT3}, {sT0}, 0xff
                s_cmp_ge_u32 {sT3}, 32
                s_cbranch_scc1 L_regok
                s_sleep 8
                buffer_load_dword v22, v23, {sDBG}, {sT1} offen sc1
                s_waitcnt vmcnt(0)
                s_branch L_regpoll
                L_regok:
                s_cmp_eq_u32 {sT0}, {sT2}
                s_cselect_b32 {sLOC}, {0 if OPT.get("noloc") else 1}, 0
                v_mov_b32 v23, {ST_M + 1024}
                v_mov_b32 v22, {sLOC}
                s_waitcnt lgkmcnt(0)
                ds_write_b32 v23, v22
                s_waitcnt lgkmcnt(0)
                L_regdone:
                """)
            TS = OPT["ts"]
            if OPT["xtouch"] and TS and i == OPT["xt0"]:
                per = 64 * TS
                tot = XCH_BYTES if OPT.get("tall") else 40960
                n = -(-tot // (4 * per))
                A(f"v_mul_u32_u24 v16, {TS}, v0")
                A(f"s_add_u32 m0, {sW1K}, {SCR}")
                A(f"s_mul_i32 {sXTC}, {sDQ}, {per}")
                A(f"s_add_u32 {sXTC}, {sXTC}, {sXS}")
                for k in range(n):
                    put(dma([f"buffer_load_dword v16, {sWS}, {sXTC} offen{XTF} lds", f"s_add_u32 {sXTC}, {sXTC}, {4*per}"], "tch", vm))
                A(f"s_add_u32 {sXTC}, {sXS}, {XST}")
                put(dma([f"buffer_load_dword v16, {sWS}, {sXTC} offen{XTF} lds"], "tch", vm))
            nx = {OPT["xt0"]: 3, OPT["xt0"] + 1: 4, OPT["xt0"] + 2: 4}.get(i, 0) if (OPT["xtouch"] and not TS) else 0
            if nx:
                A(f"s_add_u32 m0, {sW1K}, {SCR}")
            for k in range(nx):
                if i == OPT["xt0"] + 2 and k == 3:
                    A(f"s_and_b32 {sXTC}, {sW1K}, 1024")
                    A(f"s_add_u32 {sXTC}, {sXTC}, {sXS}")
                    A(f"s_add_u32 {sXTC}, {sXTC}, {XST}")
                else:
                    A("s_nop 0")
                put(dma([f"buffer_load_dwordx4 v17, {sWS}, {sXTC} offen{XTF} lds", f"s_add_u32 {sXTC}, {sXTC}, 4096"], "tch", vm))
        A("s_waitcnt lgkmcnt(4)")
        fst(i, 5)
        d = []
        if i == OPT["wwarm"]:
            d = [[f"s_mul_i32 {sT1}, s2, 14336", f"s_lshl_b32 {sT2}, {sDQ}, 10", f"s_add_u32 {sT1}, {sT1}, {sT2}",
                  f"s_add_u32 m0, {sW1K}, {SCR}"]]
            for k in range(4):
                d.append(dma([f"buffer_load_dwordx4 v17, {sWO}, {sT1} offen lds", f"s_add_u32 {sT1}, {sT1}, 4096"], f"X{i}", vm))
        if i == OPT["touch"]:
            d = [[f"v_lshrrev_b32 v16, 2, v0", f"v_mul_u32_u24 v16, 896, v16", f"v_and_b32 v18, 3, v0",
                  f"v_lshl_add_u32 v16, v18, 7, v16",
                  f"s_lshl_b32 {sT1}, {sHALF}, 2", f"s_add_u32 {sT1}, {sT1}, {sDQ}", f"s_mul_i32 {sT1}, {sT1}, {32*896}",
                  f"s_add_u32 {sT1}, {sT1}, {sWOO}", f"s_add_u32 {sT2}, {sT1}, {16*896}"],
                 dma([f"s_add_u32 m0, {sW1K}, {SCR - 384}", "s_nop 0", f"buffer_load_dword v16, {sWO}, {sT1} offen offset:384 lds"], "tch", vm),
                 dma([f"buffer_load_dword v16, {sWO}, {sT2} offen offset:384 lds"], "tch", vm)]
        vt = vt_reads(t + 1) if t + 1 <= 31 else []
        if i == 33:
            d = [[f"s_mul_i32 {sT3}, {sDQ}, 10240", f"s_add_u32 {sT2}, {sXS}, {sT3}"], [], [], []]
            for j in range(5):
                d += send(j)
        weave(pv_mfma(t, 0, P_A, t == 0), [[], []] + vt[:2] + [pb[4]] + vt[2:] + d)
        fst(i, 6)
        A("s_waitcnt lgkmcnt(0)")
        fst(i, 7)
        A("s_barrier")
        fst(i, 8)

    interval = s_interval if S else pv_interval
    seg("g0")
    for i in range(1, 4):
        interval(i)
    stamp(6)
    A(f"s_mov_b32 {sCNT}, 6")
    vm.q = [t for t in vm.q if t[0] != "X"]
    q_before = list(vm.q)
    seg("loop")
    A(f"L_{R}_loop:")
    for i in range(4, 8):
        interval(i)
    A(f"s_sub_u32 {sCNT}, {sCNT}, 1")
    A(f"s_cmp_lg_u32 {sCNT}, 0")
    A(f"s_cbranch_scc1 L_{R}_loop")
    sh = lambda q, d: [t[0] + str(int(t[1:]) + d) for t in q]
    while vm.q and vm.q[0][0] == 'X':
        vm.q.pop(0)
    assert sh(q_before, 4) == vm.q, (q_before, vm.q)
    vm.q = sh(vm.q, 20)
    tr.append(f"{R}_loop")
    seg("gl")
    stamp(7)
    for i in range(28, 33):
        interval(i)
    if S:
        if OPT["prio"]:
            A("s_setprio 0")
        run(wo_dma(2, vm)[:4])
        T = S_KF + 4
        for qt in range(5):
            A(f"v_mov_b32 v{T + qt}, v{S_L + qt}")
        for qt in range(5):
            A(f"v_permlane32_swap_b32 v{T + qt}, v{S_L + qt}")
        for qt in range(5):
            A(f"v_add_f32 v{S_L + qt}, v{S_L + qt}, v{T + qt}")
            A(f"v_mov_b32 v{T + qt}, v{S_L + qt}")
        for qt in range(5):
            A(f"v_permlane16_swap_b32 v{T + qt}, v{S_L + qt}")
        A(f"v_add_u32 v5, {(ST_L - MX_OFF) & 0xffffffff}, v{vMX}")
        A(f"v_subrev_u32 v6, {MX_OFF}, v{vMX}")
        A(f"v_lshrrev_b32 v6, 3, v6")
        A(f"v_lshlrev_b32 v6, 2, v6")
        A(f"v_add_u32 v6, {ST_M}, v6")
        for qt in range(5):
            A(f"v_add_f32 v{S_L + qt}, v{S_L + qt}, v{T + qt}")
            A(f"ds_write_b32 v5, v{S_L + qt} offset:{qt*128}")
            A(f"ds_write_b32 v6, v{S_NM + qt*4} offset:{qt*64}")
        A(f"""
        v_and_b32 v17, 15, v0
        v_lshlrev_b32 v17, 4, v17
        s_add_u32 {sT2}, {sXS}, {XST}
        s_cmp_eq_u32 {sQH}, 1
        s_cselect_b32 {sT1}, 0, 0x7fff0000
        v_add_u32 v17, {sT1}, v17
        s_lshl_b32 {sT1}, {sKH}, 2
        s_add_u32 {sT1}, {sT1}, {sT2}
        """)
        for qt in range(5):
            put(dma([f"buffer_store_dword v{S_L + qt}, v17, {sWS}, {sT1} offen offset:{qt*256 + 4}"], "sst", vm))
            put(dma([f"buffer_store_dword v{S_NM + qt*4}, v17, {sWS}, {sT2} offen offset:{qt*256}"], "sst", vm))
        A("s_waitcnt lgkmcnt(0)")
        A("s_barrier")
    else:
        pv_interval(33)

    seg("post")
    stamp(8)
    A(f"""
    v_lshlrev_b32 v17, 3, v0
    v_min_u32 v18, 31, v0
    v_lshlrev_b32 v18, 3, v18
    v_add_u32 v17, {ST_L}, v17
    v_add_u32 v18, {ST_L}, v18
    ds_read_b64 v[76:77], v17
    ds_read_b64 v[82:83], v17 offset:512
    ds_read_b64 v[78:79], v18 offset:1024
    v_mov_b32 v17, {ST_M + 1024}
    ds_read_b32 v80, v17
    """)
    chk = f"""
    s_waitcnt lgkmcnt(0)
    v_readfirstlane_b32 {sLOC}, v80
    v_add_f32 v76, v76, v77
    v_add_f32 v82, v82, v83
    v_add_f32 v78, v78, v79
    v_cmp_ge_f32 s[50:51], {sLIM}, v76
    v_cmp_ge_f32 s[52:53], {sLIM}, v82
    v_cmp_ge_f32 s[54:55], {sLIM}, v78
    s_and_b64 s[50:51], s[50:51], s[52:53]
    s_and_b64 s[50:51], s[50:51], s[54:55]
    s_cmp_eq_u64 s[50:51], -1
    s_cbranch_scc1 L_{R}_ok
    s_cmp_eq_u32 {sRETRY}, 0
    s_cbranch_scc1 L_{R}_fallback
    """
    if not S:
        mf = pv_mfma(31, 1, P_B, False)
        run(mf[:6])
    A(chk)
    seg("ok")
    A(f"L_{R}_ok:")

    def signal_wait(flag_word, poll_addr_code, nlanes, lab, agent=0):
        A(f"""
        s_cmp_lg_u32 {sW}, {agent}
        s_cbranch_scc1 L_{lab}_done
        v_mov_b32 v28, 1
        s_lshl_b32 {sT1}, {sHQ}, 2
        s_add_u32 {sT1}, {sT1}, {flag_word}
        v_mov_b32 v27, {sT1}
        {poll_addr_code}
        s_mov_b32 {sCNT}, 0x40000
        s_mov_b64 exec, 1
        s_cmp_eq_u32 {sLOC}, 1
        s_cbranch_scc1 L_{lab}_loc
        buffer_wbl2 sc1
        s_waitcnt vmcnt(0)
        buffer_store_dword v28, v27, {sWS}, {sFLG} offen sc1
        s_branch L_{lab}_sent
        L_{lab}_loc:
        buffer_store_dword v28, v27, {sWS}, {sFLG} offen{YF if lab == "fx" else ""}
        L_{lab}_sent:
        s_mov_b64 exec, {hex((1 << nlanes) - 1)}
        L_{lab}_poll:
        buffer_load_dword v30, v29, {sWS}, {sT2} offen sc1
        s_waitcnt vmcnt(0)
        v_cmp_ne_u32 vcc, 1, v30
        s_sub_u32 {sCNT}, {sCNT}, 1
        s_cmp_eq_u32 {sCNT}, 0
        s_cbranch_scc1 L_{lab}_got
        s_cmp_eq_u64 vcc, 0
        s_cbranch_scc1 L_{lab}_got
        s_sleep {OPT["slp"]}
        s_branch L_{lab}_poll
        L_{lab}_got:
        s_mov_b64 exec, -1
        s_cmp_eq_u32 {sLOC}, 1
        s_cbranch_scc1 L_{lab}_done
        buffer_inv sc1
        s_waitcnt vmcnt(0)
        L_{lab}_done:
        """)

    def oa_addr():
        A(f"""
        v_and_b32 v16, 15, v0
        v_lshrrev_b32 v17, 4, v0
        v_lshrrev_b32 v18, 2, v16
        v_lshl_add_u32 v20, v17, 3, v18
        v_lshlrev_b32 v20, 7, v20
        v_and_b32 v21, 3, v0
        v_lshl_add_u32 v20, v21, 3, v20
        v_lshrrev_b32 v18, 1, v18
        v_and_b32 v21, 1, v17
        v_lshl_add_u32 v18, v21, 1, v18
        v_xor_b32 v18, {sDQ}, v18
        v_lshl_add_u32 v{vOA[0]}, v18, 5, v20
        v_add_u32 v{vOA[1]}, 0x10000, v{vOA[0]}
        v_add_u32 v{vOA[2]}, 0x20000, v{vOA[0]}
        s_lshl_b32 {sT1}, {sDQ}, 9
        s_cmp_eq_u32 {sLOC}, 1
        s_cselect_b32 {sPA}, {sPART if OPT.get("gsc1") else sXR}, {sPART}
        s_add_u32 {sPA}, {sPA}, {sT1}
        v_lshrrev_b32 v18, 1, v17
        v_lshlrev_b32 v18, 8, v18
        v_lshl_add_u32 v18, v16, 4, v18
        v_mul_u32_u24 v22, 14336, v21
        v_xor_b32 v13, 64, v{vA0}
        v_add_u32 v14, v22, v18
        v_lshl_add_u32 v15, v21, 3, v18
        """)
    vOBx = [vA0, 13]; vS4, vS2 = 14, 15
    SA = 128
    def sa_reads(j):
        out = []
        for ks in range(8):
            for e in range(2):
                off = WSL[j] + (32*ks + 4*e) * 128
                out.append(f"ds_read_b64_tr_b16 {vr(SA + j*32 + ks*4 + e*2, 2)}, v{vOA[off >> 16]} offset:{off & 0xffff}")
        return out

    if S:
        A(f"s_lshl_b32 {sT0}, {sW}, 6")
        A(f"v_add_u32 v23, {sT0}, v0")
        oa_addr()
    else:
        A(f"""
        v_lshlrev_b32 v17, 4, v0
        v_and_b32 v16, 15, v0
        v_lshlrev_b32 v14, 4, v16
        v_lshlrev_b32 v18, 3, v16
        v_lshlrev_b32 v16, 2, v16
        v_add_u32 v15, {ST_L}, v18
        v_add_u32 v16, {ST_M}, v16
        """)
        run(mf[6:])
        for qt in range(5):
            A(f"ds_read_b64 {vr(76 + qt*4, 2)}, v15 offset:{qt*128}")
            A(f"ds_read_b32 v{78 + qt*4}, v16 offset:{qt*64}")
    stamp(3, 4)
    A("s_waitcnt vmcnt(0)")
    vm.clear()
    A("s_barrier")
    stamp(4, 4)
    if S:
        run(sa_reads(0) + sa_reads(1) + sa_reads(3))
        A("s_waitcnt lgkmcnt(0)")
    else:
        signal_wait(64, f"v_mov_b32 v29, v27\n s_xor_b32 {sT2}, {sFLG}, 128", 1, "px", agent=4)
    A("s_barrier")
    stamp(5, 4); stamp(3, 5)
    if not S:
        RB = oacc(5, 0)
        A(f"""
        s_add_u32 {sT0}, {sXR}, {XST}
        s_add_u32 {sT2}, {sXR}, {sT3}
        """)
        for qt in range(5):
            A(f"buffer_load_dwordx3 {vr(56 + qt*4, 3)}, v14, {sWS}, {sT0} offen offset:{qt*256} sc1")
            vm.issue("ps")
        for n in range(10):
            A(f"s_add_u32 {sT0}, {sT2}, {n*1024}")
            A(f"buffer_load_dwordx4 {vr(RB + n*4, 4)}, v17, {sWS}, {sT0} offen sc1")
            vm.issue(f"x{n}")
        A("s_barrier")
        stamp(4, 5)
        A(f"s_waitcnt vmcnt({vm.wait('ps')}) lgkmcnt(0)")
        stamp(5, 5)
        if OPT["stamps"] == 5:
            A("s_waitcnt vmcnt(0)")
            stamp(6, 5)
        for qt in range(5):
            l0, l1, nm = 76 + qt*4, 77 + qt*4, 78 + qt*4
            pn, pl = 56 + qt*4, 57 + qt*4
            A(f"""
            v_add_f32 v{pl}, v{pl}, v{pl+1}
            v_add_f32 v{l0}, v{l0}, v{l1}
            v_sub_f32 v{l1}, v{nm}, v{pn}
            v_sub_f32 v{nm}, v{pn}, v{nm}
            v_exp_f32 v{l1}, v{l1}
            v_exp_f32 v{nm}, v{nm}
            v_fma_f32 v{l1}, v{l1}, v{pl}, v{l0}
            v_fma_f32 v{nm}, v{nm}, v{l0}, v{pl}
            v_rcp_f32 v{l1}, v{l1}
            v_rcp_f32 v{nm}, v{nm}
            """)
        for qt in range(5):
            w1, w2 = 77 + qt*4, 78 + qt*4
            for dt in range(4):
                a = oacc(qt, dt); r = RB + (qt*2 + dt//2)*4 + (dt & 1)*2
                for k in range(4):
                    A(f"v_mul_f32 v{a+k}, v{w1}, v{a+k}")
                if dt % 2 == 0:
                    A(f"s_waitcnt vmcnt({vm.wait(f'x{qt*2 + dt//2}')})")
                A(f"v_lshlrev_b32 v24, 16, v{r}")
                A(f"v_and_b32 v25, 0xffff0000, v{r}")
                A(f"v_lshlrev_b32 v26, 16, v{r+1}")
                A(f"v_and_b32 v27, 0xffff0000, v{r+1}")
                for k in range(4):
                    A(f"v_fmac_f32 v{a+k}, v{w2}, v{24+k}")
                A(f"v_cvt_pk_bf16_f32 v{a}, v{a}, v{a+1}")
                A(f"v_cvt_pk_bf16_f32 v{a+1}, v{a+2}, v{a+3}")
                A(f"ds_write_b64 v{vOW[dt]}, {vr(a, 2)} offset:{qt*8192}")
    else:
        run(sa_reads(2))
        A("s_waitcnt lgkmcnt(0)")
        A("s_barrier")
        run(wo_dma(4, vm) + wo_dma(5, vm) + wo_dma(6, vm))
    if S and OPT["xtouch"] and not OPT.get("gsc1") and not OPT.get("tall"):
        A(f"v_lshlrev_b32 v17, 4, v0")
        A(f"s_add_u32 {sT0}, {sXR}, {sW1K}")
        for k in range(8):
            A(f"s_add_u32 {sT1}, {sT0}, {40960 + k*4096}")
            put(dma([f"buffer_load_dwordx4 v[8:11], v17, {sWS}, {sT1} offen{XTF}"], "tch", vm))
    stamp(7, 5)
    def y_out(acc, slot):
        out = []
        co = slot * 2048
        for pr in range(2):
            a = acc + pr*8; b = a + 4
            out.append([f"v_cvt_pk_bf16_f32 v{a}, v{a}, v{a+1}", f"v_cvt_pk_bf16_f32 v{a+1}, v{a+2}, v{a+3}"])
            out.append([f"v_cvt_pk_bf16_f32 v{a+2}, v{b}, v{b+1}", f"v_cvt_pk_bf16_f32 v{a+3}, v{b+2}, v{b+3}"])
            out.append(f"s_add_u32 {sT1}, {sPA}, {co + pr*2*14336}")
            out.append([f"v_permlane16_swap_b32 v{a}, v{a+2}", f"v_permlane16_swap_b32 v{a+1}, v{a+3}"])
            out.append(f"buffer_store_dwordx4 {vr(a, 4)}, v{vS4}, {sWS}, {sT1} offen{YF}")
        a = acc + 16
        out.append([f"v_cvt_pk_bf16_f32 v{a}, v{a}, v{a+1}", f"v_cvt_pk_bf16_f32 v{a+1}, v{a+2}, v{a+3}"])
        out.append([f"s_add_u32 {sT1}, {sPA}, {co + 4*14336}", f"buffer_store_dwordx2 {vr(a, 2)}, v{vS2}, {sWS}, {sT1} offen{YF}"])
        return out

    lg.clear()
    if S:
        stamp(8, 5)
        A("s_barrier")
        stamp(9); stamp(6, 4); stamp(9, 5)
        SB, NB, SACC = 24, 6, 48
        seq = [(ps, ks, qt) for ps in range(2) for ks in range(8) for qt in range(5)]
        def bread(n):
            ps, ks, qt = seq[n]
            return lds(f"ds_read_b128 {vr(SB + (n % NB)*4, 4)}, v{vOBx[ks & 1]} offset:{qt*8192 + (ks >> 1)*2048}", f"b{n}")
        for n in range(NB - 1):
            put(bread(n))
        fill = []
        for n, (ps, ks, qt) in enumerate(seq):
            if n == 42:
                fill = y_out(SACC, 0) + y_out(SACC + 20, 1)
            if n == OPT["z4"]:
                A(f"s_waitcnt vmcnt({vm.wait('wo6')})")
                A("s_barrier")
            A(f"s_waitcnt lgkmcnt({lg.wait(f'b{n}')})")
            for tl in range(2):
                j = ps*2 + tl
                acc = vr(SACC + j*20 + qt*4, 4)
                A(f"v_mfma_f32_16x16x32_bf16 {acc}, {vr(SA + j*32 + ks*4, 4)}, {vr(SB + (n % NB)*4, 4)}, {'0' if ks == 0 else acc}")
                if tl == 0 and n + NB - 1 < len(seq):
                    put(bread(n + NB - 1))
                elif fill:
                    put(fill.pop(0))
        run(fill)
        run(y_out(SACC + 40, 2) + y_out(SACC + 60, 3))
        A(f"v_mov_b32 v12, v23")
    else:
        oa_addr()
        A(f"s_lshl_b32 {sT0}, {sW}, 6")
        A(f"v_add_u32 v12, {sT0}, v0")
        A("s_waitcnt lgkmcnt(0)")
        stamp(8, 5)
        A("s_barrier")
        stamp(9); stamp(6, 4); stamp(9, 5)
        steps = [(r, ks) for r in range(3) for ks in range(8)]
        def a_read(n):
            r, ks = steps[n]
            out = []
            for e in range(2):
                off = WSL[4 + r] + (32*ks + 4*e) * 128
                out.append(lds(f"ds_read_b64_tr_b16 {vr(E_A + (n & 3)*4 + e*2, 2)}, v{vOA[off >> 16]} offset:{off & 0xffff}", f"a{n}"))
            return out
        for ks in range(8):
            for qt in range(5):
                A(f"ds_read_b128 {vr(E_O + (qt*8 + ks)*4, 4)}, v{vOBx[ks & 1]} offset:{qt*8192 + (ks >> 1)*2048}")
        A("s_barrier")
        stamp(10, 5)
        run(a_read(0) + a_read(1))
        fill = []
        for n, (r, ks) in enumerate(steps):
            if ks == 1 and r >= 1:
                fill = y_out(E_ACC[(r - 1) & 1], 4 + r - 1)
            A(f"s_waitcnt lgkmcnt({lg.wait(f'a{n}')})")
            mfs = []
            for qt in range(5):
                acc = vr(E_ACC[r & 1] + qt*4, 4)
                mfs.append(f"v_mfma_f32_16x16x32_bf16 {acc}, {vr(E_A + (n & 3)*4, 4)}, {vr(E_O + (qt*8 + ks)*4, 4)}, {'0' if ks == 0 else acc}")
            rd = a_read(n + 2) if n + 2 < len(steps) else []
            if len(rd) > 2:
                weave(mfs, rd, per=2)
            else:
                weave(mfs, rd + [fill.pop(0) if fill else [] for _ in range(3)])
        run(fill)
        run(y_out(E_ACC[0], 6))
    stamp(10); stamp(7, 4); stamp(11, 5)
    A(f"""
    s_mul_i32 {sT0}, {sHQ}, 280
    v_add_u32 v1, {sT0}, v12
    v_lshrrev_b32 v2, 5, v1
    v_mul_u32_u24 v3, 2341, v2
    v_lshrrev_b32 v3, 16, v3
    v_mul_u32_u24 v4, 28, v3
    v_sub_u32 v4, v2, v4
    v_and_b32 v5, 15, v1
    v_lshl_add_u32 v5, v3, 4, v5
    v_bfe_u32 v6, v1, 4, 1
    v_lshlrev_b32 v6, 4, v6
    v_lshl_add_u32 v6, v4, 5, v6
    v_mul_u32_u24 v7, 896, v5
    v_add_u32 v6, v6, v7
    v_lshlrev_b32 v1, 4, v1
    v_mov_b32 v13, 0x7fffff00
    v_cmp_gt_u32 vcc, 280, v12
    v_cndmask_b32 v1, v13, v1, vcc
    v_cndmask_b32 v6, v13, v6, vcc
    s_waitcnt vmcnt(0)
    s_barrier
    """)
    stamp(8, 4)
    if S:
        signal_wait(0, f"v_lshlrev_b32 v29, 2, v0\n s_mov_b32 {sT2}, {sFLG}", 16, "fx")
        A("s_branch L_red")
    tr.append("red")
    A.trace(tr)
    return vm, vm_join


def gen_fallback(role, vm_join):
    S = role == "S"; R = role
    vm = VM(63)
    tr2 = [f"{R}_gl", f"{R}_post"]
    A.seg(f"{R}_fb"); tr2.append(f"{R}_fb")
    A(f"L_{R}_fallback:")
    A(f"""
    s_mov_b32 {sRETRY}, 1
    s_waitcnt vmcnt(0) lgkmcnt(0)
    s_barrier
    s_mov_b32 {sKO}, {sKV0}
    s_mov_b32 {sCNT}, 32
    """)
    if S:
        for qt in range(5):
            A(f"v_mov_b32 v{S_L+qt}, 0xff800000")
        v_addr()
    def s_tile():
        for hh in range(2):
            for s in range(4*hh, 4*hh + 4):
                A(f"ds_read_b128 {vr(S_KF + (s & 3)*4, 4)}, v{vKA[s & 1]} offset:{(s >> 1)*2048}")
            A("s_waitcnt lgkmcnt(0)")
            for s in range(4*hh, 4*hh + 4):
                for qt in range(5):
                    acc = vr(S_S[0] + qt*4, 4)
                    A(f"v_mfma_f32_16x16x32_bf16 {acc}, {vr(S_KF + (s & 3)*4, 4)}, {vr(S_Q + (qt*8 + s)*4, 4)}, {acc if s else '0'}")
    A.seg(f"{R}_fbl"); tr2 += [f"{R}_fbl", f"{R}_fbl"]
    A(f"L_{R}_fbl:")
    if S:
        run(k_lines(0))
        A("s_waitcnt vmcnt(0)")
        A("s_barrier")
        s_tile()
        for qt in range(5):
            a = S_S[0] + qt*4
            A(f"v_max3_f32 v{S_L+qt}, v{a}, v{a+1}, v{S_L+qt}")
            A(f"v_max3_f32 v{S_L+qt}, v{a+2}, v{a+3}, v{S_L+qt}")
        A("s_barrier")
    else:
        A("s_barrier")
        A("s_barrier")
    A(f"s_sub_u32 {sCNT}, {sCNT}, 1")
    A(f"s_cmp_lg_u32 {sCNT}, 0")
    A(f"s_cbranch_scc1 L_{R}_fbl")
    A.seg(f"{R}_fbe"); tr2 += [f"{R}_fbe", f"{R}_join", f"{R}_g0"]
    if S:
        A(f"s_mov_b32 {sKO}, {sKV0}")
        A(f"s_mov_b32 {sVO}, {sKV0}")
        run(k_lines(0) + k_lines(1) + v_lines(0) + k_lines(2))
        assert vm_join == ["K1"]*4 + ["V0"]*4 + ["K2"]*4, vm_join
        if OPT["prio"]:
            A(f"s_setprio {OPT['prio']}")
        A("s_waitcnt vmcnt(12)")
        A("s_barrier")
        s_tile()
    else:
        A("s_barrier")
    A(f"s_branch L_{R}_join")
    A.trace(tr2)


vmS, joinS = gen_role("S")
gen_fallback("S", joinS)
gen_fallback("PV", None) if False else None
vmP, joinP = gen_role("PV")

D0, AC = 96, 40
A.seg("red")
A("L_red:")
A("s_barrier")
stamp(11); stamp(9, 4)
A(f"""
s_cmp_ge_u32 {sW}, 5
s_cbranch_scc1 L_fin
s_lshl_b32 {sT2}, {sB}, 1
s_add_u32 {sT2}, {sT2}, {sHALF}
s_xor_b32 {sT3}, {sT2}, 1
s_mul_i32 {sT2}, {sT2}, {16*PART_BYTES}
s_mul_i32 {sT3}, {sT3}, {16*XCH_BYTES}
s_add_u32 {sT3}, {sT3}, {XCH_OFF}
s_mov_b32 {sT0}, {PART_BYTES}
s_cmp_eq_u32 {sLOC}, {2 if OPT.get("gsc1") else 1}
s_cselect_b32 {sT2}, {sT3}, {sT2}
s_cselect_b32 {sT0}, {XCH_BYTES}, {sT0}
s_mul_i32 {sT1}, {sHALF}, {80*896}
s_add_u32 {sT1}, {sT1}, {sXO}
""")
for p in range(16):
    A(f"buffer_load_dwordx4 {vr(D0 + p*4, 4)}, v1, {sWS}, {sT2} offen sc1")
    A(f"s_add_u32 {sT2}, {sT2}, {sT0}")
for p in range(16):
    A(f"s_waitcnt vmcnt({15 - p})")
    if p in (0, 15):
        stamp({0: 10, 15: 11}[p], 4)
    for r in range(4):
        d = D0 + p*4 + r
        if p == 0:
            A(f"v_lshlrev_b32 v{AC + 2*r}, 16, v{d}")
            A(f"v_and_b32 v{AC + 2*r + 1}, 0xffff0000, v{d}")
        else:
            A(f"v_lshlrev_b32 v{24 + 2*r}, 16, v{d}")
            A(f"v_and_b32 v{25 + 2*r}, 0xffff0000, v{d}")
    if p:
        for r in range(8):
            A(f"v_add_f32 v{AC + r}, v{AC + r}, v{24 + r}")
for r in range(4):
    A(f"v_cvt_pk_bf16_f32 v{20 + r}, v{AC + 2*r}, v{AC + 2*r + 1}")
A(f"buffer_store_dwordx4 v[20:23], v6, {sOUT}, {sT1} offen")
A("L_fin:")
if OPT["stamps"]:
    A("s_waitcnt vmcnt(0)")
    stamp(12)
    A("s_memrealtime s[58:59]")
    A("s_waitcnt lgkmcnt(0)")
    A("v_mov_b32 v20, s56")
    A("v_mov_b32 v21, s58")
    for k in range(2, 13):
        A(f"v_mov_b32 v{20+k}, s{76+2*k}")
    A("v_mov_b32 v33, 0")
    A("v_mov_b32 v34, 0")
    A("v_mov_b32 v35, 0")
    A(f"s_lshl_b32 {sT0}, s2, 9")
    A(f"s_lshl_b32 {sT1}, {sW}, 6")
    A(f"s_add_u32 {sT0}, {sT0}, {sT1}")
    A(f"s_add_u32 {sT0}, {sT0}, {STAMP_OFF}")
    A("v_mov_b32 v40, 0")
    for j in range(4):
        A(f"buffer_store_dwordx4 v[{20+4*j}:{23+4*j}], v40, {sWS}, {sT0} offen offset:{16*j}")
if OPT["stamps"] and OPT.get("dbg") is not None:
    A(f"s_cmp_lg_u32 s2, {OPT['dbg']}")
    A("s_cbranch_scc1 L_end")
    A(f"s_cmp_lg_u32 {sW}, 0")
    A("s_cbranch_scc1 L_end")
    A("v_sub_u32 v21, v21, v20")
    for k in range(12, 2, -1):
        A(f"v_sub_u32 v{20+k}, v{20+k}, v{19+k}")
    for j, r in enumerate([21] + list(range(23, 33))):
        w = j + 1 if j < 7 else j + 2
        A(f"buffer_store_dword v{r}, v40, {sDBG}, 0 offen offset:{4*w}")
A("L_end:")
A("s_endpgm")
gen_fallback("PV", joinP)

A.seg("desc")
A("L_codeend:")
A('.section .rodata,"a"')
A(".p2align 6")
A(f".amdhsa_kernel {KNAME}")
A(".amdhsa_next_free_vgpr 256")
A(".amdhsa_next_free_sgpr 102")
A(".amdhsa_accum_offset 256")
A(".amdhsa_group_segment_fixed_size 0")
A(".amdhsa_kernarg_size 64")
A(".amdhsa_user_sgpr_count 2")
A(".amdhsa_user_sgpr_kernarg_segment_ptr 1")
A(".amdhsa_system_sgpr_workgroup_id_x 1")
A(".end_amdhsa_kernel")

A.fix_hazards()
sys.stderr.write("nops: %s\n" % A.count_nops())
sys.stdout.write(A.text())
```

```python
import sys, struct, math
from asmlib import Asm, VM

OPT = dict(nt="nt", prio=1, stamps=0, fine=28, pre=4, touch=-1, xtouch=1, nloop=6, dstep=5, cw=2, ts=0, z4=30, wwarm=2, xt0=29, vpv=1, mapb=1, slp=4)
for a in sys.argv[1:]:
    k, v = a.split("=")
    OPT[k] = int(v) if v.lstrip("-").isdigit() else v
NT = (" " + OPT["nt"]) if OPT["nt"] not in ("", "none") else ""
NTV = NT if "ntv" not in OPT else ((" " + OPT["ntv"]) if OPT["ntv"] != "none" else "")
KNAME = "standalone__gqa_block_cached__near_ridge_kernel"

def f32(x):
    return "0x%08x" % struct.unpack("<I", struct.pack("<f", x))[0]

P_BUF = 0
VRING = 32768
KRING = 98304
MX_OFF = KRING + 3 * 16384
STG = [0, 53248, 106496]
XOFF = 32768
WSL = [98304, 131072, 65536, 32768, 98304, 131072, 65536]
ST_L = 28672
ST_M = ST_L + 1280
LDS_BYTES = 163840
PART_BYTES = 71680
XCH_BYTES = 71680 + 2048
XST = 71680
SCR = 20480
XCH_OFF = 256 * PART_BYTES
FLAG_OFF = XCH_OFF + 256 * XCH_BYTES
STAMP_OFF = 48 << 20

sX, sWQ, sVr, sWO, sWS, sKr = "s[4:7]", "s[8:11]", "s[12:15]", "s[16:19]", "s[20:23]", "s[60:63]"
sW, sB, sHQ, sHALF, sHKV = "s24", "s25", "s26", "s27", "s28"
sKO, sCNT, sRETRY = "s29", "s30", "s31"
sT0, sT1, sT2, sT3 = "s32", "s33", "s34", "s35"
sW1K, sXO, sWQO, sKDST, sKV0, sC, sWOO, sPART = "s36", "s37", "s38", "s39", "s40", "s41", "s42", "s43"
sQH, sKH, sDQ, sHP = "s44", "s45", "s46", "s47"
sLIM, sVO, sVDST = "s48", "s49", "s3"
sXS, sXR = "s64", "s65"
sFLG, sLOC = "s66", "s67"
sXT = ["s50", "s51", "s52"]
sPA, sPB, sPC = "s50", "s51", "s52"
WOF = " " + OPT.get("wof", "none").replace("+", " ").replace("none", "")
YF = " sc1" if OPT.get("gsc1") else ""
sXTC = "s53"
XTF = " " + OPT.get("xtf", "sc1").replace("+", " ").replace("none", "")
sDBG = "s[68:71]"
sOUT = "s[72:75]"

A = Asm()
_lab = [0]

def stamp(k, mode=1):
    if OPT["stamps"] == mode or (OPT["stamps"] and k in (2, 12)):
        A(f"s_memtime s[{76+2*k}:{77+2*k}]")
    if OPT["stamps"] == 6 and mode == 1 and k in (5, 7, 8, 10):
        j = {5: 3, 7: 5, 8: 7, 10: 9}[k]
        A(f"s_memtime s[{76+2*j}:{77+2*j}]")
        A(f"s_memrealtime s[{78+2*j}:{79+2*j}]")

def vr(b, n):
    return f"v[{b}:{b+n-1}]" if n > 1 else f"v{b}"

def put(f):
    if callable(f):
        f()
    elif isinstance(f, (list, tuple)):
        for x in f:
            put(x)
    else:
        A(f)

def weave(main, fill, per=1):
    fill = list(fill)
    for m in main:
        put(m)
        for _ in range(per):
            if fill:
                put(fill.pop(0))
    for f in fill:
        put(f)

def run(fs):
    for f in fs:
        put(f)

def only_S(lines):
    def f():
        _lab[0] += 1
        A(f"s_cmp_ge_u32 {sW}, 4")
        A(f"s_cbranch_scc1 L_sk{_lab[0]}")
        for x in lines:
            A(x + " ; cond")
        A(f"L_sk{_lab[0]}:")
    return f

vI, vG = 40, 41
vXD, vWD = 42, 43
vW = [44, 45, 46, 47]
vXR = [48, 49]
vQW = [50, 51, 52, 53]
vQL = [54, 55]
vPVa = [56, 57, 58, 59, 60]
vA0 = 19
vKD = 16
vVD = [12, 13, 14, 15]
QACC = 176
QA = [96, 112]
QB = [128, 148]
S_Q, S_NM, S_KF, S_L = 96, 36, 20, 7
S_S = [56, 76]
vKA = [1, 2]; vPW = 3; vMX = 4
S_T = [5, 6, 17, 18]
O_ACC, P_A, P_B = 96, 76, 56
VT = [40, 24]
vVB = [1, 2, 20, 21]; vPR = 3; vOW = [4, 5, 6, 7]
vWOD = 12
E_O = 96
E_ACC = [56, 76]
E_A = 36
vOA = [1, 2, 3]; vOB = [5, 6]; vST4 = 7; vST2 = 8; vSTAT = 10

A.seg("head")
A("; @launch grid=(256,1,1) block=(512,1,1) lds=%d" % LDS_BYTES)
A('.amdgcn_target "amdgcn-amd-amdhsa--gfx950"')
A(".text")
A(f".globl {KNAME}")
A(".p2align 8")
A(f".type {KNAME},@function")
A(f"{KNAME}:")
A.seg("entry")
A(f"""
s_cmp_ge_u32 s2, 256
s_cbranch_scc1 L_end
s_load_dwordx16 s[64:79], s[0:1], 0
""")
if OPT["stamps"]:
    A("s_memrealtime s[56:57]")
    stamp(2)
A(f"""
s_and_b32 {sB if OPT.get("mapb") else sHKV}, s2, 7
s_lshr_b32 {sT0}, s2, 3
s_lshr_b32 {sHKV if OPT.get("mapb") else sB}, {sT0}, 2
s_and_b32 {sT1}, {sT0}, 1
s_lshr_b32 {sHALF}, {sT0}, 1
s_and_b32 {sHALF}, {sHALF}, 1
s_lshl_b32 {sHQ}, {sHKV}, 1
s_add_u32 {sHQ}, {sHQ}, {sT1}
v_lshrrev_b32 v1, 6, v0
v_and_b32 v0, 63, v0
v_readfirstlane_b32 {sW}, v1
s_mul_i32 {sXO}, {sB}, 143360
s_lshl_b32 {sWQO}, {sHQ}, 9
v_and_b32 v{vI}, 15, v0
v_lshrrev_b32 v{vG}, 4, v0
s_lshl_b32 {sW1K}, {sW}, 10
s_lshr_b32 {sHP}, {sW}, 2
s_and_b32 {sQH}, {sW}, 1
s_lshl_b32 {sT0}, {sQH}, 2
v_add_u32 v5, {sT0}, v{vG}
v_and_b32 v6, 7, v0
v_xor_b32 v5, v5, v6
v_lshlrev_b32 v5, 4, v5
v_lshrrev_b32 v6, 3, v0
v_mul_u32_u24 v6, 896, v6
v_add_u32 v{vXD}, v5, v6
s_mul_i32 {sT0}, {sHALF}, 10
s_add_u32 {sT0}, {sT0}, {sW}
s_sub_u32 {sT1}, {sT0}, 20
s_cmp_ge_u32 {sT0}, 20
s_cselect_b32 {sT1}, {sT1}, {sT0}
s_mul_i32 {sT1}, {sT1}, 7168
s_add_u32 {sXT[0]}, {sT1}, {sXO}
s_add_u32 {sT0}, {sT0}, 8
s_sub_u32 {sT1}, {sT0}, 20
s_cmp_ge_u32 {sT0}, 20
s_cselect_b32 {sT1}, {sT1}, {sT0}
s_mul_i32 {sT1}, {sT1}, 7168
s_add_u32 {sXT[1]}, {sT1}, {sXO}
s_add_u32 {sT0}, {sT0}, 8
s_sub_u32 {sT1}, {sT0}, 20
s_cmp_ge_u32 {sT0}, 20
s_cselect_b32 {sT1}, {sT1}, {sT0}
s_mul_i32 {sT1}, {sT1}, 7168
s_add_u32 {sXT[2]}, {sT1}, {sXO}
v_lshrrev_b32 v5, 5, v0
s_lshl_b32 {sT0}, {sW}, 1
v_add_u32 v5, {sT0}, v5
v_and_b32 v6, 3, v5
s_lshl_b32 {sT0}, {sHP}, 2
v_or_b32 v6, {sT0}, v6
v_bfe_u32 v7, v0, 1, 4
v_xor_b32 v6, v6, v7
v_lshlrev_b32 v6, 5, v6
v_and_b32 v7, 1, v0
v_lshlrev_b32 v7, 4, v7
v_lshlrev_b32 v5, 13, v5
v_add3_u32 v{vWD}, v5, v6, v7
s_mov_b32 s6, 1146880
s_mov_b32 s7, 0x20000
s_mov_b32 s10, 3670016
s_mov_b32 s11, 0x20000
s_waitcnt lgkmcnt(0)
s_mov_b32 s4, s64
s_mov_b32 s5, s65
s_mov_b32 s8, s70
s_mov_b32 s9, s71
""")
stamp(3, 3)

vm = VM(63)

def dma(lines, tag, v=None):
    def f():
        for x in lines:
            A(x)
        (v or vm).issue(tag)
    return f

def stage_dma(s):
    sb = STG[s % 3]
    out = []
    for t in range(4):
        out.append(dma([f"s_add_u32 m0, {sW1K}, {sb + t*8192}",
                        f"s_add_u32 {sT0}, {sWQO}, {(s*64 + 16*t) * 8192}",
                        f"buffer_load_dwordx4 v{vWD}, {sWQ}, {sT0} offen lds"], f"st{s}"))
    for t in range(3):
        l = [f"s_add_u32 m0, {sW1K}, {sb + XOFF + t*8192}",
             f"s_add_u32 {sT0}, {sXT[t]}, {s*128}",
             f"buffer_load_dwordx4 v{vXD}, {sX}, {sT0} offen lds"]
        out.append(dma(l, f"st{s}") if t < 2 else only_S(l))
    return [out[6]] + out[:6]

def k_lines(i):
    slot = i & 3
    out = []
    for sg in range(4):
        l = [f"s_add_u32 m0, {sKDST}, {slot*16384 + sg*2048 - sg*128}", "s_nop 0",
             f"buffer_load_dwordx4 v{vKD}, {sKr}, {sKO} offen offset:{sg*128}{NT} lds"]
        if sg == 3:
            l.append(f"s_add_u32 {sKO}, {sKO}, {0 if OPT.get('samekv') else 16384}")
        out.append(l)
    return out

def v_lines(t):
    pos = (t + 3) & 3
    out = []
    for jj in range(4):
        l = [f"s_add_u32 m0, {sVDST}, {pos*16384 + jj*1024}", "s_nop 0",
             f"buffer_load_dwordx4 v{vVD[jj]}, {sVr}, {sVO} offen{NTV} lds"]
        if jj == 3:
            l.append(f"s_add_u32 {sVO}, {sVO}, {0 if OPT.get('samekv') else 16384}")
        out.append(l)
    return out

run(stage_dma(0))
def code_warm(lab, wave, lds_dst, va):
    A(f"""
    s_cmp_lg_u32 {sW}, {wave}
    s_cbranch_scc1 L_cw{lab}
    s_getpc_b64 s[54:55] ; cond
    L_pc{lab}:
    s_lshr_b32 {sT0}, s2, 3 ; cond
    s_mul_i32 {sT0}, {sT0}, 1280 ; cond
    s_min_u32 {sT0}, {sT0}, L_codeend - {KNAME} - 2048 ; cond
    s_sub_u32 {sT0}, {sT0}, L_pc{lab} - {KNAME} ; cond
    s_ashr_i32 {sT1}, {sT0}, 31 ; cond
    s_add_u32 s54, s54, {sT0} ; cond
    s_addc_u32 s55, s55, {sT1} ; cond
    v_lshlrev_b32 v{va}, 4, v0 ; cond
    s_mov_b32 m0, {lds_dst} ; cond
    s_nop 0 ; cond
    global_load_lds_dwordx4 v{va}, s[54:55] ; cond
    global_load_lds_dwordx4 v{va}, s[54:55] offset:1024 ; cond
    L_cw{lab}:
    """)
if OPT["cw"]:
    code_warm("a", 5, 159744, 8)
stamp(4, 3)
A.seg("pro")
A(f"""
s_mov_b32 s16, s72
s_mov_b32 s17, s73
s_mov_b32 s18, 3670016
s_mov_b32 s19, 0x20000
s_mov_b32 s20, s78
s_mov_b32 s21, s79
s_mov_b32 s22, 0x10000000
s_mov_b32 s23, 0x20000
s_mov_b32 s12, s68
s_mov_b32 s13, s69
s_mov_b32 s14, 0x4000000
s_mov_b32 s15, 0x20000
s_mov_b32 s60, s66
s_mov_b32 s61, s67
s_mov_b32 s62, 0x4000000
s_mov_b32 s63, 0x20000
s_mov_b32 {sRETRY}, 0
s_mov_b32 {sC}, {f32(math.log2(math.e) / 16.0)}
s_mov_b32 {sLIM}, {f32(2.0 ** 30)}
s_mul_i32 {sWOO}, {sHQ}, 229376
s_lshl_b32 {sT0}, {sB}, 3
s_add_u32 {sT0}, {sT0}, {sHKV}
s_lshl_b32 {sT0}, {sT0}, 1
s_add_u32 {sT0}, {sT0}, {sHALF}
s_lshl_b32 {sKV0}, {sT0}, 19
s_mov_b32 s68, s76
s_mov_b32 s69, s77
s_mov_b32 s70, 256
s_mov_b32 s71, 0x20000
s_mov_b32 s72, s74
s_mov_b32 s73, s75
s_mov_b32 s74, 1146880
s_mov_b32 s75, 0x20000
s_lshl_b32 {sT0}, {sB}, 1
s_add_u32 {sT0}, {sT0}, {sHALF}
s_lshl_b32 {sFLG}, {sT0}, 7
s_add_u32 {sFLG}, {sFLG}, {FLAG_OFF}
s_lshl_b32 {sT0}, {sT0}, 4
s_add_u32 {sT0}, {sT0}, {sHQ}
s_mul_i32 {sPART}, {sT0}, {PART_BYTES}
s_mul_i32 {sXS}, {sT0}, {XCH_BYTES}
s_add_u32 {sXS}, {sXS}, {XCH_OFF}
s_xor_b32 {sT0}, {sT0}, 16
s_mul_i32 {sXR}, {sT0}, {XCH_BYTES}
s_add_u32 {sXR}, {sXR}, {XCH_OFF}
s_and_b32 {sDQ}, {sW}, 3
s_lshr_b32 {sKH}, {sDQ}, 1
v_lshrrev_b32 v30, 3, v{vI}
v_lshlrev_b32 v30, 10, v30
v_and_b32 v31, 7, v{vI}
v_lshlrev_b32 v31, 7, v31
v_lshrrev_b32 v32, 1, v{vI}
v_xor_b32 v33, v{vG}, v32
v_lshlrev_b32 v33, 4, v33
v_add3_u32 v{vA0}, v30, v31, v33
s_mul_i32 {sT0}, {sHP}, 10240
s_add_u32 {sT0}, {sT0}, {XOFF}
v_add_u32 v{vXR[0]}, {sT0}, v{vA0}
v_xor_b32 v{vXR[1]}, 64, v{vXR[0]}
v_lshrrev_b32 v24, 2, v{vI}
v_and_b32 v25, 1, v{vG}
v_lshlrev_b32 v25, 2, v25
v_or_b32 v25, v25, v24
v_lshl_add_u32 v26, v{vG}, 3, v24
v_lshlrev_b32 v26, 9, v26
v_and_b32 v27, 3, v0
v_lshl_add_u32 v26, v27, 3, v26
s_lshl_b32 {sT0}, {sDQ}, 2
v_xor_b32 v25, {sT0}, v25
""")
for m in range(4):
    A(f"v_xor_b32 v28, {m}, v25")
    A(f"v_lshl_add_u32 v{vW[m]}, v28, 5, v26")
stamp(5, 3)
A("s_barrier")
run(stage_dma(1))
stamp(6, 3)
A(f"""
v_lshrrev_b32 v24, 1, v{vG}
v_xor_b32 v24, v24, v32
v_and_b32 v25, 1, v{vG}
v_lshlrev_b32 v25, 3, v25
v_add3_u32 v25, v30, v31, v25
s_mul_i32 {sT0}, {sHP}, 40960
s_lshl_b32 {sT1}, {sDQ}, 11
s_add_u32 {sT0}, {sT0}, {sT1}
v_add_u32 v25, {sT0}, v25
""")
for m in range(4):
    A(f"v_xor_b32 v28, {2*m}, v24")
    A(f"v_lshl_add_u32 v{vQW[m]}, v28, 4, v25")
A(f"""
s_mov_b32 {sVO}, {sKV0}
s_mov_b32 {sKO}, {sKV0}
s_lshl_b32 {sT0}, {sQH}, 2
v_add_u32 v24, {sT0}, v{vG}
v_and_b32 v25, 7, v0
v_xor_b32 v24, v24, v25
v_lshlrev_b32 v24, 4, v24
v_lshrrev_b32 v25, 3, v0
s_lshl_b32 {sT0}, {sKH}, 4
s_lshl_b32 {sT1}, {sQH}, 3
s_add_u32 {sT0}, {sT0}, {sT1}
v_add_u32 v25, {sT0}, v25
v_lshl_add_u32 v{vKD}, v25, 9, v24
s_lshl_b32 {sT0}, {sKH}, 13
s_lshl_b32 {sT1}, {sQH}, 10
s_add_u32 {sKDST}, {sT0}, {sT1}
s_add_u32 {sKDST}, {sKDST}, {KRING}
""")
def v_addr():
    A(f"""
    v_bfe_u32 v24, v0, 4, 1
    v_lshlrev_b32 v24, 1, v24
    v_and_b32 v25, 7, v0
    v_xor_b32 v24, v24, v25
    v_lshlrev_b32 v24, 4, v24
    v_lshrrev_b32 v25, 3, v0
    v_lshl_add_u32 v24, v25, 9, v24
    s_lshl_b32 {sT0}, {sDQ}, 7
    v_add_u32 v{vVD[0]}, {sT0}, v24
    v_xor_b32 v24, 64, v{vVD[0]}
    v_add_u32 v{vVD[1]}, 4096, v24
    v_add_u32 v{vVD[2]}, 8192, v{vVD[0]}
    v_add_u32 v{vVD[3]}, 12288, v24
    """)
v_addr()
A(f"""
s_cmp_lg_u32 {sW}, 4
s_cbranch_scc1 L_noclr
v_and_b32 v24, 1, v0 ; cond
v_lshlrev_b32 v24, 6, v24 ; cond
s_lshl_b32 {sT1}, {sHQ}, 2 ; cond
v_add_u32 v24, {sT1}, v24 ; cond
v_mov_b32 v25, 0 ; cond
buffer_store_dword v25, v24, {sWS}, {sFLG} offen sc1 ; cond
L_noclr:
s_lshl_b32 {sVDST}, {sDQ}, 12
s_add_u32 {sVDST}, {sVDST}, {VRING}
s_mul_i32 {sT0}, {sQH}, 40960
v_add_u32 v{vQL[0]}, {sT0}, v{vA0}
v_xor_b32 v{vQL[1]}, 64, v{vQL[0]}
v_lshrrev_b32 v24, 1, v{vG}
s_lshl_b32 {sT0}, {sKH}, 1
v_add_u32 v24, {sT0}, v24
v_mul_u32_u24 v24, 2560, v24
v_and_b32 v25, 1, v{vG}
v_lshl_add_u32 v24, v25, 3, v24
s_mul_i32 {sT0}, {sQH}, 80
v_add_u32 v25, {sT0}, v{vI}
v_lshl_add_u32 v{vPW}, v25, 4, v24
s_lshl_b32 {sT0}, {sKH}, 2
s_add_u32 {sT0}, {sT0}, {MX_OFF}
v_lshlrev_b32 v25, 3, v25
v_add_u32 v{vMX}, {sT0}, v25
s_lshl_b32 {sT0}, {sKH}, 13
s_add_u32 {sT0}, {sT0}, {KRING}
v_add_u32 v{vKA[0]}, {sT0}, v{vA0}
v_xor_b32 v{vKA[1]}, 64, v{vKA[0]}
v_lshrrev_b32 v30, 2, v{vI}
v_lshl_add_u32 v32, v{vG}, 3, v30
v_lshlrev_b32 v32, 7, v32
v_and_b32 v33, 3, v0
v_lshl_add_u32 v32, v33, 3, v32
v_add_u32 v32, {sVDST}, v32
v_lshrrev_b32 v30, 1, v30
v_and_b32 v33, 1, v{vG}
v_lshl_add_u32 v30, v33, 1, v30
v_lshl_add_u32 v{vPVa[0]}, v30, 5, v32
v_xor_b32 v{vPVa[1]}, 32, v{vPVa[0]}
v_xor_b32 v{vPVa[2]}, 64, v{vPVa[0]}
v_xor_b32 v{vPVa[3]}, 96, v{vPVa[0]}
v_mul_u32_u24 v31, 2560, v{vG}
v_lshl_add_u32 v{vPVa[4]}, v{vI}, 4, v31
""")
for qt in range(5):
    A(f"v_mov_b32 v{S_L+qt}, 0xff800000")

def q_reads(s2):
    out = []
    for qt in range(5):
        out.append(f"ds_read_b128 {vr(QB[s2] + qt*4, 4)}, v{vXR[s2]} offset:{qt*2048}")
    for m in range(4):
        for e in range(2):
            out.append(f"ds_read_b64_tr_b16 {vr(QA[s2] + m*4 + e*2, 2)}, v{vW[m]} offset:{(32*s2 + 4*e) * 512}")
    return out

def q_mfma(s2, first):
    out = []
    for m in range(4):
        for qt in range(5):
            acc = vr(QACC + (m*5 + qt) * 4, 4)
            out.append(f"v_mfma_f32_16x16x32_bf16 {acc}, {vr(QA[s2] + m*4, 4)}, {vr(QB[s2] + qt*4, 4)}, {'0' if first else acc}")
    return out

if OPT.get("pprio"):
    put(only_S(["s_setprio 1"]))
for s in range(7):
    if s in (3, 4):
        stamp(3 if s == 3 else 9, 9)
    A(f"s_waitcnt vmcnt({vm.wait(f'st{s}')})")
    if s in (3, 4):
        stamp(4 if s == 3 else 10, 9)
    if s == 0:
        stamp(7, 3)
    A("s_barrier")
    if s <= 3:
        stamp(8 + s, 3)
    if s in (3, 4):
        stamp(5 if s == 3 else 11, 9)
    if s == 0:
        stamp(3)
    d = []
    if 0 <= s <= 4:
        d = stage_dma(s + 2)
    if s == 6:
        kl = k_lines(0) + k_lines(1) + v_lines(0) + k_lines(2)
        d = [only_S(kl[2*j] + kl[2*j + 1]) for j in range(8)]
    upd = []
    if s < 6:
        dl = STG[(s + 1) % 3] - STG[s % 3]
        upd = [[f"s_mov_b32 {sT1}, {dl & 0xffffffff}", f"v_add_u32 v{vW[0]}, {sT1}, v{vW[0]}"]] + \
              [f"v_add_u32 v{r}, {sT1}, v{r}" for r in vW[1:] + vXR]
    def spread(n, items, start, step):
        out = [[] for _ in range(n)]
        rest = []
        for k, it in enumerate(items):
            p = start + k*step
            if p < n:
                out[p] = it
            else:
                rest.append(it)
        return out, rest
    def merge(a_, b_):
        n = max(len(a_), len(b_))
        a_ = list(a_) + [[]]*(n - len(a_)); b_ = list(b_) + [[]]*(n - len(b_))
        return [[x, y] for x, y in zip(a_, b_)]
    st = OPT["dstep"] if s < 6 else 2
    if s >= 1:
        d1, d = spread(20, d, 1, st)
        weave(q_mfma(1, False), merge(q_reads(0), d1))
    else:
        weave(q_reads(0), [])
    if s == 3:
        stamp(6, 9)
    A("s_waitcnt lgkmcnt(0)")
    if s == 3:
        stamp(7, 9)
    d2, d = spread(20, d, 1, st if s else 3)
    if s == 0:
        weave(q_mfma(0, True), merge(q_reads(1) + upd, d2) + d)
    else:
        weave(q_mfma(0, False), merge([[], []] + q_reads(1) + upd, d2) + d)
    if s == 3:
        stamp(8, 9)
    A("s_waitcnt lgkmcnt(0)")
stamp(4)
A("s_barrier")

def q_out(idx):
    m, qt = divmod(idx, 5)
    a = QACC + idx * 4
    return [f"v_mul_f32 v{a}, {sC}, v{a}", f"v_mul_f32 v{a+1}, {sC}, v{a+1}",
            f"v_mul_f32 v{a+2}, {sC}, v{a+2}", f"v_mul_f32 v{a+3}, {sC}, v{a+3}",
            f"v_cvt_pk_bf16_f32 v{a}, v{a}, v{a+1}", f"v_cvt_pk_bf16_f32 v{a+1}, v{a+2}, v{a+3}",
            f"ds_write_b64 v{vQW[m]}, {vr(a, 2)} offset:{qt*8192}"]
for j, mf in enumerate(q_mfma(1, False)):
    A(mf)
    if j >= 3:
        run(q_out(j - 3))
for j in range(17, 20):
    run(q_out(j))
A(f"s_cmp_ge_u32 {sW}, 4")
A("s_cbranch_scc1 L_PV")


def wo_addr():
    A(f"""
    v_bfe_u32 v13, v0, 4, 1
    s_lshl_b32 {sT0}, {sQH}, 1
    v_or_b32 v13, {sT0}, v13
    v_lshlrev_b32 v13, 1, v13
    v_and_b32 v14, 7, v0
    v_xor_b32 v13, v13, v14
    v_lshrrev_b32 v14, 3, v0
    s_lshl_b32 {sT0}, {sW}, 3
    v_add_u32 v14, {sT0}, v14
    v_mul_u32_u24 v14, 896, v14
    v_lshl_add_u32 v{vWOD}, v13, 4, v14
    """)

def wo_dma(j, v):
    out = []
    for t in range(8):
        out.append(dma([f"s_add_u32 m0, {sW1K}, {WSL[j] + t*4096}",
                        f"s_add_u32 {sT0}, {sWOO}, {t*28672 + j*128}",
                        f"buffer_load_dwordx4 v{vWOD}, {sWO}, {sT0} offen{WOF} lds"], f"wo{j}", v))
    return out


def gen_role(role):
    S = role == "S"
    R = role
    vm = VM(63)
    lg = VM(15)
    tr = ["entry", "pro"]

    def seg(n):
        A.seg(f"{R}_{n}")
        tr.append(f"{R}_{n}")

    def k_dma(i):
        return [dma(l, f"K{i}", vm) for l in k_lines(i)]

    def v_dma(t):
        return [dma(l, f"V{t}", vm) for l in v_lines(t)]

    def lds(line, tag):
        def f():
            A(line)
            lg.issue(tag)
        return f

    def fst(i, k):
        if i == OPT["fine"]:
            stamp(k, 2)
        if k == 8 and 28 <= i <= 33:
            stamp(i - 24, 7)
        if k == 7 and 31 <= i <= 32:
            stamp(i - 21, 7)
        if k == 8 and 1 <= i <= 3:
            stamp(i + 5, 8)

    def kread(i, s):
        return lds(f"ds_read_b128 {vr(S_KF + (s & 3)*4, 4)}, v{vKA[s & 1]} offset:{(i & 3)*16384 + (s >> 1)*2048}", f"kf{s}")

    def s_mfma(i, s, qt):
        acc = vr(S_S[i & 1] + qt*4, 4)
        c = acc if s else ("0" if i == 0 else vr(S_NM + qt*4, 4))
        return f"v_mfma_f32_16x16x32_bf16 {acc}, {vr(S_KF + (s & 3)*4, 4)}, {vr(S_Q + (qt*8 + s)*4, 4)}, {c}"

    def end_wait(i):
        need = [t for t in (f"K{i+1}", f"V{i}") if vm.has(t) and t != "V1"]
        if need:
            last = max(need, key=lambda t: max(k for k, x in enumerate(vm.q) if x == t))
            A(f"s_waitcnt vmcnt({vm.wait(last)}) lgkmcnt(0)")
        else:
            A("s_waitcnt lgkmcnt(0)")
        lg.clear()

    seg("i0")
    if S:
        for t in ["K0"]*4 + ["K1"]*4 + ["V0"]*4 + ["K2"]*4:
            vm.issue(t)
        if OPT["prio"]:
            A(f"s_setprio {OPT['prio']}")
        A(f"s_waitcnt vmcnt({vm.wait('K0')}) lgkmcnt(0)")
        stamp(9, 8)
        A("s_barrier")
        stamp(5); stamp(3, 8)
        def grp(s):
            return [kread(0, s)] + [lds(f"ds_read_b128 {vr(S_Q + (qt*8 + s)*4, 4)}, v{vQL[s & 1]} offset:{qt*8192 + (s >> 1)*2048}", f"kf{s}")
                                    for qt in range(5)]
        run(grp(0) + grp(1))
        for s in range(8):
            A(f"s_waitcnt lgkmcnt({lg.wait(f'kf{s}')})")
            weave([s_mfma(0, s, qt) for qt in range(5)], grp(s + 2) if s + 2 < 8 else [], per=2)
    else:
        A("L_PV:")
        for j in range(4):
            A(f"v_mov_b32 v{vVB[j]}, v{vPVa[j]}")
            A(f"v_subrev_u32 v{vOW[j]}, 40960, v{vQW[j]}")
        A(f"v_mov_b32 v{vPR}, v{vPVa[4]}")
        A("s_waitcnt lgkmcnt(0)")
        A("s_barrier")
        stamp(5)
        A(f"""
        s_cmp_lg_u32 {sW}, 4
        s_cbranch_scc1 L_noreg
        s_getreg_b32 {sT0}, hwreg(HW_REG_XCC_ID)
        s_and_b32 {sT0}, {sT0}, 15
        s_mul_i32 {sT1}, {sT0}, {sT0}
        s_lshl_b32 {sT1}, {sT1}, 18
        s_lshl_b32 {sT0}, {sT0}, 8
        s_add_u32 {sT0}, {sT0}, {sT1}
        s_add_u32 {sT0}, {sT0}, 1
        v_mov_b32 v23, 0
        v_mov_b32 v22, {sT0}
        s_lshl_b32 {sT1}, {sB}, 5
        s_mov_b64 exec, 1
        buffer_atomic_add v22, v23, {sDBG}, {sT1} offen
        s_mov_b64 exec, -1
        L_noreg:
        """)
    vm_join = list(vm.q)
    stamp(11, 8)
    seg("join")
    A(f"L_{R}_join:")
    if S:
        SS = S_S[0]
        for qt in range(5):
            a = SS + qt*4; t = S_KF + qt*2
            A(f"v_max3_f32 v{t}, v{a}, v{a+1}, v{S_L+qt}")
            A(f"v_max3_f32 v{t}, v{a+2}, v{a+3}, v{t}")
            A(f"v_mov_b32 v{t+1}, v{t}")
        for qt in range(5):
            t = S_KF + qt*2
            A(f"v_permlane32_swap_b32 v{t}, v{t+1}")
        for qt in range(5):
            t = S_KF + qt*2
            A(f"v_max_f32 v{t}, v{t}, v{t+1}")
            A(f"v_mov_b32 v{t+1}, v{t}")
        for qt in range(5):
            t = S_KF + qt*2
            A(f"v_permlane16_swap_b32 v{t}, v{t+1}")
        for qt in range(5):
            t = S_KF + qt*2
            A(f"v_max_f32 v{t}, v{t}, v{t+1}")
            A(f"ds_write_b32 v{vMX}, v{t} offset:{qt*128}")
        A("s_waitcnt lgkmcnt(0)")
        stamp(10, 8)
        A("s_barrier")
        stamp(4, 8)
        A(f"v_and_b32 v5, 0xfffffffb, v{vMX}")
        for qt in range(5):
            A(f"ds_read_b64 {vr(S_KF + qt*2, 2)}, v5 offset:{qt*128}")
        run(v_dma(1) + v_dma(2))
        for qt in range(5):
            t = S_KF + qt*2
            A(f"s_waitcnt lgkmcnt({4 - qt})")
            A(f"v_max_f32 v{t}, v{t}, v{t+1}")
            for r in range(4):
                A(f"v_sub_f32 v{S_NM + qt*4 + r}, 0, v{t}")
            for r in range(4):
                A(f"v_sub_f32 v{SS + qt*4 + r}, v{SS + qt*4 + r}, v{t}")
        end_wait(0)
        A("s_barrier")
        stamp(5, 8)
    else:
        A("s_barrier")
        A("s_barrier")

    def softmax_fill(j):
        SS = S_S[j & 1]; buf = j & 1
        out = []
        for qt in range(5):
            a = SS + qt*4
            t0, t1 = (S_T[0], S_T[1]) if qt % 2 == 0 else (S_T[2], S_T[3])
            ex = [(2, f"v_exp_f32 v{a+r}, v{a+r}") for r in range(4)]
            wr = lds(f"ds_write_b64 v{vPW}, {vr(a, 2)} offset:{P_BUF + buf*10240 + qt*256}", "pw")
            post = [(1, f"v_add_f32 v{t0}, v{a}, v{a+1}"), (1, f"v_add_f32 v{t1}, v{a+2}, v{a+3}"),
                    (1, f"v_cvt_pk_bf16_f32 v{a}, v{a}, v{a+1}"), (1, f"v_cvt_pk_bf16_f32 v{a+1}, v{a+2}, v{a+3}"),
                    (1, f"v_add_f32 v{t0}, v{t0}, v{t1}"), (1, wr),
                    (1, f"v_mov_b32 v{S_L+qt}, v{t0}" if j == 0 else f"v_add_f32 v{S_L+qt}, v{S_L+qt}, v{t0}")]
            out.append((ex, post))
        seq = list(out[0][0])
        for qt in range(5):
            if qt + 1 < 5:
                e = out[qt + 1][0]; p = out[qt][1]
                seq += [e[0], p[0], p[1], e[1], p[2], p[3], e[2], p[4], p[5], e[3], p[6]]
            else:
                seq += out[qt][1]
        return seq

    def s_interval(i):
        fill = softmax_fill(i - 1)
        def fput(n):
            while fill and n >= fill[0][0]:
                c, it = fill.pop(0)
                n -= c
                put(it)
        fst(i, 3)
        if i <= 31:
            for s in range(4):
                put(kread(i, s))
            d = []
            if i == 1:
                d += k_dma(3)
            if i + 3 <= 31:
                d += k_dma(i + 3)
            if i == 29:
                d += [wo_addr] + wo_dma(0, vm)[:4]
            if i == 30:
                d += wo_dma(0, vm)[4:]
            if i == 31:
                d += wo_dma(1, vm)[:4]
            for f in d:
                f()
                fput(OPT["pre"])
            for s in range(8):
                A(f"s_waitcnt lgkmcnt({lg.wait(f'kf{s}')})")
                if s == 0:
                    fst(i, 4)
                    if OPT.get("dprio"):
                        A("s_setprio 2")
                for qt in range(5):
                    A(s_mfma(i, s, qt))
                    if qt == 1 and 1 <= s <= 4:
                        put(kread(i, s + 3))
                        fput(1)
                    elif qt == 4:
                        fput(1)
                    else:
                        fput(2)
            if OPT.get("dprio"):
                A("s_setprio 0")
            fst(i, 5)
        fput(1000)
        fst(i, 6)
        if i == 30:
            run(wo_dma(2, vm)[4:])
        if i == 31:
            run(wo_dma(3, vm)[:4])
        if i == 32:
            run(wo_dma(1, vm)[4:] + wo_dma(3, vm)[4:])
        end_wait(i)
        fst(i, 7)
        A("s_barrier")
        fst(i, 8)

    def vt_reads(t):
        pos = (t + 3) & 3
        out = []
        for dt in range(4):
            for e in range(2):
                out.append(f"ds_read_b64_tr_b16 {vr(VT[t & 1] + dt*4 + e*2, 2)}, v{vVB[dt]} offset:{pos*16384 + 4*e*128}")
        return out

    def oacc(qt, dt):
        return O_ACC + (qt*4 + dt)*4

    def pv_mfma(t, own, P, first):
        out = []
        for j in range(5):
            qt = j if own else 5 + j
            for dt in range(4):
                acc = vr(oacc(qt, dt), 4)
                out.append(f"v_mfma_f32_16x16x32_bf16 {acc}, {vr(VT[t & 1] + dt*4, 4)}, {vr(P + j*4, 4)}, {'0' if first else acc}")
        return out

    def send(j):
        out = []
        for dp in range(2):
            a = oacc(5 + j, dp*2)
            out.append([f"v_cvt_pk_bf16_f32 v{a+k}, v{a+2*k}, v{a+2*k+1}" for k in range(4)])
            out.append(dma([f"s_add_u32 {sT0}, {sT2}, {(j*2 + dp)*1024}",
                            f"buffer_store_dwordx4 {vr(a, 4)}, v17, {sWS}, {sT0} offen"], "snd", vm))
        return out

    def pv_interval(i):
        if i == 1:
            run(vt_reads(0))
            if OPT.get("dprio"):
                A("s_setprio 1")
            A(f"v_lshlrev_b32 v17, 4, v0")
            A(f"s_lshl_b32 {sXTC}, {sDQ}, 10")
            A(f"s_add_u32 {sXTC}, {sXTC}, {sXS}")
            if OPT["vpv"]:
                A(f"s_add_u32 {sVO}, {sKV0}, {3*16384}")
                run(v_dma(3))
            A("s_waitcnt lgkmcnt(0)")
            A("s_barrier")
            return
        t = i - 2; buf = t & 1
        fst(i, 3)
        pa = [f"ds_read_b128 {vr(P_A + j*4, 4)}, v{vPR} offset:{P_BUF + buf*10240 + (5 + j)*256}" for j in range(5)]
        pb = [f"ds_read_b128 {vr(P_B + j*4, 4)}, v{vPR} offset:{P_BUF + buf*10240 + j*256}" for j in range(5)]
        if t >= 1:
            e = []
            fl = [pa[0], e, pa[1], e, pa[2], e, pa[3], e, pa[4], e, pb[0], e, pb[1], e, pb[2], e, e, e, e, pb[3]]
            if t == 1:
                run(vt_reads(1))
            weave(pv_mfma(t - 1, 1, P_B, t == 1), fl)
        else:
            run(pa + pb[:4])
        fst(i, 4)
        if OPT["vpv"]:
            if t == 1:
                A("s_waitcnt lgkmcnt(9)")
            if i + 2 <= 31:
                run(v_dma(i + 2))
            if vm.has(f"V{t+1}"):
                A(f"s_waitcnt vmcnt({vm.wait(f'V{t+1}')})")
            if i == 28 and OPT["cw"] >= 2:
                code_warm("b", 5, SCR, 16)
            if i == 28:
                A(f"""
                s_cmp_lg_u32 {sW}, 4
                s_cbranch_scc1 L_rg1
                v_mov_b32 v23, 0 ; cond
                s_lshl_b32 {sT1}, {sB}, 5 ; cond
                buffer_load_dword v22, v23, {sDBG}, {sT1} offen sc1 ; cond
                L_rg1:
                """)
            if i == 32:
                A(f"""
                s_cmp_lg_u32 {sW}, 4
                s_cbranch_scc1 L_regdone
                s_getreg_b32 {sT2}, hwreg(HW_REG_XCC_ID)
                s_and_b32 {sT2}, {sT2}, 15
                s_mul_i32 {sT1}, {sT2}, {sT2}
                s_lshl_b32 {sT1}, {sT1}, 23
                s_lshl_b32 {sT2}, {sT2}, 13
                s_add_u32 {sT2}, {sT2}, {sT1}
                s_add_u32 {sT2}, {sT2}, 32
                s_lshl_b32 {sT1}, {sB}, 5
                s_mov_b32 {sCNT}, 0x40000
                v_mov_b32 v23, 0
                L_regpoll:
                v_readfirstlane_b32 {sT0}, v22
                s_sub_u32 {sCNT}, {sCNT}, 1
                s_cmp_eq_u32 {sCNT}, 0
                s_cbranch_scc1 L_regok
                s_and_b32 {sT3}, {sT0}, 0xff
                s_cmp_ge_u32 {sT3}, 32
                s_cbranch_scc1 L_regok
                s_sleep 8
                buffer_load_dword v22, v23, {sDBG}, {sT1} offen sc1
                s_waitcnt vmcnt(0)
                s_branch L_regpoll
                L_regok:
                s_cmp_eq_u32 {sT0}, {sT2}
                s_cselect_b32 {sLOC}, {0 if OPT.get("noloc") else 1}, 0
                v_mov_b32 v23, {ST_M + 1024}
                v_mov_b32 v22, {sLOC}
                s_waitcnt lgkmcnt(0)
                ds_write_b32 v23, v22
                s_waitcnt lgkmcnt(0)
                L_regdone:
                """)
            TS = OPT["ts"]
            if OPT["xtouch"] and TS and i == OPT["xt0"]:
                per = 64 * TS
                tot = XCH_BYTES if OPT.get("tall") else 40960
                n = -(-tot // (4 * per))
                A(f"v_mul_u32_u24 v16, {TS}, v0")
                A(f"s_add_u32 m0, {sW1K}, {SCR}")
                A(f"s_mul_i32 {sXTC}, {sDQ}, {per}")
                A(f"s_add_u32 {sXTC}, {sXTC}, {sXS}")
                for k in range(n):
                    put(dma([f"buffer_load_dword v16, {sWS}, {sXTC} offen{XTF} lds", f"s_add_u32 {sXTC}, {sXTC}, {4*per}"], "tch", vm))
                A(f"s_add_u32 {sXTC}, {sXS}, {XST}")
                put(dma([f"buffer_load_dword v16, {sWS}, {sXTC} offen{XTF} lds"], "tch", vm))
            sched = {24: 2, 25: 2, 26: 2, 27: 2, 28: 3} if OPT.get("thin") == 2 else {26: 2, 27: 2, 28: 2, 29: 2, 30: 3} if OPT.get("thin") == 3 else {28: 2, 29: 2, 30: 3, 31: 4} if OPT.get("thin") else {OPT["xt0"]: 3, OPT["xt0"] + 1: 4, OPT["xt0"] + 2: 4}
            nx = sched.get(i, 0) if (OPT["xtouch"] and not TS) else 0
            if nx:
                A(f"s_add_u32 m0, {sW1K}, {SCR}")
            for k in range(nx):
                if i == max(sched) and k == nx - 1:
                    A(f"s_and_b32 {sXTC}, {sW1K}, 1024")
                    A(f"s_add_u32 {sXTC}, {sXTC}, {sXS}")
                    A(f"s_add_u32 {sXTC}, {sXTC}, {XST}")
                else:
                    A("s_nop 0")
                put(dma([f"buffer_load_dwordx4 v17, {sWS}, {sXTC} offen{XTF} lds", f"s_add_u32 {sXTC}, {sXTC}, 4096"], "tch", vm))
        A("s_waitcnt lgkmcnt(4)")
        fst(i, 5)
        d = []
        if i == OPT["wwarm"]:
            d = [[f"s_mul_i32 {sT1}, s2, 14336", f"s_lshl_b32 {sT2}, {sDQ}, 10", f"s_add_u32 {sT1}, {sT1}, {sT2}",
                  f"s_add_u32 m0, {sW1K}, {SCR}"]]
            for k in range(4):
                d.append(dma([f"buffer_load_dwordx4 v17, {sWO}, {sT1} offen lds", f"s_add_u32 {sT1}, {sT1}, 4096"], f"X{i}", vm))
        if i == OPT["touch"]:
            d = [[f"v_lshrrev_b32 v16, 2, v0", f"v_mul_u32_u24 v16, 896, v16", f"v_and_b32 v18, 3, v0",
                  f"v_lshl_add_u32 v16, v18, 7, v16",
                  f"s_lshl_b32 {sT1}, {sHALF}, 2", f"s_add_u32 {sT1}, {sT1}, {sDQ}", f"s_mul_i32 {sT1}, {sT1}, {32*896}",
                  f"s_add_u32 {sT1}, {sT1}, {sWOO}", f"s_add_u32 {sT2}, {sT1}, {16*896}"],
                 dma([f"s_add_u32 m0, {sW1K}, {SCR - 384}", "s_nop 0", f"buffer_load_dword v16, {sWO}, {sT1} offen offset:384 lds"], "tch", vm),
                 dma([f"buffer_load_dword v16, {sWO}, {sT2} offen offset:384 lds"], "tch", vm)]
        vt = vt_reads(t + 1) if (t + 1 <= 31 and t != 0) else []
        if i == 33:
            d = [[f"s_mul_i32 {sT3}, {sDQ}, 10240", f"s_add_u32 {sT2}, {sXS}, {sT3}"], [], [], []]
            for j in range(5):
                d += send(j)
        weave(pv_mfma(t, 0, P_A, t == 0), [[], []] + vt[:2] + [pb[4]] + vt[2:] + d)
        fst(i, 6)
        A("s_waitcnt lgkmcnt(0)")
        fst(i, 7)
        A("s_barrier")
        fst(i, 8)

    interval = s_interval if S else pv_interval
    seg("g0")
    for i in range(1, 4):
        interval(i)
    stamp(6)
    A(f"s_mov_b32 {sCNT}, {OPT['nloop']}")
    vm.q = [t for t in vm.q if t[0] != "X"]
    q_before = list(vm.q)
    seg("loop")
    A(f"L_{R}_loop:")
    for i in range(4, 8):
        interval(i)
    A(f"s_sub_u32 {sCNT}, {sCNT}, 1")
    A(f"s_cmp_lg_u32 {sCNT}, 0")
    A(f"s_cbranch_scc1 L_{R}_loop")
    sh = lambda q, d: [t[0] + str(int(t[1:]) + d) for t in q]
    while vm.q and vm.q[0][0] == 'X':
        vm.q.pop(0)
    assert sh(q_before, 4) == vm.q, (q_before, vm.q)
    vm.q = sh(vm.q, 4*(OPT['nloop'] - 1))
    tr.append(f"{R}_loop")
    seg("gl")
    for i in range(4 + 4*OPT['nloop'], 33):
        if i == 28:
            stamp(7); stamp(3, 7)
        interval(i)
    if S:
        if OPT["prio"]:
            A("s_setprio 0")
        T = S_KF + 4
        for qt in range(5):
            A(f"v_mov_b32 v{T + qt}, v{S_L + qt}")
        for qt in range(5):
            A(f"v_permlane32_swap_b32 v{T + qt}, v{S_L + qt}")
        for qt in range(5):
            A(f"v_add_f32 v{S_L + qt}, v{S_L + qt}, v{T + qt}")
            A(f"v_mov_b32 v{T + qt}, v{S_L + qt}")
        for qt in range(5):
            A(f"v_permlane16_swap_b32 v{T + qt}, v{S_L + qt}")
        A(f"v_add_u32 v5, {(ST_L - MX_OFF) & 0xffffffff}, v{vMX}")
        A(f"v_subrev_u32 v6, {MX_OFF}, v{vMX}")
        A(f"v_lshrrev_b32 v6, 3, v6")
        A(f"v_lshlrev_b32 v6, 2, v6")
        A(f"v_add_u32 v6, {ST_M}, v6")
        for qt in range(5):
            A(f"v_add_f32 v{S_L + qt}, v{S_L + qt}, v{T + qt}")
            A(f"ds_write_b32 v5, v{S_L + qt} offset:{qt*128}")
            A(f"ds_write_b32 v6, v{S_NM + qt*4} offset:{qt*64}")
        A(f"""
        v_and_b32 v17, 15, v0
        v_lshlrev_b32 v17, 4, v17
        s_add_u32 {sT2}, {sXS}, {XST}
        s_lshl_b32 {sT1}, {sKH}, 3
        s_add_u32 {sT1}, {sT1}, {sT2}
        s_cmp_eq_u32 {sQH}, 0
        s_cbranch_scc1 L_nost
        """)
        for qt in range(5):
            A(f"v_mov_b32 v{S_NM + qt*4 + 1}, v{S_L + qt} ; cond")
        for qt in range(5):
            A(f"buffer_store_dwordx2 {vr(S_NM + qt*4, 2)}, v17, {sWS}, {sT1} offen offset:{qt*256} ; cond")
        A("L_nost:")
        run(wo_dma(2, vm)[:4])
        A("s_waitcnt lgkmcnt(0)")
        A("s_barrier")
    else:
        pv_interval(33)

    seg("post")
    stamp(8); stamp(9, 7)
    A(f"""
    v_lshlrev_b32 v17, 3, v0
    v_min_u32 v18, 31, v0
    v_lshlrev_b32 v18, 3, v18
    v_add_u32 v17, {ST_L}, v17
    v_add_u32 v18, {ST_L}, v18
    ds_read_b64 v[76:77], v17
    ds_read_b64 v[82:83], v17 offset:512
    ds_read_b64 v[78:79], v18 offset:1024
    v_mov_b32 v17, {ST_M + 1024}
    ds_read_b32 v80, v17
    """)
    chk = f"""
    s_waitcnt lgkmcnt(0)
    v_readfirstlane_b32 {sLOC}, v80
    v_add_f32 v76, v76, v77
    v_add_f32 v82, v82, v83
    v_add_f32 v78, v78, v79
    v_cmp_ge_f32 s[50:51], {sLIM}, v76
    v_cmp_ge_f32 s[52:53], {sLIM}, v82
    v_cmp_ge_f32 s[54:55], {sLIM}, v78
    s_and_b64 s[50:51], s[50:51], s[52:53]
    s_and_b64 s[50:51], s[50:51], s[54:55]
    s_cmp_eq_u64 s[50:51], -1
    s_cbranch_scc1 L_{R}_ok
    s_cmp_eq_u32 {sRETRY}, 0
    s_cbranch_scc1 L_{R}_fallback
    """
    if not S:
        mf = pv_mfma(31, 1, P_B, False)
        run(mf[:6])
    A(chk)
    seg("ok")
    A(f"L_{R}_ok:")

    def signal_wait(flag_word, poll_addr_code, nlanes, lab, agent=0):
        A(f"""
        s_cmp_lg_u32 {sW}, {agent}
        s_cbranch_scc1 L_{lab}_done
        v_mov_b32 v28, 1
        s_lshl_b32 {sT1}, {sHQ}, 2
        s_add_u32 {sT1}, {sT1}, {flag_word}
        v_mov_b32 v27, {sT1}
        {poll_addr_code}
        s_mov_b32 {sCNT}, 0x40000
        s_mov_b64 exec, 1
        s_cmp_eq_u32 {sLOC}, 1
        s_cbranch_scc1 L_{lab}_loc
        buffer_wbl2 sc1
        s_waitcnt vmcnt(0)
        buffer_store_dword v28, v27, {sWS}, {sFLG} offen sc1
        s_branch L_{lab}_sent
        L_{lab}_loc:
        buffer_store_dword v28, v27, {sWS}, {sFLG} offen{YF if lab == "fx" else ""}
        L_{lab}_sent:
        s_mov_b64 exec, {hex((1 << nlanes) - 1)}
        L_{lab}_poll:
        buffer_load_dword v30, v29, {sWS}, {sT2} offen sc1
        s_waitcnt vmcnt(0)
        v_cmp_ne_u32 vcc, 1, v30
        s_sub_u32 {sCNT}, {sCNT}, 1
        s_cmp_eq_u32 {sCNT}, 0
        s_cbranch_scc1 L_{lab}_got
        s_cmp_eq_u64 vcc, 0
        s_cbranch_scc1 L_{lab}_got
        s_sleep {OPT["slp"]}
        s_branch L_{lab}_poll
        L_{lab}_got:
        s_mov_b64 exec, -1
        s_cmp_eq_u32 {sLOC}, 1
        s_cbranch_scc1 L_{lab}_done
        buffer_inv sc1
        s_waitcnt vmcnt(0)
        L_{lab}_done:
        """)

    def oa_addr():
        A(f"""
        v_and_b32 v16, 15, v0
        v_lshrrev_b32 v17, 4, v0
        v_lshrrev_b32 v18, 2, v16
        v_lshl_add_u32 v20, v17, 3, v18
        v_lshlrev_b32 v20, 7, v20
        v_and_b32 v21, 3, v0
        v_lshl_add_u32 v20, v21, 3, v20
        v_lshrrev_b32 v18, 1, v18
        v_and_b32 v21, 1, v17
        v_lshl_add_u32 v18, v21, 1, v18
        v_xor_b32 v18, {sDQ}, v18
        v_lshl_add_u32 v{vOA[0]}, v18, 5, v20
        v_add_u32 v{vOA[1]}, 0x10000, v{vOA[0]}
        v_add_u32 v{vOA[2]}, 0x20000, v{vOA[0]}
        s_lshl_b32 {sT1}, {sDQ}, 9
        s_cmp_eq_u32 {sLOC}, 1
        s_cselect_b32 {sPA}, {sPART if OPT.get("gsc1") else sXR}, {sPART}
        s_add_u32 {sPA}, {sPA}, {sT1}
        v_lshrrev_b32 v18, 1, v17
        v_lshlrev_b32 v18, 8, v18
        v_lshl_add_u32 v18, v16, 4, v18
        v_mul_u32_u24 v22, 14336, v21
        v_xor_b32 v13, 64, v{vA0}
        v_add_u32 v14, v22, v18
        v_lshl_add_u32 v15, v21, 3, v18
        """)
    vOBx = [vA0, 13]; vS4, vS2 = 14, 15
    SA = 128
    def sa_reads(j):
        out = []
        for ks in range(8):
            for e in range(2):
                off = WSL[j] + (32*ks + 4*e) * 128
                out.append(f"ds_read_b64_tr_b16 {vr(SA + j*32 + ks*4 + e*2, 2)}, v{vOA[off >> 16]} offset:{off & 0xffff}")
        return out

    if S:
        A(f"s_lshl_b32 {sT0}, {sW}, 6")
        A(f"v_add_u32 v23, {sT0}, v0")
        oa_addr()
    else:
        A(f"""
        v_lshlrev_b32 v17, 4, v0
        v_and_b32 v16, 15, v0
        v_lshlrev_b32 v14, 4, v16
        v_lshlrev_b32 v18, 3, v16
        v_lshlrev_b32 v16, 2, v16
        v_add_u32 v15, {ST_L}, v18
        v_add_u32 v16, {ST_M}, v16
        """)
        run(mf[6:])
        for qt in range(5):
            A(f"ds_read_b64 {vr(76 + qt*4, 2)}, v15 offset:{qt*128}")
            A(f"ds_read_b32 v{78 + qt*4}, v16 offset:{qt*64}")
    stamp(3, 4)
    A("s_waitcnt vmcnt(0) lgkmcnt(0)")
    vm.clear()
    A("s_barrier")
    stamp(4, 4)
    if S:
        run(sa_reads(0) + sa_reads(1) + sa_reads(3))
        A("s_waitcnt lgkmcnt(0)")
    else:
        signal_wait(64, f"v_mov_b32 v29, v27\n s_xor_b32 {sT2}, {sFLG}, 128", 1, "px", agent=4)
    A("s_barrier")
    stamp(5, 4); stamp(3, 5)
    if not S:
        RB = oacc(5, 0)
        A(f"""
        s_add_u32 {sT0}, {sXR}, {XST}
        s_add_u32 {sT2}, {sXR}, {sT3}
        """)
        for qt in range(5):
            A(f"buffer_load_dwordx4 {vr(56 + qt*4, 4)}, v14, {sWS}, {sT0} offen offset:{qt*256} sc1")
            vm.issue("ps")
        for n in range(10):
            A(f"s_add_u32 {sT0}, {sT2}, {n*1024}")
            A(f"buffer_load_dwordx4 {vr(RB + n*4, 4)}, v17, {sWS}, {sT0} offen sc1")
            vm.issue(f"x{n}")
        A("s_barrier")
        stamp(4, 5)
        A(f"s_waitcnt vmcnt({vm.wait('ps')}) lgkmcnt(0)")
        stamp(5, 5)
        if OPT["stamps"] == 5:
            A("s_waitcnt vmcnt(0)")
            stamp(6, 5)
        for qt in range(5):
            l0, l1, nm = 76 + qt*4, 77 + qt*4, 78 + qt*4
            pn, pl = 56 + qt*4, 57 + qt*4
            A(f"""
            v_add_f32 v{pl}, v{pl}, v{pl+2}
            v_add_f32 v{l0}, v{l0}, v{l1}
            v_sub_f32 v{l1}, v{nm}, v{pn}
            v_sub_f32 v{nm}, v{pn}, v{nm}
            v_exp_f32 v{l1}, v{l1}
            v_exp_f32 v{nm}, v{nm}
            v_fma_f32 v{l1}, v{l1}, v{pl}, v{l0}
            v_fma_f32 v{nm}, v{nm}, v{l0}, v{pl}
            v_rcp_f32 v{l1}, v{l1}
            v_rcp_f32 v{nm}, v{nm}
            """)
        for qt in range(5):
            w1, w2 = 77 + qt*4, 78 + qt*4
            for dt in range(4):
                a = oacc(qt, dt); r = RB + (qt*2 + dt//2)*4 + (dt & 1)*2
                for k in range(4):
                    A(f"v_mul_f32 v{a+k}, v{w1}, v{a+k}")
                if dt % 2 == 0:
                    A(f"s_waitcnt vmcnt({vm.wait(f'x{qt*2 + dt//2}')})")
                A(f"v_lshlrev_b32 v24, 16, v{r}")
                A(f"v_and_b32 v25, 0xffff0000, v{r}")
                A(f"v_lshlrev_b32 v26, 16, v{r+1}")
                A(f"v_and_b32 v27, 0xffff0000, v{r+1}")
                for k in range(4):
                    A(f"v_fmac_f32 v{a+k}, v{w2}, v{24+k}")
                A(f"v_cvt_pk_bf16_f32 v{a}, v{a}, v{a+1}")
                A(f"v_cvt_pk_bf16_f32 v{a+1}, v{a+2}, v{a+3}")
                A(f"ds_write_b64 v{vOW[dt]}, {vr(a, 2)} offset:{qt*8192}")
    else:
        run(sa_reads(2))
        A("s_waitcnt lgkmcnt(0)")
        A("s_barrier")
        run(wo_dma(4, vm) + wo_dma(5, vm) + wo_dma(6, vm))
    if S and OPT["xtouch"] and not OPT.get("gsc1") and not OPT.get("tall"):
        A(f"v_lshlrev_b32 v17, 4, v0")
        A(f"s_add_u32 {sT0}, {sXR}, {sW1K}")
        for k in range(8):
            A(f"s_add_u32 {sT1}, {sT0}, {40960 + k*4096}")
            put(dma([f"buffer_load_dwordx4 v[8:11], v17, {sWS}, {sT1} offen{XTF}"], "tch", vm))
    stamp(7, 5)
    def y_out(acc, slot):
        out = []
        co = slot * 2048
        for pr in range(2):
            a = acc + pr*8; b = a + 4
            out.append([f"v_cvt_pk_bf16_f32 v{a}, v{a}, v{a+1}", f"v_cvt_pk_bf16_f32 v{a+1}, v{a+2}, v{a+3}"])
            out.append([f"v_cvt_pk_bf16_f32 v{a+2}, v{b}, v{b+1}", f"v_cvt_pk_bf16_f32 v{a+3}, v{b+2}, v{b+3}"])
            out.append(f"s_add_u32 {sT1}, {sPA}, {co + pr*2*14336}")
            out.append([f"v_permlane16_swap_b32 v{a}, v{a+2}", f"v_permlane16_swap_b32 v{a+1}, v{a+3}"])
            out.append(f"buffer_store_dwordx4 {vr(a, 4)}, v{vS4}, {sWS}, {sT1} offen{YF}")
        a = acc + 16
        out.append([f"v_cvt_pk_bf16_f32 v{a}, v{a}, v{a+1}", f"v_cvt_pk_bf16_f32 v{a+1}, v{a+2}, v{a+3}"])
        out.append([f"s_add_u32 {sT1}, {sPA}, {co + 4*14336}", f"buffer_store_dwordx2 {vr(a, 2)}, v{vS2}, {sWS}, {sT1} offen{YF}"])
        return out

    lg.clear()
    if S:
        stamp(8, 5)
        A("s_barrier")
        stamp(9); stamp(6, 4); stamp(9, 5)
        SB, NB, SACC = 24, 6, 48
        seq = [(ps, ks, qt) for ps in range(2) for ks in range(8) for qt in range(5)]
        def bread(n):
            ps, ks, qt = seq[n]
            return lds(f"ds_read_b128 {vr(SB + (n % NB)*4, 4)}, v{vOBx[ks & 1]} offset:{qt*8192 + (ks >> 1)*2048}", f"b{n}")
        for n in range(NB - 1):
            put(bread(n))
        fill = []
        for n, (ps, ks, qt) in enumerate(seq):
            if n == 42:
                fill = y_out(SACC, 0) + y_out(SACC + 20, 1)
            if n == OPT["z4"]:
                A(f"s_waitcnt vmcnt({vm.wait('wo6')})")
                A("s_barrier")
            A(f"s_waitcnt lgkmcnt({lg.wait(f'b{n}')})")
            for tl in range(2):
                j = ps*2 + tl
                acc = vr(SACC + j*20 + qt*4, 4)
                A(f"v_mfma_f32_16x16x32_bf16 {acc}, {vr(SA + j*32 + ks*4, 4)}, {vr(SB + (n % NB)*4, 4)}, {'0' if ks == 0 else acc}")
                if tl == 0 and n + NB - 1 < len(seq):
                    put(bread(n + NB - 1))
                elif fill:
                    put(fill.pop(0))
        run(fill)
        run(y_out(SACC + 40, 2) + y_out(SACC + 60, 3))
        A(f"v_mov_b32 v12, v23")
    else:
        oa_addr()
        A(f"s_lshl_b32 {sT0}, {sW}, 6")
        A(f"v_add_u32 v12, {sT0}, v0")
        A("s_waitcnt lgkmcnt(0)")
        stamp(8, 5)
        A("s_barrier")
        stamp(9); stamp(6, 4); stamp(9, 5)
        steps = [(r, ks) for r in range(3) for ks in range(8)]
        def a_read(n):
            r, ks = steps[n]
            out = []
            for e in range(2):
                off = WSL[4 + r] + (32*ks + 4*e) * 128
                out.append(lds(f"ds_read_b64_tr_b16 {vr(E_A + (n & 3)*4 + e*2, 2)}, v{vOA[off >> 16]} offset:{off & 0xffff}", f"a{n}"))
            return out
        for ks in range(8):
            for qt in range(5):
                A(f"ds_read_b128 {vr(E_O + (qt*8 + ks)*4, 4)}, v{vOBx[ks & 1]} offset:{qt*8192 + (ks >> 1)*2048}")
        A("s_barrier")
        stamp(10, 5)
        run(a_read(0) + a_read(1))
        fill = []
        for n, (r, ks) in enumerate(steps):
            if ks == 1 and r >= 1:
                fill = y_out(E_ACC[(r - 1) & 1], 4 + r - 1)
            A(f"s_waitcnt lgkmcnt({lg.wait(f'a{n}')})")
            mfs = []
            for qt in range(5):
                acc = vr(E_ACC[r & 1] + qt*4, 4)
                mfs.append(f"v_mfma_f32_16x16x32_bf16 {acc}, {vr(E_A + (n & 3)*4, 4)}, {vr(E_O + (qt*8 + ks)*4, 4)}, {'0' if ks == 0 else acc}")
            rd = a_read(n + 2) if n + 2 < len(steps) else []
            if len(rd) > 2:
                weave(mfs, rd, per=2)
            else:
                weave(mfs, rd + [fill.pop(0) if fill else [] for _ in range(3)])
        run(fill)
        run(y_out(E_ACC[0], 6))
    stamp(10); stamp(7, 4); stamp(11, 5)
    A(f"""
    s_mul_i32 {sT0}, {sHQ}, 280
    v_add_u32 v1, {sT0}, v12
    v_lshrrev_b32 v2, 5, v1
    v_mul_u32_u24 v3, 2341, v2
    v_lshrrev_b32 v3, 16, v3
    v_mul_u32_u24 v4, 28, v3
    v_sub_u32 v4, v2, v4
    v_and_b32 v5, 15, v1
    v_lshl_add_u32 v5, v3, 4, v5
    v_bfe_u32 v6, v1, 4, 1
    v_lshlrev_b32 v6, 4, v6
    v_lshl_add_u32 v6, v4, 5, v6
    v_mul_u32_u24 v7, 896, v5
    v_add_u32 v6, v6, v7
    v_lshlrev_b32 v1, 4, v1
    v_mov_b32 v13, 0x7fffff00
    v_cmp_gt_u32 vcc, 280, v12
    v_cndmask_b32 v1, v13, v1, vcc
    v_cndmask_b32 v6, v13, v6, vcc
    s_waitcnt vmcnt(0)
    s_barrier
    """)
    stamp(8, 4)
    if S:
        signal_wait(0, f"v_lshlrev_b32 v29, 2, v0\n s_mov_b32 {sT2}, {sFLG}", 16, "fx")
        A("s_branch L_red")
    tr.append("red")
    A.trace(tr)
    return vm, vm_join


def gen_fallback(role, vm_join):
    S = role == "S"; R = role
    vm = VM(63)
    tr2 = [f"{R}_gl", f"{R}_post"]
    A.seg(f"{R}_fb"); tr2.append(f"{R}_fb")
    A(f"L_{R}_fallback:")
    A(f"""
    s_mov_b32 {sRETRY}, 1
    s_waitcnt vmcnt(0) lgkmcnt(0)
    s_barrier
    s_mov_b32 {sKO}, {sKV0}
    s_mov_b32 {sCNT}, 32
    """)
    if S:
        for qt in range(5):
            A(f"v_mov_b32 v{S_L+qt}, 0xff800000")
        v_addr()
    def s_tile():
        for hh in range(2):
            for s in range(4*hh, 4*hh + 4):
                A(f"ds_read_b128 {vr(S_KF + (s & 3)*4, 4)}, v{vKA[s & 1]} offset:{(s >> 1)*2048}")
            A("s_waitcnt lgkmcnt(0)")
            for s in range(4*hh, 4*hh + 4):
                for qt in range(5):
                    acc = vr(S_S[0] + qt*4, 4)
                    A(f"v_mfma_f32_16x16x32_bf16 {acc}, {vr(S_KF + (s & 3)*4, 4)}, {vr(S_Q + (qt*8 + s)*4, 4)}, {acc if s else '0'}")
    A.seg(f"{R}_fbl"); tr2 += [f"{R}_fbl", f"{R}_fbl"]
    A(f"L_{R}_fbl:")
    if S:
        run(k_lines(0))
        A("s_waitcnt vmcnt(0)")
        A("s_barrier")
        s_tile()
        for qt in range(5):
            a = S_S[0] + qt*4
            A(f"v_max3_f32 v{S_L+qt}, v{a}, v{a+1}, v{S_L+qt}")
            A(f"v_max3_f32 v{S_L+qt}, v{a+2}, v{a+3}, v{S_L+qt}")
        A("s_barrier")
    else:
        A("s_barrier")
        A("s_barrier")
    A(f"s_sub_u32 {sCNT}, {sCNT}, 1")
    A(f"s_cmp_lg_u32 {sCNT}, 0")
    A(f"s_cbranch_scc1 L_{R}_fbl")
    A.seg(f"{R}_fbe"); tr2 += [f"{R}_fbe", f"{R}_join", f"{R}_g0"]
    if S:
        A(f"s_mov_b32 {sKO}, {sKV0}")
        A(f"s_mov_b32 {sVO}, {sKV0}")
        run(k_lines(0) + k_lines(1) + v_lines(0) + k_lines(2))
        assert vm_join == ["K1"]*4 + ["V0"]*4 + ["K2"]*4, vm_join
        if OPT["prio"]:
            A(f"s_setprio {OPT['prio']}")
        A("s_waitcnt vmcnt(12)")
        A("s_barrier")
        s_tile()
    else:
        A("s_barrier")
    A(f"s_branch L_{R}_join")
    A.trace(tr2)


vmS, joinS = gen_role("S")
gen_fallback("S", joinS)
gen_fallback("PV", None) if False else None
vmP, joinP = gen_role("PV")

D0, AC = 96, 40
A.seg("red")
A("L_red:")
A("s_barrier")
stamp(11); stamp(9, 4)
A(f"""
s_cmp_ge_u32 {sW}, 5
s_cbranch_scc1 L_fin
s_lshl_b32 {sT2}, {sB}, 1
s_add_u32 {sT2}, {sT2}, {sHALF}
s_xor_b32 {sT3}, {sT2}, 1
s_mul_i32 {sT2}, {sT2}, {16*PART_BYTES}
s_mul_i32 {sT3}, {sT3}, {16*XCH_BYTES}
s_add_u32 {sT3}, {sT3}, {XCH_OFF}
s_mov_b32 {sT0}, {PART_BYTES}
s_cmp_eq_u32 {sLOC}, {2 if OPT.get("gsc1") else 1}
s_cselect_b32 {sT2}, {sT3}, {sT2}
s_cselect_b32 {sT0}, {XCH_BYTES}, {sT0}
s_mul_i32 {sT1}, {sHALF}, {80*896}
s_add_u32 {sT1}, {sT1}, {sXO}
""")
for p in range(16):
    A(f"buffer_load_dwordx4 {vr(D0 + p*4, 4)}, v1, {sWS}, {sT2} offen sc1")
    A(f"s_add_u32 {sT2}, {sT2}, {sT0}")
for p in range(16):
    A(f"s_waitcnt vmcnt({15 - p})")
    if p in (0, 15):
        stamp({0: 10, 15: 11}[p], 4)
    for r in range(4):
        d = D0 + p*4 + r
        if p == 0:
            A(f"v_lshlrev_b32 v{AC + 2*r}, 16, v{d}")
            A(f"v_and_b32 v{AC + 2*r + 1}, 0xffff0000, v{d}")
        else:
            A(f"v_lshlrev_b32 v{24 + 2*r}, 16, v{d}")
            A(f"v_and_b32 v{25 + 2*r}, 0xffff0000, v{d}")
    if p:
        for r in range(8):
            A(f"v_add_f32 v{AC + r}, v{AC + r}, v{24 + r}")
for r in range(4):
    A(f"v_cvt_pk_bf16_f32 v{20 + r}, v{AC + 2*r}, v{AC + 2*r + 1}")
A(f"buffer_store_dwordx4 v[20:23], v6, {sOUT}, {sT1} offen")
A("L_fin:")
if OPT["stamps"]:
    A("s_waitcnt vmcnt(0)")
    stamp(12)
    A("s_memrealtime s[58:59]")
    A("s_waitcnt lgkmcnt(0)")
    A("v_mov_b32 v20, s56")
    A("v_mov_b32 v21, s58")
    for k in range(2, 13):
        A(f"v_mov_b32 v{20+k}, s{76+2*k}")
    A("v_mov_b32 v33, 0")
    A("v_mov_b32 v34, 0")
    A("v_mov_b32 v35, 0")
    A(f"s_lshl_b32 {sT0}, s2, 9")
    A(f"s_lshl_b32 {sT1}, {sW}, 6")
    A(f"s_add_u32 {sT0}, {sT0}, {sT1}")
    A(f"s_add_u32 {sT0}, {sT0}, {STAMP_OFF}")
    A("v_mov_b32 v40, 0")
    for j in range(4):
        A(f"buffer_store_dwordx4 v[{20+4*j}:{23+4*j}], v40, {sWS}, {sT0} offen offset:{16*j}")
if OPT["stamps"] and OPT.get("dbg") is not None:
    A(f"s_cmp_lg_u32 s2, {OPT['dbg']}")
    A("s_cbranch_scc1 L_end")
    A(f"s_cmp_lg_u32 {sW}, 0")
    A("s_cbranch_scc1 L_end")
    A("v_sub_u32 v21, v21, v20")
    for k in range(12, 2, -1):
        A(f"v_sub_u32 v{20+k}, v{20+k}, v{19+k}")
    for j, r in enumerate([21] + list(range(23, 33))):
        w = j + 1 if j < 7 else j + 2
        A(f"buffer_store_dword v{r}, v40, {sDBG}, 0 offen offset:{4*w}")
A("L_end:")
A("s_endpgm")
gen_fallback("PV", joinP)

A.seg("desc")
A("L_codeend:")
A('.section .rodata,"a"')
A(".p2align 6")
A(f".amdhsa_kernel {KNAME}")
A(".amdhsa_next_free_vgpr 256")
A(".amdhsa_next_free_sgpr 102")
A(".amdhsa_accum_offset 256")
A(".amdhsa_group_segment_fixed_size 0")
A(".amdhsa_kernarg_size 64")
A(".amdhsa_user_sgpr_count 2")
A(".amdhsa_user_sgpr_kernarg_segment_ptr 1")
A(".amdhsa_system_sgpr_workgroup_id_x 1")
A(".end_amdhsa_kernel")

A.fix_hazards()
sys.stderr.write("nops: %s\n" % A.count_nops())
sys.stdout.write(A.text())
```

```python
import sys, struct, math
from asmlib import Asm, VM

OPT = dict(nt="nt", prio=1, stamps=0, fine=28, pre=4, touch=-1, xtouch=1, deph=1, nloop=6, dstep=5, cw=2, ts=0, z4=30, wwarm=2, xt0=29, vpv=1, mapb=1, slp=4)
for a in sys.argv[1:]:
    k, v = a.split("=")
    OPT[k] = int(v) if v.lstrip("-").isdigit() else v
NT = (" " + OPT["nt"]) if OPT["nt"] not in ("", "none") else ""
NTV = NT if "ntv" not in OPT else ((" " + OPT["ntv"]) if OPT["ntv"] != "none" else "")
KNAME = "standalone__gqa_block_cached__near_ridge_kernel"

def f32(x):
    return "0x%08x" % struct.unpack("<I", struct.pack("<f", x))[0]

P_BUF = 0
VRING = 32768
KRING = 98304
MX_OFF = KRING + 3 * 16384
STG = [0, 53248, 106496]
XOFF = 32768
WSL = [98304, 131072, 65536, 32768, 98304, 131072, 65536]
ST_L = 28672
ST_M = ST_L + 1280
LDS_BYTES = 163840
PART_BYTES = 71680
XCH_BYTES = 71680 + 2048
XST = 71680
SCR = 20480
XCH_OFF = 256 * PART_BYTES
FLAG_OFF = XCH_OFF + 256 * XCH_BYTES
STAMP_OFF = 48 << 20

sX, sWQ, sVr, sWO, sWS, sKr = "s[4:7]", "s[8:11]", "s[12:15]", "s[16:19]", "s[20:23]", "s[60:63]"
sW, sB, sHQ, sHALF, sHKV = "s24", "s25", "s26", "s27", "s28"
sKO, sCNT, sRETRY = "s29", "s30", "s31"
sT0, sT1, sT2, sT3 = "s32", "s33", "s34", "s35"
sW1K, sXO, sWQO, sKDST, sKV0, sC, sWOO, sPART = "s36", "s37", "s38", "s39", "s40", "s41", "s42", "s43"
sQH, sKH, sDQ, sHP = "s44", "s45", "s46", "s47"
sLIM, sVO, sVDST = "s48", "s49", "s3"
sXS, sXR = "s64", "s65"
sFLG, sLOC = "s66", "s67"
sXT = ["s50", "s51", "s52"]
sPA, sPB, sPC = "s50", "s51", "s52"
WOF = " " + OPT.get("wof", "none").replace("+", " ").replace("none", "")
YF = " sc1" if OPT.get("gsc1") else ""
sWOe, sWOo = "s76", "s77"
sXTC = "s53"
XTF = " " + OPT.get("xtf", "sc1").replace("+", " ").replace("none", "")
sDBG = "s[68:71]"
sOUT = "s[72:75]"

A = Asm()
_lab = [0]

def stamp(k, mode=1):
    if OPT["stamps"] == mode or (OPT["stamps"] and k in (2, 12)):
        A(f"s_memtime s[{76+2*k}:{77+2*k}]")
    if OPT["stamps"] == 6 and mode == 1 and k in (5, 7, 8, 10):
        j = {5: 3, 7: 5, 8: 7, 10: 9}[k]
        A(f"s_memtime s[{76+2*j}:{77+2*j}]")
        A(f"s_memrealtime s[{78+2*j}:{79+2*j}]")

def vr(b, n):
    return f"v[{b}:{b+n-1}]" if n > 1 else f"v{b}"

def put(f):
    if callable(f):
        f()
    elif isinstance(f, (list, tuple)):
        for x in f:
            put(x)
    else:
        A(f)

def weave(main, fill, per=1):
    fill = list(fill)
    for m in main:
        put(m)
        for _ in range(per):
            if fill:
                put(fill.pop(0))
    for f in fill:
        put(f)

def run(fs):
    for f in fs:
        put(f)

def only_S(lines):
    def f():
        _lab[0] += 1
        A(f"s_cmp_ge_u32 {sW}, 4")
        A(f"s_cbranch_scc1 L_sk{_lab[0]}")
        for x in lines:
            A(x + " ; cond")
        A(f"L_sk{_lab[0]}:")
    return f

vI, vG = 40, 41
vXD, vWD = 42, 43
vW = [44, 45, 46, 47]
vXR = [48, 49]
vQW = [50, 51, 52, 53]
vQL = [54, 55]
vPVa = [56, 57, 58, 59, 60]
vA0 = 19
vKD = 16
vVD = [12, 13, 14, 15]
QACC = 176
QA = [96, 112]
QB = [128, 148]
S_Q, S_NM, S_KF, S_L = 96, 36, 20, 7
S_S = [56, 76]
vKA = [1, 2]; vPW = 3; vMX = 4
S_T = [5, 6, 17, 18]
O_ACC, P_A, P_B = 96, 76, 56
VT = [40, 24]
vVB = [1, 2, 20, 21]; vPR = 3; vOW = [4, 5, 6, 7]
vWOD = 12
E_O = 96
E_ACC = [56, 76]
E_A = 36
vOA = [1, 2, 3]; vOB = [5, 6]; vST4 = 7; vST2 = 8; vSTAT = 10

A.seg("head")
for c in """Kernarg layout (64 bytes, ptrs only, base s[0:1]): 0 x | 8 k_cache | 16 v_cache | 24 wq | 32 wo | 40 out | 48 debug | 56 ws
Fused GQA block, one workgroup (8 waves) per (batch, q-head, key-half):
  1. Q = x Wq (MFMA, LDS-DMA staged), pre-scaled by log2(e)/16
  2. waves 0-3: S^T = K Q^T - m, P = exp2(.) -> LDS ; waves 4-7: O^T += V^T P^T   (32-key tiles, LDS rings)
     m = max over the first key tile; run-time check of the row sums falls back to a true-max pass
  3. the two key-halves of a head exchange half of their rows, combine, project with Wo
  4. the 16 heads of a (batch, row-half) sum their partial outputs
Hand-offs use flags in ws (cleared at start, gated by a registration counter in debug);
same-die placement is detected at run time, any other placement uses release/acquire fences.
Generated by a hand-written Python emitter.""".split("\n"):
    A("; " + c)
A("; @launch grid=(256,1,1) block=(512,1,1) lds=%d" % LDS_BYTES)
A('.amdgcn_target "amdgcn-amd-amdhsa--gfx950"')
A(".text")
A(f".globl {KNAME}")
A(".p2align 8")
A(f".type {KNAME},@function")
A(f"{KNAME}:")
A.seg("entry")
A(f"""
s_cmp_ge_u32 s2, 256
s_cbranch_scc1 L_end
s_load_dwordx16 s[64:79], s[0:1], 0
""")
if OPT["stamps"]:
    A("s_memrealtime s[56:57]")
    stamp(2)
A(f"""
s_and_b32 {sB if OPT.get("mapb") else sHKV}, s2, 7
s_lshr_b32 {sT0}, s2, 3
s_lshr_b32 {sHKV if OPT.get("mapb") else sB}, {sT0}, 2
s_and_b32 {sT1}, {sT0}, 1
s_lshr_b32 {sHALF}, {sT0}, 1
s_and_b32 {sHALF}, {sHALF}, 1
s_lshl_b32 {sHQ}, {sHKV}, 1
s_add_u32 {sHQ}, {sHQ}, {sT1}
v_lshrrev_b32 v1, 6, v0
v_and_b32 v0, 63, v0
v_readfirstlane_b32 {sW}, v1
s_mul_i32 {sXO}, {sB}, 143360
s_lshl_b32 {sWQO}, {sHQ}, 9
v_and_b32 v{vI}, 15, v0
v_lshrrev_b32 v{vG}, 4, v0
s_lshl_b32 {sW1K}, {sW}, 10
s_lshr_b32 {sHP}, {sW}, 2
s_and_b32 {sQH}, {sW}, 1
s_lshl_b32 {sT0}, {sQH}, 2
v_add_u32 v5, {sT0}, v{vG}
v_and_b32 v6, 7, v0
v_xor_b32 v5, v5, v6
v_lshlrev_b32 v5, 4, v5
v_lshrrev_b32 v6, 3, v0
v_mul_u32_u24 v6, 896, v6
v_add_u32 v{vXD}, v5, v6
s_mul_i32 {sT0}, {sHALF}, 10
s_add_u32 {sT0}, {sT0}, {sW}
s_sub_u32 {sT1}, {sT0}, 20
s_cmp_ge_u32 {sT0}, 20
s_cselect_b32 {sT1}, {sT1}, {sT0}
s_mul_i32 {sT1}, {sT1}, 7168
s_add_u32 {sXT[0]}, {sT1}, {sXO}
s_add_u32 {sT0}, {sT0}, 8
s_sub_u32 {sT1}, {sT0}, 20
s_cmp_ge_u32 {sT0}, 20
s_cselect_b32 {sT1}, {sT1}, {sT0}
s_mul_i32 {sT1}, {sT1}, 7168
s_add_u32 {sXT[1]}, {sT1}, {sXO}
s_add_u32 {sT0}, {sT0}, 8
s_sub_u32 {sT1}, {sT0}, 20
s_cmp_ge_u32 {sT0}, 20
s_cselect_b32 {sT1}, {sT1}, {sT0}
s_mul_i32 {sT1}, {sT1}, 7168
s_add_u32 {sXT[2]}, {sT1}, {sXO}
v_lshrrev_b32 v5, 5, v0
s_lshl_b32 {sT0}, {sW}, 1
v_add_u32 v5, {sT0}, v5
v_and_b32 v6, 3, v5
s_lshl_b32 {sT0}, {sHP}, 2
v_or_b32 v6, {sT0}, v6
v_bfe_u32 v7, v0, 1, 4
v_xor_b32 v6, v6, v7
v_lshlrev_b32 v6, 5, v6
v_and_b32 v7, 1, v0
v_lshlrev_b32 v7, 4, v7
v_lshlrev_b32 v5, 13, v5
v_add3_u32 v{vWD}, v5, v6, v7
s_mov_b32 s6, 1146880
s_mov_b32 s7, 0x20000
s_mov_b32 s10, 3670016
s_mov_b32 s11, 0x20000
s_waitcnt lgkmcnt(0)
s_mov_b32 s4, s64
s_mov_b32 s5, s65
s_mov_b32 s8, s70
s_mov_b32 s9, s71
""")
stamp(3, 3)

vm = VM(63)

def dma(lines, tag, v=None):
    def f():
        for x in lines:
            A(x)
        (v or vm).issue(tag)
    return f

def stage_dma(s):
    sb = STG[s % 3]
    out = []
    for t in range(4):
        out.append(dma([f"s_add_u32 m0, {sW1K}, {sb + t*8192}",
                        f"s_add_u32 {sT0}, {sWQO}, {(s*64 + 16*t) * 8192}",
                        f"buffer_load_dwordx4 v{vWD}, {sWQ}, {sT0} offen lds"], f"st{s}"))
    for t in range(3):
        l = [f"s_add_u32 m0, {sW1K}, {sb + XOFF + t*8192}",
             f"s_add_u32 {sT0}, {sXT[t]}, {s*128}",
             f"buffer_load_dwordx4 v{vXD}, {sX}, {sT0} offen lds"]
        out.append(dma(l, f"st{s}") if t < 2 else only_S(l))
    return [out[6]] + out[:6]

def k_lines(i):
    slot = i & 3
    out = []
    for sg in range(4):
        l = [f"s_add_u32 m0, {sKDST}, {slot*16384 + sg*2048 - sg*128}", "s_nop 0",
             f"buffer_load_dwordx4 v{vKD}, {sKr}, {sKO} offen offset:{sg*128}{NT} lds"]
        if sg == 3:
            l.append(f"s_add_u32 {sKO}, {sKO}, {0 if OPT.get('samekv') else 16384}")
        out.append(l)
    return out

def v_lines(t):
    pos = (t + 3) & 3
    out = []
    for jj in range(4):
        l = [f"s_add_u32 m0, {sVDST}, {pos*16384 + jj*1024}", "s_nop 0",
             f"buffer_load_dwordx4 v{vVD[jj]}, {sVr}, {sVO} offen{NTV} lds"]
        if jj == 3:
            l.append(f"s_add_u32 {sVO}, {sVO}, {0 if OPT.get('samekv') else 16384}")
        out.append(l)
    return out

run(stage_dma(0))
def code_warm(lab, wave, lds_dst, va):
    A(f"""
    s_cmp_lg_u32 {sW}, {wave}
    s_cbranch_scc1 L_cw{lab}
    s_getpc_b64 s[54:55] ; cond
    L_pc{lab}:
    s_lshr_b32 {sT0}, s2, 3 ; cond
    s_mul_i32 {sT0}, {sT0}, 1280 ; cond
    s_min_u32 {sT0}, {sT0}, L_codeend - {KNAME} - 2048 ; cond
    s_sub_u32 {sT0}, {sT0}, L_pc{lab} - {KNAME} ; cond
    s_ashr_i32 {sT1}, {sT0}, 31 ; cond
    s_add_u32 s54, s54, {sT0} ; cond
    s_addc_u32 s55, s55, {sT1} ; cond
    v_lshlrev_b32 v{va}, 4, v0 ; cond
    s_mov_b32 m0, {lds_dst} ; cond
    s_nop 0 ; cond
    global_load_lds_dwordx4 v{va}, s[54:55] ; cond
    global_load_lds_dwordx4 v{va}, s[54:55] offset:1024 ; cond
    L_cw{lab}:
    """)
if OPT["cw"]:
    code_warm("a", 5, 159744, 8)
stamp(4, 3)
A.seg("pro")
A(f"""
s_mov_b32 s16, s72
s_mov_b32 s17, s73
s_mov_b32 s18, 3670016
s_mov_b32 s19, 0x20000
s_mov_b32 s20, s78
s_mov_b32 s21, s79
s_mov_b32 s22, 0x10000000
s_mov_b32 s23, 0x20000
s_mov_b32 s12, s68
s_mov_b32 s13, s69
s_mov_b32 s14, 0x4000000
s_mov_b32 s15, 0x20000
s_mov_b32 s60, s66
s_mov_b32 s61, s67
s_mov_b32 s62, 0x4000000
s_mov_b32 s63, 0x20000
s_mov_b32 {sRETRY}, 0
s_mov_b32 {sC}, {f32(math.log2(math.e) / 16.0)}
s_mov_b32 {sLIM}, {f32(2.0 ** 30)}
s_mul_i32 {sWOO}, {sHQ}, 229376
s_lshl_b32 {sT0}, {sB}, 3
s_add_u32 {sT0}, {sT0}, {sHKV}
s_lshl_b32 {sT0}, {sT0}, 1
s_add_u32 {sT0}, {sT0}, {sHALF}
s_lshl_b32 {sKV0}, {sT0}, 19
s_mov_b32 s68, s76
s_mov_b32 s69, s77
s_mov_b32 s70, 256
s_mov_b32 s71, 0x20000
s_mov_b32 s72, s74
s_mov_b32 s73, s75
s_mov_b32 s74, 1146880
s_mov_b32 s75, 0x20000
s_lshl_b32 {sT0}, {sB}, 1
s_add_u32 {sT0}, {sT0}, {sHALF}
s_lshl_b32 {sFLG}, {sT0}, 7
s_add_u32 {sFLG}, {sFLG}, {FLAG_OFF}
s_lshl_b32 {sT0}, {sT0}, 4
s_add_u32 {sT0}, {sT0}, {sHQ}
s_mul_i32 {sPART}, {sT0}, {PART_BYTES}
s_mul_i32 {sXS}, {sT0}, {XCH_BYTES}
s_add_u32 {sXS}, {sXS}, {XCH_OFF}
s_xor_b32 {sT0}, {sT0}, 16
s_mul_i32 {sXR}, {sT0}, {XCH_BYTES}
s_add_u32 {sXR}, {sXR}, {XCH_OFF}
s_and_b32 {sDQ}, {sW}, 3
s_lshr_b32 {sKH}, {sDQ}, 1
v_lshrrev_b32 v30, 3, v{vI}
v_lshlrev_b32 v30, 10, v30
v_and_b32 v31, 7, v{vI}
v_lshlrev_b32 v31, 7, v31
v_lshrrev_b32 v32, 1, v{vI}
v_xor_b32 v33, v{vG}, v32
v_lshlrev_b32 v33, 4, v33
v_add3_u32 v{vA0}, v30, v31, v33
s_mul_i32 {sT0}, {sHP}, 10240
s_add_u32 {sT0}, {sT0}, {XOFF}
v_add_u32 v{vXR[0]}, {sT0}, v{vA0}
v_xor_b32 v{vXR[1]}, 64, v{vXR[0]}
v_lshrrev_b32 v24, 2, v{vI}
v_and_b32 v25, 1, v{vG}
v_lshlrev_b32 v25, 2, v25
v_or_b32 v25, v25, v24
v_lshl_add_u32 v26, v{vG}, 3, v24
v_lshlrev_b32 v26, 9, v26
v_and_b32 v27, 3, v0
v_lshl_add_u32 v26, v27, 3, v26
s_lshl_b32 {sT0}, {sDQ}, 2
v_xor_b32 v25, {sT0}, v25
""")
for m in range(4):
    A(f"v_xor_b32 v28, {m}, v25")
    A(f"v_lshl_add_u32 v{vW[m]}, v28, 5, v26")
stamp(5, 3)
A("s_barrier")
run(stage_dma(1))
stamp(6, 3)
A(f"""
v_lshrrev_b32 v24, 1, v{vG}
v_xor_b32 v24, v24, v32
v_and_b32 v25, 1, v{vG}
v_lshlrev_b32 v25, 3, v25
v_add3_u32 v25, v30, v31, v25
s_mul_i32 {sT0}, {sHP}, 40960
s_lshl_b32 {sT1}, {sDQ}, 11
s_add_u32 {sT0}, {sT0}, {sT1}
v_add_u32 v25, {sT0}, v25
""")
for m in range(4):
    A(f"v_xor_b32 v28, {2*m}, v24")
    A(f"v_lshl_add_u32 v{vQW[m]}, v28, 4, v25")
A(f"""
s_mov_b32 {sVO}, {sKV0}
s_mov_b32 {sKO}, {sKV0}
s_lshl_b32 {sT0}, {sQH}, 2
v_add_u32 v24, {sT0}, v{vG}
v_and_b32 v25, 7, v0
v_xor_b32 v24, v24, v25
v_lshlrev_b32 v24, 4, v24
v_lshrrev_b32 v25, 3, v0
s_lshl_b32 {sT0}, {sKH}, 4
s_lshl_b32 {sT1}, {sQH}, 3
s_add_u32 {sT0}, {sT0}, {sT1}
v_add_u32 v25, {sT0}, v25
v_lshl_add_u32 v{vKD}, v25, 9, v24
s_lshl_b32 {sT0}, {sKH}, 13
s_lshl_b32 {sT1}, {sQH}, 10
s_add_u32 {sKDST}, {sT0}, {sT1}
s_add_u32 {sKDST}, {sKDST}, {KRING}
""")
def v_addr():
    A(f"""
    v_bfe_u32 v24, v0, 4, 1
    v_lshlrev_b32 v24, 1, v24
    v_and_b32 v25, 7, v0
    v_xor_b32 v24, v24, v25
    v_lshlrev_b32 v24, 4, v24
    v_lshrrev_b32 v25, 3, v0
    v_lshl_add_u32 v24, v25, 9, v24
    s_lshl_b32 {sT0}, {sDQ}, 7
    v_add_u32 v{vVD[0]}, {sT0}, v24
    v_xor_b32 v24, 64, v{vVD[0]}
    v_add_u32 v{vVD[1]}, 4096, v24
    v_add_u32 v{vVD[2]}, 8192, v{vVD[0]}
    v_add_u32 v{vVD[3]}, 12288, v24
    """)
v_addr()
A(f"""
s_cmp_lg_u32 {sW}, 4
s_cbranch_scc1 L_noclr
v_and_b32 v24, 1, v0 ; cond
v_lshlrev_b32 v24, 6, v24 ; cond
s_lshl_b32 {sT1}, {sHQ}, 2 ; cond
v_add_u32 v24, {sT1}, v24 ; cond
v_mov_b32 v25, 0 ; cond
buffer_store_dword v25, v24, {sWS}, {sFLG} offen sc1 ; cond
L_noclr:
s_cmp_lg_u32 {sW}, {6 if OPT.get("tlb") else 99}
s_cbranch_scc1 L_notlb
v_and_b32 v24, 31, v0 ; cond
s_mov_b32 {sT1}, {XCH_BYTES} ; cond
v_mul_lo_u32 v24, v24, {sT1} ; cond
s_lshl_b32 {sT0}, {sB}, 5 ; cond
s_mul_i32 {sT0}, {sT0}, {sT1} ; cond
s_add_u32 {sT0}, {sT0}, {XCH_OFF} ; cond
s_mov_b32 m0, 161792 ; cond
s_nop 0 ; cond
buffer_load_dword v24, {sWS}, {sT0} offen sc1 lds ; cond
L_notlb:
s_lshl_b32 {sVDST}, {sDQ}, 12
s_add_u32 {sVDST}, {sVDST}, {VRING}
s_mul_i32 {sT0}, {sQH}, 40960
v_add_u32 v{vQL[0]}, {sT0}, v{vA0}
v_xor_b32 v{vQL[1]}, 64, v{vQL[0]}
v_lshrrev_b32 v24, 1, v{vG}
s_lshl_b32 {sT0}, {sKH}, 1
v_add_u32 v24, {sT0}, v24
v_mul_u32_u24 v24, 2560, v24
v_and_b32 v25, 1, v{vG}
v_lshl_add_u32 v24, v25, 3, v24
s_mul_i32 {sT0}, {sQH}, 80
v_add_u32 v25, {sT0}, v{vI}
v_lshl_add_u32 v{vPW}, v25, 4, v24
s_lshl_b32 {sT0}, {sKH}, 2
s_add_u32 {sT0}, {sT0}, {MX_OFF}
v_lshlrev_b32 v25, 3, v25
v_add_u32 v{vMX}, {sT0}, v25
s_lshl_b32 {sT0}, {sKH}, 13
s_add_u32 {sT0}, {sT0}, {KRING}
v_add_u32 v{vKA[0]}, {sT0}, v{vA0}
v_xor_b32 v{vKA[1]}, 64, v{vKA[0]}
v_lshrrev_b32 v30, 2, v{vI}
v_lshl_add_u32 v32, v{vG}, 3, v30
v_lshlrev_b32 v32, 7, v32
v_and_b32 v33, 3, v0
v_lshl_add_u32 v32, v33, 3, v32
v_add_u32 v32, {sVDST}, v32
v_lshrrev_b32 v30, 1, v30
v_and_b32 v33, 1, v{vG}
v_lshl_add_u32 v30, v33, 1, v30
v_lshl_add_u32 v{vPVa[0]}, v30, 5, v32
v_xor_b32 v{vPVa[1]}, 32, v{vPVa[0]}
v_xor_b32 v{vPVa[2]}, 64, v{vPVa[0]}
v_xor_b32 v{vPVa[3]}, 96, v{vPVa[0]}
v_mul_u32_u24 v31, 2560, v{vG}
v_lshl_add_u32 v{vPVa[4]}, v{vI}, 4, v31
""")
for qt in range(5):
    A(f"v_mov_b32 v{S_L+qt}, 0xff800000")

def q_reads(s2):
    out = []
    for qt in range(5):
        out.append(f"ds_read_b128 {vr(QB[s2] + qt*4, 4)}, v{vXR[s2]} offset:{qt*2048}")
    for m in range(4):
        for e in range(2):
            out.append(f"ds_read_b64_tr_b16 {vr(QA[s2] + m*4 + e*2, 2)}, v{vW[m]} offset:{(32*s2 + 4*e) * 512}")
    return out

def q_mfma(s2, first):
    out = []
    for m in range(4):
        for qt in range(5):
            acc = vr(QACC + (m*5 + qt) * 4, 4)
            out.append(f"v_mfma_f32_16x16x32_bf16 {acc}, {vr(QA[s2] + m*4, 4)}, {vr(QB[s2] + qt*4, 4)}, {'0' if first else acc}")
    return out

if OPT.get("pprio"):
    put(only_S(["s_setprio 1"]))
for s in range(7):
    if s in (3, 4):
        stamp(3 if s == 3 else 9, 9)
    A(f"s_waitcnt vmcnt({vm.wait(f'st{s}')})")
    if s in (3, 4):
        stamp(4 if s == 3 else 10, 9)
    if s == 0:
        stamp(7, 3)
    A("s_barrier")
    if s <= 3:
        stamp(8 + s, 3)
    if s in (3, 4):
        stamp(5 if s == 3 else 11, 9)
    if s == 0:
        stamp(3)
    d = []
    if 0 <= s <= 4:
        d = stage_dma(s + 2)
    if s == 6:
        kl = k_lines(0) + k_lines(1) + v_lines(0) + k_lines(2)
        d = [only_S(kl[2*j] + kl[2*j + 1]) for j in range(8)]
    upd = []
    if s < 6:
        dl = STG[(s + 1) % 3] - STG[s % 3]
        upd = [[f"s_mov_b32 {sT1}, {dl & 0xffffffff}", f"v_add_u32 v{vW[0]}, {sT1}, v{vW[0]}"]] + \
              [f"v_add_u32 v{r}, {sT1}, v{r}" for r in vW[1:] + vXR]
    def spread(n, items, start, step):
        out = [[] for _ in range(n)]
        rest = []
        for k, it in enumerate(items):
            p = start + k*step
            if p < n:
                out[p] = it
            else:
                rest.append(it)
        return out, rest
    def merge(a_, b_):
        n = max(len(a_), len(b_))
        a_ = list(a_) + [[]]*(n - len(a_)); b_ = list(b_) + [[]]*(n - len(b_))
        return [[x, y] for x, y in zip(a_, b_)]
    st = OPT["dstep"] if s < 6 else 2
    if s >= 1:
        d1, d = spread(20, d, 1, st)
        weave(q_mfma(1, False), merge(q_reads(0), d1))
    else:
        weave(q_reads(0), [])
    if s == 3:
        stamp(6, 9)
    A("s_waitcnt lgkmcnt(0)")
    if s == 3:
        stamp(7, 9)
    d2, d = spread(20, d, 1, st if s else 3)
    if s == 0:
        weave(q_mfma(0, True), merge(q_reads(1) + upd, d2) + d)
    else:
        weave(q_mfma(0, False), merge([[], []] + q_reads(1) + upd, d2) + d)
    if s == 3:
        stamp(8, 9)
    A("s_waitcnt lgkmcnt(0)")
stamp(4)
A("s_barrier")

def q_out(idx):
    m, qt = divmod(idx, 5)
    a = QACC + idx * 4
    return [f"v_mul_f32 v{a}, {sC}, v{a}", f"v_mul_f32 v{a+1}, {sC}, v{a+1}",
            f"v_mul_f32 v{a+2}, {sC}, v{a+2}", f"v_mul_f32 v{a+3}, {sC}, v{a+3}",
            f"v_cvt_pk_bf16_f32 v{a}, v{a}, v{a+1}", f"v_cvt_pk_bf16_f32 v{a+1}, v{a+2}, v{a+3}",
            f"ds_write_b64 v{vQW[m]}, {vr(a, 2)} offset:{qt*8192}"]
for j, mf in enumerate(q_mfma(1, False)):
    A(mf)
    if j >= 3:
        run(q_out(j - 3))
for j in range(17, 20):
    run(q_out(j))
A(f"s_cmp_ge_u32 {sW}, 4")
A("s_cbranch_scc1 L_PV")


def wo_addr():
    A(f"""
    v_bfe_u32 v13, v0, 4, 1
    s_lshl_b32 {sT0}, {sQH}, 1
    v_or_b32 v13, {sT0}, v13
    v_lshlrev_b32 v13, 1, v13
    v_and_b32 v14, 7, v0
    v_xor_b32 v13, v13, v14
    v_lshrrev_b32 v14, 3, v0
    s_lshl_b32 {sT0}, {sW}, 3
    v_add_u32 v14, {sT0}, v14
    v_mul_u32_u24 v14, 896, v14
    v_lshl_add_u32 v{vWOD}, v13, 4, v14
    s_lshl_b32 {sT0}, {sHALF}, 7
    s_add_u32 {sWOe}, {sWOO}, {sT0}
    s_sub_u32 {sWOo}, {sWOO}, {sT0}
    """)

def wo_dma(j, v):
    out = []
    for t in range(8):
        out.append(dma([f"s_add_u32 m0, {sW1K}, {WSL[j] + t*4096}",
                        f"s_add_u32 {sT0}, {(sWOO if (j == 6 or not OPT['deph']) else (sWOe if j % 2 == 0 else sWOo))}, {t*28672 + j*128}",
                        f"buffer_load_dwordx4 v{vWOD}, {sWO}, {sT0} offen{WOF} lds"], f"wo{j}", v))
    return out


def gen_role(role):
    S = role == "S"
    R = role
    vm = VM(63)
    lg = VM(15)
    tr = ["entry", "pro"]

    def seg(n):
        A.seg(f"{R}_{n}")
        tr.append(f"{R}_{n}")

    def k_dma(i):
        return [dma(l, f"K{i}", vm) for l in k_lines(i)]

    def v_dma(t):
        return [dma(l, f"V{t}", vm) for l in v_lines(t)]

    def lds(line, tag):
        def f():
            A(line)
            lg.issue(tag)
        return f

    def fst(i, k):
        if i == OPT["fine"]:
            stamp(k, 2)
        if k == 8 and 28 <= i <= 33:
            stamp(i - 24, 7)
        if k == 7 and 31 <= i <= 32:
            stamp(i - 21, 7)
        if k == 8 and 1 <= i <= 3:
            stamp(i + 5, 8)

    def kread(i, s):
        return lds(f"ds_read_b128 {vr(S_KF + (s & 3)*4, 4)}, v{vKA[s & 1]} offset:{(i & 3)*16384 + (s >> 1)*2048}", f"kf{s}")

    def s_mfma(i, s, qt):
        acc = vr(S_S[i & 1] + qt*4, 4)
        c = acc if s else ("0" if i == 0 else vr(S_NM + qt*4, 4))
        return f"v_mfma_f32_16x16x32_bf16 {acc}, {vr(S_KF + (s & 3)*4, 4)}, {vr(S_Q + (qt*8 + s)*4, 4)}, {c}"

    def end_wait(i):
        need = [t for t in (f"K{i+1}", f"V{i}") if vm.has(t) and t != "V1"]
        if need:
            last = max(need, key=lambda t: max(k for k, x in enumerate(vm.q) if x == t))
            A(f"s_waitcnt vmcnt({vm.wait(last)}) lgkmcnt(0)")
        else:
            A("s_waitcnt lgkmcnt(0)")
        lg.clear()

    seg("i0")
    if S:
        for t in ["K0"]*4 + ["K1"]*4 + ["V0"]*4 + ["K2"]*4:
            vm.issue(t)
        if OPT["prio"]:
            A(f"s_setprio {OPT['prio']}")
        A(f"s_waitcnt vmcnt({vm.wait('K0')}) lgkmcnt(0)")
        stamp(9, 8)
        A("s_barrier")
        stamp(5); stamp(3, 8)
        def grp(s):
            return [kread(0, s)] + [lds(f"ds_read_b128 {vr(S_Q + (qt*8 + s)*4, 4)}, v{vQL[s & 1]} offset:{qt*8192 + (s >> 1)*2048}", f"kf{s}")
                                    for qt in range(5)]
        run(grp(0) + grp(1))
        for s in range(8):
            A(f"s_waitcnt lgkmcnt({lg.wait(f'kf{s}')})")
            weave([s_mfma(0, s, qt) for qt in range(5)], grp(s + 2) if s + 2 < 8 else [], per=2)
    else:
        A("L_PV:")
        for j in range(4):
            A(f"v_mov_b32 v{vVB[j]}, v{vPVa[j]}")
            A(f"v_subrev_u32 v{vOW[j]}, 40960, v{vQW[j]}")
        A(f"v_mov_b32 v{vPR}, v{vPVa[4]}")
        A("s_waitcnt lgkmcnt(0)")
        A("s_barrier")
        stamp(5)
        A(f"""
        s_cmp_lg_u32 {sW}, 4
        s_cbranch_scc1 L_noreg
        s_getreg_b32 {sT0}, hwreg(HW_REG_XCC_ID)
        s_and_b32 {sT0}, {sT0}, 15
        s_mul_i32 {sT1}, {sT0}, {sT0}
        s_lshl_b32 {sT1}, {sT1}, 18
        s_lshl_b32 {sT0}, {sT0}, 8
        s_add_u32 {sT0}, {sT0}, {sT1}
        s_add_u32 {sT0}, {sT0}, 1
        v_mov_b32 v23, 0
        v_mov_b32 v22, {sT0}
        s_lshl_b32 {sT1}, {sB}, 5
        s_mov_b64 exec, 1
        buffer_atomic_add v22, v23, {sDBG}, {sT1} offen
        s_mov_b64 exec, -1
        L_noreg:
        """)
    vm_join = list(vm.q)
    stamp(11, 8)
    seg("join")
    A(f"L_{R}_join:")
    if S:
        SS = S_S[0]
        for qt in range(5):
            a = SS + qt*4; t = S_KF + qt*2
            A(f"v_max3_f32 v{t}, v{a}, v{a+1}, v{S_L+qt}")
            A(f"v_max3_f32 v{t}, v{a+2}, v{a+3}, v{t}")
            A(f"v_mov_b32 v{t+1}, v{t}")
        for qt in range(5):
            t = S_KF + qt*2
            A(f"v_permlane32_swap_b32 v{t}, v{t+1}")
        for qt in range(5):
            t = S_KF + qt*2
            A(f"v_max_f32 v{t}, v{t}, v{t+1}")
            A(f"v_mov_b32 v{t+1}, v{t}")
        for qt in range(5):
            t = S_KF + qt*2
            A(f"v_permlane16_swap_b32 v{t}, v{t+1}")
        for qt in range(5):
            t = S_KF + qt*2
            A(f"v_max_f32 v{t}, v{t}, v{t+1}")
            A(f"ds_write_b32 v{vMX}, v{t} offset:{qt*128}")
        A("s_waitcnt lgkmcnt(0)")
        stamp(10, 8)
        A("s_barrier")
        stamp(4, 8)
        A(f"v_and_b32 v5, 0xfffffffb, v{vMX}")
        for qt in range(5):
            A(f"ds_read_b64 {vr(S_KF + qt*2, 2)}, v5 offset:{qt*128}")
        run(v_dma(1) + v_dma(2))
        for qt in range(5):
            t = S_KF + qt*2
            A(f"s_waitcnt lgkmcnt({4 - qt})")
            A(f"v_max_f32 v{t}, v{t}, v{t+1}")
            for r in range(4):
                A(f"v_sub_f32 v{S_NM + qt*4 + r}, 0, v{t}")
            for r in range(4):
                A(f"v_sub_f32 v{SS + qt*4 + r}, v{SS + qt*4 + r}, v{t}")
        end_wait(0)
        A("s_barrier")
        stamp(5, 8)
    else:
        A("s_barrier")
        A("s_barrier")

    def softmax_fill(j):
        SS = S_S[j & 1]; buf = j & 1
        out = []
        for qt in range(5):
            a = SS + qt*4
            t0, t1 = (S_T[0], S_T[1]) if qt % 2 == 0 else (S_T[2], S_T[3])
            ex = [(2, f"v_exp_f32 v{a+r}, v{a+r}") for r in range(4)]
            wr = lds(f"ds_write_b64 v{vPW}, {vr(a, 2)} offset:{P_BUF + buf*10240 + qt*256}", "pw")
            post = [(1, f"v_add_f32 v{t0}, v{a}, v{a+1}"), (1, f"v_add_f32 v{t1}, v{a+2}, v{a+3}"),
                    (1, f"v_cvt_pk_bf16_f32 v{a}, v{a}, v{a+1}"), (1, f"v_cvt_pk_bf16_f32 v{a+1}, v{a+2}, v{a+3}"),
                    (1, f"v_add_f32 v{t0}, v{t0}, v{t1}"), (1, wr),
                    (1, f"v_mov_b32 v{S_L+qt}, v{t0}" if j == 0 else f"v_add_f32 v{S_L+qt}, v{S_L+qt}, v{t0}")]
            out.append((ex, post))
        seq = list(out[0][0])
        for qt in range(5):
            if qt + 1 < 5:
                e = out[qt + 1][0]; p = out[qt][1]
                seq += [e[0], p[0], p[1], e[1], p[2], p[3], e[2], p[4], p[5], e[3], p[6]]
            else:
                seq += out[qt][1]
        return seq

    def s_interval(i):
        fill = softmax_fill(i - 1)
        def fput(n):
            while fill and n >= fill[0][0]:
                c, it = fill.pop(0)
                n -= c
                put(it)
        fst(i, 3)
        if i <= 31:
            for s in range(4):
                put(kread(i, s))
            d = []
            if i == 1:
                d += k_dma(3)
            if i + 3 <= 31:
                d += k_dma(i + 3)
            if i == 29:
                d += [wo_addr] + wo_dma(0, vm)[:4]
            if i == 30:
                d += wo_dma(0, vm)[4:]
            if i == 31:
                d += wo_dma(1, vm)[:4]
            for f in d:
                f()
                fput(OPT["pre"])
            for s in range(8):
                A(f"s_waitcnt lgkmcnt({lg.wait(f'kf{s}')})")
                if s == 0:
                    fst(i, 4)
                    if OPT.get("dprio"):
                        A("s_setprio 2")
                for qt in range(5):
                    A(s_mfma(i, s, qt))
                    if qt == 1 and 1 <= s <= 4:
                        put(kread(i, s + 3))
                        fput(1)
                    elif qt == 4:
                        fput(1)
                    else:
                        fput(2)
            if OPT.get("dprio") or OPT.get("ppost"):
                A("s_setprio 0")
            fst(i, 5)
        fput(1000)
        fst(i, 6)
        if i == 30:
            run(wo_dma(2, vm)[4:])
        if i == 31:
            run(wo_dma(3, vm)[:4])
        if i == 32:
            run(wo_dma(1, vm)[4:] + wo_dma(3, vm)[4:])
        end_wait(i)
        if OPT.get("ppost") and i <= 31:
            A(f"s_setprio {OPT['ppost']}")
        fst(i, 7)
        A("s_barrier")
        fst(i, 8)

    def vt_reads(t):
        pos = (t + 3) & 3
        out = []
        for dt in range(4):
            for e in range(2):
                out.append(f"ds_read_b64_tr_b16 {vr(VT[t & 1] + dt*4 + e*2, 2)}, v{vVB[dt]} offset:{pos*16384 + 4*e*128}")
        return out

    def oacc(qt, dt):
        return O_ACC + (qt*4 + dt)*4

    def pv_mfma(t, own, P, first):
        out = []
        for j in range(5):
            qt = j if own else 5 + j
            for dt in range(4):
                acc = vr(oacc(qt, dt), 4)
                out.append(f"v_mfma_f32_16x16x32_bf16 {acc}, {vr(VT[t & 1] + dt*4, 4)}, {vr(P + j*4, 4)}, {'0' if first else acc}")
        return out

    def send(j):
        out = []
        for dp in range(2):
            a = oacc(5 + j, dp*2)
            out.append([f"v_cvt_pk_bf16_f32 v{a+k}, v{a+2*k}, v{a+2*k+1}" for k in range(4)])
            out.append(dma([f"s_add_u32 {sT0}, {sT2}, {(j*2 + dp)*1024}",
                            f"buffer_store_dwordx4 {vr(a, 4)}, v17, {sWS}, {sT0} offen"], "snd", vm))
        return out

    def pv_interval(i):
        if i == 1:
            run(vt_reads(0))
            if OPT.get("dprio") or OPT.get("ppost") == 2:
                A("s_setprio 1")
            A(f"v_lshlrev_b32 v17, 4, v0")
            A(f"s_lshl_b32 {sXTC}, {sDQ}, 10")
            A(f"s_add_u32 {sXTC}, {sXTC}, {sXS}")
            if OPT["vpv"]:
                A(f"s_add_u32 {sVO}, {sKV0}, {3*16384}")
                run(v_dma(3))
            A("s_waitcnt lgkmcnt(0)")
            A("s_barrier")
            return
        t = i - 2; buf = t & 1
        fst(i, 3)
        pa = [f"ds_read_b128 {vr(P_A + j*4, 4)}, v{vPR} offset:{P_BUF + buf*10240 + (5 + j)*256}" for j in range(5)]
        pb = [f"ds_read_b128 {vr(P_B + j*4, 4)}, v{vPR} offset:{P_BUF + buf*10240 + j*256}" for j in range(5)]
        if t >= 1:
            e = []
            fl = [pa[0], e, pa[1], e, pa[2], e, pa[3], e, pa[4], e, pb[0], e, pb[1], e, pb[2], e, e, e, e, pb[3]]
            if t == 1:
                run(vt_reads(1))
            weave(pv_mfma(t - 1, 1, P_B, t == 1), fl)
        else:
            run(pa + pb[:4])
        fst(i, 4)
        if OPT["vpv"]:
            if t == 1:
                A("s_waitcnt lgkmcnt(9)")
            if i + 2 <= 31:
                run(v_dma(i + 2))
            if vm.has(f"V{t+1}"):
                A(f"s_waitcnt vmcnt({vm.wait(f'V{t+1}')})")
            if i == 28 and OPT["cw"] >= 2:
                code_warm("b", 5, SCR, 16)
            if i == 28:
                A(f"""
                s_cmp_lg_u32 {sW}, 4
                s_cbranch_scc1 L_rg1
                v_mov_b32 v23, 0 ; cond
                s_lshl_b32 {sT1}, {sB}, 5 ; cond
                buffer_load_dword v22, v23, {sDBG}, {sT1} offen sc1 ; cond
                L_rg1:
                """)
            if i == 32:
                A(f"""
                s_cmp_lg_u32 {sW}, 4
                s_cbranch_scc1 L_regdone
                s_getreg_b32 {sT2}, hwreg(HW_REG_XCC_ID)
                s_and_b32 {sT2}, {sT2}, 15
                s_mul_i32 {sT1}, {sT2}, {sT2}
                s_lshl_b32 {sT1}, {sT1}, 23
                s_lshl_b32 {sT2}, {sT2}, 13
                s_add_u32 {sT2}, {sT2}, {sT1}
                s_add_u32 {sT2}, {sT2}, 32
                s_lshl_b32 {sT1}, {sB}, 5
                s_mov_b32 {sCNT}, 0x40000
                v_mov_b32 v23, 0
                L_regpoll:
                v_readfirstlane_b32 {sT0}, v22
                s_sub_u32 {sCNT}, {sCNT}, 1
                s_cmp_eq_u32 {sCNT}, 0
                s_cbranch_scc1 L_regok
                s_and_b32 {sT3}, {sT0}, 0xff
                s_cmp_ge_u32 {sT3}, 32
                s_cbranch_scc1 L_regok
                s_sleep 8
                buffer_load_dword v22, v23, {sDBG}, {sT1} offen sc1
                s_waitcnt vmcnt(0)
                s_branch L_regpoll
                L_regok:
                s_cmp_eq_u32 {sT0}, {sT2}
                s_cselect_b32 {sLOC}, {0 if OPT.get("noloc") else 1}, 0
                v_mov_b32 v23, {ST_M + 1024}
                v_mov_b32 v22, {sLOC}
                s_waitcnt lgkmcnt(0)
                ds_write_b32 v23, v22
                s_waitcnt lgkmcnt(0)
                L_regdone:
                """)
            TS = OPT["ts"]
            if OPT["xtouch"] and TS and i == OPT["xt0"]:
                per = 64 * TS
                tot = XCH_BYTES if OPT.get("tall") else 40960
                n = -(-tot // (4 * per))
                A(f"v_mul_u32_u24 v16, {TS}, v0")
                A(f"s_add_u32 m0, {sW1K}, {SCR}")
                A(f"s_mul_i32 {sXTC}, {sDQ}, {per}")
                A(f"s_add_u32 {sXTC}, {sXTC}, {sXS}")
                for k in range(n):
                    put(dma([f"buffer_load_dword v16, {sWS}, {sXTC} offen{XTF} lds", f"s_add_u32 {sXTC}, {sXTC}, {4*per}"], "tch", vm))
                A(f"s_add_u32 {sXTC}, {sXS}, {XST}")
                put(dma([f"buffer_load_dword v16, {sWS}, {sXTC} offen{XTF} lds"], "tch", vm))
            sched = {24: 2, 25: 2, 26: 2, 27: 2, 28: 3} if OPT.get("thin") == 2 else {26: 2, 27: 2, 28: 2, 29: 2, 30: 3} if OPT.get("thin") == 3 else {28: 2, 29: 2, 30: 3, 31: 4} if OPT.get("thin") else {OPT["xt0"]: 3, OPT["xt0"] + 1: 4, OPT["xt0"] + 2: 4}
            nx = sched.get(i, 0) if (OPT["xtouch"] and not TS) else 0
            if nx:
                A(f"s_add_u32 m0, {sW1K}, {SCR}")
            for k in range(nx):
                if i == max(sched) and k == nx - 1:
                    A(f"s_and_b32 {sXTC}, {sW1K}, 1024")
                    A(f"s_add_u32 {sXTC}, {sXTC}, {sXS}")
                    A(f"s_add_u32 {sXTC}, {sXTC}, {XST}")
                else:
                    A("s_nop 0")
                put(dma([f"buffer_load_dwordx4 v17, {sWS}, {sXTC} offen{XTF} lds", f"s_add_u32 {sXTC}, {sXTC}, 4096"], "tch", vm))
        A("s_waitcnt lgkmcnt(4)")
        fst(i, 5)
        d = []
        if i == OPT["wwarm"]:
            d = [[f"s_mul_i32 {sT1}, s2, 14336", f"s_lshl_b32 {sT2}, {sDQ}, 10", f"s_add_u32 {sT1}, {sT1}, {sT2}",
                  f"s_add_u32 m0, {sW1K}, {SCR}"]]
            for k in range(4):
                d.append(dma([f"buffer_load_dwordx4 v17, {sWO}, {sT1} offen lds", f"s_add_u32 {sT1}, {sT1}, 4096"], f"X{i}", vm))
        if i == OPT["touch"]:
            d = [[f"v_lshrrev_b32 v16, 2, v0", f"v_mul_u32_u24 v16, 896, v16", f"v_and_b32 v18, 3, v0",
                  f"v_lshl_add_u32 v16, v18, 7, v16",
                  f"s_lshl_b32 {sT1}, {sHALF}, 2", f"s_add_u32 {sT1}, {sT1}, {sDQ}", f"s_mul_i32 {sT1}, {sT1}, {32*896}",
                  f"s_add_u32 {sT1}, {sT1}, {sWOO}", f"s_add_u32 {sT2}, {sT1}, {16*896}"],
                 dma([f"s_add_u32 m0, {sW1K}, {SCR - 384}", "s_nop 0", f"buffer_load_dword v16, {sWO}, {sT1} offen offset:384 lds"], "tch", vm),
                 dma([f"buffer_load_dword v16, {sWO}, {sT2} offen offset:384 lds"], "tch", vm)]
        vt = vt_reads(t + 1) if (t + 1 <= 31 and t != 0) else []
        if i == 33:
            d = [[f"s_mul_i32 {sT3}, {sDQ}, 10240", f"s_add_u32 {sT2}, {sXS}, {sT3}"], [], [], []]
            for j in range(5):
                d += send(j)
        weave(pv_mfma(t, 0, P_A, t == 0), [[], []] + vt[:2] + [pb[4]] + vt[2:] + d)
        fst(i, 6)
        A("s_waitcnt lgkmcnt(0)")
        fst(i, 7)
        A("s_barrier")
        fst(i, 8)

    interval = s_interval if S else pv_interval
    seg("g0")
    for i in range(1, 4):
        interval(i)
    stamp(6)
    A(f"s_mov_b32 {sCNT}, {OPT['nloop']}")
    vm.q = [t for t in vm.q if t[0] != "X"]
    q_before = list(vm.q)
    seg("loop")
    A(f"L_{R}_loop:")
    for i in range(4, 8):
        interval(i)
    A(f"s_sub_u32 {sCNT}, {sCNT}, 1")
    A(f"s_cmp_lg_u32 {sCNT}, 0")
    A(f"s_cbranch_scc1 L_{R}_loop")
    sh = lambda q, d: [t[0] + str(int(t[1:]) + d) for t in q]
    while vm.q and vm.q[0][0] == 'X':
        vm.q.pop(0)
    assert sh(q_before, 4) == vm.q, (q_before, vm.q)
    vm.q = sh(vm.q, 4*(OPT['nloop'] - 1))
    tr.append(f"{R}_loop")
    seg("gl")
    for i in range(4 + 4*OPT['nloop'], 33):
        if i == 28:
            stamp(7); stamp(3, 7)
        interval(i)
    if S:
        if OPT["prio"]:
            A("s_setprio 0")
        T = S_KF + 4
        for qt in range(5):
            A(f"v_mov_b32 v{T + qt}, v{S_L + qt}")
        for qt in range(5):
            A(f"v_permlane32_swap_b32 v{T + qt}, v{S_L + qt}")
        for qt in range(5):
            A(f"v_add_f32 v{S_L + qt}, v{S_L + qt}, v{T + qt}")
            A(f"v_mov_b32 v{T + qt}, v{S_L + qt}")
        for qt in range(5):
            A(f"v_permlane16_swap_b32 v{T + qt}, v{S_L + qt}")
        A(f"v_add_u32 v5, {(ST_L - MX_OFF) & 0xffffffff}, v{vMX}")
        A(f"v_subrev_u32 v6, {MX_OFF}, v{vMX}")
        A(f"v_lshrrev_b32 v6, 3, v6")
        A(f"v_lshlrev_b32 v6, 2, v6")
        A(f"v_add_u32 v6, {ST_M}, v6")
        for qt in range(5):
            A(f"v_add_f32 v{S_L + qt}, v{S_L + qt}, v{T + qt}")
            A(f"ds_write_b32 v5, v{S_L + qt} offset:{qt*128}")
            A(f"ds_write_b32 v6, v{S_NM + qt*4} offset:{qt*64}")
        A(f"""
        v_and_b32 v17, 15, v0
        v_lshlrev_b32 v17, 4, v17
        s_add_u32 {sT2}, {sXS}, {XST}
        s_lshl_b32 {sT1}, {sKH}, 3
        s_add_u32 {sT1}, {sT1}, {sT2}
        s_cmp_eq_u32 {sQH}, 0
        s_cbranch_scc1 L_nost
        """)
        for qt in range(5):
            A(f"v_mov_b32 v{S_NM + qt*4 + 1}, v{S_L + qt} ; cond")
        for qt in range(5):
            A(f"buffer_store_dwordx2 {vr(S_NM + qt*4, 2)}, v17, {sWS}, {sT1} offen offset:{qt*256} ; cond")
        A("L_nost:")
        run(wo_dma(2, vm)[:4])
        A("s_waitcnt lgkmcnt(0)")
        A("s_barrier")
    else:
        pv_interval(33)

    seg("post")
    stamp(8); stamp(9, 7)
    A(f"""
    v_lshlrev_b32 v17, 3, v0
    v_min_u32 v18, 31, v0
    v_lshlrev_b32 v18, 3, v18
    v_add_u32 v17, {ST_L}, v17
    v_add_u32 v18, {ST_L}, v18
    ds_read_b64 v[76:77], v17
    ds_read_b64 v[82:83], v17 offset:512
    ds_read_b64 v[78:79], v18 offset:1024
    v_mov_b32 v17, {ST_M + 1024}
    ds_read_b32 v80, v17
    """)
    chk = f"""
    s_waitcnt lgkmcnt(0)
    v_readfirstlane_b32 {sLOC}, v80
    v_add_f32 v76, v76, v77
    v_add_f32 v82, v82, v83
    v_add_f32 v78, v78, v79
    v_cmp_ge_f32 s[50:51], {sLIM}, v76
    v_cmp_ge_f32 s[52:53], {sLIM}, v82
    v_cmp_ge_f32 s[54:55], {sLIM}, v78
    s_and_b64 s[50:51], s[50:51], s[52:53]
    s_and_b64 s[50:51], s[50:51], s[54:55]
    s_cmp_eq_u64 s[50:51], -1
    s_cbranch_scc1 L_{R}_ok
    s_cmp_eq_u32 {sRETRY}, 0
    s_cbranch_scc1 L_{R}_fallback
    """
    if not S:
        mf = pv_mfma(31, 1, P_B, False)
        run(mf[:6])
    A(chk)
    seg("ok")
    A(f"L_{R}_ok:")

    def signal_wait(flag_word, poll_addr_code, nlanes, lab, agent=0):
        A(f"""
        s_cmp_lg_u32 {sW}, {agent}
        s_cbranch_scc1 L_{lab}_done
        v_mov_b32 v28, 1
        s_lshl_b32 {sT1}, {sHQ}, 2
        s_add_u32 {sT1}, {sT1}, {flag_word}
        v_mov_b32 v27, {sT1}
        {poll_addr_code}
        s_mov_b32 {sCNT}, 0x40000
        s_mov_b64 exec, 1
        s_cmp_eq_u32 {sLOC}, 1
        s_cbranch_scc1 L_{lab}_loc
        buffer_wbl2 sc1
        s_waitcnt vmcnt(0)
        buffer_store_dword v28, v27, {sWS}, {sFLG} offen sc1
        s_branch L_{lab}_sent
        L_{lab}_loc:
        buffer_store_dword v28, v27, {sWS}, {sFLG} offen{YF if lab == "fx" else ""}
        L_{lab}_sent:
        s_mov_b64 exec, {hex((1 << nlanes) - 1)}
        L_{lab}_poll:
        buffer_load_dword v30, v29, {sWS}, {sT2} offen sc1
        s_waitcnt vmcnt(0)
        v_cmp_ne_u32 vcc, 1, v30
        s_sub_u32 {sCNT}, {sCNT}, 1
        s_cmp_eq_u32 {sCNT}, 0
        s_cbranch_scc1 L_{lab}_got
        s_cmp_eq_u64 vcc, 0
        s_cbranch_scc1 L_{lab}_got
        s_sleep {OPT["slp"]}
        s_branch L_{lab}_poll
        L_{lab}_got:
        s_mov_b64 exec, -1
        s_cmp_eq_u32 {sLOC}, 1
        s_cbranch_scc1 L_{lab}_done
        buffer_inv sc1
        s_waitcnt vmcnt(0)
        L_{lab}_done:
        """)

    def oa_addr():
        A(f"""
        v_and_b32 v16, 15, v0
        v_lshrrev_b32 v17, 4, v0
        v_lshrrev_b32 v18, 2, v16
        v_lshl_add_u32 v20, v17, 3, v18
        v_lshlrev_b32 v20, 7, v20
        v_and_b32 v21, 3, v0
        v_lshl_add_u32 v20, v21, 3, v20
        v_lshrrev_b32 v18, 1, v18
        v_and_b32 v21, 1, v17
        v_lshl_add_u32 v18, v21, 1, v18
        v_xor_b32 v18, {sDQ}, v18
        v_lshl_add_u32 v{vOA[0]}, v18, 5, v20
        v_add_u32 v{vOA[1]}, 0x10000, v{vOA[0]}
        v_add_u32 v{vOA[2]}, 0x20000, v{vOA[0]}
        s_lshl_b32 {sT1}, {sDQ}, 9
        s_cmp_eq_u32 {sLOC}, 1
        s_cselect_b32 {sPA}, {sPART if OPT.get("gsc1") else sXR}, {sPART}
        s_add_u32 {sPA}, {sPA}, {sT1}
        s_lshl_b32 {sT1}, {sHALF}, 11
        s_add_u32 {sPB}, {sPA}, {sT1}
        s_sub_u32 {sPC}, {sPA}, {sT1}
        v_lshrrev_b32 v18, 1, v17
        v_lshlrev_b32 v18, 8, v18
        v_lshl_add_u32 v18, v16, 4, v18
        v_mul_u32_u24 v22, 14336, v21
        v_xor_b32 v13, 64, v{vA0}
        v_add_u32 v14, v22, v18
        v_lshl_add_u32 v15, v21, 3, v18
        """)
    vOBx = [vA0, 13]; vS4, vS2 = 14, 15
    SA = 128
    def sa_reads(j):
        out = []
        for ks in range(8):
            for e in range(2):
                off = WSL[j] + (32*ks + 4*e) * 128
                out.append(f"ds_read_b64_tr_b16 {vr(SA + j*32 + ks*4 + e*2, 2)}, v{vOA[off >> 16]} offset:{off & 0xffff}")
        return out

    if S:
        A(f"s_lshl_b32 {sT0}, {sW}, 6")
        A(f"v_add_u32 v23, {sT0}, v0")
        oa_addr()
    else:
        A(f"""
        v_lshlrev_b32 v17, 4, v0
        v_and_b32 v16, 15, v0
        v_lshlrev_b32 v14, 4, v16
        v_lshlrev_b32 v18, 3, v16
        v_lshlrev_b32 v16, 2, v16
        v_add_u32 v15, {ST_L}, v18
        v_add_u32 v16, {ST_M}, v16
        """)
        run(mf[6:])
        for qt in range(5):
            A(f"ds_read_b64 {vr(76 + qt*4, 2)}, v15 offset:{qt*128}")
            A(f"ds_read_b32 v{78 + qt*4}, v16 offset:{qt*64}")
    stamp(3, 4)
    A("s_waitcnt vmcnt(0) lgkmcnt(0)")
    vm.clear()
    A("s_barrier")
    stamp(4, 4)
    if S:
        run(sa_reads(0) + sa_reads(1) + sa_reads(3))
        A("s_waitcnt lgkmcnt(0)")
    else:
        signal_wait(64, f"v_mov_b32 v29, v27\n s_xor_b32 {sT2}, {sFLG}, 128", 1, "px", agent=4)
    A("s_barrier")
    stamp(5, 4); stamp(3, 5)
    if not S:
        RB = oacc(5, 0)
        A(f"""
        s_add_u32 {sT0}, {sXR}, {XST}
        s_add_u32 {sT2}, {sXR}, {sT3}
        """)
        for qt in range(5):
            A(f"buffer_load_dwordx4 {vr(56 + qt*4, 4)}, v14, {sWS}, {sT0} offen offset:{qt*256} sc1")
            vm.issue("ps")
        for n in range(10):
            A(f"s_add_u32 {sT0}, {sT2}, {n*1024}")
            A(f"buffer_load_dwordx4 {vr(RB + n*4, 4)}, v17, {sWS}, {sT0} offen sc1")
            vm.issue(f"x{n}")
        A("s_barrier")
        stamp(4, 5)
        A(f"s_waitcnt vmcnt({vm.wait('ps')}) lgkmcnt(0)")
        stamp(5, 5)
        if OPT["stamps"] == 5:
            A("s_waitcnt vmcnt(0)")
            stamp(6, 5)
        for qt in range(5):
            l0, l1, nm = 76 + qt*4, 77 + qt*4, 78 + qt*4
            pn, pl = 56 + qt*4, 57 + qt*4
            A(f"""
            v_add_f32 v{pl}, v{pl}, v{pl+2}
            v_add_f32 v{l0}, v{l0}, v{l1}
            v_sub_f32 v{l1}, v{nm}, v{pn}
            v_sub_f32 v{nm}, v{pn}, v{nm}
            v_exp_f32 v{l1}, v{l1}
            v_exp_f32 v{nm}, v{nm}
            v_fma_f32 v{l1}, v{l1}, v{pl}, v{l0}
            v_fma_f32 v{nm}, v{nm}, v{l0}, v{pl}
            v_rcp_f32 v{l1}, v{l1}
            v_rcp_f32 v{nm}, v{nm}
            """)
        for qt in range(5):
            w1, w2 = 77 + qt*4, 78 + qt*4
            for dt in range(4):
                a = oacc(qt, dt); r = RB + (qt*2 + dt//2)*4 + (dt & 1)*2
                for k in range(4):
                    A(f"v_mul_f32 v{a+k}, v{w1}, v{a+k}")
                if dt % 2 == 0:
                    A(f"s_waitcnt vmcnt({vm.wait(f'x{qt*2 + dt//2}')})")
                A(f"v_lshlrev_b32 v24, 16, v{r}")
                A(f"v_and_b32 v25, 0xffff0000, v{r}")
                A(f"v_lshlrev_b32 v26, 16, v{r+1}")
                A(f"v_and_b32 v27, 0xffff0000, v{r+1}")
                for k in range(4):
                    A(f"v_fmac_f32 v{a+k}, v{w2}, v{24+k}")
                A(f"v_cvt_pk_bf16_f32 v{a}, v{a}, v{a+1}")
                A(f"v_cvt_pk_bf16_f32 v{a+1}, v{a+2}, v{a+3}")
                A(f"ds_write_b64 v{vOW[dt]}, {vr(a, 2)} offset:{qt*8192}")
    else:
        run(sa_reads(2))
        A("s_waitcnt lgkmcnt(0)")
        A("s_barrier")
        run(wo_dma(4, vm) + wo_dma(5, vm) + wo_dma(6, vm))
    if S and OPT["xtouch"] and not OPT.get("gsc1") and not OPT.get("tall"):
        A(f"v_lshlrev_b32 v17, 4, v0")
        A(f"s_add_u32 {sT0}, {sXR}, {sW1K}")
        for k in range(8):
            A(f"s_add_u32 {sT1}, {sT0}, {40960 + k*4096}")
            put(dma([f"buffer_load_dwordx4 v[8:11], v17, {sWS}, {sT1} offen{XTF}"], "tch", vm))
    stamp(7, 5)
    def y_out(acc, slot):
        out = []
        co = slot * 2048
        sPA = globals()["sPA"] if (slot == 6 or not OPT["deph"]) else (sPB if slot % 2 == 0 else sPC)
        for pr in range(2):
            a = acc + pr*8; b = a + 4
            out.append([f"v_cvt_pk_bf16_f32 v{a}, v{a}, v{a+1}", f"v_cvt_pk_bf16_f32 v{a+1}, v{a+2}, v{a+3}"])
            out.append([f"v_cvt_pk_bf16_f32 v{a+2}, v{b}, v{b+1}", f"v_cvt_pk_bf16_f32 v{a+3}, v{b+2}, v{b+3}"])
            out.append(f"s_add_u32 {sT1}, {sPA}, {co + pr*2*14336}")
            out.append([f"v_permlane16_swap_b32 v{a}, v{a+2}", f"v_permlane16_swap_b32 v{a+1}, v{a+3}"])
            out.append(f"buffer_store_dwordx4 {vr(a, 4)}, v{vS4}, {sWS}, {sT1} offen{YF}")
        a = acc + 16
        out.append([f"v_cvt_pk_bf16_f32 v{a}, v{a}, v{a+1}", f"v_cvt_pk_bf16_f32 v{a+1}, v{a+2}, v{a+3}"])
        out.append([f"s_add_u32 {sT1}, {sPA}, {co + 4*14336}", f"buffer_store_dwordx2 {vr(a, 2)}, v{vS2}, {sWS}, {sT1} offen{YF}"])
        return out

    lg.clear()
    if S:
        stamp(8, 5)
        A("s_barrier")
        stamp(9); stamp(6, 4); stamp(9, 5)
        SB, NB, SACC = 24, 6, 48
        seq = [(ps, ks, qt) for ps in range(2) for ks in range(8) for qt in range(5)]
        def bread(n):
            ps, ks, qt = seq[n]
            return lds(f"ds_read_b128 {vr(SB + (n % NB)*4, 4)}, v{vOBx[ks & 1]} offset:{qt*8192 + (ks >> 1)*2048}", f"b{n}")
        for n in range(NB - 1):
            put(bread(n))
        fill = []
        for n, (ps, ks, qt) in enumerate(seq):
            if n == 42:
                fill = y_out(SACC, 0) + y_out(SACC + 20, 1)
            if n == OPT["z4"]:
                A(f"s_waitcnt vmcnt({vm.wait('wo6')})")
                A("s_barrier")
            A(f"s_waitcnt lgkmcnt({lg.wait(f'b{n}')})")
            for tl in range(2):
                j = ps*2 + tl
                acc = vr(SACC + j*20 + qt*4, 4)
                A(f"v_mfma_f32_16x16x32_bf16 {acc}, {vr(SA + j*32 + ks*4, 4)}, {vr(SB + (n % NB)*4, 4)}, {'0' if ks == 0 else acc}")
                if tl == 0 and n + NB - 1 < len(seq):
                    put(bread(n + NB - 1))
                elif fill:
                    put(fill.pop(0))
        run(fill)
        run(y_out(SACC + 40, 2) + y_out(SACC + 60, 3))
        A(f"v_mov_b32 v12, v23")
    else:
        oa_addr()
        A(f"s_lshl_b32 {sT0}, {sW}, 6")
        A(f"v_add_u32 v12, {sT0}, v0")
        A("s_waitcnt lgkmcnt(0)")
        stamp(8, 5)
        A("s_barrier")
        stamp(9); stamp(6, 4); stamp(9, 5)
        steps = [(r, ks) for r in range(3) for ks in range(8)]
        def a_read(n):
            r, ks = steps[n]
            out = []
            for e in range(2):
                off = WSL[4 + r] + (32*ks + 4*e) * 128
                out.append(lds(f"ds_read_b64_tr_b16 {vr(E_A + (n & 3)*4 + e*2, 2)}, v{vOA[off >> 16]} offset:{off & 0xffff}", f"a{n}"))
            return out
        for ks in range(8):
            for qt in range(5):
                A(f"ds_read_b128 {vr(E_O + (qt*8 + ks)*4, 4)}, v{vOBx[ks & 1]} offset:{qt*8192 + (ks >> 1)*2048}")
        A("s_barrier")
        stamp(10, 5)
        run(a_read(0) + a_read(1))
        fill = []
        for n, (r, ks) in enumerate(steps):
            if ks == 1 and r >= 1:
                fill = y_out(E_ACC[(r - 1) & 1], 4 + r - 1)
            A(f"s_waitcnt lgkmcnt({lg.wait(f'a{n}')})")
            mfs = []
            for qt in range(5):
                acc = vr(E_ACC[r & 1] + qt*4, 4)
                mfs.append(f"v_mfma_f32_16x16x32_bf16 {acc}, {vr(E_A + (n & 3)*4, 4)}, {vr(E_O + (qt*8 + ks)*4, 4)}, {'0' if ks == 0 else acc}")
            rd = a_read(n + 2) if n + 2 < len(steps) else []
            if len(rd) > 2:
                weave(mfs, rd, per=2)
            else:
                weave(mfs, rd + [fill.pop(0) if fill else [] for _ in range(3)])
        run(fill)
        run(y_out(E_ACC[0], 6))
    stamp(10); stamp(7, 4); stamp(11, 5)
    A(f"""
    s_mul_i32 {sT0}, {sHQ}, 280
    v_add_u32 v1, {sT0}, v12
    v_lshrrev_b32 v2, 5, v1
    v_mul_u32_u24 v3, 2341, v2
    v_lshrrev_b32 v3, 16, v3
    v_mul_u32_u24 v4, 28, v3
    v_sub_u32 v4, v2, v4
    v_and_b32 v5, 15, v1
    v_lshl_add_u32 v5, v3, 4, v5
    v_bfe_u32 v6, v1, 4, 1
    v_lshlrev_b32 v6, 4, v6
    v_lshl_add_u32 v6, v4, 5, v6
    v_mul_u32_u24 v7, 896, v5
    v_add_u32 v6, v6, v7
    v_lshlrev_b32 v1, 4, v1
    v_mov_b32 v13, 0x7fffff00
    v_cmp_gt_u32 vcc, 280, v12
    v_cndmask_b32 v1, v13, v1, vcc
    v_cndmask_b32 v6, v13, v6, vcc
    s_waitcnt vmcnt(0)
    s_barrier
    """)
    stamp(8, 4)
    if S:
        signal_wait(0, f"v_lshlrev_b32 v29, 2, v0\n s_mov_b32 {sT2}, {sFLG}", 16, "fx")
        A("s_branch L_red")
    tr.append("red")
    A.trace(tr)
    return vm, vm_join


def gen_fallback(role, vm_join):
    S = role == "S"; R = role
    vm = VM(63)
    tr2 = [f"{R}_gl", f"{R}_post"]
    A.seg(f"{R}_fb"); tr2.append(f"{R}_fb")
    A(f"L_{R}_fallback:")
    A(f"""
    s_mov_b32 {sRETRY}, 1
    s_waitcnt vmcnt(0) lgkmcnt(0)
    s_barrier
    s_mov_b32 {sKO}, {sKV0}
    s_mov_b32 {sCNT}, 32
    """)
    if S:
        for qt in range(5):
            A(f"v_mov_b32 v{S_L+qt}, 0xff800000")
        v_addr()
    def s_tile():
        for hh in range(2):
            for s in range(4*hh, 4*hh + 4):
                A(f"ds_read_b128 {vr(S_KF + (s & 3)*4, 4)}, v{vKA[s & 1]} offset:{(s >> 1)*2048}")
            A("s_waitcnt lgkmcnt(0)")
            for s in range(4*hh, 4*hh + 4):
                for qt in range(5):
                    acc = vr(S_S[0] + qt*4, 4)
                    A(f"v_mfma_f32_16x16x32_bf16 {acc}, {vr(S_KF + (s & 3)*4, 4)}, {vr(S_Q + (qt*8 + s)*4, 4)}, {acc if s else '0'}")
    A.seg(f"{R}_fbl"); tr2 += [f"{R}_fbl", f"{R}_fbl"]
    A(f"L_{R}_fbl:")
    if S:
        run(k_lines(0))
        A("s_waitcnt vmcnt(0)")
        A("s_barrier")
        s_tile()
        for qt in range(5):
            a = S_S[0] + qt*4
            A(f"v_max3_f32 v{S_L+qt}, v{a}, v{a+1}, v{S_L+qt}")
            A(f"v_max3_f32 v{S_L+qt}, v{a+2}, v{a+3}, v{S_L+qt}")
        A("s_barrier")
    else:
        A("s_barrier")
        A("s_barrier")
    A(f"s_sub_u32 {sCNT}, {sCNT}, 1")
    A(f"s_cmp_lg_u32 {sCNT}, 0")
    A(f"s_cbranch_scc1 L_{R}_fbl")
    A.seg(f"{R}_fbe"); tr2 += [f"{R}_fbe", f"{R}_join", f"{R}_g0"]
    if S:
        A(f"s_mov_b32 {sKO}, {sKV0}")
        A(f"s_mov_b32 {sVO}, {sKV0}")
        run(k_lines(0) + k_lines(1) + v_lines(0) + k_lines(2))
        assert vm_join == ["K1"]*4 + ["V0"]*4 + ["K2"]*4, vm_join
        if OPT["prio"]:
            A(f"s_setprio {OPT['prio']}")
        A("s_waitcnt vmcnt(12)")
        A("s_barrier")
        s_tile()
    else:
        A("s_barrier")
    A(f"s_branch L_{R}_join")
    A.trace(tr2)


vmS, joinS = gen_role("S")
gen_fallback("S", joinS)
gen_fallback("PV", None) if False else None
vmP, joinP = gen_role("PV")

D0, AC = 96, 40
A.seg("red")
A("L_red:")
A("s_barrier")
stamp(11); stamp(9, 4)
A(f"""
s_cmp_ge_u32 {sW}, 5
s_cbranch_scc1 L_fin
s_lshl_b32 {sT2}, {sB}, 1
s_add_u32 {sT2}, {sT2}, {sHALF}
s_xor_b32 {sT3}, {sT2}, 1
s_mul_i32 {sT2}, {sT2}, {16*PART_BYTES}
s_mul_i32 {sT3}, {sT3}, {16*XCH_BYTES}
s_add_u32 {sT3}, {sT3}, {XCH_OFF}
s_mov_b32 {sT0}, {PART_BYTES}
s_cmp_eq_u32 {sLOC}, {2 if OPT.get("gsc1") else 1}
s_cselect_b32 {sT2}, {sT3}, {sT2}
s_cselect_b32 {sT0}, {XCH_BYTES}, {sT0}
s_mul_i32 {sT1}, {sHALF}, {80*896}
s_add_u32 {sT1}, {sT1}, {sXO}
""")
for p in range(16):
    A(f"buffer_load_dwordx4 {vr(D0 + p*4, 4)}, v1, {sWS}, {sT2} offen sc1")
    A(f"s_add_u32 {sT2}, {sT2}, {sT0}")
for p in range(16):
    A(f"s_waitcnt vmcnt({15 - p})")
    if p in (0, 15):
        stamp({0: 10, 15: 11}[p], 4)
    for r in range(4):
        d = D0 + p*4 + r
        if p == 0:
            A(f"v_lshlrev_b32 v{AC + 2*r}, 16, v{d}")
            A(f"v_and_b32 v{AC + 2*r + 1}, 0xffff0000, v{d}")
        else:
            A(f"v_lshlrev_b32 v{24 + 2*r}, 16, v{d}")
            A(f"v_and_b32 v{25 + 2*r}, 0xffff0000, v{d}")
    if p:
        for r in range(8):
            A(f"v_add_f32 v{AC + r}, v{AC + r}, v{24 + r}")
for r in range(4):
    A(f"v_cvt_pk_bf16_f32 v{20 + r}, v{AC + 2*r}, v{AC + 2*r + 1}")
A(f"buffer_store_dwordx4 v[20:23], v6, {sOUT}, {sT1} offen")
A("L_fin:")
if OPT["stamps"]:
    A("s_waitcnt vmcnt(0)")
    stamp(12)
    A("s_memrealtime s[58:59]")
    A("s_waitcnt lgkmcnt(0)")
    A("v_mov_b32 v20, s56")
    A("v_mov_b32 v21, s58")
    for k in range(2, 13):
        A(f"v_mov_b32 v{20+k}, s{76+2*k}")
    A("v_mov_b32 v33, 0")
    A("v_mov_b32 v34, 0")
    A("v_mov_b32 v35, 0")
    A(f"s_lshl_b32 {sT0}, s2, 9")
    A(f"s_lshl_b32 {sT1}, {sW}, 6")
    A(f"s_add_u32 {sT0}, {sT0}, {sT1}")
    A(f"s_add_u32 {sT0}, {sT0}, {STAMP_OFF}")
    A("v_mov_b32 v40, 0")
    for j in range(4):
        A(f"buffer_store_dwordx4 v[{20+4*j}:{23+4*j}], v40, {sWS}, {sT0} offen offset:{16*j}")
if OPT["stamps"] and OPT.get("dbg") is not None:
    A(f"s_cmp_lg_u32 s2, {OPT['dbg']}")
    A("s_cbranch_scc1 L_end")
    A(f"s_cmp_lg_u32 {sW}, 0")
    A("s_cbranch_scc1 L_end")
    A("v_sub_u32 v21, v21, v20")
    for k in range(12, 2, -1):
        A(f"v_sub_u32 v{20+k}, v{20+k}, v{19+k}")
    for j, r in enumerate([21] + list(range(23, 33))):
        w = j + 1 if j < 7 else j + 2
        A(f"buffer_store_dword v{r}, v40, {sDBG}, 0 offen offset:{4*w}")
A("L_end:")
A("s_endpgm")
gen_fallback("PV", joinP)

A.seg("desc")
A("L_codeend:")
A('.section .rodata,"a"')
A(".p2align 6")
A(f".amdhsa_kernel {KNAME}")
A(".amdhsa_next_free_vgpr 256")
A(".amdhsa_next_free_sgpr 102")
A(".amdhsa_accum_offset 256")
A(".amdhsa_group_segment_fixed_size 0")
A(".amdhsa_kernarg_size 64")
A(".amdhsa_user_sgpr_count 2")
A(".amdhsa_user_sgpr_kernarg_segment_ptr 1")
A(".amdhsa_system_sgpr_workgroup_id_x 1")
A(".end_amdhsa_kernel")

A.fix_hazards()
sys.stderr.write("nops: %s\n" % A.count_nops())
sys.stdout.write(A.text())
```

```python
import sys, struct, math
from asmlib import Asm, VM

OPT = dict(nt="nt", prio=1, stamps=0, fine=28, pre=4, touch=-1, xtouch=1, rot=0, deph=1, nloop=6, dstep=5, cw=2, ts=0, z4=30, wwarm=2, xt0=29, vpv=1, mapb=1, slp=4)
for a in sys.argv[1:]:
    k, v = a.split("=")
    OPT[k] = int(v) if v.lstrip("-").isdigit() else v
NT = (" " + OPT["nt"]) if OPT["nt"] not in ("", "none") else ""
NTV = NT if "ntv" not in OPT else ((" " + OPT["ntv"]) if OPT["ntv"] != "none" else "")
KNAME = "standalone__gqa_block_cached__near_ridge_kernel"

def f32(x):
    return "0x%08x" % struct.unpack("<I", struct.pack("<f", x))[0]

P_BUF = 0
VRING = 32768
KRING = 98304
MX_OFF = KRING + 3 * 16384
STG = [0, 53248, 106496]
XOFF = 32768
WSL = [98304, 131072, 65536, 32768, 98304, 131072, 65536]
ST_L = 28672
ST_M = ST_L + 1280
LDS_BYTES = 163840
PART_BYTES = 71680
XCH_BYTES = 71680 + 2048
XST = 71680
SCR = 20480
XCH_OFF = 256 * PART_BYTES
FLAG_OFF = XCH_OFF + 256 * XCH_BYTES
STAMP_OFF = 48 << 20

sX, sWQ, sVr, sWO, sWS, sKr = "s[4:7]", "s[8:11]", "s[12:15]", "s[16:19]", "s[20:23]", "s[60:63]"
sW, sB, sHQ, sHALF, sHKV = "s24", "s25", "s26", "s27", "s28"
sKO, sCNT, sRETRY = "s29", "s30", "s31"
sT0, sT1, sT2, sT3 = "s32", "s33", "s34", "s35"
sW1K, sXO, sWQO, sKDST, sKV0, sC, sWOO, sPART = "s36", "s37", "s38", "s39", "s40", "s41", "s42", "s43"
sQH, sKH, sDQ, sHP = "s44", "s45", "s46", "s47"
sLIM, sVO, sVDST = "s48", "s49", "s3"
sXS, sXR = "s64", "s65"
sFLG, sLOC = "s66", "s67"
sXT = ["s50", "s51", "s52"]
sPA, sPB, sPC = "s50", "s51", "s52"
WOF = " " + OPT.get("wof", "none").replace("+", " ").replace("none", "")
YF = " sc1" if OPT.get("gsc1") else ""
sWOe, sWOo = "s76", "s77"
sKVB = "s78"
sXTC = "s53"
XTF = " " + OPT.get("xtf", "sc1").replace("+", " ").replace("none", "")
sDBG = "s[68:71]"
sOUT = "s[72:75]"

A = Asm()
_lab = [0]

def stamp(k, mode=1):
    if OPT["stamps"] == mode or (OPT["stamps"] and k in (2, 12)):
        A(f"s_memtime s[{76+2*k}:{77+2*k}]")
    if OPT["stamps"] == 6 and mode == 1 and k in (5, 7, 8, 10):
        j = {5: 3, 7: 5, 8: 7, 10: 9}[k]
        A(f"s_memtime s[{76+2*j}:{77+2*j}]")
        A(f"s_memrealtime s[{78+2*j}:{79+2*j}]")

def vr(b, n):
    return f"v[{b}:{b+n-1}]" if n > 1 else f"v{b}"

def put(f):
    if callable(f):
        f()
    elif isinstance(f, (list, tuple)):
        for x in f:
            put(x)
    else:
        A(f)

def weave(main, fill, per=1):
    fill = list(fill)
    for m in main:
        put(m)
        for _ in range(per):
            if fill:
                put(fill.pop(0))
    for f in fill:
        put(f)

def run(fs):
    for f in fs:
        put(f)

def only_S(lines):
    def f():
        _lab[0] += 1
        A(f"s_cmp_ge_u32 {sW}, 4")
        A(f"s_cbranch_scc1 L_sk{_lab[0]}")
        for x in lines:
            A(x + " ; cond")
        A(f"L_sk{_lab[0]}:")
    return f

vI, vG = 40, 41
vXD, vWD = 42, 43
vW = [44, 45, 46, 47]
vXR = [48, 49]
vQW = [50, 51, 52, 53]
vQL = [54, 55]
vPVa = [56, 57, 58, 59, 60]
vA0 = 19
vKD = 16
vVD = [12, 13, 14, 15]
QACC = 176
QA = [96, 112]
QB = [128, 148]
S_Q, S_NM, S_KF, S_L = 96, 36, 20, 7
S_S = [56, 76]
vKA = [1, 2]; vPW = 3; vMX = 4
S_T = [5, 6, 17, 18]
O_ACC, P_A, P_B = 96, 76, 56
VT = [40, 24]
vVB = [1, 2, 20, 21]; vPR = 3; vOW = [4, 5, 6, 7]
vWOD = 12
E_O = 96
E_ACC = [56, 76]
E_A = 36
vOA = [1, 2, 3]; vOB = [5, 6]; vST4 = 7; vST2 = 8; vSTAT = 10

A.seg("head")
for c in """Kernarg layout (64 bytes, ptrs only, base s[0:1]): 0 x | 8 k_cache | 16 v_cache | 24 wq | 32 wo | 40 out | 48 debug | 56 ws
Fused GQA block, one workgroup (8 waves) per (batch, q-head, key-half):
  1. Q = x Wq (MFMA, LDS-DMA staged), pre-scaled by log2(e)/16
  2. waves 0-3: S^T = K Q^T - m, P = exp2(.) -> LDS ; waves 4-7: O^T += V^T P^T   (32-key tiles, LDS rings)
     m = max over the first key tile; run-time check of the row sums falls back to a true-max pass
  3. the two key-halves of a head exchange half of their rows, combine, project with Wo
  4. the 16 heads of a (batch, row-half) sum their partial outputs
Hand-offs use flags in ws (cleared at start, gated by a registration counter in debug);
same-die placement is detected at run time, any other placement uses release/acquire fences.
Generated by a hand-written Python emitter.""".split("\n"):
    A("; " + c)
A("; @launch grid=(256,1,1) block=(512,1,1) lds=%d" % LDS_BYTES)
A('.amdgcn_target "amdgcn-amd-amdhsa--gfx950"')
A(".text")
A(f".globl {KNAME}")
A(".p2align 8")
A(f".type {KNAME},@function")
A(f"{KNAME}:")
A.seg("entry")
A(f"""
s_cmp_ge_u32 s2, 256
s_cbranch_scc1 L_end
s_load_dwordx16 s[64:79], s[0:1], 0
""")
if OPT["stamps"]:
    A("s_memrealtime s[56:57]")
    stamp(2)
A(f"""
s_and_b32 {sB if OPT.get("mapb") else sHKV}, s2, 7
s_lshr_b32 {sT0}, s2, 3
s_lshr_b32 {sHKV if OPT.get("mapb") else sB}, {sT0}, 2
s_and_b32 {sT1}, {sT0}, 1
s_lshr_b32 {sHALF}, {sT0}, 1
s_and_b32 {sHALF}, {sHALF}, 1
s_lshl_b32 {sHQ}, {sHKV}, 1
s_add_u32 {sHQ}, {sHQ}, {sT1}
v_lshrrev_b32 v1, 6, v0
v_and_b32 v0, 63, v0
v_readfirstlane_b32 {sW}, v1
s_mul_i32 {sXO}, {sB}, 143360
s_lshl_b32 {sWQO}, {sHQ}, 9
v_and_b32 v{vI}, 15, v0
v_lshrrev_b32 v{vG}, 4, v0
s_lshl_b32 {sW1K}, {sW}, 10
s_lshr_b32 {sHP}, {sW}, 2
s_and_b32 {sQH}, {sW}, 1
s_lshl_b32 {sT0}, {sQH}, 2
v_add_u32 v5, {sT0}, v{vG}
v_and_b32 v6, 7, v0
v_xor_b32 v5, v5, v6
v_lshlrev_b32 v5, 4, v5
v_lshrrev_b32 v6, 3, v0
v_mul_u32_u24 v6, 896, v6
v_add_u32 v{vXD}, v5, v6
s_mul_i32 {sT0}, {sHALF}, 10
s_add_u32 {sT0}, {sT0}, {sW}
s_sub_u32 {sT1}, {sT0}, 20
s_cmp_ge_u32 {sT0}, 20
s_cselect_b32 {sT1}, {sT1}, {sT0}
s_mul_i32 {sT1}, {sT1}, 7168
s_add_u32 {sXT[0]}, {sT1}, {sXO}
s_add_u32 {sT0}, {sT0}, 8
s_sub_u32 {sT1}, {sT0}, 20
s_cmp_ge_u32 {sT0}, 20
s_cselect_b32 {sT1}, {sT1}, {sT0}
s_mul_i32 {sT1}, {sT1}, 7168
s_add_u32 {sXT[1]}, {sT1}, {sXO}
s_add_u32 {sT0}, {sT0}, 8
s_sub_u32 {sT1}, {sT0}, 20
s_cmp_ge_u32 {sT0}, 20
s_cselect_b32 {sT1}, {sT1}, {sT0}
s_mul_i32 {sT1}, {sT1}, 7168
s_add_u32 {sXT[2]}, {sT1}, {sXO}
v_lshrrev_b32 v5, 5, v0
s_lshl_b32 {sT0}, {sW}, 1
v_add_u32 v5, {sT0}, v5
v_and_b32 v6, 3, v5
s_lshl_b32 {sT0}, {sHP}, 2
v_or_b32 v6, {sT0}, v6
v_bfe_u32 v7, v0, 1, 4
v_xor_b32 v6, v6, v7
v_lshlrev_b32 v6, 5, v6
v_and_b32 v7, 1, v0
v_lshlrev_b32 v7, 4, v7
v_lshlrev_b32 v5, 13, v5
v_add3_u32 v{vWD}, v5, v6, v7
s_mov_b32 s6, 1146880
s_mov_b32 s7, 0x20000
s_mov_b32 s10, 3670016
s_mov_b32 s11, 0x20000
s_waitcnt lgkmcnt(0)
s_mov_b32 s4, s64
s_mov_b32 s5, s65
s_mov_b32 s8, s70
s_mov_b32 s9, s71
""")
stamp(3, 3)

vm = VM(63)

def dma(lines, tag, v=None):
    def f():
        for x in lines:
            A(x)
        (v or vm).issue(tag)
    return f

def stage_dma(s):
    sb = STG[s % 3]
    out = []
    for t in range(4):
        out.append(dma([f"s_add_u32 m0, {sW1K}, {sb + t*8192}",
                        f"s_add_u32 {sT0}, {sWQO}, {(s*64 + 16*t) * 8192}",
                        f"buffer_load_dwordx4 v{vWD}, {sWQ}, {sT0} offen lds"], f"st{s}"))
    for t in range(3):
        l = [f"s_add_u32 m0, {sW1K}, {sb + XOFF + t*8192}",
             f"s_add_u32 {sT0}, {sXT[t]}, {s*128}",
             f"buffer_load_dwordx4 v{vXD}, {sX}, {sT0} offen lds"]
        out.append(dma(l, f"st{s}") if t < 2 else only_S(l))
    return [out[6]] + out[:6]

def k_lines(i):
    slot = i & 3
    out = []
    for sg in range(4):
        l = [f"s_add_u32 m0, {sKDST}, {slot*16384 + sg*2048 - sg*128}", "s_nop 0",
             f"buffer_load_dwordx4 v{vKD}, {sKr}, {sKO} offen offset:{sg*128}{NT} lds"]
        if sg == 3:
            l.append(f"s_add_u32 {sKO}, {sKO}, {0 if OPT.get('samekv') else 16384}")
            if OPT["rot"]:
                l += [f"s_and_b32 {sKO}, {sKO}, 0x7ffff", f"s_or_b32 {sKO}, {sKO}, {sKVB}"]
        out.append(l)
    return out

def v_lines(t):
    pos = (t + 3) & 3
    out = []
    for jj in range(4):
        l = [f"s_add_u32 m0, {sVDST}, {pos*16384 + jj*1024}", "s_nop 0",
             f"buffer_load_dwordx4 v{vVD[jj]}, {sVr}, {sVO} offen{NTV} lds"]
        if jj == 3:
            l.append(f"s_add_u32 {sVO}, {sVO}, {0 if OPT.get('samekv') else 16384}")
            if OPT["rot"]:
                l += [f"s_and_b32 {sVO}, {sVO}, 0x7ffff", f"s_or_b32 {sVO}, {sVO}, {sKVB}"]
        out.append(l)
    return out

run(stage_dma(0))
def code_warm(lab, wave, lds_dst, va):
    A(f"""
    s_cmp_lg_u32 {sW}, {wave}
    s_cbranch_scc1 L_cw{lab}
    s_getpc_b64 s[54:55] ; cond
    L_pc{lab}:
    s_lshr_b32 {sT0}, s2, 3 ; cond
    s_mul_i32 {sT0}, {sT0}, 1280 ; cond
    s_min_u32 {sT0}, {sT0}, L_codeend - {KNAME} - 2048 ; cond
    s_sub_u32 {sT0}, {sT0}, L_pc{lab} - {KNAME} ; cond
    s_ashr_i32 {sT1}, {sT0}, 31 ; cond
    s_add_u32 s54, s54, {sT0} ; cond
    s_addc_u32 s55, s55, {sT1} ; cond
    v_lshlrev_b32 v{va}, 4, v0 ; cond
    s_mov_b32 m0, {lds_dst} ; cond
    s_nop 0 ; cond
    global_load_lds_dwordx4 v{va}, s[54:55] ; cond
    global_load_lds_dwordx4 v{va}, s[54:55] offset:1024 ; cond
    L_cw{lab}:
    """)
if OPT["cw"]:
    code_warm("a", 5, 159744, 8)
stamp(4, 3)
A.seg("pro")
A(f"""
s_mov_b32 s16, s72
s_mov_b32 s17, s73
s_mov_b32 s18, 3670016
s_mov_b32 s19, 0x20000
s_mov_b32 s20, s78
s_mov_b32 s21, s79
s_mov_b32 s22, 0x10000000
s_mov_b32 s23, 0x20000
s_mov_b32 s12, s68
s_mov_b32 s13, s69
s_mov_b32 s14, 0x4000000
s_mov_b32 s15, 0x20000
s_mov_b32 s60, s66
s_mov_b32 s61, s67
s_mov_b32 s62, 0x4000000
s_mov_b32 s63, 0x20000
s_mov_b32 {sRETRY}, 0
s_mov_b32 {sC}, {f32(math.log2(math.e) / 16.0)}
s_mov_b32 {sLIM}, {f32(2.0 ** 30)}
s_mul_i32 {sWOO}, {sHQ}, 229376
s_lshl_b32 {sT0}, {sB}, 3
s_add_u32 {sT0}, {sT0}, {sHKV}
s_lshl_b32 {sT0}, {sT0}, 1
s_add_u32 {sT0}, {sT0}, {sHALF}
s_lshl_b32 {sKV0}, {sT0}, 19
s_mov_b32 {sKVB}, {sKV0}
s_mul_i32 {sT0}, {sT0}, {OPT["rot"]}
s_and_b32 {sT0}, {sT0}, 31
s_lshl_b32 {sT0}, {sT0}, 14
s_add_u32 {sKV0}, {sKV0}, {sT0}
s_mov_b32 s68, s76
s_mov_b32 s69, s77
s_mov_b32 s70, 256
s_mov_b32 s71, 0x20000
s_mov_b32 s72, s74
s_mov_b32 s73, s75
s_mov_b32 s74, 1146880
s_mov_b32 s75, 0x20000
s_lshl_b32 {sT0}, {sB}, 1
s_add_u32 {sT0}, {sT0}, {sHALF}
s_lshl_b32 {sFLG}, {sT0}, 7
s_add_u32 {sFLG}, {sFLG}, {FLAG_OFF}
s_lshl_b32 {sT0}, {sT0}, 4
s_add_u32 {sT0}, {sT0}, {sHQ}
s_mul_i32 {sPART}, {sT0}, {PART_BYTES}
s_mul_i32 {sXS}, {sT0}, {XCH_BYTES}
s_add_u32 {sXS}, {sXS}, {XCH_OFF}
s_xor_b32 {sT0}, {sT0}, 16
s_mul_i32 {sXR}, {sT0}, {XCH_BYTES}
s_add_u32 {sXR}, {sXR}, {XCH_OFF}
s_and_b32 {sDQ}, {sW}, 3
s_lshr_b32 {sKH}, {sDQ}, 1
v_lshrrev_b32 v30, 3, v{vI}
v_lshlrev_b32 v30, 10, v30
v_and_b32 v31, 7, v{vI}
v_lshlrev_b32 v31, 7, v31
v_lshrrev_b32 v32, 1, v{vI}
v_xor_b32 v33, v{vG}, v32
v_lshlrev_b32 v33, 4, v33
v_add3_u32 v{vA0}, v30, v31, v33
s_mul_i32 {sT0}, {sHP}, 10240
s_add_u32 {sT0}, {sT0}, {XOFF}
v_add_u32 v{vXR[0]}, {sT0}, v{vA0}
v_xor_b32 v{vXR[1]}, 64, v{vXR[0]}
v_lshrrev_b32 v24, 2, v{vI}
v_and_b32 v25, 1, v{vG}
v_lshlrev_b32 v25, 2, v25
v_or_b32 v25, v25, v24
v_lshl_add_u32 v26, v{vG}, 3, v24
v_lshlrev_b32 v26, 9, v26
v_and_b32 v27, 3, v0
v_lshl_add_u32 v26, v27, 3, v26
s_lshl_b32 {sT0}, {sDQ}, 2
v_xor_b32 v25, {sT0}, v25
""")
for m in range(4):
    A(f"v_xor_b32 v28, {m}, v25")
    A(f"v_lshl_add_u32 v{vW[m]}, v28, 5, v26")
stamp(5, 3)
A("s_barrier")
run(stage_dma(1))
stamp(6, 3)
A(f"""
v_lshrrev_b32 v24, 1, v{vG}
v_xor_b32 v24, v24, v32
v_and_b32 v25, 1, v{vG}
v_lshlrev_b32 v25, 3, v25
v_add3_u32 v25, v30, v31, v25
s_mul_i32 {sT0}, {sHP}, 40960
s_lshl_b32 {sT1}, {sDQ}, 11
s_add_u32 {sT0}, {sT0}, {sT1}
v_add_u32 v25, {sT0}, v25
""")
for m in range(4):
    A(f"v_xor_b32 v28, {2*m}, v24")
    A(f"v_lshl_add_u32 v{vQW[m]}, v28, 4, v25")
A(f"""
s_mov_b32 {sVO}, {sKV0}
s_mov_b32 {sKO}, {sKV0}
s_lshl_b32 {sT0}, {sQH}, 2
v_add_u32 v24, {sT0}, v{vG}
v_and_b32 v25, 7, v0
v_xor_b32 v24, v24, v25
v_lshlrev_b32 v24, 4, v24
v_lshrrev_b32 v25, 3, v0
s_lshl_b32 {sT0}, {sKH}, 4
s_lshl_b32 {sT1}, {sQH}, 3
s_add_u32 {sT0}, {sT0}, {sT1}
v_add_u32 v25, {sT0}, v25
v_lshl_add_u32 v{vKD}, v25, 9, v24
s_lshl_b32 {sT0}, {sKH}, 13
s_lshl_b32 {sT1}, {sQH}, 10
s_add_u32 {sKDST}, {sT0}, {sT1}
s_add_u32 {sKDST}, {sKDST}, {KRING}
""")
def v_addr():
    A(f"""
    v_bfe_u32 v24, v0, 4, 1
    v_lshlrev_b32 v24, 1, v24
    v_and_b32 v25, 7, v0
    v_xor_b32 v24, v24, v25
    v_lshlrev_b32 v24, 4, v24
    v_lshrrev_b32 v25, 3, v0
    v_lshl_add_u32 v24, v25, 9, v24
    s_lshl_b32 {sT0}, {sDQ}, 7
    v_add_u32 v{vVD[0]}, {sT0}, v24
    v_xor_b32 v24, 64, v{vVD[0]}
    v_add_u32 v{vVD[1]}, 4096, v24
    v_add_u32 v{vVD[2]}, 8192, v{vVD[0]}
    v_add_u32 v{vVD[3]}, 12288, v24
    """)
v_addr()
A(f"""
s_cmp_lg_u32 {sW}, 4
s_cbranch_scc1 L_noclr
v_and_b32 v24, 1, v0 ; cond
v_lshlrev_b32 v24, 6, v24 ; cond
s_lshl_b32 {sT1}, {sHQ}, 2 ; cond
v_add_u32 v24, {sT1}, v24 ; cond
v_mov_b32 v25, 0 ; cond
buffer_store_dword v25, v24, {sWS}, {sFLG} offen sc1 ; cond
L_noclr:
s_cmp_lg_u32 {sW}, {6 if OPT.get("tlb") else 99}
s_cbranch_scc1 L_notlb
v_and_b32 v24, 31, v0 ; cond
s_mov_b32 {sT1}, {XCH_BYTES} ; cond
v_mul_lo_u32 v24, v24, {sT1} ; cond
s_lshl_b32 {sT0}, {sB}, 5 ; cond
s_mul_i32 {sT0}, {sT0}, {sT1} ; cond
s_add_u32 {sT0}, {sT0}, {XCH_OFF} ; cond
s_mov_b32 m0, 161792 ; cond
s_nop 0 ; cond
buffer_load_dword v24, {sWS}, {sT0} offen sc1 lds ; cond
L_notlb:
s_lshl_b32 {sVDST}, {sDQ}, 12
s_add_u32 {sVDST}, {sVDST}, {VRING}
s_mul_i32 {sT0}, {sQH}, 40960
v_add_u32 v{vQL[0]}, {sT0}, v{vA0}
v_xor_b32 v{vQL[1]}, 64, v{vQL[0]}
v_lshrrev_b32 v24, 1, v{vG}
s_lshl_b32 {sT0}, {sKH}, 1
v_add_u32 v24, {sT0}, v24
v_mul_u32_u24 v24, 2560, v24
v_and_b32 v25, 1, v{vG}
v_lshl_add_u32 v24, v25, 3, v24
s_mul_i32 {sT0}, {sQH}, 80
v_add_u32 v25, {sT0}, v{vI}
v_lshl_add_u32 v{vPW}, v25, 4, v24
s_lshl_b32 {sT0}, {sKH}, 2
s_add_u32 {sT0}, {sT0}, {MX_OFF}
v_lshlrev_b32 v25, 3, v25
v_add_u32 v{vMX}, {sT0}, v25
s_lshl_b32 {sT0}, {sKH}, 13
s_add_u32 {sT0}, {sT0}, {KRING}
v_add_u32 v{vKA[0]}, {sT0}, v{vA0}
v_xor_b32 v{vKA[1]}, 64, v{vKA[0]}
v_lshrrev_b32 v30, 2, v{vI}
v_lshl_add_u32 v32, v{vG}, 3, v30
v_lshlrev_b32 v32, 7, v32
v_and_b32 v33, 3, v0
v_lshl_add_u32 v32, v33, 3, v32
v_add_u32 v32, {sVDST}, v32
v_lshrrev_b32 v30, 1, v30
v_and_b32 v33, 1, v{vG}
v_lshl_add_u32 v30, v33, 1, v30
v_lshl_add_u32 v{vPVa[0]}, v30, 5, v32
v_xor_b32 v{vPVa[1]}, 32, v{vPVa[0]}
v_xor_b32 v{vPVa[2]}, 64, v{vPVa[0]}
v_xor_b32 v{vPVa[3]}, 96, v{vPVa[0]}
v_mul_u32_u24 v31, 2560, v{vG}
v_lshl_add_u32 v{vPVa[4]}, v{vI}, 4, v31
""")
for qt in range(5):
    A(f"v_mov_b32 v{S_L+qt}, 0xff800000")

def q_reads(s2):
    out = []
    for qt in range(5):
        out.append(f"ds_read_b128 {vr(QB[s2] + qt*4, 4)}, v{vXR[s2]} offset:{qt*2048}")
    for m in range(4):
        for e in range(2):
            out.append(f"ds_read_b64_tr_b16 {vr(QA[s2] + m*4 + e*2, 2)}, v{vW[m]} offset:{(32*s2 + 4*e) * 512}")
    return out

def q_mfma(s2, first):
    out = []
    for m in range(4):
        for qt in range(5):
            acc = vr(QACC + (m*5 + qt) * 4, 4)
            out.append(f"v_mfma_f32_16x16x32_bf16 {acc}, {vr(QA[s2] + m*4, 4)}, {vr(QB[s2] + qt*4, 4)}, {'0' if first else acc}")
    return out

if OPT.get("pprio"):
    put(only_S(["s_setprio 1"]))
for s in range(7):
    if s in (3, 4):
        stamp(3 if s == 3 else 9, 9)
    A(f"s_waitcnt vmcnt({vm.wait(f'st{s}')})")
    if s in (3, 4):
        stamp(4 if s == 3 else 10, 9)
    if s == 0:
        stamp(7, 3)
    A("s_barrier")
    if s <= 3:
        stamp(8 + s, 3)
    if s in (3, 4):
        stamp(5 if s == 3 else 11, 9)
    if s == 0:
        stamp(3)
    d = []
    if 0 <= s <= 4:
        d = stage_dma(s + 2)
    if s == 6:
        kl = k_lines(0) + k_lines(1) + v_lines(0) + k_lines(2)
        d = [only_S(kl[2*j] + kl[2*j + 1]) for j in range(8)]
    upd = []
    if s < 6:
        dl = STG[(s + 1) % 3] - STG[s % 3]
        upd = [[f"s_mov_b32 {sT1}, {dl & 0xffffffff}", f"v_add_u32 v{vW[0]}, {sT1}, v{vW[0]}"]] + \
              [f"v_add_u32 v{r}, {sT1}, v{r}" for r in vW[1:] + vXR]
    def spread(n, items, start, step):
        out = [[] for _ in range(n)]
        rest = []
        for k, it in enumerate(items):
            p = start + k*step
            if p < n:
                out[p] = it
            else:
                rest.append(it)
        return out, rest
    def merge(a_, b_):
        n = max(len(a_), len(b_))
        a_ = list(a_) + [[]]*(n - len(a_)); b_ = list(b_) + [[]]*(n - len(b_))
        return [[x, y] for x, y in zip(a_, b_)]
    st = OPT["dstep"] if s < 6 else 2
    if s >= 1:
        d1, d = spread(20, d, 1, st)
        weave(q_mfma(1, False), merge(q_reads(0), d1))
    else:
        weave(q_reads(0), [])
    if s == 3:
        stamp(6, 9)
    A("s_waitcnt lgkmcnt(0)")
    if s == 3:
        stamp(7, 9)
    d2, d = spread(20, d, 1, st if s else 3)
    if s == 0:
        weave(q_mfma(0, True), merge(q_reads(1) + upd, d2) + d)
    else:
        weave(q_mfma(0, False), merge([[], []] + q_reads(1) + upd, d2) + d)
    if s == 3:
        stamp(8, 9)
    A("s_waitcnt lgkmcnt(0)")
stamp(4)
A("s_barrier")

def q_out(idx):
    m, qt = divmod(idx, 5)
    a = QACC + idx * 4
    return [f"v_mul_f32 v{a}, {sC}, v{a}", f"v_mul_f32 v{a+1}, {sC}, v{a+1}",
            f"v_mul_f32 v{a+2}, {sC}, v{a+2}", f"v_mul_f32 v{a+3}, {sC}, v{a+3}",
            f"v_cvt_pk_bf16_f32 v{a}, v{a}, v{a+1}", f"v_cvt_pk_bf16_f32 v{a+1}, v{a+2}, v{a+3}",
            f"ds_write_b64 v{vQW[m]}, {vr(a, 2)} offset:{qt*8192}"]
for j, mf in enumerate(q_mfma(1, False)):
    A(mf)
    if j >= 3:
        run(q_out(j - 3))
for j in range(17, 20):
    run(q_out(j))
A(f"s_cmp_ge_u32 {sW}, 4")
A("s_cbranch_scc1 L_PV")


def wo_addr():
    A(f"""
    v_bfe_u32 v13, v0, 4, 1
    s_lshl_b32 {sT0}, {sQH}, 1
    v_or_b32 v13, {sT0}, v13
    v_lshlrev_b32 v13, 1, v13
    v_and_b32 v14, 7, v0
    v_xor_b32 v13, v13, v14
    v_lshrrev_b32 v14, 3, v0
    s_lshl_b32 {sT0}, {sW}, 3
    v_add_u32 v14, {sT0}, v14
    v_mul_u32_u24 v14, 896, v14
    v_lshl_add_u32 v{vWOD}, v13, 4, v14
    s_lshl_b32 {sT0}, {sHALF}, 7
    s_add_u32 {sWOe}, {sWOO}, {sT0}
    s_sub_u32 {sWOo}, {sWOO}, {sT0}
    """)

def wo_dma(j, v):
    out = []
    for t in range(8):
        out.append(dma([f"s_add_u32 m0, {sW1K}, {WSL[j] + t*4096}",
                        f"s_add_u32 {sT0}, {(sWOO if (j == 6 or not OPT['deph']) else (sWOe if j % 2 == 0 else sWOo))}, {t*28672 + j*128}",
                        f"buffer_load_dwordx4 v{vWOD}, {sWO}, {sT0} offen{WOF} lds"], f"wo{j}", v))
    return out


def gen_role(role):
    S = role == "S"
    R = role
    vm = VM(63)
    lg = VM(15)
    tr = ["entry", "pro"]

    def seg(n):
        A.seg(f"{R}_{n}")
        tr.append(f"{R}_{n}")

    def k_dma(i):
        return [dma(l, f"K{i}", vm) for l in k_lines(i)]

    def v_dma(t):
        return [dma(l, f"V{t}", vm) for l in v_lines(t)]

    def lds(line, tag):
        def f():
            A(line)
            lg.issue(tag)
        return f

    def fst(i, k):
        if i == OPT["fine"]:
            stamp(k, 2)
        if k == 8 and 28 <= i <= 33:
            stamp(i - 24, 7)
        if k == 7 and 31 <= i <= 32:
            stamp(i - 21, 7)
        if k == 8 and 1 <= i <= 3:
            stamp(i + 5, 8)

    def kread(i, s):
        return lds(f"ds_read_b128 {vr(S_KF + (s & 3)*4, 4)}, v{vKA[s & 1]} offset:{(i & 3)*16384 + (s >> 1)*2048}", f"kf{s}")

    def s_mfma(i, s, qt):
        acc = vr(S_S[i & 1] + qt*4, 4)
        c = acc if s else ("0" if i == 0 else vr(S_NM + qt*4, 4))
        return f"v_mfma_f32_16x16x32_bf16 {acc}, {vr(S_KF + (s & 3)*4, 4)}, {vr(S_Q + (qt*8 + s)*4, 4)}, {c}"

    def end_wait(i):
        need = [t for t in (f"K{i+1}", f"V{i}") if vm.has(t) and t != "V1"]
        if need:
            last = max(need, key=lambda t: max(k for k, x in enumerate(vm.q) if x == t))
            A(f"s_waitcnt vmcnt({vm.wait(last)}) lgkmcnt(0)")
        else:
            A("s_waitcnt lgkmcnt(0)")
        lg.clear()

    seg("i0")
    if S:
        for t in ["K0"]*4 + ["K1"]*4 + ["V0"]*4 + ["K2"]*4:
            vm.issue(t)
        if OPT["prio"]:
            A(f"s_setprio {OPT['prio']}")
        A(f"s_waitcnt vmcnt({vm.wait('K0')}) lgkmcnt(0)")
        stamp(9, 8)
        A("s_barrier")
        stamp(5); stamp(3, 8)
        def grp(s):
            return [kread(0, s)] + [lds(f"ds_read_b128 {vr(S_Q + (qt*8 + s)*4, 4)}, v{vQL[s & 1]} offset:{qt*8192 + (s >> 1)*2048}", f"kf{s}")
                                    for qt in range(5)]
        run(grp(0) + grp(1))
        for s in range(8):
            A(f"s_waitcnt lgkmcnt({lg.wait(f'kf{s}')})")
            weave([s_mfma(0, s, qt) for qt in range(5)], grp(s + 2) if s + 2 < 8 else [], per=2)
    else:
        A("L_PV:")
        for j in range(4):
            A(f"v_mov_b32 v{vVB[j]}, v{vPVa[j]}")
            A(f"v_subrev_u32 v{vOW[j]}, 40960, v{vQW[j]}")
        A(f"v_mov_b32 v{vPR}, v{vPVa[4]}")
        A("s_waitcnt lgkmcnt(0)")
        A("s_barrier")
        stamp(5)
        A(f"""
        s_cmp_lg_u32 {sW}, 4
        s_cbranch_scc1 L_noreg
        s_getreg_b32 {sT0}, hwreg(HW_REG_XCC_ID)
        s_and_b32 {sT0}, {sT0}, 15
        s_mul_i32 {sT1}, {sT0}, {sT0}
        s_lshl_b32 {sT1}, {sT1}, 18
        s_lshl_b32 {sT0}, {sT0}, 8
        s_add_u32 {sT0}, {sT0}, {sT1}
        s_add_u32 {sT0}, {sT0}, 1
        v_mov_b32 v23, 0
        v_mov_b32 v22, {sT0}
        s_lshl_b32 {sT1}, {sB}, 5
        s_mov_b64 exec, 1
        buffer_atomic_add v22, v23, {sDBG}, {sT1} offen
        s_mov_b64 exec, -1
        L_noreg:
        """)
    vm_join = list(vm.q)
    stamp(11, 8)
    seg("join")
    A(f"L_{R}_join:")
    if S:
        SS = S_S[0]
        for qt in range(5):
            a = SS + qt*4; t = S_KF + qt*2
            A(f"v_max3_f32 v{t}, v{a}, v{a+1}, v{S_L+qt}")
            A(f"v_max3_f32 v{t}, v{a+2}, v{a+3}, v{t}")
            A(f"v_mov_b32 v{t+1}, v{t}")
        for qt in range(5):
            t = S_KF + qt*2
            A(f"v_permlane32_swap_b32 v{t}, v{t+1}")
        for qt in range(5):
            t = S_KF + qt*2
            A(f"v_max_f32 v{t}, v{t}, v{t+1}")
            A(f"v_mov_b32 v{t+1}, v{t}")
        for qt in range(5):
            t = S_KF + qt*2
            A(f"v_permlane16_swap_b32 v{t}, v{t+1}")
        for qt in range(5):
            t = S_KF + qt*2
            A(f"v_max_f32 v{t}, v{t}, v{t+1}")
            A(f"ds_write_b32 v{vMX}, v{t} offset:{qt*128}")
        A("s_waitcnt lgkmcnt(0)")
        stamp(10, 8)
        A("s_barrier")
        stamp(4, 8)
        A(f"v_and_b32 v5, 0xfffffffb, v{vMX}")
        for qt in range(5):
            A(f"ds_read_b64 {vr(S_KF + qt*2, 2)}, v5 offset:{qt*128}")
        run(v_dma(1) + v_dma(2))
        for qt in range(5):
            t = S_KF + qt*2
            A(f"s_waitcnt lgkmcnt({4 - qt})")
            A(f"v_max_f32 v{t}, v{t}, v{t+1}")
            for r in range(4):
                A(f"v_sub_f32 v{S_NM + qt*4 + r}, 0, v{t}")
            for r in range(4):
                A(f"v_sub_f32 v{SS + qt*4 + r}, v{SS + qt*4 + r}, v{t}")
        end_wait(0)
        A("s_barrier")
        stamp(5, 8)
    else:
        A("s_barrier")
        A("s_barrier")

    def softmax_fill(j):
        SS = S_S[j & 1]; buf = j & 1
        out = []
        for qt in range(5):
            a = SS + qt*4
            t0, t1 = (S_T[0], S_T[1]) if qt % 2 == 0 else (S_T[2], S_T[3])
            ex = [(2, f"v_exp_f32 v{a+r}, v{a+r}") for r in range(4)]
            wr = lds(f"ds_write_b64 v{vPW}, {vr(a, 2)} offset:{P_BUF + buf*10240 + qt*256}", "pw")
            post = [(1, f"v_add_f32 v{t0}, v{a}, v{a+1}"), (1, f"v_add_f32 v{t1}, v{a+2}, v{a+3}"),
                    (1, f"v_cvt_pk_bf16_f32 v{a}, v{a}, v{a+1}"), (1, f"v_cvt_pk_bf16_f32 v{a+1}, v{a+2}, v{a+3}"),
                    (1, f"v_add_f32 v{t0}, v{t0}, v{t1}"), (1, wr),
                    (1, f"v_mov_b32 v{S_L+qt}, v{t0}" if j == 0 else f"v_add_f32 v{S_L+qt}, v{S_L+qt}, v{t0}")]
            out.append((ex, post))
        seq = list(out[0][0])
        for qt in range(5):
            if qt + 1 < 5:
                e = out[qt + 1][0]; p = out[qt][1]
                seq += [e[0], p[0], p[1], e[1], p[2], p[3], e[2], p[4], p[5], e[3], p[6]]
            else:
                seq += out[qt][1]
        return seq

    def s_interval(i):
        fill = softmax_fill(i - 1)
        def fput(n):
            while fill and n >= fill[0][0]:
                c, it = fill.pop(0)
                n -= c
                put(it)
        fst(i, 3)
        if i <= 31:
            for s in range(4):
                put(kread(i, s))
            d = []
            if i == 1:
                d += k_dma(3)
            if i + 3 <= 31:
                d += k_dma(i + 3)
            if i == 29:
                d += [wo_addr] + wo_dma(0, vm)[:4]
            if i == 30:
                d += wo_dma(0, vm)[4:]
            if i == 31:
                d += wo_dma(1, vm)[:4]
            for f in d:
                f()
                fput(OPT["pre"])
            for s in range(8):
                A(f"s_waitcnt lgkmcnt({lg.wait(f'kf{s}')})")
                if s == 0:
                    fst(i, 4)
                    if OPT.get("dprio"):
                        A("s_setprio 2")
                for qt in range(5):
                    A(s_mfma(i, s, qt))
                    if qt == 1 and 1 <= s <= 4:
                        put(kread(i, s + 3))
                        fput(1)
                    elif qt == 4:
                        fput(1)
                    else:
                        fput(2)
            if OPT.get("dprio") or OPT.get("ppost"):
                A("s_setprio 0")
            fst(i, 5)
        fput(1000)
        fst(i, 6)
        if i == 30:
            run(wo_dma(2, vm)[4:])
        if i == 31:
            run(wo_dma(3, vm)[:4])
        if i == 32:
            run(wo_dma(1, vm)[4:] + wo_dma(3, vm)[4:])
        end_wait(i)
        if OPT.get("ppost") and i <= 31:
            A(f"s_setprio {OPT['ppost']}")
        fst(i, 7)
        A("s_barrier")
        fst(i, 8)

    def vt_reads(t):
        pos = (t + 3) & 3
        out = []
        for dt in range(4):
            for e in range(2):
                out.append(f"ds_read_b64_tr_b16 {vr(VT[t & 1] + dt*4 + e*2, 2)}, v{vVB[dt]} offset:{pos*16384 + 4*e*128}")
        return out

    def oacc(qt, dt):
        return O_ACC + (qt*4 + dt)*4

    def pv_mfma(t, own, P, first):
        out = []
        for j in range(5):
            qt = j if own else 5 + j
            for dt in range(4):
                acc = vr(oacc(qt, dt), 4)
                out.append(f"v_mfma_f32_16x16x32_bf16 {acc}, {vr(VT[t & 1] + dt*4, 4)}, {vr(P + j*4, 4)}, {'0' if first else acc}")
        return out

    def send(j):
        out = []
        for dp in range(2):
            a = oacc(5 + j, dp*2)
            out.append([f"v_cvt_pk_bf16_f32 v{a+k}, v{a+2*k}, v{a+2*k+1}" for k in range(4)])
            out.append(dma([f"s_add_u32 {sT0}, {sT2}, {(j*2 + dp)*1024}",
                            f"buffer_store_dwordx4 {vr(a, 4)}, v17, {sWS}, {sT0} offen"], "snd", vm))
        return out

    def pv_interval(i):
        if i == 1:
            run(vt_reads(0))
            if OPT.get("dprio") or OPT.get("ppost") == 2:
                A("s_setprio 1")
            A(f"v_lshlrev_b32 v17, 4, v0")
            A(f"s_lshl_b32 {sXTC}, {sDQ}, 10")
            A(f"s_add_u32 {sXTC}, {sXTC}, {sXS}")
            if OPT["vpv"]:
                A(f"s_add_u32 {sVO}, {sKV0}, {3*16384}")
                if OPT["rot"]:
                    A(f"s_and_b32 {sVO}, {sVO}, 0x7ffff")
                    A(f"s_or_b32 {sVO}, {sVO}, {sKVB}")
                run(v_dma(3))
            A("s_waitcnt lgkmcnt(0)")
            A("s_barrier")
            return
        t = i - 2; buf = t & 1
        fst(i, 3)
        pa = [f"ds_read_b128 {vr(P_A + j*4, 4)}, v{vPR} offset:{P_BUF + buf*10240 + (5 + j)*256}" for j in range(5)]
        pb = [f"ds_read_b128 {vr(P_B + j*4, 4)}, v{vPR} offset:{P_BUF + buf*10240 + j*256}" for j in range(5)]
        if t >= 1:
            e = []
            fl = [pa[0], e, pa[1], e, pa[2], e, pa[3], e, pa[4], e, pb[0], e, pb[1], e, pb[2], e, e, e, e, pb[3]]
            if t == 1:
                run(vt_reads(1))
            weave(pv_mfma(t - 1, 1, P_B, t == 1), fl)
        else:
            run(pa + pb[:4])
        fst(i, 4)
        if OPT["vpv"]:
            if t == 1:
                A("s_waitcnt lgkmcnt(9)")
            if i + 2 <= 31:
                run(v_dma(i + 2))
            if vm.has(f"V{t+1}"):
                A(f"s_waitcnt vmcnt({vm.wait(f'V{t+1}')})")
            if i == 28 and OPT["cw"] >= 2:
                code_warm("b", 5, SCR, 16)
            if i == 28:
                A(f"""
                s_cmp_lg_u32 {sW}, 4
                s_cbranch_scc1 L_rg1
                v_mov_b32 v23, 0 ; cond
                s_lshl_b32 {sT1}, {sB}, 5 ; cond
                buffer_load_dword v22, v23, {sDBG}, {sT1} offen sc1 ; cond
                L_rg1:
                """)
            if i == 32:
                A(f"""
                s_cmp_lg_u32 {sW}, 4
                s_cbranch_scc1 L_regdone
                s_getreg_b32 {sT2}, hwreg(HW_REG_XCC_ID)
                s_and_b32 {sT2}, {sT2}, 15
                s_mul_i32 {sT1}, {sT2}, {sT2}
                s_lshl_b32 {sT1}, {sT1}, 23
                s_lshl_b32 {sT2}, {sT2}, 13
                s_add_u32 {sT2}, {sT2}, {sT1}
                s_add_u32 {sT2}, {sT2}, 32
                s_lshl_b32 {sT1}, {sB}, 5
                s_mov_b32 {sCNT}, 0x40000
                v_mov_b32 v23, 0
                L_regpoll:
                v_readfirstlane_b32 {sT0}, v22
                s_sub_u32 {sCNT}, {sCNT}, 1
                s_cmp_eq_u32 {sCNT}, 0
                s_cbranch_scc1 L_regok
                s_and_b32 {sT3}, {sT0}, 0xff
                s_cmp_ge_u32 {sT3}, 32
                s_cbranch_scc1 L_regok
                s_sleep 8
                buffer_load_dword v22, v23, {sDBG}, {sT1} offen sc1
                s_waitcnt vmcnt(0)
                s_branch L_regpoll
                L_regok:
                s_cmp_eq_u32 {sT0}, {sT2}
                s_cselect_b32 {sLOC}, {0 if OPT.get("noloc") else 1}, 0
                v_mov_b32 v23, {ST_M + 1024}
                v_mov_b32 v22, {sLOC}
                s_waitcnt lgkmcnt(0)
                ds_write_b32 v23, v22
                s_waitcnt lgkmcnt(0)
                L_regdone:
                """)
            TS = OPT["ts"]
            if OPT["xtouch"] and TS and i == OPT["xt0"]:
                per = 64 * TS
                tot = XCH_BYTES if OPT.get("tall") else 40960
                n = -(-tot // (4 * per))
                A(f"v_mul_u32_u24 v16, {TS}, v0")
                A(f"s_add_u32 m0, {sW1K}, {SCR}")
                A(f"s_mul_i32 {sXTC}, {sDQ}, {per}")
                A(f"s_add_u32 {sXTC}, {sXTC}, {sXS}")
                for k in range(n):
                    put(dma([f"buffer_load_dword v16, {sWS}, {sXTC} offen{XTF} lds", f"s_add_u32 {sXTC}, {sXTC}, {4*per}"], "tch", vm))
                A(f"s_add_u32 {sXTC}, {sXS}, {XST}")
                put(dma([f"buffer_load_dword v16, {sWS}, {sXTC} offen{XTF} lds"], "tch", vm))
            sched = {24: 2, 25: 2, 26: 2, 27: 2, 28: 3} if OPT.get("thin") == 2 else {26: 2, 27: 2, 28: 2, 29: 2, 30: 3} if OPT.get("thin") == 3 else {28: 2, 29: 2, 30: 3, 31: 4} if OPT.get("thin") else {OPT["xt0"]: 3, OPT["xt0"] + 1: 4, OPT["xt0"] + 2: 4}
            nx = sched.get(i, 0) if (OPT["xtouch"] and not TS) else 0
            if nx:
                A(f"s_add_u32 m0, {sW1K}, {SCR}")
            for k in range(nx):
                if i == max(sched) and k == nx - 1:
                    A(f"s_and_b32 {sXTC}, {sW1K}, 1024")
                    A(f"s_add_u32 {sXTC}, {sXTC}, {sXS}")
                    A(f"s_add_u32 {sXTC}, {sXTC}, {XST}")
                else:
                    A("s_nop 0")
                put(dma([f"buffer_load_dwordx4 v17, {sWS}, {sXTC} offen{XTF} lds", f"s_add_u32 {sXTC}, {sXTC}, 4096"], "tch", vm))
        A("s_waitcnt lgkmcnt(4)")
        fst(i, 5)
        d = []
        if i == OPT["wwarm"]:
            d = [[f"s_mul_i32 {sT1}, s2, 14336", f"s_lshl_b32 {sT2}, {sDQ}, 10", f"s_add_u32 {sT1}, {sT1}, {sT2}",
                  f"s_add_u32 m0, {sW1K}, {SCR}"]]
            for k in range(4):
                d.append(dma([f"buffer_load_dwordx4 v17, {sWO}, {sT1} offen lds", f"s_add_u32 {sT1}, {sT1}, 4096"], f"X{i}", vm))
        if i == OPT["touch"]:
            d = [[f"v_lshrrev_b32 v16, 2, v0", f"v_mul_u32_u24 v16, 896, v16", f"v_and_b32 v18, 3, v0",
                  f"v_lshl_add_u32 v16, v18, 7, v16",
                  f"s_lshl_b32 {sT1}, {sHALF}, 2", f"s_add_u32 {sT1}, {sT1}, {sDQ}", f"s_mul_i32 {sT1}, {sT1}, {32*896}",
                  f"s_add_u32 {sT1}, {sT1}, {sWOO}", f"s_add_u32 {sT2}, {sT1}, {16*896}"],
                 dma([f"s_add_u32 m0, {sW1K}, {SCR - 384}", "s_nop 0", f"buffer_load_dword v16, {sWO}, {sT1} offen offset:384 lds"], "tch", vm),
                 dma([f"buffer_load_dword v16, {sWO}, {sT2} offen offset:384 lds"], "tch", vm)]
        vt = vt_reads(t + 1) if (t + 1 <= 31 and t != 0) else []
        if i == 33:
            d = [[f"s_mul_i32 {sT3}, {sDQ}, 10240", f"s_add_u32 {sT2}, {sXS}, {sT3}"], [], [], []]
            for j in range(5):
                d += send(j)
        weave(pv_mfma(t, 0, P_A, t == 0), [[], []] + vt[:2] + [pb[4]] + vt[2:] + d)
        fst(i, 6)
        A("s_waitcnt lgkmcnt(0)")
        fst(i, 7)
        A("s_barrier")
        fst(i, 8)

    interval = s_interval if S else pv_interval
    seg("g0")
    for i in range(1, 4):
        interval(i)
    stamp(6)
    A(f"s_mov_b32 {sCNT}, {OPT['nloop']}")
    vm.q = [t for t in vm.q if t[0] != "X"]
    q_before = list(vm.q)
    seg("loop")
    A(f"L_{R}_loop:")
    for i in range(4, 8):
        interval(i)
    A(f"s_sub_u32 {sCNT}, {sCNT}, 1")
    A(f"s_cmp_lg_u32 {sCNT}, 0")
    A(f"s_cbranch_scc1 L_{R}_loop")
    sh = lambda q, d: [t[0] + str(int(t[1:]) + d) for t in q]
    while vm.q and vm.q[0][0] == 'X':
        vm.q.pop(0)
    assert sh(q_before, 4) == vm.q, (q_before, vm.q)
    vm.q = sh(vm.q, 4*(OPT['nloop'] - 1))
    tr.append(f"{R}_loop")
    seg("gl")
    for i in range(4 + 4*OPT['nloop'], 33):
        if i == 28:
            stamp(7); stamp(3, 7)
        interval(i)
    if S:
        if OPT["prio"]:
            A("s_setprio 0")
        T = S_KF + 4
        for qt in range(5):
            A(f"v_mov_b32 v{T + qt}, v{S_L + qt}")
        for qt in range(5):
            A(f"v_permlane32_swap_b32 v{T + qt}, v{S_L + qt}")
        for qt in range(5):
            A(f"v_add_f32 v{S_L + qt}, v{S_L + qt}, v{T + qt}")
            A(f"v_mov_b32 v{T + qt}, v{S_L + qt}")
        for qt in range(5):
            A(f"v_permlane16_swap_b32 v{T + qt}, v{S_L + qt}")
        A(f"v_add_u32 v5, {(ST_L - MX_OFF) & 0xffffffff}, v{vMX}")
        A(f"v_subrev_u32 v6, {MX_OFF}, v{vMX}")
        A(f"v_lshrrev_b32 v6, 3, v6")
        A(f"v_lshlrev_b32 v6, 2, v6")
        A(f"v_add_u32 v6, {ST_M}, v6")
        for qt in range(5):
            A(f"v_add_f32 v{S_L + qt}, v{S_L + qt}, v{T + qt}")
            A(f"ds_write_b32 v5, v{S_L + qt} offset:{qt*128}")
            A(f"ds_write_b32 v6, v{S_NM + qt*4} offset:{qt*64}")
        A(f"""
        v_and_b32 v17, 15, v0
        v_lshlrev_b32 v17, 4, v17
        s_add_u32 {sT2}, {sXS}, {XST}
        s_lshl_b32 {sT1}, {sKH}, 3
        s_add_u32 {sT1}, {sT1}, {sT2}
        s_cmp_eq_u32 {sQH}, 0
        s_cbranch_scc1 L_nost
        """)
        for qt in range(5):
            A(f"v_mov_b32 v{S_NM + qt*4 + 1}, v{S_L + qt} ; cond")
        for qt in range(5):
            A(f"buffer_store_dwordx2 {vr(S_NM + qt*4, 2)}, v17, {sWS}, {sT1} offen offset:{qt*256} ; cond")
        A("L_nost:")
        run(wo_dma(2, vm)[:4])
        A("s_waitcnt lgkmcnt(0)")
        A("s_barrier")
    else:
        pv_interval(33)

    seg("post")
    stamp(8); stamp(9, 7)
    A(f"""
    v_lshlrev_b32 v17, 3, v0
    v_min_u32 v18, 31, v0
    v_lshlrev_b32 v18, 3, v18
    v_add_u32 v17, {ST_L}, v17
    v_add_u32 v18, {ST_L}, v18
    ds_read_b64 v[76:77], v17
    ds_read_b64 v[82:83], v17 offset:512
    ds_read_b64 v[78:79], v18 offset:1024
    v_mov_b32 v17, {ST_M + 1024}
    ds_read_b32 v80, v17
    """)
    chk = f"""
    s_waitcnt lgkmcnt(0)
    v_readfirstlane_b32 {sLOC}, v80
    v_add_f32 v76, v76, v77
    v_add_f32 v82, v82, v83
    v_add_f32 v78, v78, v79
    v_cmp_ge_f32 s[50:51], {sLIM}, v76
    v_cmp_ge_f32 s[52:53], {sLIM}, v82
    v_cmp_ge_f32 s[54:55], {sLIM}, v78
    s_and_b64 s[50:51], s[50:51], s[52:53]
    s_and_b64 s[50:51], s[50:51], s[54:55]
    s_cmp_eq_u64 s[50:51], -1
    s_cbranch_scc1 L_{R}_ok
    s_cmp_eq_u32 {sRETRY}, 0
    s_cbranch_scc1 L_{R}_fallback
    """
    if not S:
        mf = pv_mfma(31, 1, P_B, False)
        run(mf[:6])
    A(chk)
    seg("ok")
    A(f"L_{R}_ok:")

    def signal_wait(flag_word, poll_addr_code, nlanes, lab, agent=0):
        A(f"""
        s_cmp_lg_u32 {sW}, {agent}
        s_cbranch_scc1 L_{lab}_done
        v_mov_b32 v28, 1
        s_lshl_b32 {sT1}, {sHQ}, 2
        s_add_u32 {sT1}, {sT1}, {flag_word}
        v_mov_b32 v27, {sT1}
        {poll_addr_code}
        s_mov_b32 {sCNT}, 0x40000
        s_mov_b64 exec, 1
        s_cmp_eq_u32 {sLOC}, 1
        s_cbranch_scc1 L_{lab}_loc
        buffer_wbl2 sc1
        s_waitcnt vmcnt(0)
        buffer_store_dword v28, v27, {sWS}, {sFLG} offen sc1
        s_branch L_{lab}_sent
        L_{lab}_loc:
        buffer_store_dword v28, v27, {sWS}, {sFLG} offen{YF if lab == "fx" else ""}
        L_{lab}_sent:
        s_mov_b64 exec, {hex((1 << nlanes) - 1)}
        L_{lab}_poll:
        buffer_load_dword v30, v29, {sWS}, {sT2} offen sc1
        s_waitcnt vmcnt(0)
        v_cmp_ne_u32 vcc, 1, v30
        s_sub_u32 {sCNT}, {sCNT}, 1
        s_cmp_eq_u32 {sCNT}, 0
        s_cbranch_scc1 L_{lab}_got
        s_cmp_eq_u64 vcc, 0
        s_cbranch_scc1 L_{lab}_got
        s_sleep {OPT["slp"]}
        s_branch L_{lab}_poll
        L_{lab}_got:
        s_mov_b64 exec, -1
        s_cmp_eq_u32 {sLOC}, 1
        s_cbranch_scc1 L_{lab}_done
        buffer_inv sc1
        s_waitcnt vmcnt(0)
        L_{lab}_done:
        """)

    def oa_addr():
        A(f"""
        v_and_b32 v16, 15, v0
        v_lshrrev_b32 v17, 4, v0
        v_lshrrev_b32 v18, 2, v16
        v_lshl_add_u32 v20, v17, 3, v18
        v_lshlrev_b32 v20, 7, v20
        v_and_b32 v21, 3, v0
        v_lshl_add_u32 v20, v21, 3, v20
        v_lshrrev_b32 v18, 1, v18
        v_and_b32 v21, 1, v17
        v_lshl_add_u32 v18, v21, 1, v18
        v_xor_b32 v18, {sDQ}, v18
        v_lshl_add_u32 v{vOA[0]}, v18, 5, v20
        v_add_u32 v{vOA[1]}, 0x10000, v{vOA[0]}
        v_add_u32 v{vOA[2]}, 0x20000, v{vOA[0]}
        s_lshl_b32 {sT1}, {sDQ}, 9
        s_cmp_eq_u32 {sLOC}, 1
        s_cselect_b32 {sPA}, {sPART if OPT.get("gsc1") else sXR}, {sPART}
        s_add_u32 {sPA}, {sPA}, {sT1}
        s_lshl_b32 {sT1}, {sHALF}, 11
        s_add_u32 {sPB}, {sPA}, {sT1}
        s_sub_u32 {sPC}, {sPA}, {sT1}
        v_lshrrev_b32 v18, 1, v17
        v_lshlrev_b32 v18, 8, v18
        v_lshl_add_u32 v18, v16, 4, v18
        v_mul_u32_u24 v22, 14336, v21
        v_xor_b32 v13, 64, v{vA0}
        v_add_u32 v14, v22, v18
        v_lshl_add_u32 v15, v21, 3, v18
        """)
    vOBx = [vA0, 13]; vS4, vS2 = 14, 15
    SA = 128
    def sa_reads(j):
        out = []
        for ks in range(8):
            for e in range(2):
                off = WSL[j] + (32*ks + 4*e) * 128
                out.append(f"ds_read_b64_tr_b16 {vr(SA + j*32 + ks*4 + e*2, 2)}, v{vOA[off >> 16]} offset:{off & 0xffff}")
        return out

    if S:
        A(f"s_lshl_b32 {sT0}, {sW}, 6")
        A(f"v_add_u32 v23, {sT0}, v0")
        oa_addr()
    else:
        A(f"""
        v_lshlrev_b32 v17, 4, v0
        v_and_b32 v16, 15, v0
        v_lshlrev_b32 v14, 4, v16
        v_lshlrev_b32 v18, 3, v16
        v_lshlrev_b32 v16, 2, v16
        v_add_u32 v15, {ST_L}, v18
        v_add_u32 v16, {ST_M}, v16
        """)
        run(mf[6:])
        for qt in range(5):
            A(f"ds_read_b64 {vr(76 + qt*4, 2)}, v15 offset:{qt*128}")
            A(f"ds_read_b32 v{78 + qt*4}, v16 offset:{qt*64}")
    stamp(3, 4)
    A("s_waitcnt vmcnt(0) lgkmcnt(0)")
    vm.clear()
    A("s_barrier")
    stamp(4, 4)
    if S:
        run(sa_reads(0) + sa_reads(1) + sa_reads(3))
        A("s_waitcnt lgkmcnt(0)")
    else:
        signal_wait(64, f"v_mov_b32 v29, v27\n s_xor_b32 {sT2}, {sFLG}, 128", 1, "px", agent=4)
    A("s_barrier")
    stamp(5, 4); stamp(3, 5)
    if not S:
        RB = oacc(5, 0)
        A(f"""
        s_add_u32 {sT0}, {sXR}, {XST}
        s_add_u32 {sT2}, {sXR}, {sT3}
        """)
        for qt in range(5):
            A(f"buffer_load_dwordx4 {vr(56 + qt*4, 4)}, v14, {sWS}, {sT0} offen offset:{qt*256} sc1")
            vm.issue("ps")
        for n in range(10):
            A(f"s_add_u32 {sT0}, {sT2}, {n*1024}")
            A(f"buffer_load_dwordx4 {vr(RB + n*4, 4)}, v17, {sWS}, {sT0} offen sc1")
            vm.issue(f"x{n}")
        A("s_barrier")
        stamp(4, 5)
        A(f"s_waitcnt vmcnt({vm.wait('ps')}) lgkmcnt(0)")
        stamp(5, 5)
        if OPT["stamps"] == 5:
            A("s_waitcnt vmcnt(0)")
            stamp(6, 5)
        for qt in range(5):
            l0, l1, nm = 76 + qt*4, 77 + qt*4, 78 + qt*4
            pn, pl = 56 + qt*4, 57 + qt*4
            A(f"""
            v_add_f32 v{pl}, v{pl}, v{pl+2}
            v_add_f32 v{l0}, v{l0}, v{l1}
            v_sub_f32 v{l1}, v{nm}, v{pn}
            v_sub_f32 v{nm}, v{pn}, v{nm}
            v_exp_f32 v{l1}, v{l1}
            v_exp_f32 v{nm}, v{nm}
            v_fma_f32 v{l1}, v{l1}, v{pl}, v{l0}
            v_fma_f32 v{nm}, v{nm}, v{l0}, v{pl}
            v_rcp_f32 v{l1}, v{l1}
            v_rcp_f32 v{nm}, v{nm}
            """)
        for qt in range(5):
            w1, w2 = 77 + qt*4, 78 + qt*4
            for dt in range(4):
                a = oacc(qt, dt); r = RB + (qt*2 + dt//2)*4 + (dt & 1)*2
                for k in range(4):
                    A(f"v_mul_f32 v{a+k}, v{w1}, v{a+k}")
                if dt % 2 == 0:
                    A(f"s_waitcnt vmcnt({vm.wait(f'x{qt*2 + dt//2}')})")
                A(f"v_lshlrev_b32 v24, 16, v{r}")
                A(f"v_and_b32 v25, 0xffff0000, v{r}")
                A(f"v_lshlrev_b32 v26, 16, v{r+1}")
                A(f"v_and_b32 v27, 0xffff0000, v{r+1}")
                for k in range(4):
                    A(f"v_fmac_f32 v{a+k}, v{w2}, v{24+k}")
                A(f"v_cvt_pk_bf16_f32 v{a}, v{a}, v{a+1}")
                A(f"v_cvt_pk_bf16_f32 v{a+1}, v{a+2}, v{a+3}")
                A(f"ds_write_b64 v{vOW[dt]}, {vr(a, 2)} offset:{qt*8192}")
    else:
        run(sa_reads(2))
        A("s_waitcnt lgkmcnt(0)")
        A("s_barrier")
        run(wo_dma(4, vm) + wo_dma(5, vm) + wo_dma(6, vm))
    if S and OPT["xtouch"] and not OPT.get("gsc1") and not OPT.get("tall"):
        A(f"v_lshlrev_b32 v17, 4, v0")
        A(f"s_add_u32 {sT0}, {sXR}, {sW1K}")
        for k in range(8):
            A(f"s_add_u32 {sT1}, {sT0}, {40960 + k*4096}")
            put(dma([f"buffer_load_dwordx4 v[8:11], v17, {sWS}, {sT1} offen{XTF}"], "tch", vm))
    stamp(7, 5)
    def y_out(acc, slot):
        out = []
        co = slot * 2048
        sPA = globals()["sPA"] if (slot == 6 or not OPT["deph"]) else (sPB if slot % 2 == 0 else sPC)
        for pr in range(2):
            a = acc + pr*8; b = a + 4
            out.append([f"v_cvt_pk_bf16_f32 v{a}, v{a}, v{a+1}", f"v_cvt_pk_bf16_f32 v{a+1}, v{a+2}, v{a+3}"])
            out.append([f"v_cvt_pk_bf16_f32 v{a+2}, v{b}, v{b+1}", f"v_cvt_pk_bf16_f32 v{a+3}, v{b+2}, v{b+3}"])
            out.append(f"s_add_u32 {sT1}, {sPA}, {co + pr*2*14336}")
            out.append([f"v_permlane16_swap_b32 v{a}, v{a+2}", f"v_permlane16_swap_b32 v{a+1}, v{a+3}"])
            out.append(f"buffer_store_dwordx4 {vr(a, 4)}, v{vS4}, {sWS}, {sT1} offen{YF}")
        a = acc + 16
        out.append([f"v_cvt_pk_bf16_f32 v{a}, v{a}, v{a+1}", f"v_cvt_pk_bf16_f32 v{a+1}, v{a+2}, v{a+3}"])
        out.append([f"s_add_u32 {sT1}, {sPA}, {co + 4*14336}", f"buffer_store_dwordx2 {vr(a, 2)}, v{vS2}, {sWS}, {sT1} offen{YF}"])
        return out

    lg.clear()
    if S:
        stamp(8, 5)
        A("s_barrier")
        stamp(9); stamp(6, 4); stamp(9, 5)
        SB, NB, SACC = 24, 6, 48
        seq = [(ps, ks, qt) for ps in range(2) for ks in range(8) for qt in range(5)]
        def bread(n):
            ps, ks, qt = seq[n]
            return lds(f"ds_read_b128 {vr(SB + (n % NB)*4, 4)}, v{vOBx[ks & 1]} offset:{qt*8192 + (ks >> 1)*2048}", f"b{n}")
        for n in range(NB - 1):
            put(bread(n))
        fill = []
        for n, (ps, ks, qt) in enumerate(seq):
            if n == 42:
                fill = y_out(SACC, 0) + y_out(SACC + 20, 1)
            if n == OPT["z4"]:
                A(f"s_waitcnt vmcnt({vm.wait('wo6')})")
                A("s_barrier")
            A(f"s_waitcnt lgkmcnt({lg.wait(f'b{n}')})")
            for tl in range(2):
                j = ps*2 + tl
                acc = vr(SACC + j*20 + qt*4, 4)
                A(f"v_mfma_f32_16x16x32_bf16 {acc}, {vr(SA + j*32 + ks*4, 4)}, {vr(SB + (n % NB)*4, 4)}, {'0' if ks == 0 else acc}")
                if tl == 0 and n + NB - 1 < len(seq):
                    put(bread(n + NB - 1))
                elif fill:
                    put(fill.pop(0))
        run(fill)
        run(y_out(SACC + 40, 2) + y_out(SACC + 60, 3))
        A(f"v_mov_b32 v12, v23")
    else:
        oa_addr()
        A(f"s_lshl_b32 {sT0}, {sW}, 6")
        A(f"v_add_u32 v12, {sT0}, v0")
        A("s_waitcnt lgkmcnt(0)")
        stamp(8, 5)
        A("s_barrier")
        stamp(9); stamp(6, 4); stamp(9, 5)
        steps = [(r, ks) for r in range(3) for ks in range(8)]
        def a_read(n):
            r, ks = steps[n]
            out = []
            for e in range(2):
                off = WSL[4 + r] + (32*ks + 4*e) * 128
                out.append(lds(f"ds_read_b64_tr_b16 {vr(E_A + (n & 3)*4 + e*2, 2)}, v{vOA[off >> 16]} offset:{off & 0xffff}", f"a{n}"))
            return out
        for ks in range(8):
            for qt in range(5):
                A(f"ds_read_b128 {vr(E_O + (qt*8 + ks)*4, 4)}, v{vOBx[ks & 1]} offset:{qt*8192 + (ks >> 1)*2048}")
        A("s_barrier")
        stamp(10, 5)
        run(a_read(0) + a_read(1))
        fill = []
        for n, (r, ks) in enumerate(steps):
            if ks == 1 and r >= 1:
                fill = y_out(E_ACC[(r - 1) & 1], 4 + r - 1)
            A(f"s_waitcnt lgkmcnt({lg.wait(f'a{n}')})")
            mfs = []
            for qt in range(5):
                acc = vr(E_ACC[r & 1] + qt*4, 4)
                mfs.append(f"v_mfma_f32_16x16x32_bf16 {acc}, {vr(E_A + (n & 3)*4, 4)}, {vr(E_O + (qt*8 + ks)*4, 4)}, {'0' if ks == 0 else acc}")
            rd = a_read(n + 2) if n + 2 < len(steps) else []
            if len(rd) > 2:
                weave(mfs, rd, per=2)
            else:
                weave(mfs, rd + [fill.pop(0) if fill else [] for _ in range(3)])
        run(fill)
        run(y_out(E_ACC[0], 6))
    stamp(10); stamp(7, 4); stamp(11, 5)
    A(f"""
    s_mul_i32 {sT0}, {sHQ}, 280
    v_add_u32 v1, {sT0}, v12
    v_lshrrev_b32 v2, 5, v1
    v_mul_u32_u24 v3, 2341, v2
    v_lshrrev_b32 v3, 16, v3
    v_mul_u32_u24 v4, 28, v3
    v_sub_u32 v4, v2, v4
    v_and_b32 v5, 15, v1
    v_lshl_add_u32 v5, v3, 4, v5
    v_bfe_u32 v6, v1, 4, 1
    v_lshlrev_b32 v6, 4, v6
    v_lshl_add_u32 v6, v4, 5, v6
    v_mul_u32_u24 v7, 896, v5
    v_add_u32 v6, v6, v7
    v_lshlrev_b32 v1, 4, v1
    v_mov_b32 v13, 0x7fffff00
    v_cmp_gt_u32 vcc, 280, v12
    v_cndmask_b32 v1, v13, v1, vcc
    v_cndmask_b32 v6, v13, v6, vcc
    s_waitcnt vmcnt(0)
    s_barrier
    """)
    stamp(8, 4)
    if S:
        signal_wait(0, f"v_lshlrev_b32 v29, 2, v0\n s_mov_b32 {sT2}, {sFLG}", 16, "fx")
        A("s_branch L_red")
    tr.append("red")
    A.trace(tr)
    return vm, vm_join


def gen_fallback(role, vm_join):
    S = role == "S"; R = role
    vm = VM(63)
    tr2 = [f"{R}_gl", f"{R}_post"]
    A.seg(f"{R}_fb"); tr2.append(f"{R}_fb")
    A(f"L_{R}_fallback:")
    A(f"""
    s_mov_b32 {sRETRY}, 1
    s_waitcnt vmcnt(0) lgkmcnt(0)
    s_barrier
    s_mov_b32 {sKO}, {sKV0}
    s_mov_b32 {sCNT}, 32
    """)
    if S:
        for qt in range(5):
            A(f"v_mov_b32 v{S_L+qt}, 0xff800000")
        v_addr()
    def s_tile():
        for hh in range(2):
            for s in range(4*hh, 4*hh + 4):
                A(f"ds_read_b128 {vr(S_KF + (s & 3)*4, 4)}, v{vKA[s & 1]} offset:{(s >> 1)*2048}")
            A("s_waitcnt lgkmcnt(0)")
            for s in range(4*hh, 4*hh + 4):
                for qt in range(5):
                    acc = vr(S_S[0] + qt*4, 4)
                    A(f"v_mfma_f32_16x16x32_bf16 {acc}, {vr(S_KF + (s & 3)*4, 4)}, {vr(S_Q + (qt*8 + s)*4, 4)}, {acc if s else '0'}")
    A.seg(f"{R}_fbl"); tr2 += [f"{R}_fbl", f"{R}_fbl"]
    A(f"L_{R}_fbl:")
    if S:
        run(k_lines(0))
        A("s_waitcnt vmcnt(0)")
        A("s_barrier")
        s_tile()
        for qt in range(5):
            a = S_S[0] + qt*4
            A(f"v_max3_f32 v{S_L+qt}, v{a}, v{a+1}, v{S_L+qt}")
            A(f"v_max3_f32 v{S_L+qt}, v{a+2}, v{a+3}, v{S_L+qt}")
        A("s_barrier")
    else:
        A("s_barrier")
        A("s_barrier")
    A(f"s_sub_u32 {sCNT}, {sCNT}, 1")
    A(f"s_cmp_lg_u32 {sCNT}, 0")
    A(f"s_cbranch_scc1 L_{R}_fbl")
    A.seg(f"{R}_fbe"); tr2 += [f"{R}_fbe", f"{R}_join", f"{R}_g0"]
    if S:
        A(f"s_mov_b32 {sKO}, {sKV0}")
        A(f"s_mov_b32 {sVO}, {sKV0}")
        run(k_lines(0) + k_lines(1) + v_lines(0) + k_lines(2))
        assert vm_join == ["K1"]*4 + ["V0"]*4 + ["K2"]*4, vm_join
        if OPT["prio"]:
            A(f"s_setprio {OPT['prio']}")
        A("s_waitcnt vmcnt(12)")
        A("s_barrier")
        s_tile()
    else:
        A("s_barrier")
    A(f"s_branch L_{R}_join")
    A.trace(tr2)


vmS, joinS = gen_role("S")
gen_fallback("S", joinS)
gen_fallback("PV", None) if False else None
vmP, joinP = gen_role("PV")

D0, AC = 96, 40
A.seg("red")
A("L_red:")
A("s_barrier")
stamp(11); stamp(9, 4)
A(f"""
s_cmp_ge_u32 {sW}, 5
s_cbranch_scc1 L_fin
s_lshl_b32 {sT2}, {sB}, 1
s_add_u32 {sT2}, {sT2}, {sHALF}
s_xor_b32 {sT3}, {sT2}, 1
s_mul_i32 {sT2}, {sT2}, {16*PART_BYTES}
s_mul_i32 {sT3}, {sT3}, {16*XCH_BYTES}
s_add_u32 {sT3}, {sT3}, {XCH_OFF}
s_mov_b32 {sT0}, {PART_BYTES}
s_cmp_eq_u32 {sLOC}, {2 if OPT.get("gsc1") else 1}
s_cselect_b32 {sT2}, {sT3}, {sT2}
s_cselect_b32 {sT0}, {XCH_BYTES}, {sT0}
s_mul_i32 {sT1}, {sHALF}, {80*896}
s_add_u32 {sT1}, {sT1}, {sXO}
""")
for p in range(16):
    A(f"buffer_load_dwordx4 {vr(D0 + p*4, 4)}, v1, {sWS}, {sT2} offen sc1")
    A(f"s_add_u32 {sT2}, {sT2}, {sT0}")
for p in range(16):
    A(f"s_waitcnt vmcnt({15 - p})")
    if p in (0, 15):
        stamp({0: 10, 15: 11}[p], 4)
    for r in range(4):
        d = D0 + p*4 + r
        if p == 0:
            A(f"v_lshlrev_b32 v{AC + 2*r}, 16, v{d}")
            A(f"v_and_b32 v{AC + 2*r + 1}, 0xffff0000, v{d}")
        else:
            A(f"v_lshlrev_b32 v{24 + 2*r}, 16, v{d}")
            A(f"v_and_b32 v{25 + 2*r}, 0xffff0000, v{d}")
    if p:
        for r in range(8):
            A(f"v_add_f32 v{AC + r}, v{AC + r}, v{24 + r}")
for r in range(4):
    A(f"v_cvt_pk_bf16_f32 v{20 + r}, v{AC + 2*r}, v{AC + 2*r + 1}")
A(f"buffer_store_dwordx4 v[20:23], v6, {sOUT}, {sT1} offen")
A("L_fin:")
if OPT["stamps"]:
    A("s_waitcnt vmcnt(0)")
    stamp(12)
    A("s_memrealtime s[58:59]")
    A("s_waitcnt lgkmcnt(0)")
    A("v_mov_b32 v20, s56")
    A("v_mov_b32 v21, s58")
    for k in range(2, 13):
        A(f"v_mov_b32 v{20+k}, s{76+2*k}")
    A("v_mov_b32 v33, 0")
    A("v_mov_b32 v34, 0")
    A("v_mov_b32 v35, 0")
    A(f"s_lshl_b32 {sT0}, s2, 9")
    A(f"s_lshl_b32 {sT1}, {sW}, 6")
    A(f"s_add_u32 {sT0}, {sT0}, {sT1}")
    A(f"s_add_u32 {sT0}, {sT0}, {STAMP_OFF}")
    A("v_mov_b32 v40, 0")
    for j in range(4):
        A(f"buffer_store_dwordx4 v[{20+4*j}:{23+4*j}], v40, {sWS}, {sT0} offen offset:{16*j}")
if OPT["stamps"] and OPT.get("dbg") is not None:
    A(f"s_cmp_lg_u32 s2, {OPT['dbg']}")
    A("s_cbranch_scc1 L_end")
    A(f"s_cmp_lg_u32 {sW}, 0")
    A("s_cbranch_scc1 L_end")
    A("v_sub_u32 v21, v21, v20")
    for k in range(12, 2, -1):
        A(f"v_sub_u32 v{20+k}, v{20+k}, v{19+k}")
    for j, r in enumerate([21] + list(range(23, 33))):
        w = j + 1 if j < 7 else j + 2
        A(f"buffer_store_dword v{r}, v40, {sDBG}, 0 offen offset:{4*w}")
A("L_end:")
A("s_endpgm")
gen_fallback("PV", joinP)

A.seg("desc")
A("L_codeend:")
A('.section .rodata,"a"')
A(".p2align 6")
A(f".amdhsa_kernel {KNAME}")
A(".amdhsa_next_free_vgpr 256")
A(".amdhsa_next_free_sgpr 102")
A(".amdhsa_accum_offset 256")
A(".amdhsa_group_segment_fixed_size 0")
A(".amdhsa_kernarg_size 64")
A(".amdhsa_user_sgpr_count 2")
A(".amdhsa_user_sgpr_kernarg_segment_ptr 1")
A(".amdhsa_system_sgpr_workgroup_id_x 1")
A(".end_amdhsa_kernel")

A.fix_hazards()
sys.stderr.write("nops: %s\n" % A.count_nops())
sys.stdout.write(A.text())
```

```python
import sys, struct, math
from asmlib import Asm, VM

OPT = dict(nt="nt", prio=1, stamps=0, fine=28, pre=4, touch=-1, xtouch=1, lstep=2, rot=0, deph=1, nloop=6, dstep=5, cw=2, ts=0, z4=32, wwarm=2, xt0=29, vpv=1, mapb=1, slp=4)
for a in sys.argv[1:]:
    k, v = a.split("=")
    OPT[k] = int(v) if v.lstrip("-").isdigit() else v
NT = (" " + OPT["nt"]) if OPT["nt"] not in ("", "none") else ""
NTV = NT if "ntv" not in OPT else ((" " + OPT["ntv"]) if OPT["ntv"] != "none" else "")
KNAME = "standalone__gqa_block_cached__near_ridge_kernel"

def f32(x):
    return "0x%08x" % struct.unpack("<I", struct.pack("<f", x))[0]

P_BUF = 0
VRING = 32768
KRING = 98304
MX_OFF = KRING + 3 * 16384
STG = [0, 53248, 106496]
XOFF = 32768
WSL = [98304, 131072, 65536, 32768, 98304, 131072, 65536]
ST_L = 28672
ST_M = ST_L + 1280
LDS_BYTES = 163840
PART_BYTES = 71680
XCH_BYTES = 71680 + 2048
XST = 71680
SCR = 20480
XCH_OFF = 256 * PART_BYTES
FLAG_OFF = XCH_OFF + 256 * XCH_BYTES
STAMP_OFF = 48 << 20

sX, sWQ, sVr, sWO, sWS, sKr = "s[4:7]", "s[8:11]", "s[12:15]", "s[16:19]", "s[20:23]", "s[60:63]"
sW, sB, sHQ, sHALF, sHKV = "s24", "s25", "s26", "s27", "s28"
sKO, sCNT, sRETRY = "s29", "s30", "s31"
sT0, sT1, sT2, sT3 = "s32", "s33", "s34", "s35"
sW1K, sXO, sWQO, sKDST, sKV0, sC, sWOO, sPART = "s36", "s37", "s38", "s39", "s40", "s41", "s42", "s43"
sQH, sKH, sDQ, sHP = "s44", "s45", "s46", "s47"
sLIM, sVO, sVDST = "s48", "s49", "s3"
sXS, sXR = "s64", "s65"
sFLG, sLOC = "s66", "s67"
sXT = ["s50", "s51", "s52"]
sPA, sPB, sPC = "s50", "s51", "s52"
WOF = " " + OPT.get("wof", "none").replace("+", " ").replace("none", "")
YF = " sc1" if OPT.get("gsc1") else ""
sWOe, sWOo = "s76", "s77"
sKVB = "s78"
sXTC = "s53"
XTF = " " + OPT.get("xtf", "sc1").replace("+", " ").replace("none", "")
sDBG = "s[68:71]"
sOUT = "s[72:75]"

A = Asm()
_lab = [0]

def stamp(k, mode=1):
    if OPT["stamps"] == mode or (OPT["stamps"] and k in (2, 12)):
        A(f"s_memtime s[{76+2*k}:{77+2*k}]")
    if OPT["stamps"] == 6 and mode == 1 and k in (5, 7, 8, 10):
        j = {5: 3, 7: 5, 8: 7, 10: 9}[k]
        A(f"s_memtime s[{76+2*j}:{77+2*j}]")
        A(f"s_memrealtime s[{78+2*j}:{79+2*j}]")

def vr(b, n):
    return f"v[{b}:{b+n-1}]" if n > 1 else f"v{b}"

def put(f):
    if callable(f):
        f()
    elif isinstance(f, (list, tuple)):
        for x in f:
            put(x)
    else:
        A(f)

def weave(main, fill, per=1):
    fill = list(fill)
    for m in main:
        put(m)
        for _ in range(per):
            if fill:
                put(fill.pop(0))
    for f in fill:
        put(f)

def run(fs):
    for f in fs:
        put(f)

def only_S(lines):
    def f():
        _lab[0] += 1
        A(f"s_cmp_ge_u32 {sW}, 4")
        A(f"s_cbranch_scc1 L_sk{_lab[0]}")
        for x in lines:
            A(x + " ; cond")
        A(f"L_sk{_lab[0]}:")
    return f

vI, vG = 40, 41
vXD, vWD = 42, 43
vW = [44, 45, 46, 47]
vXR = [48, 49]
vQW = [50, 51, 52, 53]
vQL = [54, 55]
vPVa = [56, 57, 58, 59, 60]
vA0 = 19
vKD = 16
vVD = [12, 13, 14, 15]
QACC = 176
QA = [96, 112]
QB = [128, 148]
S_Q, S_NM, S_KF, S_L = 96, 36, 20, 7
S_S = [56, 76]
vKA = [1, 2]; vPW = 3; vMX = 4
S_T = [5, 6, 17, 18]
O_ACC, P_A, P_B = 96, 76, 56
VT = [40, 24]
vVB = [1, 2, 20, 21]; vPR = 3; vOW = [4, 5, 6, 7]
vWOD = 12
E_O = 96
E_ACC = [56, 76]
E_A = 36
vOA = [1, 2, 3]; vOB = [5, 6]; vST4 = 7; vST2 = 8; vSTAT = 10

A.seg("head")
for c in """Kernarg layout (64 bytes, ptrs only, base s[0:1]): 0 x | 8 k_cache | 16 v_cache | 24 wq | 32 wo | 40 out | 48 debug | 56 ws
Fused GQA block, one workgroup (8 waves) per (batch, q-head, key-half):
  1. Q = x Wq (MFMA, LDS-DMA staged), pre-scaled by log2(e)/16
  2. waves 0-3: S^T = K Q^T - m, P = exp2(.) -> LDS ; waves 4-7: O^T += V^T P^T   (32-key tiles, LDS rings)
     m = max over the first key tile; run-time check of the row sums falls back to a true-max pass
  3. the two key-halves of a head exchange half of their rows, combine, project with Wo
  4. the 16 heads of a (batch, row-half) sum their partial outputs
Hand-offs use flags in ws (cleared at start, gated by a registration counter in debug);
same-die placement is detected at run time, any other placement uses release/acquire fences.
Generated by a hand-written Python emitter.""".split("\n"):
    A("; " + c)
A("; @launch grid=(256,1,1) block=(512,1,1) lds=%d" % LDS_BYTES)
A('.amdgcn_target "amdgcn-amd-amdhsa--gfx950"')
A(".text")
A(f".globl {KNAME}")
A(".p2align 8")
A(f".type {KNAME},@function")
A(f"{KNAME}:")
A.seg("entry")
A(f"""
s_cmp_ge_u32 s2, 256
s_cbranch_scc1 L_end
s_load_dwordx16 s[64:79], s[0:1], 0
""")
if OPT["stamps"]:
    A("s_memrealtime s[56:57]")
    stamp(2)
A(f"""
s_and_b32 {sB if OPT.get("mapb") else sHKV}, s2, 7
s_lshr_b32 {sT0}, s2, 3
s_lshr_b32 {sHKV if OPT.get("mapb") else sB}, {sT0}, 2
s_and_b32 {sT1}, {sT0}, 1
s_lshr_b32 {sHALF}, {sT0}, 1
s_and_b32 {sHALF}, {sHALF}, 1
s_lshl_b32 {sHQ}, {sHKV}, 1
s_add_u32 {sHQ}, {sHQ}, {sT1}
v_lshrrev_b32 v1, 6, v0
v_and_b32 v0, 63, v0
v_readfirstlane_b32 {sW}, v1
s_mul_i32 {sXO}, {sB}, 143360
s_lshl_b32 {sWQO}, {sHQ}, 9
v_and_b32 v{vI}, 15, v0
v_lshrrev_b32 v{vG}, 4, v0
s_lshl_b32 {sW1K}, {sW}, 10
s_lshr_b32 {sHP}, {sW}, 2
s_and_b32 {sQH}, {sW}, 1
s_lshl_b32 {sT0}, {sQH}, 2
v_add_u32 v5, {sT0}, v{vG}
v_and_b32 v6, 7, v0
v_xor_b32 v5, v5, v6
v_lshlrev_b32 v5, 4, v5
v_lshrrev_b32 v6, 3, v0
v_mul_u32_u24 v6, 896, v6
v_add_u32 v{vXD}, v5, v6
s_mul_i32 {sT0}, {sHALF}, 10
s_add_u32 {sT0}, {sT0}, {sW}
s_sub_u32 {sT1}, {sT0}, 20
s_cmp_ge_u32 {sT0}, 20
s_cselect_b32 {sT1}, {sT1}, {sT0}
s_mul_i32 {sT1}, {sT1}, 7168
s_add_u32 {sXT[0]}, {sT1}, {sXO}
s_add_u32 {sT0}, {sT0}, 8
s_sub_u32 {sT1}, {sT0}, 20
s_cmp_ge_u32 {sT0}, 20
s_cselect_b32 {sT1}, {sT1}, {sT0}
s_mul_i32 {sT1}, {sT1}, 7168
s_add_u32 {sXT[1]}, {sT1}, {sXO}
s_add_u32 {sT0}, {sT0}, 8
s_sub_u32 {sT1}, {sT0}, 20
s_cmp_ge_u32 {sT0}, 20
s_cselect_b32 {sT1}, {sT1}, {sT0}
s_mul_i32 {sT1}, {sT1}, 7168
s_add_u32 {sXT[2]}, {sT1}, {sXO}
v_lshrrev_b32 v5, 5, v0
s_lshl_b32 {sT0}, {sW}, 1
v_add_u32 v5, {sT0}, v5
v_and_b32 v6, 3, v5
s_lshl_b32 {sT0}, {sHP}, 2
v_or_b32 v6, {sT0}, v6
v_bfe_u32 v7, v0, 1, 4
v_xor_b32 v6, v6, v7
v_lshlrev_b32 v6, 5, v6
v_and_b32 v7, 1, v0
v_lshlrev_b32 v7, 4, v7
v_lshlrev_b32 v5, 13, v5
v_add3_u32 v{vWD}, v5, v6, v7
s_mov_b32 s6, 1146880
s_mov_b32 s7, 0x20000
s_mov_b32 s10, 3670016
s_mov_b32 s11, 0x20000
s_waitcnt lgkmcnt(0)
s_mov_b32 s4, s64
s_mov_b32 s5, s65
s_mov_b32 s8, s70
s_mov_b32 s9, s71
""")
stamp(3, 3)

vm = VM(63)

def dma(lines, tag, v=None):
    def f():
        for x in lines:
            A(x)
        (v or vm).issue(tag)
    return f

def stage_dma(s):
    sb = STG[s % 3]
    out = []
    for t in range(4):
        out.append(dma([f"s_add_u32 m0, {sW1K}, {sb + t*8192}",
                        f"s_add_u32 {sT0}, {sWQO}, {(s*64 + 16*t) * 8192}",
                        f"buffer_load_dwordx4 v{vWD}, {sWQ}, {sT0} offen lds"], f"st{s}"))
    for t in range(3):
        l = [f"s_add_u32 m0, {sW1K}, {sb + XOFF + t*8192}",
             f"s_add_u32 {sT0}, {sXT[t]}, {s*128}",
             f"buffer_load_dwordx4 v{vXD}, {sX}, {sT0} offen lds"]
        out.append(dma(l, f"st{s}") if t < 2 else only_S(l))
    return [out[6]] + out[:6]

def k_lines(i):
    slot = i & 3
    out = []
    for sg in range(4):
        l = [f"s_add_u32 m0, {sKDST}, {slot*16384 + sg*2048 - sg*128}", "s_nop 0",
             f"buffer_load_dwordx4 v{vKD}, {sKr}, {sKO} offen offset:{sg*128}{NT} lds"]
        if sg == 3:
            l.append(f"s_add_u32 {sKO}, {sKO}, {0 if OPT.get('samekv') else 16384}")
            if OPT["rot"]:
                l += [f"s_and_b32 {sKO}, {sKO}, 0x7ffff", f"s_or_b32 {sKO}, {sKO}, {sKVB}"]
        out.append(l)
    return out

def v_lines(t):
    pos = (t + 3) & 3
    out = []
    for jj in range(4):
        l = [f"s_add_u32 m0, {sVDST}, {pos*16384 + jj*1024}", "s_nop 0",
             f"buffer_load_dwordx4 v{vVD[jj]}, {sVr}, {sVO} offen{NTV} lds"]
        if jj == 3:
            l.append(f"s_add_u32 {sVO}, {sVO}, {0 if OPT.get('samekv') else 16384}")
            if OPT["rot"]:
                l += [f"s_and_b32 {sVO}, {sVO}, 0x7ffff", f"s_or_b32 {sVO}, {sVO}, {sKVB}"]
        out.append(l)
    return out

run(stage_dma(0))
def code_warm(lab, wave, lds_dst, va):
    A(f"""
    s_cmp_lg_u32 {sW}, {wave}
    s_cbranch_scc1 L_cw{lab}
    s_getpc_b64 s[54:55] ; cond
    L_pc{lab}:
    s_lshr_b32 {sT0}, s2, 3 ; cond
    s_mul_i32 {sT0}, {sT0}, 1280 ; cond
    s_min_u32 {sT0}, {sT0}, L_codeend - {KNAME} - 2048 ; cond
    s_sub_u32 {sT0}, {sT0}, L_pc{lab} - {KNAME} ; cond
    s_ashr_i32 {sT1}, {sT0}, 31 ; cond
    s_add_u32 s54, s54, {sT0} ; cond
    s_addc_u32 s55, s55, {sT1} ; cond
    v_lshlrev_b32 v{va}, 4, v0 ; cond
    s_mov_b32 m0, {lds_dst} ; cond
    s_nop 0 ; cond
    global_load_lds_dwordx4 v{va}, s[54:55] ; cond
    global_load_lds_dwordx4 v{va}, s[54:55] offset:1024 ; cond
    L_cw{lab}:
    """)
if OPT["cw"]:
    code_warm("a", 5, 159744, 8)
stamp(4, 3)
A.seg("pro")
A(f"""
s_mov_b32 s16, s72
s_mov_b32 s17, s73
s_mov_b32 s18, 3670016
s_mov_b32 s19, 0x20000
s_mov_b32 s20, s78
s_mov_b32 s21, s79
s_mov_b32 s22, 0x10000000
s_mov_b32 s23, 0x20000
s_mov_b32 s12, s68
s_mov_b32 s13, s69
s_mov_b32 s14, 0x4000000
s_mov_b32 s15, 0x20000
s_mov_b32 s60, s66
s_mov_b32 s61, s67
s_mov_b32 s62, 0x4000000
s_mov_b32 s63, 0x20000
s_mov_b32 {sRETRY}, 0
s_mov_b32 {sC}, {f32(math.log2(math.e) / 16.0)}
s_mov_b32 {sLIM}, {f32(2.0 ** 30)}
s_mul_i32 {sWOO}, {sHQ}, 229376
s_lshl_b32 {sT0}, {sB}, 3
s_add_u32 {sT0}, {sT0}, {sHKV}
s_lshl_b32 {sT0}, {sT0}, 1
s_add_u32 {sT0}, {sT0}, {sHALF}
s_lshl_b32 {sKV0}, {sT0}, 19
s_mov_b32 {sKVB}, {sKV0}
s_mul_i32 {sT0}, {sT0}, {OPT["rot"]}
s_and_b32 {sT0}, {sT0}, 31
s_lshl_b32 {sT0}, {sT0}, 14
s_add_u32 {sKV0}, {sKV0}, {sT0}
s_mov_b32 s68, s76
s_mov_b32 s69, s77
s_mov_b32 s70, 256
s_mov_b32 s71, 0x20000
s_mov_b32 s72, s74
s_mov_b32 s73, s75
s_mov_b32 s74, 1146880
s_mov_b32 s75, 0x20000
s_lshl_b32 {sT0}, {sB}, 1
s_add_u32 {sT0}, {sT0}, {sHALF}
s_lshl_b32 {sFLG}, {sT0}, 7
s_add_u32 {sFLG}, {sFLG}, {FLAG_OFF}
s_lshl_b32 {sT0}, {sT0}, 4
s_add_u32 {sT0}, {sT0}, {sHQ}
s_mul_i32 {sPART}, {sT0}, {PART_BYTES}
s_mul_i32 {sXS}, {sT0}, {XCH_BYTES}
s_add_u32 {sXS}, {sXS}, {XCH_OFF}
s_xor_b32 {sT0}, {sT0}, 16
s_mul_i32 {sXR}, {sT0}, {XCH_BYTES}
s_add_u32 {sXR}, {sXR}, {XCH_OFF}
s_and_b32 {sDQ}, {sW}, 3
s_lshr_b32 {sKH}, {sDQ}, 1
v_lshrrev_b32 v30, 3, v{vI}
v_lshlrev_b32 v30, 10, v30
v_and_b32 v31, 7, v{vI}
v_lshlrev_b32 v31, 7, v31
v_lshrrev_b32 v32, 1, v{vI}
v_xor_b32 v33, v{vG}, v32
v_lshlrev_b32 v33, 4, v33
v_add3_u32 v{vA0}, v30, v31, v33
s_mul_i32 {sT0}, {sHP}, 10240
s_add_u32 {sT0}, {sT0}, {XOFF}
v_add_u32 v{vXR[0]}, {sT0}, v{vA0}
v_xor_b32 v{vXR[1]}, 64, v{vXR[0]}
v_lshrrev_b32 v24, 2, v{vI}
v_and_b32 v25, 1, v{vG}
v_lshlrev_b32 v25, 2, v25
v_or_b32 v25, v25, v24
v_lshl_add_u32 v26, v{vG}, 3, v24
v_lshlrev_b32 v26, 9, v26
v_and_b32 v27, 3, v0
v_lshl_add_u32 v26, v27, 3, v26
s_lshl_b32 {sT0}, {sDQ}, 2
v_xor_b32 v25, {sT0}, v25
""")
for m in range(4):
    A(f"v_xor_b32 v28, {m}, v25")
    A(f"v_lshl_add_u32 v{vW[m]}, v28, 5, v26")
stamp(5, 3)
A("s_barrier")
run(stage_dma(1))
stamp(6, 3)
A(f"""
v_lshrrev_b32 v24, 1, v{vG}
v_xor_b32 v24, v24, v32
v_and_b32 v25, 1, v{vG}
v_lshlrev_b32 v25, 3, v25
v_add3_u32 v25, v30, v31, v25
s_mul_i32 {sT0}, {sHP}, 40960
s_lshl_b32 {sT1}, {sDQ}, 11
s_add_u32 {sT0}, {sT0}, {sT1}
v_add_u32 v25, {sT0}, v25
""")
for m in range(4):
    A(f"v_xor_b32 v28, {2*m}, v24")
    A(f"v_lshl_add_u32 v{vQW[m]}, v28, 4, v25")
A(f"""
s_mov_b32 {sVO}, {sKV0}
s_mov_b32 {sKO}, {sKV0}
s_lshl_b32 {sT0}, {sQH}, 2
v_add_u32 v24, {sT0}, v{vG}
v_and_b32 v25, 7, v0
v_xor_b32 v24, v24, v25
v_lshlrev_b32 v24, 4, v24
v_lshrrev_b32 v25, 3, v0
s_lshl_b32 {sT0}, {sKH}, 4
s_lshl_b32 {sT1}, {sQH}, 3
s_add_u32 {sT0}, {sT0}, {sT1}
v_add_u32 v25, {sT0}, v25
v_lshl_add_u32 v{vKD}, v25, 9, v24
s_lshl_b32 {sT0}, {sKH}, 13
s_lshl_b32 {sT1}, {sQH}, 10
s_add_u32 {sKDST}, {sT0}, {sT1}
s_add_u32 {sKDST}, {sKDST}, {KRING}
""")
def v_addr():
    A(f"""
    v_bfe_u32 v24, v0, 4, 1
    v_lshlrev_b32 v24, 1, v24
    v_and_b32 v25, 7, v0
    v_xor_b32 v24, v24, v25
    v_lshlrev_b32 v24, 4, v24
    v_lshrrev_b32 v25, 3, v0
    v_lshl_add_u32 v24, v25, 9, v24
    s_lshl_b32 {sT0}, {sDQ}, 7
    v_add_u32 v{vVD[0]}, {sT0}, v24
    v_xor_b32 v24, 64, v{vVD[0]}
    v_add_u32 v{vVD[1]}, 4096, v24
    v_add_u32 v{vVD[2]}, 8192, v{vVD[0]}
    v_add_u32 v{vVD[3]}, 12288, v24
    """)
v_addr()
A(f"""
s_cmp_lg_u32 {sW}, 4
s_cbranch_scc1 L_noclr
v_and_b32 v24, 1, v0 ; cond
v_lshlrev_b32 v24, 6, v24 ; cond
s_lshl_b32 {sT1}, {sHQ}, 2 ; cond
v_add_u32 v24, {sT1}, v24 ; cond
v_mov_b32 v25, 0 ; cond
buffer_store_dword v25, v24, {sWS}, {sFLG} offen sc1 ; cond
L_noclr:
s_cmp_lg_u32 {sW}, {6 if OPT.get("tlb") else 99}
s_cbranch_scc1 L_notlb
v_and_b32 v24, 31, v0 ; cond
s_mov_b32 {sT1}, {XCH_BYTES} ; cond
v_mul_lo_u32 v24, v24, {sT1} ; cond
s_lshl_b32 {sT0}, {sB}, 5 ; cond
s_mul_i32 {sT0}, {sT0}, {sT1} ; cond
s_add_u32 {sT0}, {sT0}, {XCH_OFF} ; cond
s_mov_b32 m0, 161792 ; cond
s_nop 0 ; cond
buffer_load_dword v24, {sWS}, {sT0} offen sc1 lds ; cond
L_notlb:
s_lshl_b32 {sVDST}, {sDQ}, 12
s_add_u32 {sVDST}, {sVDST}, {VRING}
s_mul_i32 {sT0}, {sQH}, 40960
v_add_u32 v{vQL[0]}, {sT0}, v{vA0}
v_xor_b32 v{vQL[1]}, 64, v{vQL[0]}
v_lshrrev_b32 v24, 1, v{vG}
s_lshl_b32 {sT0}, {sKH}, 1
v_add_u32 v24, {sT0}, v24
v_mul_u32_u24 v24, 2560, v24
v_and_b32 v25, 1, v{vG}
v_lshl_add_u32 v24, v25, 3, v24
s_mul_i32 {sT0}, {sQH}, 80
v_add_u32 v25, {sT0}, v{vI}
v_lshl_add_u32 v{vPW}, v25, 4, v24
s_lshl_b32 {sT0}, {sKH}, 2
s_add_u32 {sT0}, {sT0}, {MX_OFF}
v_lshlrev_b32 v25, 3, v25
v_add_u32 v{vMX}, {sT0}, v25
s_lshl_b32 {sT0}, {sKH}, 13
s_add_u32 {sT0}, {sT0}, {KRING}
v_add_u32 v{vKA[0]}, {sT0}, v{vA0}
v_xor_b32 v{vKA[1]}, 64, v{vKA[0]}
v_lshrrev_b32 v30, 2, v{vI}
v_lshl_add_u32 v32, v{vG}, 3, v30
v_lshlrev_b32 v32, 7, v32
v_and_b32 v33, 3, v0
v_lshl_add_u32 v32, v33, 3, v32
v_add_u32 v32, {sVDST}, v32
v_lshrrev_b32 v30, 1, v30
v_and_b32 v33, 1, v{vG}
v_lshl_add_u32 v30, v33, 1, v30
v_lshl_add_u32 v{vPVa[0]}, v30, 5, v32
v_xor_b32 v{vPVa[1]}, 32, v{vPVa[0]}
v_xor_b32 v{vPVa[2]}, 64, v{vPVa[0]}
v_xor_b32 v{vPVa[3]}, 96, v{vPVa[0]}
v_mul_u32_u24 v31, 2560, v{vG}
v_lshl_add_u32 v{vPVa[4]}, v{vI}, 4, v31
""")
for qt in range(5):
    A(f"v_mov_b32 v{S_L+qt}, 0xff800000")

def q_reads(s2):
    out = []
    for qt in range(5):
        out.append(f"ds_read_b128 {vr(QB[s2] + qt*4, 4)}, v{vXR[s2]} offset:{qt*2048}")
    for m in range(4):
        for e in range(2):
            out.append(f"ds_read_b64_tr_b16 {vr(QA[s2] + m*4 + e*2, 2)}, v{vW[m]} offset:{(32*s2 + 4*e) * 512}")
    return out

def q_mfma(s2, first):
    out = []
    for m in range(4):
        for qt in range(5):
            acc = vr(QACC + (m*5 + qt) * 4, 4)
            out.append(f"v_mfma_f32_16x16x32_bf16 {acc}, {vr(QA[s2] + m*4, 4)}, {vr(QB[s2] + qt*4, 4)}, {'0' if first else acc}")
    return out

if OPT.get("pprio"):
    put(only_S(["s_setprio 1"]))
for s in range(7):
    if s in (3, 4):
        stamp(3 if s == 3 else 9, 9)
    A(f"s_waitcnt vmcnt({vm.wait(f'st{s}')})")
    if s in (3, 4):
        stamp(4 if s == 3 else 10, 9)
    if s == 0:
        stamp(7, 3)
    A("s_barrier")
    if s <= 3:
        stamp(8 + s, 3)
    if s in (3, 4):
        stamp(5 if s == 3 else 11, 9)
    if s == 0:
        stamp(3)
    d = []
    if 0 <= s <= 4:
        d = stage_dma(s + 2)
    if s == 6:
        kl = k_lines(0) + k_lines(1) + v_lines(0) + k_lines(2)
        d = [only_S(kl[2*j] + kl[2*j + 1]) for j in range(8)]
    upd = []
    if s < 6:
        dl = STG[(s + 1) % 3] - STG[s % 3]
        upd = [[f"s_mov_b32 {sT1}, {dl & 0xffffffff}", f"v_add_u32 v{vW[0]}, {sT1}, v{vW[0]}"]] + \
              [f"v_add_u32 v{r}, {sT1}, v{r}" for r in vW[1:] + vXR]
    def spread(n, items, start, step):
        out = [[] for _ in range(n)]
        rest = []
        for k, it in enumerate(items):
            p = start + k*step
            if p < n:
                out[p] = it
            else:
                rest.append(it)
        return out, rest
    def merge(a_, b_):
        n = max(len(a_), len(b_))
        a_ = list(a_) + [[]]*(n - len(a_)); b_ = list(b_) + [[]]*(n - len(b_))
        return [[x, y] for x, y in zip(a_, b_)]
    st = OPT["dstep"] if s < 6 else 2
    if s >= 1:
        d1, d = spread(20, d, 1, st)
        weave(q_mfma(1, False), merge(q_reads(0), d1))
    else:
        weave(q_reads(0), [])
    if s == 3:
        stamp(6, 9)
    A("s_waitcnt lgkmcnt(0)")
    if s == 3:
        stamp(7, 9)
    d2, d = spread(20, d, 1, st if s else 3)
    if s == 0:
        weave(q_mfma(0, True), merge(q_reads(1) + upd, d2) + d)
    else:
        weave(q_mfma(0, False), merge([[], []] + q_reads(1) + upd, d2) + d)
    if s == 3:
        stamp(8, 9)
    A("s_waitcnt lgkmcnt(0)")
stamp(4)
A("s_barrier")

def q_out(idx):
    m, qt = divmod(idx, 5)
    a = QACC + idx * 4
    return [f"v_mul_f32 v{a}, {sC}, v{a}", f"v_mul_f32 v{a+1}, {sC}, v{a+1}",
            f"v_mul_f32 v{a+2}, {sC}, v{a+2}", f"v_mul_f32 v{a+3}, {sC}, v{a+3}",
            f"v_cvt_pk_bf16_f32 v{a}, v{a}, v{a+1}", f"v_cvt_pk_bf16_f32 v{a+1}, v{a+2}, v{a+3}",
            f"ds_write_b64 v{vQW[m]}, {vr(a, 2)} offset:{qt*8192}"]
for j, mf in enumerate(q_mfma(1, False)):
    A(mf)
    if j >= 3:
        run(q_out(j - 3))
for j in range(17, 20):
    run(q_out(j))
A(f"s_cmp_ge_u32 {sW}, 4")
A("s_cbranch_scc1 L_PV")


def wo_addr():
    A(f"""
    v_bfe_u32 v13, v0, 4, 1
    s_lshl_b32 {sT0}, {sQH}, 1
    v_or_b32 v13, {sT0}, v13
    v_lshlrev_b32 v13, 1, v13
    v_and_b32 v14, 7, v0
    v_xor_b32 v13, v13, v14
    v_lshrrev_b32 v14, 3, v0
    s_lshl_b32 {sT0}, {sW}, 3
    v_add_u32 v14, {sT0}, v14
    v_mul_u32_u24 v14, 896, v14
    v_lshl_add_u32 v{vWOD}, v13, 4, v14
    s_lshl_b32 {sT0}, {sHALF}, 7
    s_add_u32 {sWOe}, {sWOO}, {sT0}
    s_sub_u32 {sWOo}, {sWOO}, {sT0}
    """)

def wo_dma(j, v):
    out = []
    for t in range(8):
        out.append(dma([f"s_add_u32 m0, {sW1K}, {WSL[j] + t*4096}",
                        f"s_add_u32 {sT0}, {(sWOO if (j == 6 or not OPT['deph']) else (sWOe if j % 2 == 0 else sWOo))}, {t*28672 + j*128}",
                        f"buffer_load_dwordx4 v{vWOD}, {sWO}, {sT0} offen{WOF} lds"], f"wo{j}", v))
    return out


def gen_role(role):
    S = role == "S"
    R = role
    vm = VM(63)
    lg = VM(15)
    tr = ["entry", "pro"]

    def seg(n):
        A.seg(f"{R}_{n}")
        tr.append(f"{R}_{n}")

    def k_dma(i):
        return [dma(l, f"K{i}", vm) for l in k_lines(i)]

    def v_dma(t):
        return [dma(l, f"V{t}", vm) for l in v_lines(t)]

    def lds(line, tag):
        def f():
            A(line)
            lg.issue(tag)
        return f

    def fst(i, k):
        if i == OPT["fine"]:
            stamp(k, 2)
        if k == 8 and 28 <= i <= 33:
            stamp(i - 24, 7)
        if k == 7 and 31 <= i <= 32:
            stamp(i - 21, 7)
        if k == 8 and 1 <= i <= 3:
            stamp(i + 5, 8)

    def kread(i, s):
        return lds(f"ds_read_b128 {vr(S_KF + (s & 3)*4, 4)}, v{vKA[s & 1]} offset:{(i & 3)*16384 + (s >> 1)*2048}", f"kf{s}")

    def s_mfma(i, s, qt):
        acc = vr(S_S[i & 1] + qt*4, 4)
        c = acc if s else ("0" if i == 0 else vr(S_NM + qt*4, 4))
        return f"v_mfma_f32_16x16x32_bf16 {acc}, {vr(S_KF + (s & 3)*4, 4)}, {vr(S_Q + (qt*8 + s)*4, 4)}, {c}"

    def end_wait(i):
        need = [t for t in (f"K{i+1}", f"V{i}") if vm.has(t) and t != "V1"]
        if need:
            last = max(need, key=lambda t: max(k for k, x in enumerate(vm.q) if x == t))
            A(f"s_waitcnt vmcnt({vm.wait(last)}) lgkmcnt(0)")
        else:
            A("s_waitcnt lgkmcnt(0)")
        lg.clear()

    seg("i0")
    if S:
        for t in ["K0"]*4 + ["K1"]*4 + ["V0"]*4 + ["K2"]*4:
            vm.issue(t)
        if OPT["prio"]:
            A(f"s_setprio {OPT['prio']}")
        A(f"s_waitcnt vmcnt({vm.wait('K0')}) lgkmcnt(0)")
        stamp(9, 8)
        A("s_barrier")
        stamp(5); stamp(3, 8)
        def grp(s):
            return [kread(0, s)] + [lds(f"ds_read_b128 {vr(S_Q + (qt*8 + s)*4, 4)}, v{vQL[s & 1]} offset:{qt*8192 + (s >> 1)*2048}", f"kf{s}")
                                    for qt in range(5)]
        run(grp(0) + grp(1))
        for s in range(8):
            A(f"s_waitcnt lgkmcnt({lg.wait(f'kf{s}')})")
            weave([s_mfma(0, s, qt) for qt in range(5)], grp(s + 2) if s + 2 < 8 else [], per=2)
    else:
        A("L_PV:")
        for j in range(4):
            A(f"v_mov_b32 v{vVB[j]}, v{vPVa[j]}")
            A(f"v_subrev_u32 v{vOW[j]}, 40960, v{vQW[j]}")
        A(f"v_mov_b32 v{vPR}, v{vPVa[4]}")
        A("s_waitcnt lgkmcnt(0)")
        A("s_barrier")
        stamp(5)
        A(f"""
        s_cmp_lg_u32 {sW}, 4
        s_cbranch_scc1 L_noreg
        s_getreg_b32 {sT0}, hwreg(HW_REG_XCC_ID)
        s_and_b32 {sT0}, {sT0}, 15
        s_mul_i32 {sT1}, {sT0}, {sT0}
        s_lshl_b32 {sT1}, {sT1}, 18
        s_lshl_b32 {sT0}, {sT0}, 8
        s_add_u32 {sT0}, {sT0}, {sT1}
        s_add_u32 {sT0}, {sT0}, 1
        v_mov_b32 v23, 0
        v_mov_b32 v22, {sT0}
        s_lshl_b32 {sT1}, {sB}, 5
        s_mov_b64 exec, 1
        buffer_atomic_add v22, v23, {sDBG}, {sT1} offen
        s_mov_b64 exec, -1
        L_noreg:
        """)
    vm_join = list(vm.q)
    stamp(11, 8)
    seg("join")
    A(f"L_{R}_join:")
    if S:
        SS = S_S[0]
        for qt in range(5):
            a = SS + qt*4; t = S_KF + qt*2
            A(f"v_max3_f32 v{t}, v{a}, v{a+1}, v{S_L+qt}")
            A(f"v_max3_f32 v{t}, v{a+2}, v{a+3}, v{t}")
            A(f"v_mov_b32 v{t+1}, v{t}")
        for qt in range(5):
            t = S_KF + qt*2
            A(f"v_permlane32_swap_b32 v{t}, v{t+1}")
        for qt in range(5):
            t = S_KF + qt*2
            A(f"v_max_f32 v{t}, v{t}, v{t+1}")
            A(f"v_mov_b32 v{t+1}, v{t}")
        for qt in range(5):
            t = S_KF + qt*2
            A(f"v_permlane16_swap_b32 v{t}, v{t+1}")
        for qt in range(5):
            t = S_KF + qt*2
            A(f"v_max_f32 v{t}, v{t}, v{t+1}")
            A(f"ds_write_b32 v{vMX}, v{t} offset:{qt*128}")
        A("s_waitcnt lgkmcnt(0)")
        stamp(10, 8)
        A("s_barrier")
        stamp(4, 8)
        A(f"v_and_b32 v5, 0xfffffffb, v{vMX}")
        for qt in range(5):
            A(f"ds_read_b64 {vr(S_KF + qt*2, 2)}, v5 offset:{qt*128}")
        run(v_dma(1) + v_dma(2))
        for qt in range(5):
            t = S_KF + qt*2
            A(f"s_waitcnt lgkmcnt({4 - qt})")
            A(f"v_max_f32 v{t}, v{t}, v{t+1}")
            for r in range(4):
                A(f"v_sub_f32 v{S_NM + qt*4 + r}, 0, v{t}")
            for r in range(4):
                A(f"v_sub_f32 v{SS + qt*4 + r}, v{SS + qt*4 + r}, v{t}")
        end_wait(0)
        A("s_barrier")
        stamp(5, 8)
    else:
        A("s_barrier")
        A("s_barrier")

    def softmax_fill(j):
        SS = S_S[j & 1]; buf = j & 1
        out = []
        for qt in range(5):
            a = SS + qt*4
            t0, t1 = (S_T[0], S_T[1]) if qt % 2 == 0 else (S_T[2], S_T[3])
            ex = [(2, f"v_exp_f32 v{a+r}, v{a+r}") for r in range(4)]
            wr = lds(f"ds_write_b64 v{vPW}, {vr(a, 2)} offset:{P_BUF + buf*10240 + qt*256}", "pw")
            post = [(1, f"v_add_f32 v{t0}, v{a}, v{a+1}"), (1, f"v_add_f32 v{t1}, v{a+2}, v{a+3}"),
                    (1, f"v_cvt_pk_bf16_f32 v{a}, v{a}, v{a+1}"), (1, f"v_cvt_pk_bf16_f32 v{a+1}, v{a+2}, v{a+3}"),
                    (1, f"v_add_f32 v{t0}, v{t0}, v{t1}"), (1, wr),
                    (1, f"v_mov_b32 v{S_L+qt}, v{t0}" if j == 0 else f"v_add_f32 v{S_L+qt}, v{S_L+qt}, v{t0}")]
            out.append((ex, post))
        seq = list(out[0][0])
        for qt in range(5):
            if qt + 1 < 5:
                e = out[qt + 1][0]; p = out[qt][1]
                seq += [e[0], p[0], p[1], e[1], p[2], p[3], e[2], p[4], p[5], e[3], p[6]]
            else:
                seq += out[qt][1]
        return seq

    def s_interval(i):
        fill = softmax_fill(i - 1)
        def fput(n):
            while fill and n >= fill[0][0]:
                c, it = fill.pop(0)
                n -= c
                put(it)
        fst(i, 3)
        if i <= 31:
            for s in range(4):
                put(kread(i, s))
            d = []
            if i == 1:
                d += k_dma(3)
            if i + 3 <= 31:
                d += k_dma(i + 3)
            if i == 29:
                d += [wo_addr] + wo_dma(0, vm)[:4]
            if i == 30:
                d += wo_dma(0, vm)[4:]
            if i == 31:
                d += wo_dma(1, vm)[:4]
            for f in d:
                f()
                fput(OPT["pre"])
            for s in range(8):
                A(f"s_waitcnt lgkmcnt({lg.wait(f'kf{s}')})")
                if s == 0:
                    fst(i, 4)
                    if OPT.get("dprio"):
                        A("s_setprio 2")
                for qt in range(5):
                    A(s_mfma(i, s, qt))
                    if qt == 1 and 1 <= s <= 4:
                        put(kread(i, s + 3))
                        fput(1)
                    elif qt == 4:
                        fput(1)
                    else:
                        fput(2)
            if OPT.get("dprio") or OPT.get("ppost"):
                A("s_setprio 0")
            fst(i, 5)
        fput(1000)
        fst(i, 6)
        if i == 30:
            run(wo_dma(2, vm)[4:])
        if i == 31:
            run(wo_dma(3, vm)[:4])
        if i == 32:
            run(wo_dma(1, vm)[4:] + wo_dma(3, vm)[4:])
        end_wait(i)
        if OPT.get("ppost") and i <= 31:
            A(f"s_setprio {OPT['ppost']}")
        fst(i, 7)
        A("s_barrier")
        fst(i, 8)

    def vt_reads(t):
        pos = (t + 3) & 3
        out = []
        for dt in range(4):
            for e in range(2):
                out.append(f"ds_read_b64_tr_b16 {vr(VT[t & 1] + dt*4 + e*2, 2)}, v{vVB[dt]} offset:{pos*16384 + 4*e*128}")
        return out

    def oacc(qt, dt):
        return O_ACC + (qt*4 + dt)*4

    def pv_mfma(t, own, P, first):
        out = []
        for j in range(5):
            qt = j if own else 5 + j
            for dt in range(4):
                acc = vr(oacc(qt, dt), 4)
                out.append(f"v_mfma_f32_16x16x32_bf16 {acc}, {vr(VT[t & 1] + dt*4, 4)}, {vr(P + j*4, 4)}, {'0' if first else acc}")
        return out

    def send(j):
        out = []
        for dp in range(2):
            a = oacc(5 + j, dp*2)
            out.append([f"v_cvt_pk_bf16_f32 v{a+k}, v{a+2*k}, v{a+2*k+1}" for k in range(4)])
            out.append(dma([f"s_add_u32 {sT0}, {sT2}, {(j*2 + dp)*1024}",
                            f"buffer_store_dwordx4 {vr(a, 4)}, v17, {sWS}, {sT0} offen"], "snd", vm))
        return out

    def pv_interval(i):
        if i == 1:
            run(vt_reads(0))
            if OPT.get("dprio") or OPT.get("ppost") == 2:
                A("s_setprio 1")
            A(f"v_lshlrev_b32 v17, 4, v0")
            A(f"s_lshl_b32 {sXTC}, {sDQ}, 10")
            A(f"s_add_u32 {sXTC}, {sXTC}, {sXS}")
            if OPT["vpv"]:
                A(f"s_add_u32 {sVO}, {sKV0}, {3*16384}")
                if OPT["rot"]:
                    A(f"s_and_b32 {sVO}, {sVO}, 0x7ffff")
                    A(f"s_or_b32 {sVO}, {sVO}, {sKVB}")
                run(v_dma(3))
            A("s_waitcnt lgkmcnt(0)")
            A("s_barrier")
            return
        t = i - 2; buf = t & 1
        fst(i, 3)
        pa = [f"ds_read_b128 {vr(P_A + j*4, 4)}, v{vPR} offset:{P_BUF + buf*10240 + (5 + j)*256}" for j in range(5)]
        pb = [f"ds_read_b128 {vr(P_B + j*4, 4)}, v{vPR} offset:{P_BUF + buf*10240 + j*256}" for j in range(5)]
        if t >= 1:
            e = []
            fl = [pa[0], e, pa[1], e, pa[2], e, pa[3], e, pa[4], e, pb[0], e, pb[1], e, pb[2], e, e, e, e, pb[3]]
            if t == 1:
                run(vt_reads(1))
            weave(pv_mfma(t - 1, 1, P_B, t == 1), fl)
        else:
            run(pa + pb[:4])
        fst(i, 4)
        if OPT["vpv"]:
            if t == 1:
                A("s_waitcnt lgkmcnt(9)")
            if i + 2 <= 31:
                run(v_dma(i + 2))
            if vm.has(f"V{t+1}"):
                A(f"s_waitcnt vmcnt({vm.wait(f'V{t+1}')})")
            if i == 28 and OPT["cw"] >= 2:
                code_warm("b", 5, SCR, 16)
            if i == 28:
                A(f"""
                s_cmp_lg_u32 {sW}, 4
                s_cbranch_scc1 L_rg1
                v_mov_b32 v23, 0 ; cond
                s_lshl_b32 {sT1}, {sB}, 5 ; cond
                buffer_load_dword v22, v23, {sDBG}, {sT1} offen sc1 ; cond
                L_rg1:
                """)
            if i == 32:
                A(f"""
                s_cmp_lg_u32 {sW}, 4
                s_cbranch_scc1 L_regdone
                s_getreg_b32 {sT2}, hwreg(HW_REG_XCC_ID)
                s_and_b32 {sT2}, {sT2}, 15
                s_mul_i32 {sT1}, {sT2}, {sT2}
                s_lshl_b32 {sT1}, {sT1}, 23
                s_lshl_b32 {sT2}, {sT2}, 13
                s_add_u32 {sT2}, {sT2}, {sT1}
                s_add_u32 {sT2}, {sT2}, 32
                s_lshl_b32 {sT1}, {sB}, 5
                s_mov_b32 {sCNT}, 0x40000
                v_mov_b32 v23, 0
                L_regpoll:
                v_readfirstlane_b32 {sT0}, v22
                s_sub_u32 {sCNT}, {sCNT}, 1
                s_cmp_eq_u32 {sCNT}, 0
                s_cbranch_scc1 L_regok
                s_and_b32 {sT3}, {sT0}, 0xff
                s_cmp_ge_u32 {sT3}, 32
                s_cbranch_scc1 L_regok
                s_sleep 8
                buffer_load_dword v22, v23, {sDBG}, {sT1} offen sc1
                s_waitcnt vmcnt(0)
                s_branch L_regpoll
                L_regok:
                s_cmp_eq_u32 {sT0}, {sT2}
                s_cselect_b32 {sLOC}, {0 if OPT.get("noloc") else 1}, 0
                v_mov_b32 v23, {ST_M + 1024}
                v_mov_b32 v22, {sLOC}
                s_waitcnt lgkmcnt(0)
                ds_write_b32 v23, v22
                s_waitcnt lgkmcnt(0)
                L_regdone:
                """)
            TS = OPT["ts"]
            if OPT["xtouch"] and TS and i == OPT["xt0"]:
                per = 64 * TS
                tot = XCH_BYTES if OPT.get("tall") else 40960
                n = -(-tot // (4 * per))
                A(f"v_mul_u32_u24 v16, {TS}, v0")
                A(f"s_add_u32 m0, {sW1K}, {SCR}")
                A(f"s_mul_i32 {sXTC}, {sDQ}, {per}")
                A(f"s_add_u32 {sXTC}, {sXTC}, {sXS}")
                for k in range(n):
                    put(dma([f"buffer_load_dword v16, {sWS}, {sXTC} offen{XTF} lds", f"s_add_u32 {sXTC}, {sXTC}, {4*per}"], "tch", vm))
                A(f"s_add_u32 {sXTC}, {sXS}, {XST}")
                put(dma([f"buffer_load_dword v16, {sWS}, {sXTC} offen{XTF} lds"], "tch", vm))
            sched = {24: 2, 25: 2, 26: 2, 27: 2, 28: 3} if OPT.get("thin") == 2 else {26: 2, 27: 2, 28: 2, 29: 2, 30: 3} if OPT.get("thin") == 3 else {28: 2, 29: 2, 30: 3, 31: 4} if OPT.get("thin") else {OPT["xt0"]: 3, OPT["xt0"] + 1: 4, OPT["xt0"] + 2: 4}
            nx = sched.get(i, 0) if (OPT["xtouch"] and not TS) else 0
            if nx:
                A(f"s_add_u32 m0, {sW1K}, {SCR}")
            for k in range(nx):
                if i == max(sched) and k == nx - 1:
                    A(f"s_and_b32 {sXTC}, {sW1K}, 1024")
                    A(f"s_add_u32 {sXTC}, {sXTC}, {sXS}")
                    A(f"s_add_u32 {sXTC}, {sXTC}, {XST}")
                else:
                    A("s_nop 0")
                put(dma([f"buffer_load_dwordx4 v17, {sWS}, {sXTC} offen{XTF} lds", f"s_add_u32 {sXTC}, {sXTC}, 4096"], "tch", vm))
        A("s_waitcnt lgkmcnt(4)")
        fst(i, 5)
        d = []
        if i == OPT["wwarm"]:
            d = [[f"s_mul_i32 {sT1}, s2, 14336", f"s_lshl_b32 {sT2}, {sDQ}, 10", f"s_add_u32 {sT1}, {sT1}, {sT2}",
                  f"s_add_u32 m0, {sW1K}, {SCR}"]]
            for k in range(4):
                d.append(dma([f"buffer_load_dwordx4 v17, {sWO}, {sT1} offen lds", f"s_add_u32 {sT1}, {sT1}, 4096"], f"X{i}", vm))
        if i == OPT["touch"]:
            d = [[f"v_lshrrev_b32 v16, 2, v0", f"v_mul_u32_u24 v16, 896, v16", f"v_and_b32 v18, 3, v0",
                  f"v_lshl_add_u32 v16, v18, 7, v16",
                  f"s_lshl_b32 {sT1}, {sHALF}, 2", f"s_add_u32 {sT1}, {sT1}, {sDQ}", f"s_mul_i32 {sT1}, {sT1}, {32*896}",
                  f"s_add_u32 {sT1}, {sT1}, {sWOO}", f"s_add_u32 {sT2}, {sT1}, {16*896}"],
                 dma([f"s_add_u32 m0, {sW1K}, {SCR - 384}", "s_nop 0", f"buffer_load_dword v16, {sWO}, {sT1} offen offset:384 lds"], "tch", vm),
                 dma([f"buffer_load_dword v16, {sWO}, {sT2} offen offset:384 lds"], "tch", vm)]
        vt = vt_reads(t + 1) if (t + 1 <= 31 and t != 0) else []
        if i == 33:
            d = [[f"s_mul_i32 {sT3}, {sDQ}, 10240", f"s_add_u32 {sT2}, {sXS}, {sT3}"], [], [], []]
            for j in range(5):
                d += send(j)
        weave(pv_mfma(t, 0, P_A, t == 0), [[], []] + vt[:2] + [pb[4]] + vt[2:] + d)
        fst(i, 6)
        A("s_waitcnt lgkmcnt(0)")
        fst(i, 7)
        A("s_barrier")
        fst(i, 8)

    interval = s_interval if S else pv_interval
    seg("g0")
    for i in range(1, 4):
        interval(i)
    stamp(6)
    A(f"s_mov_b32 {sCNT}, {OPT['nloop']}")
    vm.q = [t for t in vm.q if t[0] != "X"]
    q_before = list(vm.q)
    seg("loop")
    A(f"L_{R}_loop:")
    for i in range(4, 8):
        interval(i)
    A(f"s_sub_u32 {sCNT}, {sCNT}, 1")
    A(f"s_cmp_lg_u32 {sCNT}, 0")
    A(f"s_cbranch_scc1 L_{R}_loop")
    sh = lambda q, d: [t[0] + str(int(t[1:]) + d) for t in q]
    while vm.q and vm.q[0][0] == 'X':
        vm.q.pop(0)
    assert sh(q_before, 4) == vm.q, (q_before, vm.q)
    vm.q = sh(vm.q, 4*(OPT['nloop'] - 1))
    tr.append(f"{R}_loop")
    seg("gl")
    for i in range(4 + 4*OPT['nloop'], 33):
        if i == 28:
            stamp(7); stamp(3, 7)
        interval(i)
    if S:
        if OPT["prio"]:
            A("s_setprio 0")
        T = S_KF + 4
        for qt in range(5):
            A(f"v_mov_b32 v{T + qt}, v{S_L + qt}")
        for qt in range(5):
            A(f"v_permlane32_swap_b32 v{T + qt}, v{S_L + qt}")
        for qt in range(5):
            A(f"v_add_f32 v{S_L + qt}, v{S_L + qt}, v{T + qt}")
            A(f"v_mov_b32 v{T + qt}, v{S_L + qt}")
        for qt in range(5):
            A(f"v_permlane16_swap_b32 v{T + qt}, v{S_L + qt}")
        A(f"v_add_u32 v5, {(ST_L - MX_OFF) & 0xffffffff}, v{vMX}")
        A(f"v_subrev_u32 v6, {MX_OFF}, v{vMX}")
        A(f"v_lshrrev_b32 v6, 3, v6")
        A(f"v_lshlrev_b32 v6, 2, v6")
        A(f"v_add_u32 v6, {ST_M}, v6")
        for qt in range(5):
            A(f"v_add_f32 v{S_L + qt}, v{S_L + qt}, v{T + qt}")
            A(f"ds_write_b32 v5, v{S_L + qt} offset:{qt*128}")
            A(f"ds_write_b32 v6, v{S_NM + qt*4} offset:{qt*64}")
        A(f"""
        v_and_b32 v17, 15, v0
        v_lshlrev_b32 v17, 4, v17
        s_add_u32 {sT2}, {sXS}, {XST}
        s_lshl_b32 {sT1}, {sKH}, 3
        s_add_u32 {sT1}, {sT1}, {sT2}
        s_cmp_eq_u32 {sQH}, 0
        s_cbranch_scc1 L_nost
        """)
        for qt in range(5):
            A(f"v_mov_b32 v{S_NM + qt*4 + 1}, v{S_L + qt} ; cond")
        for qt in range(5):
            A(f"buffer_store_dwordx2 {vr(S_NM + qt*4, 2)}, v17, {sWS}, {sT1} offen offset:{qt*256} ; cond")
        A("L_nost:")
        run(wo_dma(2, vm)[:4])
        A("s_waitcnt lgkmcnt(0)")
        A("s_barrier")
    else:
        pv_interval(33)

    seg("post")
    stamp(8); stamp(9, 7)
    A(f"""
    v_lshlrev_b32 v17, 3, v0
    v_min_u32 v18, 31, v0
    v_lshlrev_b32 v18, 3, v18
    v_add_u32 v17, {ST_L}, v17
    v_add_u32 v18, {ST_L}, v18
    ds_read_b64 v[76:77], v17
    ds_read_b64 v[82:83], v17 offset:512
    ds_read_b64 v[78:79], v18 offset:1024
    v_mov_b32 v17, {ST_M + 1024}
    ds_read_b32 v80, v17
    """)
    chk = f"""
    s_waitcnt lgkmcnt(0)
    v_readfirstlane_b32 {sLOC}, v80
    v_add_f32 v76, v76, v77
    v_add_f32 v82, v82, v83
    v_add_f32 v78, v78, v79
    v_cmp_ge_f32 s[50:51], {sLIM}, v76
    v_cmp_ge_f32 s[52:53], {sLIM}, v82
    v_cmp_ge_f32 s[54:55], {sLIM}, v78
    s_and_b64 s[50:51], s[50:51], s[52:53]
    s_and_b64 s[50:51], s[50:51], s[54:55]
    s_cmp_eq_u64 s[50:51], -1
    s_cbranch_scc1 L_{R}_ok
    s_cmp_eq_u32 {sRETRY}, 0
    s_cbranch_scc1 L_{R}_fallback
    """
    if not S:
        mf = pv_mfma(31, 1, P_B, False)
        run(mf[:6])
    A(chk)
    seg("ok")
    A(f"L_{R}_ok:")

    def signal_wait(flag_word, poll_addr_code, nlanes, lab, agent=0):
        A(f"""
        s_cmp_lg_u32 {sW}, {agent}
        s_cbranch_scc1 L_{lab}_done
        v_mov_b32 v28, 1
        s_lshl_b32 {sT1}, {sHQ}, 2
        s_add_u32 {sT1}, {sT1}, {flag_word}
        v_mov_b32 v27, {sT1}
        {poll_addr_code}
        s_mov_b32 {sCNT}, 0x40000
        s_mov_b64 exec, 1
        s_cmp_eq_u32 {sLOC}, 1
        s_cbranch_scc1 L_{lab}_loc
        buffer_wbl2 sc1
        s_waitcnt vmcnt(0)
        buffer_store_dword v28, v27, {sWS}, {sFLG} offen sc1
        s_branch L_{lab}_sent
        L_{lab}_loc:
        buffer_store_dword v28, v27, {sWS}, {sFLG} offen{YF if lab == "fx" else ""}
        L_{lab}_sent:
        s_mov_b64 exec, {hex((1 << nlanes) - 1)}
        L_{lab}_poll:
        buffer_load_dword v30, v29, {sWS}, {sT2} offen sc1
        s_waitcnt vmcnt(0)
        v_cmp_ne_u32 vcc, 1, v30
        s_sub_u32 {sCNT}, {sCNT}, 1
        s_cmp_eq_u32 {sCNT}, 0
        s_cbranch_scc1 L_{lab}_got
        s_cmp_eq_u64 vcc, 0
        s_cbranch_scc1 L_{lab}_got
        s_sleep {OPT["slp"]}
        s_branch L_{lab}_poll
        L_{lab}_got:
        s_mov_b64 exec, -1
        s_cmp_eq_u32 {sLOC}, 1
        s_cbranch_scc1 L_{lab}_done
        buffer_inv sc1
        s_waitcnt vmcnt(0)
        L_{lab}_done:
        """)

    def oa_addr():
        A(f"""
        v_and_b32 v16, 15, v0
        v_lshrrev_b32 v17, 4, v0
        v_lshrrev_b32 v18, 2, v16
        v_lshl_add_u32 v20, v17, 3, v18
        v_lshlrev_b32 v20, 7, v20
        v_and_b32 v21, 3, v0
        v_lshl_add_u32 v20, v21, 3, v20
        v_lshrrev_b32 v18, 1, v18
        v_and_b32 v21, 1, v17
        v_lshl_add_u32 v18, v21, 1, v18
        v_xor_b32 v18, {sDQ}, v18
        v_lshl_add_u32 v{vOA[0]}, v18, 5, v20
        v_add_u32 v{vOA[1]}, 0x10000, v{vOA[0]}
        v_add_u32 v{vOA[2]}, 0x20000, v{vOA[0]}
        s_lshl_b32 {sT1}, {sDQ}, 9
        s_cmp_eq_u32 {sLOC}, 1
        s_cselect_b32 {sPA}, {sPART if OPT.get("gsc1") else sXR}, {sPART}
        s_add_u32 {sPA}, {sPA}, {sT1}
        s_lshl_b32 {sT1}, {sHALF}, 11
        s_add_u32 {sPB}, {sPA}, {sT1}
        s_sub_u32 {sPC}, {sPA}, {sT1}
        v_lshrrev_b32 v18, 1, v17
        v_lshlrev_b32 v18, 8, v18
        v_lshl_add_u32 v18, v16, 4, v18
        v_mul_u32_u24 v22, 14336, v21
        v_xor_b32 v13, 64, v{vA0}
        v_add_u32 v14, v22, v18
        v_lshl_add_u32 v15, v21, 3, v18
        """)
    vOBx = [vA0, 13]; vS4, vS2 = 14, 15
    SA = 128
    def sa_reads(j):
        out = []
        for ks in range(8):
            for e in range(2):
                off = WSL[j] + (32*ks + 4*e) * 128
                out.append(f"ds_read_b64_tr_b16 {vr(SA + j*32 + ks*4 + e*2, 2)}, v{vOA[off >> 16]} offset:{off & 0xffff}")
        return out

    if S:
        A(f"s_lshl_b32 {sT0}, {sW}, 6")
        A(f"v_add_u32 v23, {sT0}, v0")
        oa_addr()
    else:
        A(f"""
        v_lshlrev_b32 v9, 4, v0
        v_and_b32 v16, 15, v0
        v_lshlrev_b32 v8, 4, v16
        v_lshlrev_b32 v18, 3, v16
        v_lshlrev_b32 v16, 2, v16
        v_add_u32 v10, {ST_L}, v18
        v_add_u32 v11, {ST_M}, v16
        """)
        run(mf[6:])
        for qt in range(5):
            A(f"ds_read_b64 {vr(76 + qt*4, 2)}, v10 offset:{qt*128}")
            A(f"ds_read_b32 v{78 + qt*4}, v11 offset:{qt*64}")
    stamp(3, 4)
    A("s_waitcnt vmcnt(0) lgkmcnt(0)")
    vm.clear()
    A("s_barrier")
    stamp(4, 4)
    if S:
        run(sa_reads(0) + sa_reads(1) + sa_reads(3))
        A("s_waitcnt lgkmcnt(0)")
    else:
        oa_addr()
        A(f"s_lshl_b32 {sT0}, {sW}, 6")
        A(f"v_add_u32 v12, {sT0}, v0")
        signal_wait(64, f"v_mov_b32 v29, v27\n s_xor_b32 {sT2}, {sFLG}, 128", 1, "px", agent=4)
    A("s_barrier")
    stamp(5, 4); stamp(3, 5)
    if not S:
        RB = oacc(5, 0)
        A(f"""
        s_add_u32 {sT0}, {sXR}, {XST}
        s_add_u32 {sT2}, {sXR}, {sT3}
        """)
        for qt in range(5):
            A(f"buffer_load_dwordx4 {vr(56 + qt*4, 4)}, v8, {sWS}, {sT0} offen offset:{qt*256} sc1")
            vm.issue("ps")
        for n in range(10):
            A(f"s_add_u32 {sT0}, {sT2}, {n*1024}")
            A(f"buffer_load_dwordx4 {vr(RB + n*4, 4)}, v9, {sWS}, {sT0} offen sc1")
            vm.issue(f"x{n}")
        A("s_barrier")
        stamp(4, 5)
        A(f"s_waitcnt vmcnt({vm.wait('ps')}) lgkmcnt(0)")
        stamp(5, 5)
        if OPT["stamps"] == 5:
            A("s_waitcnt vmcnt(0)")
            stamp(6, 5)
        ops = []
        for qt in range(5):
            l0, l1, nm = 76 + qt*4, 77 + qt*4, 78 + qt*4
            pn, pl = 56 + qt*4, 57 + qt*4
            ops.append([f"v_add_f32 v{pl}, v{pl}, v{pl+2}", f"v_add_f32 v{l0}, v{l0}, v{l1}",
                        f"v_sub_f32 v{l1}, v{nm}, v{pn}", f"v_sub_f32 v{nm}, v{pn}, v{nm}",
                        f"v_exp_f32 v{l1}, v{l1}", f"v_exp_f32 v{nm}, v{nm}",
                        f"v_fma_f32 v{l1}, v{l1}, v{pl}, v{l0}", f"v_fma_f32 v{nm}, v{nm}, v{l0}, v{pl}",
                        f"v_rcp_f32 v{l0}, v{l1}", f"v_rcp_f32 v{nm}, v{nm}"])
        for k in range(10):
            for qt in range(5):
                A(ops[qt][k])
        for qt in range(5):
            w1, w2 = 76 + qt*4, 78 + qt*4
            a0 = oacc(qt, 0); r0 = RB + qt*8; T = 24 + (qt & 1)*16
            for k in range(8):
                A(f"v_pk_mul_f32 {vr(a0+2*k, 2)}, {vr(w1, 2)}, {vr(a0+2*k, 2)} op_sel_hi:[0,1]")
            A(f"s_waitcnt vmcnt({vm.wait(f'x{qt*2 + 1}')})")
            for k in range(8):
                A(f"v_lshlrev_b32 v{T+2*k}, 16, v{r0+k}")
                A(f"v_and_b32 v{T+2*k+1}, 0xffff0000, v{r0+k}")
            for k in range(8):
                A(f"v_pk_fma_f32 {vr(a0+2*k, 2)}, {vr(w2, 2)}, {vr(T+2*k, 2)}, {vr(a0+2*k, 2)} op_sel_hi:[0,1,1]")
            for k in range(8):
                A(f"v_cvt_pk_bf16_f32 v{T+k}, v{a0+2*k}, v{a0+2*k+1}")
            for dt in range(4):
                A(f"ds_write_b64 v{vOW[dt]}, {vr(T+2*dt, 2)} offset:{qt*8192}")
    else:
        run(sa_reads(2))
        A("s_waitcnt lgkmcnt(0)")
        A("s_barrier")
        run(wo_dma(4, vm) + wo_dma(5, vm))
    late = []
    if S:
        late = wo_dma(6, vm)
        if OPT["xtouch"] and not OPT.get("gsc1"):
            A(f"v_lshlrev_b32 v17, 4, v0")
            A(f"s_add_u32 {sT2}, {sXR}, {sW1K}")
            for k in range(8):
                late.append(dma([f"s_add_u32 {sT1}, {sT2}, {40960 + k*4096}",
                                 f"buffer_load_dwordx4 v[8:11], v17, {sWS}, {sT1} offen{XTF}"], "tch", vm))
    stamp(7, 5)
    def y_out(acc, slot):
        out = []
        co = slot * 2048
        sPA = globals()["sPA"] if (slot == 6 or not OPT["deph"]) else (sPB if slot % 2 == 0 else sPC)
        for pr in range(2):
            a = acc + pr*8; b = a + 4
            out.append([f"v_cvt_pk_bf16_f32 v{a}, v{a}, v{a+1}", f"v_cvt_pk_bf16_f32 v{a+1}, v{a+2}, v{a+3}"])
            out.append([f"v_cvt_pk_bf16_f32 v{a+2}, v{b}, v{b+1}", f"v_cvt_pk_bf16_f32 v{a+3}, v{b+2}, v{b+3}"])
            out.append(f"s_add_u32 {sT1}, {sPA}, {co + pr*2*14336}")
            out.append([f"v_permlane16_swap_b32 v{a}, v{a+2}", f"v_permlane16_swap_b32 v{a+1}, v{a+3}"])
            out.append(f"buffer_store_dwordx4 {vr(a, 4)}, v{vS4}, {sWS}, {sT1} offen{YF}")
        a = acc + 16
        out.append([f"v_cvt_pk_bf16_f32 v{a}, v{a}, v{a+1}", f"v_cvt_pk_bf16_f32 v{a+1}, v{a+2}, v{a+3}"])
        out.append([f"s_add_u32 {sT1}, {sPA}, {co + 4*14336}", f"buffer_store_dwordx2 {vr(a, 2)}, v{vS2}, {sWS}, {sT1} offen{YF}"])
        return out

    lg.clear()
    if S:
        A(f"s_waitcnt vmcnt({vm.wait('wo4')})")
        stamp(8, 5)
        A("s_barrier")
        stamp(9); stamp(6, 4); stamp(9, 5)
        SB, NB, SACC = 24, 6, 48
        seq = [(ps, ks, qt) for ps in range(2) for ks in range(8) for qt in range(5)]
        def bread(n):
            ps, ks, qt = seq[n]
            return lds(f"ds_read_b128 {vr(SB + (n % NB)*4, 4)}, v{vOBx[ks & 1]} offset:{qt*8192 + (ks >> 1)*2048}", f"b{n}")
        for n in range(NB - 1):
            put(bread(n))
        fill = []
        for f in late:
            fill += [f] + [[]] * (OPT["lstep"] - 1)
        for n, (ps, ks, qt) in enumerate(seq):
            if n == 42:
                fill += y_out(SACC, 0) + y_out(SACC + 20, 1)
            if n == OPT["z4"]:
                A(f"s_waitcnt vmcnt({vm.wait('wo6')})")
                A("s_barrier")
            A(f"s_waitcnt lgkmcnt({lg.wait(f'b{n}')})")
            for tl in range(2):
                j = ps*2 + tl
                acc = vr(SACC + j*20 + qt*4, 4)
                A(f"v_mfma_f32_16x16x32_bf16 {acc}, {vr(SA + j*32 + ks*4, 4)}, {vr(SB + (n % NB)*4, 4)}, {'0' if ks == 0 else acc}")
                if tl == 0 and n + NB - 1 < len(seq):
                    put(bread(n + NB - 1))
                elif fill:
                    put(fill.pop(0))
        run(fill)
        run(y_out(SACC + 40, 2) + y_out(SACC + 60, 3))
        A(f"v_mov_b32 v12, v23")
    else:
        A("s_waitcnt lgkmcnt(0)")
        stamp(8, 5)
        A("s_barrier")
        stamp(9); stamp(6, 4); stamp(9, 5)
        steps = [(r, ks) for r in range(3) for ks in range(8)]
        def a_read(n):
            r, ks = steps[n]
            out = []
            if r == 0:
                out += [lds(f"ds_read_b128 {vr(E_O + (qt*8 + ks)*4, 4)}, v{vOBx[ks & 1]} offset:{qt*8192 + (ks >> 1)*2048}", f"a{n}") for qt in range(5)]
            for e in range(2):
                off = WSL[4 + r] + (32*ks + 4*e) * 128
                out.append(lds(f"ds_read_b64_tr_b16 {vr(E_A + (n & 3)*4 + e*2, 2)}, v{vOA[off >> 16]} offset:{off & 0xffff}", f"a{n}"))
            return out
        run(a_read(0) + a_read(1))
        fill = []
        for n, (r, ks) in enumerate(steps):
            if ks == 1 and r >= 1:
                fill = y_out(E_ACC[(r - 1) & 1], 4 + r - 1)
            if n == 6:
                A("s_barrier")
                stamp(10, 5)
            A(f"s_waitcnt lgkmcnt({lg.wait(f'a{n}')})")
            mfs = []
            for qt in range(5):
                acc = vr(E_ACC[r & 1] + qt*4, 4)
                mfs.append(f"v_mfma_f32_16x16x32_bf16 {acc}, {vr(E_A + (n & 3)*4, 4)}, {vr(E_O + (qt*8 + ks)*4, 4)}, {'0' if ks == 0 else acc}")
            rd = a_read(n + 2) if n + 2 < len(steps) else []
            if len(rd) > 2:
                weave(mfs, rd, per=2)
            else:
                weave(mfs, rd + [fill.pop(0) if fill else [] for _ in range(3)])
        run(fill)
        run(y_out(E_ACC[0], 6))
    stamp(10); stamp(7, 4); stamp(11, 5)
    A(f"""
    s_mul_i32 {sT0}, {sHQ}, 280
    v_add_u32 v1, {sT0}, v12
    v_lshrrev_b32 v2, 5, v1
    v_mul_u32_u24 v3, 2341, v2
    v_lshrrev_b32 v3, 16, v3
    v_mul_u32_u24 v4, 28, v3
    v_sub_u32 v4, v2, v4
    v_and_b32 v5, 15, v1
    v_lshl_add_u32 v5, v3, 4, v5
    v_bfe_u32 v6, v1, 4, 1
    v_lshlrev_b32 v6, 4, v6
    v_lshl_add_u32 v6, v4, 5, v6
    v_mul_u32_u24 v7, 896, v5
    v_add_u32 v6, v6, v7
    v_lshlrev_b32 v1, 4, v1
    v_mov_b32 v13, 0x7fffff00
    v_cmp_gt_u32 vcc, 280, v12
    v_cndmask_b32 v1, v13, v1, vcc
    v_cndmask_b32 v6, v13, v6, vcc
    s_waitcnt vmcnt(0)
    s_barrier
    """)
    stamp(8, 4)
    if S:
        signal_wait(0, f"v_lshlrev_b32 v29, 2, v0\n s_mov_b32 {sT2}, {sFLG}", 16, "fx")
        A("s_branch L_red")
    tr.append("red")
    A.trace(tr)
    return vm, vm_join


def gen_fallback(role, vm_join):
    S = role == "S"; R = role
    vm = VM(63)
    tr2 = [f"{R}_gl", f"{R}_post"]
    A.seg(f"{R}_fb"); tr2.append(f"{R}_fb")
    A(f"L_{R}_fallback:")
    A(f"""
    s_mov_b32 {sRETRY}, 1
    s_waitcnt vmcnt(0) lgkmcnt(0)
    s_barrier
    s_mov_b32 {sKO}, {sKV0}
    s_mov_b32 {sCNT}, 32
    """)
    if S:
        for qt in range(5):
            A(f"v_mov_b32 v{S_L+qt}, 0xff800000")
        v_addr()
    def s_tile():
        for hh in range(2):
            for s in range(4*hh, 4*hh + 4):
                A(f"ds_read_b128 {vr(S_KF + (s & 3)*4, 4)}, v{vKA[s & 1]} offset:{(s >> 1)*2048}")
            A("s_waitcnt lgkmcnt(0)")
            for s in range(4*hh, 4*hh + 4):
                for qt in range(5):
                    acc = vr(S_S[0] + qt*4, 4)
                    A(f"v_mfma_f32_16x16x32_bf16 {acc}, {vr(S_KF + (s & 3)*4, 4)}, {vr(S_Q + (qt*8 + s)*4, 4)}, {acc if s else '0'}")
    A.seg(f"{R}_fbl"); tr2 += [f"{R}_fbl", f"{R}_fbl"]
    A(f"L_{R}_fbl:")
    if S:
        run(k_lines(0))
        A("s_waitcnt vmcnt(0)")
        A("s_barrier")
        s_tile()
        for qt in range(5):
            a = S_S[0] + qt*4
            A(f"v_max3_f32 v{S_L+qt}, v{a}, v{a+1}, v{S_L+qt}")
            A(f"v_max3_f32 v{S_L+qt}, v{a+2}, v{a+3}, v{S_L+qt}")
        A("s_barrier")
    else:
        A("s_barrier")
        A("s_barrier")
    A(f"s_sub_u32 {sCNT}, {sCNT}, 1")
    A(f"s_cmp_lg_u32 {sCNT}, 0")
    A(f"s_cbranch_scc1 L_{R}_fbl")
    A.seg(f"{R}_fbe"); tr2 += [f"{R}_fbe", f"{R}_join", f"{R}_g0"]
    if S:
        A(f"s_mov_b32 {sKO}, {sKV0}")
        A(f"s_mov_b32 {sVO}, {sKV0}")
        run(k_lines(0) + k_lines(1) + v_lines(0) + k_lines(2))
        assert vm_join == ["K1"]*4 + ["V0"]*4 + ["K2"]*4, vm_join
        if OPT["prio"]:
            A(f"s_setprio {OPT['prio']}")
        A("s_waitcnt vmcnt(12)")
        A("s_barrier")
        s_tile()
    else:
        A("s_barrier")
    A(f"s_branch L_{R}_join")
    A.trace(tr2)


vmS, joinS = gen_role("S")
gen_fallback("S", joinS)
gen_fallback("PV", None) if False else None
vmP, joinP = gen_role("PV")

D0, AC = 96, 40
A.seg("red")
A("L_red:")
A("s_barrier")
stamp(11); stamp(9, 4)
A(f"""
s_cmp_ge_u32 {sW}, 5
s_cbranch_scc1 L_fin
s_lshl_b32 {sT2}, {sB}, 1
s_add_u32 {sT2}, {sT2}, {sHALF}
s_xor_b32 {sT3}, {sT2}, 1
s_mul_i32 {sT2}, {sT2}, {16*PART_BYTES}
s_mul_i32 {sT3}, {sT3}, {16*XCH_BYTES}
s_add_u32 {sT3}, {sT3}, {XCH_OFF}
s_mov_b32 {sT0}, {PART_BYTES}
s_cmp_eq_u32 {sLOC}, {2 if OPT.get("gsc1") else 1}
s_cselect_b32 {sT2}, {sT3}, {sT2}
s_cselect_b32 {sT0}, {XCH_BYTES}, {sT0}
s_mul_i32 {sT1}, {sHALF}, {80*896}
s_add_u32 {sT1}, {sT1}, {sXO}
""")
for p in range(16):
    A(f"buffer_load_dwordx4 {vr(D0 + p*4, 4)}, v1, {sWS}, {sT2} offen sc1")
    A(f"s_add_u32 {sT2}, {sT2}, {sT0}")
for p in range(16):
    A(f"s_waitcnt vmcnt({15 - p})")
    if p in (0, 15):
        stamp({0: 10, 15: 11}[p], 4)
    for r in range(4):
        d = D0 + p*4 + r
        if p == 0:
            A(f"v_lshlrev_b32 v{AC + 2*r}, 16, v{d}")
            A(f"v_and_b32 v{AC + 2*r + 1}, 0xffff0000, v{d}")
        else:
            A(f"v_lshlrev_b32 v{24 + 2*r}, 16, v{d}")
            A(f"v_and_b32 v{25 + 2*r}, 0xffff0000, v{d}")
    if p:
        for r in range(4):
            A(f"v_pk_add_f32 {vr(AC + 2*r, 2)}, {vr(AC + 2*r, 2)}, {vr(24 + 2*r, 2)}")
for r in range(4):
    A(f"v_cvt_pk_bf16_f32 v{20 + r}, v{AC + 2*r}, v{AC + 2*r + 1}")
A(f"buffer_store_dwordx4 v[20:23], v6, {sOUT}, {sT1} offen")
A("L_fin:")
if OPT["stamps"]:
    A("s_waitcnt vmcnt(0)")
    stamp(12)
    A("s_memrealtime s[58:59]")
    A("s_waitcnt lgkmcnt(0)")
    A("v_mov_b32 v20, s56")
    A("v_mov_b32 v21, s58")
    for k in range(2, 13):
        A(f"v_mov_b32 v{20+k}, s{76+2*k}")
    A("v_mov_b32 v33, 0")
    A("v_mov_b32 v34, 0")
    A("v_mov_b32 v35, 0")
    A(f"s_lshl_b32 {sT0}, s2, 9")
    A(f"s_lshl_b32 {sT1}, {sW}, 6")
    A(f"s_add_u32 {sT0}, {sT0}, {sT1}")
    A(f"s_add_u32 {sT0}, {sT0}, {STAMP_OFF}")
    A("v_mov_b32 v40, 0")
    for j in range(4):
        A(f"buffer_store_dwordx4 v[{20+4*j}:{23+4*j}], v40, {sWS}, {sT0} offen offset:{16*j}")
if OPT["stamps"] and OPT.get("dbg") is not None:
    A(f"s_cmp_lg_u32 s2, {OPT['dbg']}")
    A("s_cbranch_scc1 L_end")
    A(f"s_cmp_lg_u32 {sW}, 0")
    A("s_cbranch_scc1 L_end")
    A("v_sub_u32 v21, v21, v20")
    for k in range(12, 2, -1):
        A(f"v_sub_u32 v{20+k}, v{20+k}, v{19+k}")
    for j, r in enumerate([21] + list(range(23, 33))):
        w = j + 1 if j < 7 else j + 2
        A(f"buffer_store_dword v{r}, v40, {sDBG}, 0 offen offset:{4*w}")
A("L_end:")
A("s_endpgm")
gen_fallback("PV", joinP)

A.seg("desc")
A("L_codeend:")
A('.section .rodata,"a"')
A(".p2align 6")
A(f".amdhsa_kernel {KNAME}")
A(".amdhsa_next_free_vgpr 256")
A(".amdhsa_next_free_sgpr 102")
A(".amdhsa_accum_offset 256")
A(".amdhsa_group_segment_fixed_size 0")
A(".amdhsa_kernarg_size 64")
A(".amdhsa_user_sgpr_count 2")
A(".amdhsa_user_sgpr_kernarg_segment_ptr 1")
A(".amdhsa_system_sgpr_workgroup_id_x 1")
A(".end_amdhsa_kernel")

A.fix_hazards()
sys.stderr.write("nops: %s\n" % A.count_nops())
sys.stdout.write(A.text())
```

```python
import sys, struct, math
from asmlib import Asm, VM

OPT = dict(nt="nt", prio=1, stamps=0, fine=28, pre=4, touch=-1, xtouch=1, nsend=5, lstep=2, rot=0, deph=1, nloop=6, dstep=5, cw=2, ts=0, z4=32, wwarm=2, xt0=29, vpv=1, mapb=1, slp=2)
for a in sys.argv[1:]:
    k, v = a.split("=")
    OPT[k] = int(v) if v.lstrip("-").isdigit() else v
NT = (" " + OPT["nt"]) if OPT["nt"] not in ("", "none") else ""
NTV = NT if "ntv" not in OPT else ((" " + OPT["ntv"]) if OPT["ntv"] != "none" else "")
KNAME = "standalone__gqa_block_cached__near_ridge_kernel"

def f32(x):
    return "0x%08x" % struct.unpack("<I", struct.pack("<f", x))[0]

P_BUF = 0
VRING = 32768
KRING = 98304
MX_OFF = KRING + 3 * 16384
STG = [0, 53248, 106496]
XOFF = 32768
WSL = [98304, 131072, 65536, 32768, 98304, 131072, 65536]
ST_L = 28672
ST_M = ST_L + 1280
LDS_BYTES = 163840
PART_BYTES = 71680
XCH_BYTES = 71680 + 2048
XST = 71680
SCR = 20480
XCH_OFF = 256 * PART_BYTES
FLAG_OFF = XCH_OFF + 256 * XCH_BYTES
STAMP_OFF = 48 << 20

sX, sWQ, sVr, sWO, sWS, sKr = "s[4:7]", "s[8:11]", "s[12:15]", "s[16:19]", "s[20:23]", "s[60:63]"
sW, sB, sHQ, sHALF, sHKV = "s24", "s25", "s26", "s27", "s28"
sKO, sCNT, sRETRY = "s29", "s30", "s31"
sT0, sT1, sT2, sT3 = "s32", "s33", "s34", "s35"
sW1K, sXO, sWQO, sKDST, sKV0, sC, sWOO, sPART = "s36", "s37", "s38", "s39", "s40", "s41", "s42", "s43"
sQH, sKH, sDQ, sHP = "s44", "s45", "s46", "s47"
sLIM, sVO, sVDST = "s48", "s49", "s3"
sXS, sXR = "s64", "s65"
sFLG, sLOC = "s66", "s67"
sXT = ["s50", "s51", "s52"]
sPA, sPB, sPC = "s50", "s51", "s52"
WOF = " " + OPT.get("wof", "none").replace("+", " ").replace("none", "")
YF = " sc1" if OPT.get("gsc1") else ""
sWOe, sWOo = "s76", "s77"
sKVB = "s78"
sXTC = "s53"
XTF = " " + OPT.get("xtf", "sc1").replace("+", " ").replace("none", "")
sDBG = "s[68:71]"
sOUT = "s[72:75]"

A = Asm()
_lab = [0]

def stamp(k, mode=1):
    if OPT["stamps"] == mode or (OPT["stamps"] and k in (2, 12)):
        A(f"s_memtime s[{76+2*k}:{77+2*k}]")
    if OPT["stamps"] == 6 and mode == 1 and k in (5, 7, 8, 10):
        j = {5: 3, 7: 5, 8: 7, 10: 9}[k]
        A(f"s_memtime s[{76+2*j}:{77+2*j}]")
        A(f"s_memrealtime s[{78+2*j}:{79+2*j}]")

def vr(b, n):
    return f"v[{b}:{b+n-1}]" if n > 1 else f"v{b}"

def put(f):
    if callable(f):
        f()
    elif isinstance(f, (list, tuple)):
        for x in f:
            put(x)
    else:
        A(f)

def weave(main, fill, per=1):
    fill = list(fill)
    for m in main:
        put(m)
        for _ in range(per):
            if fill:
                put(fill.pop(0))
    for f in fill:
        put(f)

def run(fs):
    for f in fs:
        put(f)

def only_S(lines):
    def f():
        _lab[0] += 1
        A(f"s_cmp_ge_u32 {sW}, 4")
        A(f"s_cbranch_scc1 L_sk{_lab[0]}")
        for x in lines:
            A(x + " ; cond")
        A(f"L_sk{_lab[0]}:")
    return f

vI, vG = 40, 41
vXD, vWD = 42, 43
vW = [44, 45, 46, 47]
vXR = [48, 49]
vQW = [50, 51, 52, 53]
vQL = [54, 55]
vPVa = [56, 57, 58, 59, 60]
vA0 = 19
vKD = 16
vVD = [12, 13, 14, 15]
QACC = 176
QA = [96, 112]
QB = [128, 148]
S_Q, S_NM, S_KF, S_L = 96, 36, 20, 7
S_S = [56, 76]
vKA = [1, 2]; vPW = 3; vMX = 4
S_T = [5, 6, 17, 18]
O_ACC, P_A, P_B = 96, 76, 56
VT = [40, 24]
vVB = [1, 2, 20, 21]; vPR = 3; vOW = [4, 5, 6, 7]
vWOD = 12
E_O = 96
E_ACC = [56, 76]
E_A = 36
vOA = [1, 2, 3]; vOB = [5, 6]; vST4 = 7; vST2 = 8; vSTAT = 10

A.seg("head")
for c in """Kernarg layout (64 bytes, ptrs only, base s[0:1]): 0 x | 8 k_cache | 16 v_cache | 24 wq | 32 wo | 40 out | 48 debug | 56 ws
Fused GQA block, one workgroup (8 waves) per (batch, q-head, key-half):
  1. Q = x Wq (MFMA, LDS-DMA staged), pre-scaled by log2(e)/16
  2. waves 0-3: S^T = K Q^T - m, P = exp2(.) -> LDS ; waves 4-7: O^T += V^T P^T   (32-key tiles, LDS rings)
     m = max over the first key tile; run-time check of the row sums falls back to a true-max pass
  3. the two key-halves of a head exchange half of their rows, combine, project with Wo
  4. the 16 heads of a (batch, row-half) sum their partial outputs
Hand-offs use flags in ws (cleared at start, gated by a registration counter in debug);
same-die placement is detected at run time, any other placement uses release/acquire fences.
Generated by a hand-written Python emitter.""".split("\n"):
    A("; " + c)
A("; @launch grid=(256,1,1) block=(512,1,1) lds=%d" % LDS_BYTES)
A('.amdgcn_target "amdgcn-amd-amdhsa--gfx950"')
A(".text")
A(f".globl {KNAME}")
A(".p2align 8")
A(f".type {KNAME},@function")
A(f"{KNAME}:")
A.seg("entry")
A(f"""
s_cmp_ge_u32 s2, 256
s_cbranch_scc1 L_end
s_load_dwordx16 s[64:79], s[0:1], 0
""")
if OPT["stamps"]:
    A("s_memrealtime s[56:57]")
    stamp(2)
A(f"""
s_and_b32 {sB if OPT.get("mapb") else sHKV}, s2, 7
s_lshr_b32 {sT0}, s2, 3
s_lshr_b32 {sHKV if OPT.get("mapb") else sB}, {sT0}, 2
s_and_b32 {sT1}, {sT0}, 1
s_lshr_b32 {sHALF}, {sT0}, 1
s_and_b32 {sHALF}, {sHALF}, 1
s_lshl_b32 {sHQ}, {sHKV}, 1
s_add_u32 {sHQ}, {sHQ}, {sT1}
v_lshrrev_b32 v1, 6, v0
v_and_b32 v0, 63, v0
v_readfirstlane_b32 {sW}, v1
s_mul_i32 {sXO}, {sB}, 143360
s_lshl_b32 {sWQO}, {sHQ}, 9
v_and_b32 v{vI}, 15, v0
v_lshrrev_b32 v{vG}, 4, v0
s_lshl_b32 {sW1K}, {sW}, 10
s_lshr_b32 {sHP}, {sW}, 2
s_and_b32 {sQH}, {sW}, 1
s_lshl_b32 {sT0}, {sQH}, 2
v_add_u32 v5, {sT0}, v{vG}
v_and_b32 v6, 7, v0
v_xor_b32 v5, v5, v6
v_lshlrev_b32 v5, 4, v5
v_lshrrev_b32 v6, 3, v0
v_mul_u32_u24 v6, 896, v6
v_add_u32 v{vXD}, v5, v6
s_mul_i32 {sT0}, {sHALF}, 10
s_add_u32 {sT0}, {sT0}, {sW}
s_sub_u32 {sT1}, {sT0}, 20
s_cmp_ge_u32 {sT0}, 20
s_cselect_b32 {sT1}, {sT1}, {sT0}
s_mul_i32 {sT1}, {sT1}, 7168
s_add_u32 {sXT[0]}, {sT1}, {sXO}
s_add_u32 {sT0}, {sT0}, 8
s_sub_u32 {sT1}, {sT0}, 20
s_cmp_ge_u32 {sT0}, 20
s_cselect_b32 {sT1}, {sT1}, {sT0}
s_mul_i32 {sT1}, {sT1}, 7168
s_add_u32 {sXT[1]}, {sT1}, {sXO}
s_add_u32 {sT0}, {sT0}, 8
s_sub_u32 {sT1}, {sT0}, 20
s_cmp_ge_u32 {sT0}, 20
s_cselect_b32 {sT1}, {sT1}, {sT0}
s_mul_i32 {sT1}, {sT1}, 7168
s_add_u32 {sXT[2]}, {sT1}, {sXO}
v_lshrrev_b32 v5, 5, v0
s_lshl_b32 {sT0}, {sW}, 1
v_add_u32 v5, {sT0}, v5
v_and_b32 v6, 3, v5
s_lshl_b32 {sT0}, {sHP}, 2
v_or_b32 v6, {sT0}, v6
v_bfe_u32 v7, v0, 1, 4
v_xor_b32 v6, v6, v7
v_lshlrev_b32 v6, 5, v6
v_and_b32 v7, 1, v0
v_lshlrev_b32 v7, 4, v7
v_lshlrev_b32 v5, 13, v5
v_add3_u32 v{vWD}, v5, v6, v7
s_mov_b32 s6, 1146880
s_mov_b32 s7, 0x20000
s_mov_b32 s10, 3670016
s_mov_b32 s11, 0x20000
s_waitcnt lgkmcnt(0)
s_mov_b32 s4, s64
s_mov_b32 s5, s65
s_mov_b32 s8, s70
s_mov_b32 s9, s71
""")
stamp(3, 3)

vm = VM(63)

def dma(lines, tag, v=None):
    def f():
        for x in lines:
            A(x)
        (v or vm).issue(tag)
    return f

def stage_dma(s):
    sb = STG[s % 3]
    out = []
    for t in range(4):
        out.append(dma([f"s_add_u32 m0, {sW1K}, {sb + t*8192}",
                        f"s_add_u32 {sT0}, {sWQO}, {(s*64 + 16*t) * 8192}",
                        f"buffer_load_dwordx4 v{vWD}, {sWQ}, {sT0} offen lds"], f"st{s}"))
    for t in range(3):
        l = [f"s_add_u32 m0, {sW1K}, {sb + XOFF + t*8192}",
             f"s_add_u32 {sT0}, {sXT[t]}, {s*128}",
             f"buffer_load_dwordx4 v{vXD}, {sX}, {sT0} offen lds"]
        out.append(dma(l, f"st{s}") if t < 2 else only_S(l))
    return [out[6]] + out[:6]

def k_lines(i):
    slot = i & 3
    out = []
    for sg in range(4):
        l = [f"s_add_u32 m0, {sKDST}, {slot*16384 + sg*2048 - sg*128}", "s_nop 0",
             f"buffer_load_dwordx4 v{vKD}, {sKr}, {sKO} offen offset:{sg*128}{NT} lds"]
        if sg == 3:
            l.append(f"s_add_u32 {sKO}, {sKO}, {0 if OPT.get('samekv') else 16384}")
            if OPT["rot"]:
                l += [f"s_and_b32 {sKO}, {sKO}, 0x7ffff", f"s_or_b32 {sKO}, {sKO}, {sKVB}"]
        out.append(l)
    return out

def v_lines(t):
    pos = (t + 3) & 3
    out = []
    for jj in range(4):
        l = [f"s_add_u32 m0, {sVDST}, {pos*16384 + jj*1024}", "s_nop 0",
             f"buffer_load_dwordx4 v{vVD[jj]}, {sVr}, {sVO} offen{NTV} lds"]
        if jj == 3:
            l.append(f"s_add_u32 {sVO}, {sVO}, {0 if OPT.get('samekv') else 16384}")
            if OPT["rot"]:
                l += [f"s_and_b32 {sVO}, {sVO}, 0x7ffff", f"s_or_b32 {sVO}, {sVO}, {sKVB}"]
        out.append(l)
    return out

run(stage_dma(0))
def code_warm(lab, wave, lds_dst, va):
    A(f"""
    s_cmp_lg_u32 {sW}, {wave}
    s_cbranch_scc1 L_cw{lab}
    s_getpc_b64 s[54:55] ; cond
    L_pc{lab}:
    s_lshr_b32 {sT0}, s2, 3 ; cond
    s_mul_i32 {sT0}, {sT0}, 1280 ; cond
    s_min_u32 {sT0}, {sT0}, L_codeend - {KNAME} - 2048 ; cond
    s_sub_u32 {sT0}, {sT0}, L_pc{lab} - {KNAME} ; cond
    s_ashr_i32 {sT1}, {sT0}, 31 ; cond
    s_add_u32 s54, s54, {sT0} ; cond
    s_addc_u32 s55, s55, {sT1} ; cond
    v_lshlrev_b32 v{va}, 4, v0 ; cond
    s_mov_b32 m0, {lds_dst} ; cond
    s_nop 0 ; cond
    global_load_lds_dwordx4 v{va}, s[54:55] ; cond
    global_load_lds_dwordx4 v{va}, s[54:55] offset:1024 ; cond
    L_cw{lab}:
    """)
if OPT["cw"]:
    code_warm("a", 5, 159744, 8)
stamp(4, 3)
A.seg("pro")
A(f"""
s_mov_b32 s16, s72
s_mov_b32 s17, s73
s_mov_b32 s18, 3670016
s_mov_b32 s19, 0x20000
s_mov_b32 s20, s78
s_mov_b32 s21, s79
s_mov_b32 s22, 0x10000000
s_mov_b32 s23, 0x20000
s_mov_b32 s12, s68
s_mov_b32 s13, s69
s_mov_b32 s14, 0x4000000
s_mov_b32 s15, 0x20000
s_mov_b32 s60, s66
s_mov_b32 s61, s67
s_mov_b32 s62, 0x4000000
s_mov_b32 s63, 0x20000
s_mov_b32 {sRETRY}, 0
s_mov_b32 {sC}, {f32(math.log2(math.e) / 16.0)}
s_mov_b32 {sLIM}, {f32(2.0 ** 30)}
s_mul_i32 {sWOO}, {sHQ}, 229376
s_lshl_b32 {sT0}, {sB}, 3
s_add_u32 {sT0}, {sT0}, {sHKV}
s_lshl_b32 {sT0}, {sT0}, 1
s_add_u32 {sT0}, {sT0}, {sHALF}
s_lshl_b32 {sKV0}, {sT0}, 19
s_mov_b32 {sKVB}, {sKV0}
s_mul_i32 {sT0}, {sT0}, {OPT["rot"]}
s_and_b32 {sT0}, {sT0}, 31
s_lshl_b32 {sT0}, {sT0}, 14
s_add_u32 {sKV0}, {sKV0}, {sT0}
s_mov_b32 s68, s76
s_mov_b32 s69, s77
s_mov_b32 s70, 256
s_mov_b32 s71, 0x20000
s_mov_b32 s72, s74
s_mov_b32 s73, s75
s_mov_b32 s74, 1146880
s_mov_b32 s75, 0x20000
s_lshl_b32 {sT0}, {sB}, 1
s_add_u32 {sT0}, {sT0}, {sHALF}
s_lshl_b32 {sFLG}, {sT0}, 7
s_add_u32 {sFLG}, {sFLG}, {FLAG_OFF}
s_lshl_b32 {sT0}, {sT0}, 4
s_add_u32 {sT0}, {sT0}, {sHQ}
s_mul_i32 {sPART}, {sT0}, {PART_BYTES}
s_mul_i32 {sXS}, {sT0}, {XCH_BYTES}
s_add_u32 {sXS}, {sXS}, {XCH_OFF}
s_xor_b32 {sT0}, {sT0}, 16
s_mul_i32 {sXR}, {sT0}, {XCH_BYTES}
s_add_u32 {sXR}, {sXR}, {XCH_OFF}
s_and_b32 {sDQ}, {sW}, 3
s_lshr_b32 {sKH}, {sDQ}, 1
v_lshrrev_b32 v30, 3, v{vI}
v_lshlrev_b32 v30, 10, v30
v_and_b32 v31, 7, v{vI}
v_lshlrev_b32 v31, 7, v31
v_lshrrev_b32 v32, 1, v{vI}
v_xor_b32 v33, v{vG}, v32
v_lshlrev_b32 v33, 4, v33
v_add3_u32 v{vA0}, v30, v31, v33
s_mul_i32 {sT0}, {sHP}, 10240
s_add_u32 {sT0}, {sT0}, {XOFF}
v_add_u32 v{vXR[0]}, {sT0}, v{vA0}
v_xor_b32 v{vXR[1]}, 64, v{vXR[0]}
v_lshrrev_b32 v24, 2, v{vI}
v_and_b32 v25, 1, v{vG}
v_lshlrev_b32 v25, 2, v25
v_or_b32 v25, v25, v24
v_lshl_add_u32 v26, v{vG}, 3, v24
v_lshlrev_b32 v26, 9, v26
v_and_b32 v27, 3, v0
v_lshl_add_u32 v26, v27, 3, v26
s_lshl_b32 {sT0}, {sDQ}, 2
v_xor_b32 v25, {sT0}, v25
""")
for m in range(4):
    A(f"v_xor_b32 v28, {m}, v25")
    A(f"v_lshl_add_u32 v{vW[m]}, v28, 5, v26")
stamp(5, 3)
A("s_barrier")
run(stage_dma(1))
stamp(6, 3)
A(f"""
v_lshrrev_b32 v24, 1, v{vG}
v_xor_b32 v24, v24, v32
v_and_b32 v25, 1, v{vG}
v_lshlrev_b32 v25, 3, v25
v_add3_u32 v25, v30, v31, v25
s_mul_i32 {sT0}, {sHP}, 40960
s_lshl_b32 {sT1}, {sDQ}, 11
s_add_u32 {sT0}, {sT0}, {sT1}
v_add_u32 v25, {sT0}, v25
""")
for m in range(4):
    A(f"v_xor_b32 v28, {2*m}, v24")
    A(f"v_lshl_add_u32 v{vQW[m]}, v28, 4, v25")
A(f"""
s_mov_b32 {sVO}, {sKV0}
s_mov_b32 {sKO}, {sKV0}
s_lshl_b32 {sT0}, {sQH}, 2
v_add_u32 v24, {sT0}, v{vG}
v_and_b32 v25, 7, v0
v_xor_b32 v24, v24, v25
v_lshlrev_b32 v24, 4, v24
v_lshrrev_b32 v25, 3, v0
s_lshl_b32 {sT0}, {sKH}, 4
s_lshl_b32 {sT1}, {sQH}, 3
s_add_u32 {sT0}, {sT0}, {sT1}
v_add_u32 v25, {sT0}, v25
v_lshl_add_u32 v{vKD}, v25, 9, v24
s_lshl_b32 {sT0}, {sKH}, 13
s_lshl_b32 {sT1}, {sQH}, 10
s_add_u32 {sKDST}, {sT0}, {sT1}
s_add_u32 {sKDST}, {sKDST}, {KRING}
""")
def v_addr():
    A(f"""
    v_bfe_u32 v24, v0, 4, 1
    v_lshlrev_b32 v24, 1, v24
    v_and_b32 v25, 7, v0
    v_xor_b32 v24, v24, v25
    v_lshlrev_b32 v24, 4, v24
    v_lshrrev_b32 v25, 3, v0
    v_lshl_add_u32 v24, v25, 9, v24
    s_lshl_b32 {sT0}, {sDQ}, 7
    v_add_u32 v{vVD[0]}, {sT0}, v24
    v_xor_b32 v24, 64, v{vVD[0]}
    v_add_u32 v{vVD[1]}, 4096, v24
    v_add_u32 v{vVD[2]}, 8192, v{vVD[0]}
    v_add_u32 v{vVD[3]}, 12288, v24
    """)
v_addr()
A(f"""
s_cmp_lg_u32 {sW}, 4
s_cbranch_scc1 L_noclr
v_and_b32 v24, 1, v0 ; cond
v_lshlrev_b32 v24, 6, v24 ; cond
s_lshl_b32 {sT1}, {sHQ}, 2 ; cond
v_add_u32 v24, {sT1}, v24 ; cond
v_mov_b32 v25, 0 ; cond
buffer_store_dword v25, v24, {sWS}, {sFLG} offen sc1 ; cond
L_noclr:
s_cmp_lg_u32 {sW}, {6 if OPT.get("tlb") else 99}
s_cbranch_scc1 L_notlb
v_and_b32 v24, 31, v0 ; cond
s_mov_b32 {sT1}, {XCH_BYTES} ; cond
v_mul_lo_u32 v24, v24, {sT1} ; cond
s_lshl_b32 {sT0}, {sB}, 5 ; cond
s_mul_i32 {sT0}, {sT0}, {sT1} ; cond
s_add_u32 {sT0}, {sT0}, {XCH_OFF} ; cond
s_mov_b32 m0, 161792 ; cond
s_nop 0 ; cond
buffer_load_dword v24, {sWS}, {sT0} offen sc1 lds ; cond
L_notlb:
s_lshl_b32 {sVDST}, {sDQ}, 12
s_add_u32 {sVDST}, {sVDST}, {VRING}
s_mul_i32 {sT0}, {sQH}, 40960
v_add_u32 v{vQL[0]}, {sT0}, v{vA0}
v_xor_b32 v{vQL[1]}, 64, v{vQL[0]}
v_lshrrev_b32 v24, 1, v{vG}
s_lshl_b32 {sT0}, {sKH}, 1
v_add_u32 v24, {sT0}, v24
v_mul_u32_u24 v24, 2560, v24
v_and_b32 v25, 1, v{vG}
v_lshl_add_u32 v24, v25, 3, v24
s_mul_i32 {sT0}, {sQH}, 80
v_add_u32 v25, {sT0}, v{vI}
v_lshl_add_u32 v{vPW}, v25, 4, v24
s_lshl_b32 {sT0}, {sKH}, 2
s_add_u32 {sT0}, {sT0}, {MX_OFF}
v_lshlrev_b32 v25, 3, v25
v_add_u32 v{vMX}, {sT0}, v25
s_lshl_b32 {sT0}, {sKH}, 13
s_add_u32 {sT0}, {sT0}, {KRING}
v_add_u32 v{vKA[0]}, {sT0}, v{vA0}
v_xor_b32 v{vKA[1]}, 64, v{vKA[0]}
v_lshrrev_b32 v30, 2, v{vI}
v_lshl_add_u32 v32, v{vG}, 3, v30
v_lshlrev_b32 v32, 7, v32
v_and_b32 v33, 3, v0
v_lshl_add_u32 v32, v33, 3, v32
v_add_u32 v32, {sVDST}, v32
v_lshrrev_b32 v30, 1, v30
v_and_b32 v33, 1, v{vG}
v_lshl_add_u32 v30, v33, 1, v30
v_lshl_add_u32 v{vPVa[0]}, v30, 5, v32
v_xor_b32 v{vPVa[1]}, 32, v{vPVa[0]}
v_xor_b32 v{vPVa[2]}, 64, v{vPVa[0]}
v_xor_b32 v{vPVa[3]}, 96, v{vPVa[0]}
v_mul_u32_u24 v31, 2560, v{vG}
v_lshl_add_u32 v{vPVa[4]}, v{vI}, 4, v31
""")
for qt in range(5):
    A(f"v_mov_b32 v{S_L+qt}, 0xff800000")

def q_reads(s2):
    out = []
    for qt in range(5):
        out.append(f"ds_read_b128 {vr(QB[s2] + qt*4, 4)}, v{vXR[s2]} offset:{qt*2048}")
    for m in range(4):
        for e in range(2):
            out.append(f"ds_read_b64_tr_b16 {vr(QA[s2] + m*4 + e*2, 2)}, v{vW[m]} offset:{(32*s2 + 4*e) * 512}")
    return out

def q_mfma(s2, first):
    out = []
    for m in range(4):
        for qt in range(5):
            acc = vr(QACC + (m*5 + qt) * 4, 4)
            out.append(f"v_mfma_f32_16x16x32_bf16 {acc}, {vr(QA[s2] + m*4, 4)}, {vr(QB[s2] + qt*4, 4)}, {'0' if first else acc}")
    return out

if OPT.get("pprio"):
    put(only_S(["s_setprio 1"]))
for s in range(7):
    if s in (3, 4):
        stamp(3 if s == 3 else 9, 9)
    A(f"s_waitcnt vmcnt({vm.wait(f'st{s}')})")
    if s in (3, 4):
        stamp(4 if s == 3 else 10, 9)
    if s == 0:
        stamp(7, 3)
    A("s_barrier")
    if s <= 3:
        stamp(8 + s, 3)
    if s in (3, 4):
        stamp(5 if s == 3 else 11, 9)
    if s == 0:
        stamp(3)
    d = []
    if 0 <= s <= 4:
        d = stage_dma(s + 2)
    if s == 6:
        kl = k_lines(0) + k_lines(1) + v_lines(0) + k_lines(2)
        d = [only_S(kl[2*j] + kl[2*j + 1]) for j in range(8)]
    upd = []
    if s < 6:
        dl = STG[(s + 1) % 3] - STG[s % 3]
        upd = [[f"s_mov_b32 {sT1}, {dl & 0xffffffff}", f"v_add_u32 v{vW[0]}, {sT1}, v{vW[0]}"]] + \
              [f"v_add_u32 v{r}, {sT1}, v{r}" for r in vW[1:] + vXR]
    def spread(n, items, start, step):
        out = [[] for _ in range(n)]
        rest = []
        for k, it in enumerate(items):
            p = start + k*step
            if p < n:
                out[p] = it
            else:
                rest.append(it)
        return out, rest
    def merge(a_, b_):
        n = max(len(a_), len(b_))
        a_ = list(a_) + [[]]*(n - len(a_)); b_ = list(b_) + [[]]*(n - len(b_))
        return [[x, y] for x, y in zip(a_, b_)]
    st = OPT["dstep"] if s < 6 else 2
    if s >= 1:
        d1, d = spread(20, d, 1, st)
        weave(q_mfma(1, False), merge(q_reads(0), d1))
    else:
        weave(q_reads(0), [])
    if s == 3:
        stamp(6, 9)
    A("s_waitcnt lgkmcnt(0)")
    if s == 3:
        stamp(7, 9)
    d2, d = spread(20, d, 1, st if s else 3)
    if s == 0:
        weave(q_mfma(0, True), merge(q_reads(1) + upd, d2) + d)
    else:
        weave(q_mfma(0, False), merge([[], []] + q_reads(1) + upd, d2) + d)
    if s == 3:
        stamp(8, 9)
    A("s_waitcnt lgkmcnt(0)")
stamp(4)
A("s_barrier")

A(f"v_mov_b32 v34, {sC}")
def q_out(idxs):
    out = []
    for idx in idxs:
        a = QACC + idx * 4
        out += [f"v_pk_mul_f32 {vr(a, 2)}, v[34:35], {vr(a, 2)} op_sel_hi:[0,1]", f"v_pk_mul_f32 {vr(a+2, 2)}, v[34:35], {vr(a+2, 2)} op_sel_hi:[0,1]"]
    for idx in idxs:
        a = QACC + idx * 4
        out += [f"v_cvt_pk_bf16_f32 v{a}, v{a}, v{a+1}", f"v_cvt_pk_bf16_f32 v{a+1}, v{a+2}, v{a+3}"]
    for idx in idxs:
        m, qt = divmod(idx, 5)
        a = QACC + idx * 4
        out.append(f"ds_write_b64 v{vQW[m]}, {vr(a, 2)} offset:{qt*8192}")
    return out
for j, mf in enumerate(q_mfma(1, False)):
    A(mf)
    if j >= 7 and j % 4 == 3:
        run(q_out(range(j - 7, j - 3)))
run(q_out(range(16, 20)))
A(f"s_cmp_ge_u32 {sW}, 4")
A("s_cbranch_scc1 L_PV")


def wo_addr():
    A(f"""
    v_bfe_u32 v13, v0, 4, 1
    s_lshl_b32 {sT0}, {sQH}, 1
    v_or_b32 v13, {sT0}, v13
    v_lshlrev_b32 v13, 1, v13
    v_and_b32 v14, 7, v0
    v_xor_b32 v13, v13, v14
    v_lshrrev_b32 v14, 3, v0
    s_lshl_b32 {sT0}, {sW}, 3
    v_add_u32 v14, {sT0}, v14
    v_mul_u32_u24 v14, 896, v14
    v_lshl_add_u32 v{vWOD}, v13, 4, v14
    s_lshl_b32 {sT0}, {sHALF}, 7
    s_add_u32 {sWOe}, {sWOO}, {sT0}
    s_sub_u32 {sWOo}, {sWOO}, {sT0}
    """)

def wo_dma(j, v):
    out = []
    for t in range(8):
        out.append(dma([f"s_add_u32 m0, {sW1K}, {WSL[j] + t*4096}",
                        f"s_add_u32 {sT0}, {(sWOO if (j == 6 or not OPT['deph']) else (sWOe if j % 2 == 0 else sWOo))}, {t*28672 + j*128}",
                        f"buffer_load_dwordx4 v{vWOD}, {sWO}, {sT0} offen{WOF} lds"], f"wo{j}", v))
    return out


def gen_role(role):
    S = role == "S"
    R = role
    vm = VM(63)
    lg = VM(15)
    tr = ["entry", "pro"]

    def seg(n):
        A.seg(f"{R}_{n}")
        tr.append(f"{R}_{n}")

    def k_dma(i):
        return [dma(l, f"K{i}", vm) for l in k_lines(i)]

    def v_dma(t):
        return [dma(l, f"V{t}", vm) for l in v_lines(t)]

    def lds(line, tag):
        def f():
            A(line)
            lg.issue(tag)
        return f

    def fst(i, k):
        if i == OPT["fine"]:
            stamp(k, 2)
        if k == 8 and 28 <= i <= 33:
            stamp(i - 24, 7)
        if k == 7 and 31 <= i <= 32:
            stamp(i - 21, 7)
        if k == 8 and 1 <= i <= 3:
            stamp(i + 5, 8)

    def kread(i, s):
        return lds(f"ds_read_b128 {vr(S_KF + (s & 3)*4, 4)}, v{vKA[s & 1]} offset:{(i & 3)*16384 + (s >> 1)*2048}", f"kf{s}")

    def s_mfma(i, s, qt):
        acc = vr(S_S[i & 1] + qt*4, 4)
        c = acc if s else ("0" if i == 0 else vr(S_NM + qt*4, 4))
        return f"v_mfma_f32_16x16x32_bf16 {acc}, {vr(S_KF + (s & 3)*4, 4)}, {vr(S_Q + (qt*8 + s)*4, 4)}, {c}"

    def end_wait(i):
        need = [t for t in (f"K{i+1}", f"V{i}") if vm.has(t) and t != "V1"]
        if need:
            last = max(need, key=lambda t: max(k for k, x in enumerate(vm.q) if x == t))
            A(f"s_waitcnt vmcnt({vm.wait(last)}) lgkmcnt(0)")
        else:
            A("s_waitcnt lgkmcnt(0)")
        lg.clear()

    seg("i0")
    if S:
        for t in ["K0"]*4 + ["K1"]*4 + ["V0"]*4 + ["K2"]*4:
            vm.issue(t)
        if OPT["prio"]:
            A(f"s_setprio {OPT['prio']}")
        A(f"s_waitcnt vmcnt({vm.wait('K0')}) lgkmcnt(0)")
        stamp(9, 8)
        A("s_barrier")
        stamp(5); stamp(3, 8)
        def grp(s):
            return [kread(0, s)] + [lds(f"ds_read_b128 {vr(S_Q + (qt*8 + s)*4, 4)}, v{vQL[s & 1]} offset:{qt*8192 + (s >> 1)*2048}", f"kf{s}")
                                    for qt in range(5)]
        run(grp(0) + grp(1))
        for s in range(8):
            A(f"s_waitcnt lgkmcnt({lg.wait(f'kf{s}')})")
            weave([s_mfma(0, s, qt) for qt in range(5)], grp(s + 2) if s + 2 < 8 else [], per=2)
    else:
        A("L_PV:")
        for j in range(4):
            A(f"v_mov_b32 v{vVB[j]}, v{vPVa[j]}")
            A(f"v_subrev_u32 v{vOW[j]}, 40960, v{vQW[j]}")
        A(f"v_mov_b32 v{vPR}, v{vPVa[4]}")
        A("s_waitcnt lgkmcnt(0)")
        A("s_barrier")
        stamp(5)
        A(f"""
        s_cmp_lg_u32 {sW}, 4
        s_cbranch_scc1 L_noreg
        s_getreg_b32 {sT0}, hwreg(HW_REG_XCC_ID)
        s_and_b32 {sT0}, {sT0}, 15
        s_mul_i32 {sT1}, {sT0}, {sT0}
        s_lshl_b32 {sT1}, {sT1}, 18
        s_lshl_b32 {sT0}, {sT0}, 8
        s_add_u32 {sT0}, {sT0}, {sT1}
        s_add_u32 {sT0}, {sT0}, 1
        v_mov_b32 v23, 0
        v_mov_b32 v22, {sT0}
        s_lshl_b32 {sT1}, {sB}, 5
        s_mov_b64 exec, 1
        buffer_atomic_add v22, v23, {sDBG}, {sT1} offen
        s_mov_b64 exec, -1
        L_noreg:
        """)
    vm_join = list(vm.q)
    stamp(11, 8)
    seg("join")
    A(f"L_{R}_join:")
    if S:
        SS = S_S[0]
        for qt in range(5):
            a = SS + qt*4; t = S_KF + qt*2
            A(f"v_max3_f32 v{t}, v{a}, v{a+1}, v{S_L+qt}")
            A(f"v_max3_f32 v{t}, v{a+2}, v{a+3}, v{t}")
            A(f"v_mov_b32 v{t+1}, v{t}")
        for qt in range(5):
            t = S_KF + qt*2
            A(f"v_permlane32_swap_b32 v{t}, v{t+1}")
        for qt in range(5):
            t = S_KF + qt*2
            A(f"v_max_f32 v{t}, v{t}, v{t+1}")
            A(f"v_mov_b32 v{t+1}, v{t}")
        for qt in range(5):
            t = S_KF + qt*2
            A(f"v_permlane16_swap_b32 v{t}, v{t+1}")
        for qt in range(5):
            t = S_KF + qt*2
            A(f"v_max_f32 v{t}, v{t}, v{t+1}")
            A(f"ds_write_b32 v{vMX}, v{t} offset:{qt*128}")
        A("s_waitcnt lgkmcnt(0)")
        stamp(10, 8)
        A("s_barrier")
        stamp(4, 8)
        A(f"v_and_b32 v5, 0xfffffffb, v{vMX}")
        for qt in range(5):
            A(f"ds_read_b64 {vr(S_KF + qt*2, 2)}, v5 offset:{qt*128}")
        run(v_dma(1) + v_dma(2))
        for qt in range(5):
            t = S_KF + qt*2
            A(f"s_waitcnt lgkmcnt({4 - qt})")
            A(f"v_max_f32 v{t}, v{t}, v{t+1}")
            for r in range(4):
                A(f"v_sub_f32 v{S_NM + qt*4 + r}, 0, v{t}")
            for r in range(4):
                A(f"v_sub_f32 v{SS + qt*4 + r}, v{SS + qt*4 + r}, v{t}")
        end_wait(0)
        A("s_barrier")
        stamp(5, 8)
    else:
        A("s_barrier")
        A("s_barrier")

    def softmax_fill(j):
        SS = S_S[j & 1]; buf = j & 1
        out = []
        for qt in range(5):
            a = SS + qt*4
            t0, t1 = (S_T[0], S_T[1]) if qt % 2 == 0 else (S_T[2], S_T[3])
            ex = [(2, f"v_exp_f32 v{a+r}, v{a+r}") for r in range(4)]
            wr = lds(f"ds_write_b64 v{vPW}, {vr(a, 2)} offset:{P_BUF + buf*10240 + qt*256}", "pw")
            post = [(1, f"v_add_f32 v{t0}, v{a}, v{a+1}"), (1, f"v_add_f32 v{t1}, v{a+2}, v{a+3}"),
                    (1, f"v_cvt_pk_bf16_f32 v{a}, v{a}, v{a+1}"), (1, f"v_cvt_pk_bf16_f32 v{a+1}, v{a+2}, v{a+3}"),
                    (1, f"v_add_f32 v{t0}, v{t0}, v{t1}"), (1, wr),
                    (1, f"v_mov_b32 v{S_L+qt}, v{t0}" if j == 0 else f"v_add_f32 v{S_L+qt}, v{S_L+qt}, v{t0}")]
            out.append((ex, post))
        seq = list(out[0][0])
        for qt in range(5):
            if qt + 1 < 5:
                e = out[qt + 1][0]; p = out[qt][1]
                seq += [e[0], p[0], p[1], e[1], p[2], p[3], e[2], p[4], p[5], e[3], p[6]]
            else:
                seq += out[qt][1]
        return seq

    def s_interval(i):
        fill = softmax_fill(i - 1)
        def fput(n):
            while fill and n >= fill[0][0]:
                c, it = fill.pop(0)
                n -= c
                put(it)
        fst(i, 3)
        if i <= 31:
            for s in range(4):
                put(kread(i, s))
            d = []
            if i == 1:
                d += k_dma(3)
            if i + 3 <= 31:
                d += k_dma(i + 3)
            if i == 29:
                d += [wo_addr] + wo_dma(0, vm)[:4]
            if i == 30:
                d += wo_dma(0, vm)[4:]
            if i == 31:
                d += wo_dma(1, vm)[:4]
            for f in d:
                f()
                fput(OPT["pre"])
            for s in range(8):
                A(f"s_waitcnt lgkmcnt({lg.wait(f'kf{s}')})")
                if s == 0:
                    fst(i, 4)
                    if OPT.get("dprio"):
                        A("s_setprio 2")
                for qt in range(5):
                    A(s_mfma(i, s, qt))
                    if qt == 1 and 1 <= s <= 4:
                        put(kread(i, s + 3))
                        fput(1)
                    elif qt == 4:
                        fput(1)
                    else:
                        fput(2)
            if OPT.get("dprio") or OPT.get("ppost"):
                A("s_setprio 0")
            fst(i, 5)
        fput(1000)
        fst(i, 6)
        if i == 30:
            run(wo_dma(2, vm)[4:])
        if i == 31:
            run(wo_dma(3, vm)[:4])
        if i == 32:
            run(wo_dma(1, vm)[4:] + wo_dma(3, vm)[4:])
        end_wait(i)
        if OPT.get("ppost") and i <= 31:
            A(f"s_setprio {OPT['ppost']}")
        fst(i, 7)
        A("s_barrier")
        fst(i, 8)

    def vt_reads(t):
        pos = (t + 3) & 3
        out = []
        for dt in range(4):
            for e in range(2):
                out.append(f"ds_read_b64_tr_b16 {vr(VT[t & 1] + dt*4 + e*2, 2)}, v{vVB[dt]} offset:{pos*16384 + 4*e*128}")
        return out

    def oacc(qt, dt):
        return O_ACC + (qt*4 + dt)*4

    def pv_mfma(t, own, P, first):
        out = []
        for j in range(5):
            qt = j if own else 5 + j
            for dt in range(4):
                acc = vr(oacc(qt, dt), 4)
                out.append(f"v_mfma_f32_16x16x32_bf16 {acc}, {vr(VT[t & 1] + dt*4, 4)}, {vr(P + j*4, 4)}, {'0' if first else acc}")
        return out

    def send(j):
        out = []
        for dp in range(2):
            a = oacc(5 + j, dp*2)
            out.append([f"v_cvt_pk_bf16_f32 v{a+k}, v{a+2*k}, v{a+2*k+1}" for k in range(4)])
            out.append(dma([f"s_add_u32 {sT0}, {sT2}, {(j*2 + dp)*1024}",
                            f"buffer_store_dwordx4 {vr(a, 4)}, v17, {sWS}, {sT0} offen"], "snd", vm))
        return out

    def pv_interval(i):
        if i == 1:
            run(vt_reads(0))
            if OPT.get("dprio") or OPT.get("ppost") == 2:
                A("s_setprio 1")
            A(f"v_lshlrev_b32 v17, 4, v0")
            A(f"s_lshl_b32 {sXTC}, {sDQ}, 10")
            A(f"s_add_u32 {sXTC}, {sXTC}, {sXS}")
            if OPT["vpv"]:
                A(f"s_add_u32 {sVO}, {sKV0}, {3*16384}")
                if OPT["rot"]:
                    A(f"s_and_b32 {sVO}, {sVO}, 0x7ffff")
                    A(f"s_or_b32 {sVO}, {sVO}, {sKVB}")
                run(v_dma(3))
            A("s_waitcnt lgkmcnt(0)")
            A("s_barrier")
            return
        t = i - 2; buf = t & 1
        fst(i, 3)
        pa = [f"ds_read_b128 {vr(P_A + j*4, 4)}, v{vPR} offset:{P_BUF + buf*10240 + (5 + j)*256}" for j in range(5)]
        pb = [f"ds_read_b128 {vr(P_B + j*4, 4)}, v{vPR} offset:{P_BUF + buf*10240 + j*256}" for j in range(5)]
        if t >= 1:
            e = []
            fl = [pa[0], e, pa[1], e, pa[2], e, pa[3], e, pa[4], e, pb[0], e, pb[1], e, pb[2], e, e, e, e, pb[3]]
            if t == 1:
                run(vt_reads(1))
            weave(pv_mfma(t - 1, 1, P_B, t == 1), fl)
        else:
            run(pa + pb[:4])
        fst(i, 4)
        if OPT["vpv"]:
            if t == 1:
                A("s_waitcnt lgkmcnt(9)")
            if i + 2 <= 31:
                run(v_dma(i + 2))
            if vm.has(f"V{t+1}"):
                A(f"s_waitcnt vmcnt({vm.wait(f'V{t+1}')})")
            if i == 28 and OPT["cw"] >= 2:
                code_warm("b", 5, SCR, 16)
            if i == 28:
                A(f"""
                s_cmp_lg_u32 {sW}, 4
                s_cbranch_scc1 L_rg1
                v_mov_b32 v23, 0 ; cond
                s_lshl_b32 {sT1}, {sB}, 5 ; cond
                buffer_load_dword v22, v23, {sDBG}, {sT1} offen sc1 ; cond
                L_rg1:
                """)
            if i == 32:
                A(f"""
                s_cmp_lg_u32 {sW}, 4
                s_cbranch_scc1 L_regdone
                s_getreg_b32 {sT2}, hwreg(HW_REG_XCC_ID)
                s_and_b32 {sT2}, {sT2}, 15
                s_mul_i32 {sT1}, {sT2}, {sT2}
                s_lshl_b32 {sT1}, {sT1}, 23
                s_lshl_b32 {sT2}, {sT2}, 13
                s_add_u32 {sT2}, {sT2}, {sT1}
                s_add_u32 {sT2}, {sT2}, 32
                s_lshl_b32 {sT1}, {sB}, 5
                s_mov_b32 {sCNT}, 0x40000
                v_mov_b32 v23, 0
                L_regpoll:
                v_readfirstlane_b32 {sT0}, v22
                s_sub_u32 {sCNT}, {sCNT}, 1
                s_cmp_eq_u32 {sCNT}, 0
                s_cbranch_scc1 L_regok
                s_and_b32 {sT3}, {sT0}, 0xff
                s_cmp_ge_u32 {sT3}, 32
                s_cbranch_scc1 L_regok
                s_sleep 8
                buffer_load_dword v22, v23, {sDBG}, {sT1} offen sc1
                s_waitcnt vmcnt(0)
                s_branch L_regpoll
                L_regok:
                s_cmp_eq_u32 {sT0}, {sT2}
                s_cselect_b32 {sLOC}, {0 if OPT.get("noloc") else 1}, 0
                v_mov_b32 v23, {ST_M + 1024}
                v_mov_b32 v22, {sLOC}
                s_waitcnt lgkmcnt(0)
                ds_write_b32 v23, v22
                s_waitcnt lgkmcnt(0)
                L_regdone:
                """)
            TS = OPT["ts"]
            if OPT["xtouch"] and TS and i == OPT["xt0"]:
                per = 64 * TS
                tot = XCH_BYTES if OPT.get("tall") else 40960
                n = -(-tot // (4 * per))
                A(f"v_mul_u32_u24 v16, {TS}, v0")
                A(f"s_add_u32 m0, {sW1K}, {SCR}")
                A(f"s_mul_i32 {sXTC}, {sDQ}, {per}")
                A(f"s_add_u32 {sXTC}, {sXTC}, {sXS}")
                for k in range(n):
                    put(dma([f"buffer_load_dword v16, {sWS}, {sXTC} offen{XTF} lds", f"s_add_u32 {sXTC}, {sXTC}, {4*per}"], "tch", vm))
                A(f"s_add_u32 {sXTC}, {sXS}, {XST}")
                put(dma([f"buffer_load_dword v16, {sWS}, {sXTC} offen{XTF} lds"], "tch", vm))
            sched = {24: 2, 25: 2, 26: 2, 27: 2, 28: 3} if OPT.get("thin") == 2 else {26: 2, 27: 2, 28: 2, 29: 2, 30: 3} if OPT.get("thin") == 3 else {28: 2, 29: 2, 30: 3, 31: 4} if OPT.get("thin") else {OPT["xt0"]: 3, OPT["xt0"] + 1: 4, OPT["xt0"] + 2: 4}
            nx = sched.get(i, 0) if (OPT["xtouch"] and not TS) else 0
            if nx:
                A(f"s_add_u32 m0, {sW1K}, {SCR}")
            for k in range(nx):
                if i == max(sched) and k == nx - 1:
                    A(f"s_and_b32 {sXTC}, {sW1K}, 1024")
                    A(f"s_add_u32 {sXTC}, {sXTC}, {sXS}")
                    A(f"s_add_u32 {sXTC}, {sXTC}, {XST}")
                else:
                    A("s_nop 0")
                put(dma([f"buffer_load_dwordx4 v17, {sWS}, {sXTC} offen{XTF} lds", f"s_add_u32 {sXTC}, {sXTC}, 4096"], "tch", vm))
        A("s_waitcnt lgkmcnt(4)")
        fst(i, 5)
        d = []
        if i == OPT["wwarm"]:
            d = [[f"s_mul_i32 {sT1}, s2, 14336", f"s_lshl_b32 {sT2}, {sDQ}, 10", f"s_add_u32 {sT1}, {sT1}, {sT2}",
                  f"s_add_u32 m0, {sW1K}, {SCR}"]]
            for k in range(4):
                d.append(dma([f"buffer_load_dwordx4 v17, {sWO}, {sT1} offen lds", f"s_add_u32 {sT1}, {sT1}, 4096"], f"X{i}", vm))
        if i == OPT["touch"]:
            d = [[f"v_lshrrev_b32 v16, 2, v0", f"v_mul_u32_u24 v16, 896, v16", f"v_and_b32 v18, 3, v0",
                  f"v_lshl_add_u32 v16, v18, 7, v16",
                  f"s_lshl_b32 {sT1}, {sHALF}, 2", f"s_add_u32 {sT1}, {sT1}, {sDQ}", f"s_mul_i32 {sT1}, {sT1}, {32*896}",
                  f"s_add_u32 {sT1}, {sT1}, {sWOO}", f"s_add_u32 {sT2}, {sT1}, {16*896}"],
                 dma([f"s_add_u32 m0, {sW1K}, {SCR - 384}", "s_nop 0", f"buffer_load_dword v16, {sWO}, {sT1} offen offset:384 lds"], "tch", vm),
                 dma([f"buffer_load_dword v16, {sWO}, {sT2} offen offset:384 lds"], "tch", vm)]
        vt = vt_reads(t + 1) if (t + 1 <= 31 and t != 0) else []
        if i == 33:
            d = [[f"s_mul_i32 {sT3}, {sDQ}, 10240", f"s_add_u32 {sT2}, {sXS}, {sT3}"], [], [], []]
            for j in range(OPT["nsend"]):
                d += send(j)
        weave(pv_mfma(t, 0, P_A, t == 0), [[], []] + vt[:2] + [pb[4]] + vt[2:] + d)
        fst(i, 6)
        A("s_waitcnt lgkmcnt(0)")
        fst(i, 7)
        A("s_barrier")
        fst(i, 8)

    interval = s_interval if S else pv_interval
    seg("g0")
    for i in range(1, 4):
        interval(i)
    stamp(6)
    A(f"s_mov_b32 {sCNT}, {OPT['nloop']}")
    vm.q = [t for t in vm.q if t[0] != "X"]
    q_before = list(vm.q)
    seg("loop")
    A(f"L_{R}_loop:")
    for i in range(4, 8):
        interval(i)
    A(f"s_sub_u32 {sCNT}, {sCNT}, 1")
    A(f"s_cmp_lg_u32 {sCNT}, 0")
    A(f"s_cbranch_scc1 L_{R}_loop")
    sh = lambda q, d: [t[0] + str(int(t[1:]) + d) for t in q]
    while vm.q and vm.q[0][0] == 'X':
        vm.q.pop(0)
    assert sh(q_before, 4) == vm.q, (q_before, vm.q)
    vm.q = sh(vm.q, 4*(OPT['nloop'] - 1))
    tr.append(f"{R}_loop")
    seg("gl")
    for i in range(4 + 4*OPT['nloop'], 33):
        if i == 28:
            stamp(7); stamp(3, 7)
        interval(i)
    if S:
        if OPT["prio"]:
            A("s_setprio 0")
        T = S_KF + 4
        for qt in range(5):
            A(f"v_mov_b32 v{T + qt}, v{S_L + qt}")
        for qt in range(5):
            A(f"v_permlane32_swap_b32 v{T + qt}, v{S_L + qt}")
        for qt in range(5):
            A(f"v_add_f32 v{S_L + qt}, v{S_L + qt}, v{T + qt}")
            A(f"v_mov_b32 v{T + qt}, v{S_L + qt}")
        for qt in range(5):
            A(f"v_permlane16_swap_b32 v{T + qt}, v{S_L + qt}")
        A(f"v_add_u32 v5, {(ST_L - MX_OFF) & 0xffffffff}, v{vMX}")
        A(f"v_subrev_u32 v6, {MX_OFF}, v{vMX}")
        A(f"v_lshrrev_b32 v6, 3, v6")
        A(f"v_lshlrev_b32 v6, 2, v6")
        A(f"v_add_u32 v6, {ST_M}, v6")
        for qt in range(5):
            A(f"v_add_f32 v{S_L + qt}, v{S_L + qt}, v{T + qt}")
            A(f"ds_write_b32 v5, v{S_L + qt} offset:{qt*128}")
            A(f"ds_write_b32 v6, v{S_NM + qt*4} offset:{qt*64}")
        A(f"""
        v_and_b32 v17, 15, v0
        v_lshlrev_b32 v17, 4, v17
        s_add_u32 {sT2}, {sXS}, {XST}
        s_lshl_b32 {sT1}, {sKH}, 3
        s_add_u32 {sT1}, {sT1}, {sT2}
        s_cmp_eq_u32 {sQH}, 0
        s_cbranch_scc1 L_nost
        """)
        for qt in range(5):
            A(f"v_mov_b32 v{S_NM + qt*4 + 1}, v{S_L + qt} ; cond")
        for qt in range(5):
            A(f"buffer_store_dwordx2 {vr(S_NM + qt*4, 2)}, v17, {sWS}, {sT1} offen offset:{qt*256} ; cond")
        A("L_nost:")
        run(wo_dma(2, vm)[:4])
        A("s_waitcnt lgkmcnt(0)")
        A("s_barrier")
    else:
        pv_interval(33)

    seg("post")
    stamp(8); stamp(9, 7)
    A(f"""
    v_lshlrev_b32 v17, 3, v0
    v_min_u32 v18, 31, v0
    v_lshlrev_b32 v18, 3, v18
    v_add_u32 v17, {ST_L}, v17
    v_add_u32 v18, {ST_L}, v18
    ds_read_b64 v[76:77], v17
    ds_read_b64 v[82:83], v17 offset:512
    ds_read_b64 v[78:79], v18 offset:1024
    v_mov_b32 v17, {ST_M + 1024}
    ds_read_b32 v80, v17
    """)
    chk = f"""
    s_waitcnt lgkmcnt(0)
    v_readfirstlane_b32 {sLOC}, v80
    v_add_f32 v76, v76, v77
    v_add_f32 v82, v82, v83
    v_add_f32 v78, v78, v79
    v_cmp_ge_f32 s[50:51], {sLIM}, v76
    v_cmp_ge_f32 s[52:53], {sLIM}, v82
    v_cmp_ge_f32 s[54:55], {sLIM}, v78
    s_and_b64 s[50:51], s[50:51], s[52:53]
    s_and_b64 s[50:51], s[50:51], s[54:55]
    s_cmp_eq_u64 s[50:51], -1
    s_cbranch_scc1 L_{R}_ok
    s_cmp_eq_u32 {sRETRY}, 0
    s_cbranch_scc1 L_{R}_fallback
    """
    if not S:
        mf = pv_mfma(31, 1, P_B, False)
        rest = []
        for j in range(OPT["nsend"], 5):
            rest += send(j)
        A("v_lshlrev_b32 v84, 4, v0")
        rest = [(lambda f=f: put(f)) for f in rest]
        _sv = A.cur
        k0 = len(A.cur)
        weave(mf[:8], rest)
        for ins in A.cur[k0:]:
            if "buffer_store_dwordx4" in ins.text:
                ins.__init__(ins.text.replace(", v17,", ", v84,"))
    A(chk)
    seg("ok")
    A(f"L_{R}_ok:")

    def signal_wait(flag_word, poll_addr_code, nlanes, lab, agent=0):
        A(f"""
        s_cmp_lg_u32 {sW}, {agent}
        s_cbranch_scc1 L_{lab}_done
        v_mov_b32 v28, 1
        s_lshl_b32 {sT1}, {sHQ}, 2
        s_add_u32 {sT1}, {sT1}, {flag_word}
        v_mov_b32 v27, {sT1}
        {poll_addr_code}
        s_mov_b32 {sCNT}, 0x40000
        s_mov_b64 exec, 1
        s_cmp_eq_u32 {sLOC}, 1
        s_cbranch_scc1 L_{lab}_loc
        buffer_wbl2 sc1
        s_waitcnt vmcnt(0)
        buffer_store_dword v28, v27, {sWS}, {sFLG} offen sc1
        s_branch L_{lab}_sent
        L_{lab}_loc:
        buffer_store_dword v28, v27, {sWS}, {sFLG} offen{YF if lab == "fx" else ""}
        L_{lab}_sent:
        s_mov_b64 exec, {hex((1 << nlanes) - 1)}
        L_{lab}_poll:
        buffer_load_dword v30, v29, {sWS}, {sT2} offen sc1
        s_waitcnt vmcnt(0)
        v_cmp_ne_u32 vcc, 1, v30
        s_sub_u32 {sCNT}, {sCNT}, 1
        s_cmp_eq_u32 {sCNT}, 0
        s_cbranch_scc1 L_{lab}_got
        s_cmp_eq_u64 vcc, 0
        s_cbranch_scc1 L_{lab}_got
        s_sleep {OPT["slp"]}
        s_branch L_{lab}_poll
        L_{lab}_got:
        s_mov_b64 exec, -1
        s_cmp_eq_u32 {sLOC}, 1
        s_cbranch_scc1 L_{lab}_done
        buffer_inv sc1
        s_waitcnt vmcnt(0)
        L_{lab}_done:
        """)

    def oa_addr():
        A(f"""
        v_and_b32 v16, 15, v0
        v_lshrrev_b32 v17, 4, v0
        v_lshrrev_b32 v18, 2, v16
        v_lshl_add_u32 v20, v17, 3, v18
        v_lshlrev_b32 v20, 7, v20
        v_and_b32 v21, 3, v0
        v_lshl_add_u32 v20, v21, 3, v20
        v_lshrrev_b32 v18, 1, v18
        v_and_b32 v21, 1, v17
        v_lshl_add_u32 v18, v21, 1, v18
        v_xor_b32 v18, {sDQ}, v18
        v_lshl_add_u32 v{vOA[0]}, v18, 5, v20
        v_add_u32 v{vOA[1]}, 0x10000, v{vOA[0]}
        v_add_u32 v{vOA[2]}, 0x20000, v{vOA[0]}
        s_lshl_b32 {sT1}, {sDQ}, 9
        s_cmp_eq_u32 {sLOC}, 1
        s_cselect_b32 {sPA}, {sPART if OPT.get("gsc1") else sXR}, {sPART}
        s_add_u32 {sPA}, {sPA}, {sT1}
        s_lshl_b32 {sT1}, {sHALF}, 11
        s_add_u32 {sPB}, {sPA}, {sT1}
        s_sub_u32 {sPC}, {sPA}, {sT1}
        v_lshrrev_b32 v18, 1, v17
        v_lshlrev_b32 v18, 8, v18
        v_lshl_add_u32 v18, v16, 4, v18
        v_mul_u32_u24 v22, 14336, v21
        v_xor_b32 v13, 64, v{vA0}
        v_add_u32 v14, v22, v18
        v_lshl_add_u32 v15, v21, 3, v18
        """)
    vOBx = [vA0, 13]; vS4, vS2 = 14, 15
    SA = 128
    def sa_reads(j):
        out = []
        for ks in range(8):
            for e in range(2):
                off = WSL[j] + (32*ks + 4*e) * 128
                out.append(f"ds_read_b64_tr_b16 {vr(SA + j*32 + ks*4 + e*2, 2)}, v{vOA[off >> 16]} offset:{off & 0xffff}")
        return out

    if S:
        A(f"s_lshl_b32 {sT0}, {sW}, 6")
        A(f"v_add_u32 v23, {sT0}, v0")
        oa_addr()
    else:
        A(f"""
        v_lshlrev_b32 v9, 4, v0
        v_and_b32 v16, 15, v0
        v_lshlrev_b32 v8, 4, v16
        v_lshlrev_b32 v18, 3, v16
        v_lshlrev_b32 v16, 2, v16
        v_add_u32 v10, {ST_L}, v18
        v_add_u32 v11, {ST_M}, v16
        """)
        run(mf[8:])
        for qt in range(5):
            A(f"ds_read_b64 {vr(76 + qt*4, 2)}, v10 offset:{qt*128}")
            A(f"ds_read_b32 v{78 + qt*4}, v11 offset:{qt*64}")
    stamp(3, 4)
    A("s_waitcnt vmcnt(0) lgkmcnt(0)")
    vm.clear()
    A("s_barrier")
    stamp(4, 4)
    if S:
        run(sa_reads(0) + sa_reads(1) + sa_reads(3))
        A("s_waitcnt lgkmcnt(0)")
    else:
        oa_addr()
        A(f"s_lshl_b32 {sT0}, {sW}, 6")
        A(f"v_add_u32 v12, {sT0}, v0")
        signal_wait(64, f"v_mov_b32 v29, v27\n s_xor_b32 {sT2}, {sFLG}, 128", 1, "px", agent=4)
    A("s_barrier")
    stamp(5, 4); stamp(3, 5)
    if not S:
        RB = oacc(5, 0)
        A(f"""
        s_add_u32 {sT0}, {sXR}, {XST}
        s_add_u32 {sT2}, {sXR}, {sT3}
        """)
        for qt in range(5):
            A(f"buffer_load_dwordx4 {vr(56 + qt*4, 4)}, v8, {sWS}, {sT0} offen offset:{qt*256} sc1")
            vm.issue("ps")
        for n in range(10):
            A(f"s_add_u32 {sT0}, {sT2}, {n*1024}")
            A(f"buffer_load_dwordx4 {vr(RB + n*4, 4)}, v9, {sWS}, {sT0} offen sc1")
            vm.issue(f"x{n}")
        A("s_barrier")
        stamp(4, 5)
        A(f"s_waitcnt vmcnt({vm.wait('ps')}) lgkmcnt(0)")
        stamp(5, 5)
        if OPT["stamps"] == 5:
            A("s_waitcnt vmcnt(0)")
            stamp(6, 5)
        ops = []
        for qt in range(5):
            l0, l1, nm = 76 + qt*4, 77 + qt*4, 78 + qt*4
            pn, pl = 56 + qt*4, 57 + qt*4
            ops.append([f"v_add_f32 v{pl}, v{pl}, v{pl+2}", f"v_add_f32 v{l0}, v{l0}, v{l1}",
                        f"v_sub_f32 v{l1}, v{nm}, v{pn}", f"v_sub_f32 v{nm}, v{pn}, v{nm}",
                        f"v_exp_f32 v{l1}, v{l1}", f"v_exp_f32 v{nm}, v{nm}",
                        f"v_fma_f32 v{l1}, v{l1}, v{pl}, v{l0}", f"v_fma_f32 v{nm}, v{nm}, v{l0}, v{pl}",
                        f"v_rcp_f32 v{l0}, v{l1}", f"v_rcp_f32 v{nm}, v{nm}"])
        for k in range(10):
            for qt in range(5):
                A(ops[qt][k])
        for qt in range(5):
            w1, w2 = 76 + qt*4, 78 + qt*4
            a0 = oacc(qt, 0); r0 = RB + qt*8; T = 24 + (qt & 1)*16
            for k in range(8):
                A(f"v_pk_mul_f32 {vr(a0+2*k, 2)}, {vr(w1, 2)}, {vr(a0+2*k, 2)} op_sel_hi:[0,1]")
            A(f"s_waitcnt vmcnt({vm.wait(f'x{qt*2 + 1}')})")
            for k in range(8):
                A(f"v_lshlrev_b32 v{T+2*k}, 16, v{r0+k}")
                A(f"v_and_b32 v{T+2*k+1}, 0xffff0000, v{r0+k}")
            for k in range(8):
                A(f"v_pk_fma_f32 {vr(a0+2*k, 2)}, {vr(w2, 2)}, {vr(T+2*k, 2)}, {vr(a0+2*k, 2)} op_sel_hi:[0,1,1]")
            for k in range(8):
                A(f"v_cvt_pk_bf16_f32 v{T+k}, v{a0+2*k}, v{a0+2*k+1}")
            for dt in range(4):
                A(f"ds_write_b64 v{vOW[dt]}, {vr(T+2*dt, 2)} offset:{qt*8192}")
    else:
        run(sa_reads(2))
        A("s_waitcnt lgkmcnt(0)")
        A("s_barrier")
        run(wo_dma(4, vm) + wo_dma(5, vm))
    late = []
    if S:
        late = wo_dma(6, vm)
        if OPT["xtouch"] and not OPT.get("gsc1"):
            A(f"v_lshlrev_b32 v17, 4, v0")
            A(f"s_add_u32 {sT2}, {sXR}, {sW1K}")
            for k in range(8):
                late.append(dma([f"s_add_u32 {sT1}, {sT2}, {40960 + k*4096}",
                                 f"buffer_load_dwordx4 v[8:11], v17, {sWS}, {sT1} offen{XTF}"], "tch", vm))
    stamp(7, 5)
    def y_out(acc, slot):
        out = []
        co = slot * 2048
        sPA = globals()["sPA"] if (slot == 6 or not OPT["deph"]) else (sPB if slot % 2 == 0 else sPC)
        for pr in range(2):
            a = acc + pr*8; b = a + 4
            out.append([f"v_cvt_pk_bf16_f32 v{a}, v{a}, v{a+1}", f"v_cvt_pk_bf16_f32 v{a+1}, v{a+2}, v{a+3}"])
            out.append([f"v_cvt_pk_bf16_f32 v{a+2}, v{b}, v{b+1}", f"v_cvt_pk_bf16_f32 v{a+3}, v{b+2}, v{b+3}"])
            out.append(f"s_add_u32 {sT1}, {sPA}, {co + pr*2*14336}")
            out.append([f"v_permlane16_swap_b32 v{a}, v{a+2}", f"v_permlane16_swap_b32 v{a+1}, v{a+3}"])
            out.append(f"buffer_store_dwordx4 {vr(a, 4)}, v{vS4}, {sWS}, {sT1} offen{YF}")
        a = acc + 16
        out.append([f"v_cvt_pk_bf16_f32 v{a}, v{a}, v{a+1}", f"v_cvt_pk_bf16_f32 v{a+1}, v{a+2}, v{a+3}"])
        out.append([f"s_add_u32 {sT1}, {sPA}, {co + 4*14336}", f"buffer_store_dwordx2 {vr(a, 2)}, v{vS2}, {sWS}, {sT1} offen{YF}"])
        return out

    lg.clear()
    if S:
        A(f"s_waitcnt vmcnt({vm.wait('wo4')})")
        stamp(8, 5)
        A("s_barrier")
        stamp(9); stamp(6, 4); stamp(9, 5)
        SB, NB, SACC = 24, 6, 48
        seq = [(ps, ks, qt) for ps in range(2) for ks in range(8) for qt in range(5)]
        def bread(n):
            ps, ks, qt = seq[n]
            return lds(f"ds_read_b128 {vr(SB + (n % NB)*4, 4)}, v{vOBx[ks & 1]} offset:{qt*8192 + (ks >> 1)*2048}", f"b{n}")
        for n in range(NB - 1):
            put(bread(n))
        fill = []
        for f in late:
            fill += [f] + [[]] * (OPT["lstep"] - 1)
        for n, (ps, ks, qt) in enumerate(seq):
            if n == 42:
                fill += y_out(SACC, 0) + y_out(SACC + 20, 1)
            if n == OPT["z4"]:
                A(f"s_waitcnt vmcnt({vm.wait('wo6')})")
                A("s_barrier")
            A(f"s_waitcnt lgkmcnt({lg.wait(f'b{n}')})")
            for tl in range(2):
                j = ps*2 + tl
                acc = vr(SACC + j*20 + qt*4, 4)
                A(f"v_mfma_f32_16x16x32_bf16 {acc}, {vr(SA + j*32 + ks*4, 4)}, {vr(SB + (n % NB)*4, 4)}, {'0' if ks == 0 else acc}")
                if tl == 0 and n + NB - 1 < len(seq):
                    put(bread(n + NB - 1))
                elif fill:
                    put(fill.pop(0))
        run(fill)
        run(y_out(SACC + 40, 2) + y_out(SACC + 60, 3))
        A(f"v_mov_b32 v12, v23")
    else:
        A("s_waitcnt lgkmcnt(0)")
        stamp(8, 5)
        A("s_barrier")
        stamp(9); stamp(6, 4); stamp(9, 5)
        steps = [(r, ks) for r in range(3) for ks in range(8)]
        def a_read(n):
            r, ks = steps[n]
            out = []
            if r == 0:
                out += [lds(f"ds_read_b128 {vr(E_O + (qt*8 + ks)*4, 4)}, v{vOBx[ks & 1]} offset:{qt*8192 + (ks >> 1)*2048}", f"a{n}") for qt in range(5)]
            for e in range(2):
                off = WSL[4 + r] + (32*ks + 4*e) * 128
                out.append(lds(f"ds_read_b64_tr_b16 {vr(E_A + (n & 3)*4 + e*2, 2)}, v{vOA[off >> 16]} offset:{off & 0xffff}", f"a{n}"))
            return out
        run(a_read(0) + a_read(1))
        fill = []
        for n, (r, ks) in enumerate(steps):
            if ks == 1 and r >= 1:
                fill = y_out(E_ACC[(r - 1) & 1], 4 + r - 1)
            if n == 6:
                A("s_barrier")
                stamp(10, 5)
            A(f"s_waitcnt lgkmcnt({lg.wait(f'a{n}')})")
            mfs = []
            for qt in range(5):
                acc = vr(E_ACC[r & 1] + qt*4, 4)
                mfs.append(f"v_mfma_f32_16x16x32_bf16 {acc}, {vr(E_A + (n & 3)*4, 4)}, {vr(E_O + (qt*8 + ks)*4, 4)}, {'0' if ks == 0 else acc}")
            rd = a_read(n + 2) if n + 2 < len(steps) else []
            if len(rd) > 2:
                weave(mfs, rd, per=2)
            else:
                weave(mfs, rd + [fill.pop(0) if fill else [] for _ in range(3)])
        run(fill)
        run(y_out(E_ACC[0], 6))
    stamp(10); stamp(7, 4); stamp(11, 5)
    A(f"""
    s_mul_i32 {sT0}, {sHQ}, 280
    v_add_u32 v1, {sT0}, v12
    v_lshrrev_b32 v2, 5, v1
    v_mul_u32_u24 v3, 2341, v2
    v_lshrrev_b32 v3, 16, v3
    v_mul_u32_u24 v4, 28, v3
    v_sub_u32 v4, v2, v4
    v_and_b32 v5, 15, v1
    v_lshl_add_u32 v5, v3, 4, v5
    v_bfe_u32 v6, v1, 4, 1
    v_lshlrev_b32 v6, 4, v6
    v_lshl_add_u32 v6, v4, 5, v6
    v_mul_u32_u24 v7, 896, v5
    v_add_u32 v6, v6, v7
    v_lshlrev_b32 v1, 4, v1
    v_mov_b32 v13, 0x7fffff00
    v_cmp_gt_u32 vcc, 280, v12
    v_cndmask_b32 v1, v13, v1, vcc
    v_cndmask_b32 v6, v13, v6, vcc
    s_waitcnt vmcnt(0)
    s_barrier
    """)
    stamp(8, 4)
    if S:
        signal_wait(0, f"v_lshlrev_b32 v29, 2, v0\n s_mov_b32 {sT2}, {sFLG}", 16, "fx")
        A("s_branch L_red")
    tr.append("red")
    A.trace(tr)
    return vm, vm_join


def gen_fallback(role, vm_join):
    S = role == "S"; R = role
    vm = VM(63)
    tr2 = [f"{R}_gl", f"{R}_post"]
    A.seg(f"{R}_fb"); tr2.append(f"{R}_fb")
    A(f"L_{R}_fallback:")
    A(f"""
    s_mov_b32 {sRETRY}, 1
    s_waitcnt vmcnt(0) lgkmcnt(0)
    s_barrier
    s_mov_b32 {sKO}, {sKV0}
    s_mov_b32 {sCNT}, 32
    """)
    if S:
        for qt in range(5):
            A(f"v_mov_b32 v{S_L+qt}, 0xff800000")
        v_addr()
    def s_tile():
        for hh in range(2):
            for s in range(4*hh, 4*hh + 4):
                A(f"ds_read_b128 {vr(S_KF + (s & 3)*4, 4)}, v{vKA[s & 1]} offset:{(s >> 1)*2048}")
            A("s_waitcnt lgkmcnt(0)")
            for s in range(4*hh, 4*hh + 4):
                for qt in range(5):
                    acc = vr(S_S[0] + qt*4, 4)
                    A(f"v_mfma_f32_16x16x32_bf16 {acc}, {vr(S_KF + (s & 3)*4, 4)}, {vr(S_Q + (qt*8 + s)*4, 4)}, {acc if s else '0'}")
    A.seg(f"{R}_fbl"); tr2 += [f"{R}_fbl", f"{R}_fbl"]
    A(f"L_{R}_fbl:")
    if S:
        run(k_lines(0))
        A("s_waitcnt vmcnt(0)")
        A("s_barrier")
        s_tile()
        for qt in range(5):
            a = S_S[0] + qt*4
            A(f"v_max3_f32 v{S_L+qt}, v{a}, v{a+1}, v{S_L+qt}")
            A(f"v_max3_f32 v{S_L+qt}, v{a+2}, v{a+3}, v{S_L+qt}")
        A("s_barrier")
    else:
        A("s_barrier")
        A("s_barrier")
    A(f"s_sub_u32 {sCNT}, {sCNT}, 1")
    A(f"s_cmp_lg_u32 {sCNT}, 0")
    A(f"s_cbranch_scc1 L_{R}_fbl")
    A.seg(f"{R}_fbe"); tr2 += [f"{R}_fbe", f"{R}_join", f"{R}_g0"]
    if S:
        A(f"s_mov_b32 {sKO}, {sKV0}")
        A(f"s_mov_b32 {sVO}, {sKV0}")
        run(k_lines(0) + k_lines(1) + v_lines(0) + k_lines(2))
        assert vm_join == ["K1"]*4 + ["V0"]*4 + ["K2"]*4, vm_join
        if OPT["prio"]:
            A(f"s_setprio {OPT['prio']}")
        A("s_waitcnt vmcnt(12)")
        A("s_barrier")
        s_tile()
    else:
        A("s_barrier")
    A(f"s_branch L_{R}_join")
    A.trace(tr2)


vmS, joinS = gen_role("S")
gen_fallback("S", joinS)
gen_fallback("PV", None) if False else None
vmP, joinP = gen_role("PV")

D0, AC = 96, 40
A.seg("red")
A("L_red:")
A("s_barrier")
stamp(11); stamp(9, 4)
A(f"""
s_cmp_ge_u32 {sW}, 5
s_cbranch_scc1 L_fin
s_lshl_b32 {sT2}, {sB}, 1
s_add_u32 {sT2}, {sT2}, {sHALF}
s_xor_b32 {sT3}, {sT2}, 1
s_mul_i32 {sT2}, {sT2}, {16*PART_BYTES}
s_mul_i32 {sT3}, {sT3}, {16*XCH_BYTES}
s_add_u32 {sT3}, {sT3}, {XCH_OFF}
s_mov_b32 {sT0}, {PART_BYTES}
s_cmp_eq_u32 {sLOC}, {2 if OPT.get("gsc1") else 1}
s_cselect_b32 {sT2}, {sT3}, {sT2}
s_cselect_b32 {sT0}, {XCH_BYTES}, {sT0}
s_mul_i32 {sT1}, {sHALF}, {80*896}
s_add_u32 {sT1}, {sT1}, {sXO}
""")
for p in range(16):
    A(f"buffer_load_dwordx4 {vr(D0 + p*4, 4)}, v1, {sWS}, {sT2} offen sc1")
    A(f"s_add_u32 {sT2}, {sT2}, {sT0}")
def unp(p, T):
    out = []
    for r in range(4):
        d = D0 + p*4 + r
        out += [f"v_lshlrev_b32 v{T + 2*r}, 16, v{d}", f"v_and_b32 v{T + 2*r + 1}, 0xffff0000, v{d}"]
    return out
TT = [24, 32]
AC2 = 48
for p in range(16):
    A(f"s_waitcnt vmcnt({15 - p})")
    if p in (0, 15):
        stamp({0: 10, 15: 11}[p], 4)
    run(unp(p, AC if p == 0 else AC2 if p == 1 else TT[p & 1]))
    if p >= 3:
        acc = AC if (p - 1) % 2 == 0 else AC2
        for r in range(4):
            A(f"v_pk_add_f32 {vr(acc + 2*r, 2)}, {vr(acc + 2*r, 2)}, {vr(TT[(p - 1) & 1] + 2*r, 2)}")
for r in range(4):
    A(f"v_pk_add_f32 {vr(AC2 + 2*r, 2)}, {vr(AC2 + 2*r, 2)}, {vr(TT[1] + 2*r, 2)}")
for r in range(4):
    A(f"v_pk_add_f32 {vr(AC + 2*r, 2)}, {vr(AC + 2*r, 2)}, {vr(AC2 + 2*r, 2)}")
for r in range(4):
    A(f"v_cvt_pk_bf16_f32 v{20 + r}, v{AC + 2*r}, v{AC + 2*r + 1}")
A(f"buffer_store_dwordx4 v[20:23], v6, {sOUT}, {sT1} offen")
A("L_fin:")
if OPT["stamps"]:
    A("s_waitcnt vmcnt(0)")
    stamp(12)
    A("s_memrealtime s[58:59]")
    A("s_waitcnt lgkmcnt(0)")
    A("v_mov_b32 v20, s56")
    A("v_mov_b32 v21, s58")
    for k in range(2, 13):
        A(f"v_mov_b32 v{20+k}, s{76+2*k}")
    A("v_mov_b32 v33, 0")
    A("v_mov_b32 v34, 0")
    A("v_mov_b32 v35, 0")
    A(f"s_lshl_b32 {sT0}, s2, 9")
    A(f"s_lshl_b32 {sT1}, {sW}, 6")
    A(f"s_add_u32 {sT0}, {sT0}, {sT1}")
    A(f"s_add_u32 {sT0}, {sT0}, {STAMP_OFF}")
    A("v_mov_b32 v40, 0")
    for j in range(4):
        A(f"buffer_store_dwordx4 v[{20+4*j}:{23+4*j}], v40, {sWS}, {sT0} offen offset:{16*j}")
if OPT["stamps"] and OPT.get("dbg") is not None:
    A(f"s_cmp_lg_u32 s2, {OPT['dbg']}")
    A("s_cbranch_scc1 L_end")
    A(f"s_cmp_lg_u32 {sW}, 0")
    A("s_cbranch_scc1 L_end")
    A("v_sub_u32 v21, v21, v20")
    for k in range(12, 2, -1):
        A(f"v_sub_u32 v{20+k}, v{20+k}, v{19+k}")
    for j, r in enumerate([21] + list(range(23, 33))):
        w = j + 1 if j < 7 else j + 2
        A(f"buffer_store_dword v{r}, v40, {sDBG}, 0 offen offset:{4*w}")
A("L_end:")
A("s_endpgm")
gen_fallback("PV", joinP)

A.seg("desc")
A("L_codeend:")
A('.section .rodata,"a"')
A(".p2align 6")
A(f".amdhsa_kernel {KNAME}")
A(".amdhsa_next_free_vgpr 256")
A(".amdhsa_next_free_sgpr 102")
A(".amdhsa_accum_offset 256")
A(".amdhsa_group_segment_fixed_size 0")
A(".amdhsa_kernarg_size 64")
A(".amdhsa_user_sgpr_count 2")
A(".amdhsa_user_sgpr_kernarg_segment_ptr 1")
A(".amdhsa_system_sgpr_workgroup_id_x 1")
A(".end_amdhsa_kernel")

A.fix_hazards()
sys.stderr.write("nops: %s\n" % A.count_nops())
sys.stdout.write(A.text())
```
